```python
import torch

def _softmax(x, axis=-1):
    return torch.softmax(x, dim=axis)

def _gelu(x):
    return torch.nn.functional.gelu(x, approximate='tanh')

def _silu(x):
    return torch.nn.functional.silu(x)

def _sigmoid(x):
    return torch.sigmoid(x)

def _layernorm(x, axis=-1, eps=1e-05):
    m = x.mean(dim=axis, keepdim=True)
    v = x.var(dim=axis, keepdim=True, unbiased=False)
    return (x - m) / torch.sqrt(v + eps)

def _scatter_add(tgt, idx, src, axis=0):
    return tgt.clone().index_add_(axis, idx, src)

def _segment_sum(src, seg, n):
    out = torch.zeros((n,) + src.shape[1:], dtype=src.dtype)
    return out.index_add_(0, seg, src)

def _pad(x, pw):
    flat = tuple((v for pair in reversed(pw) for v in pair))
    return torch.nn.functional.pad(x, flat)
kernel_name = 'adaLN_cond__ssm_conv_h3__mixer_gmlp__prompt'

def setup_inputs():

    _w = lambda a: (lambda t: t.to(torch.bfloat16) if t.is_floating_point() else t)(torch.as_tensor(a))

    def _A_setup():
        B, S, D = (1, 2048, 1024)
        ks = 4
        return {'q': _w((lambda *s: torch.randn(*s, dtype=torch.bfloat16) * 0.05)(B, S, D)), 'k': _w((lambda *s: torch.randn(*s, dtype=torch.bfloat16) * 0.8)(B, S, D)), 'v': _w((lambda *s: torch.randn(*s, dtype=torch.bfloat16) * 0.8)(B, S, D)), 'shift_k': _w((lambda *s: torch.randn(*s, dtype=torch.bfloat16) * 0.8)(D, ks) * 0.5), 'ssm_k': _w((lambda *s: torch.randn(*s, dtype=torch.bfloat16) * 0.8)(D, S) * (1.0 / S ** 0.5)), 'ssm_D': _w((lambda *s: torch.randn(*s, dtype=torch.bfloat16) * 0.8)(D))}
    _A_in = _A_setup()

    def _B_setup():
        B, S, D, F = (1, 2048, 1024, 3584)
        Fh = F // 2
        return {'x': _w((lambda *s: torch.randn(*s, dtype=torch.bfloat16) * 0.05)(B, S, D)), 'w_in': _w((lambda *s: torch.randn(*s, dtype=torch.bfloat16) * 0.4)(D, 2 * Fh)), 'w_sp': _w(0.01 * (lambda *s: torch.randn(*s, dtype=torch.bfloat16) * 0.4)(S, S)), 'b_sp': _w(1.0 + 0.01 * (lambda *s: torch.randn(*s, dtype=torch.bfloat16) * 0.05)(S)), 'w_out': _w((lambda *s: torch.randn(*s, dtype=torch.bfloat16) * 0.05)(Fh, D))}
    _B_in = _B_setup()
    return {'A_q': _A_in['q'], 'A_k': _A_in['k'], 'A_v': _A_in['v'], 'A_shift_k': _A_in['shift_k'], 'A_ssm_k': _A_in['ssm_k'], 'A_ssm_D': _A_in['ssm_D'], 'B_x': _B_in['x'], 'B_w_in': _B_in['w_in'], 'B_w_sp': _B_in['w_sp'], 'B_b_sp': _B_in['b_sp'], 'B_w_out': _B_in['w_out'], 'c': _w((lambda *s: torch.randn(*s, dtype=torch.bfloat16) * 0.1)(1, 1024) * 8.0), 'w_mod': _w((lambda *s: torch.randn(*s, dtype=torch.bfloat16) * 0.1)(1024, 6 * 1024) * 1024 ** (-0.5) * 8.0)}

def reference(A_q, A_k, A_v, A_shift_k, A_ssm_k, A_ssm_D, B_x, B_w_in, B_w_sp, B_b_sp, B_w_out, c, w_mod):

    def _A_ref(q, k, v, shift_k, ssm_k, ssm_D):
        B, S, D = q.shape
        ks = shift_k.shape[-1]
        k_pad = _pad(k, ((0, 0), (ks - 1, 0), (0, 0)))
        k_shift = torch.zeros_like(k)
        for t in range(ks):
            k_shift = k_shift + k_pad[:, t:t + S, :] * shift_k[:, ks - 1 - t][None, None, :]
        kv = k_shift * v
        L = 2 * S
        kv_pad = _pad(kv, ((0, 0), (0, S), (0, 0)))
        kf_pad = _pad(ssm_k, ((0, 0), (0, S)))
        kv_f = (lambda x, axes=(-2, -1): torch.fft.rfft2(x.float(), dim=axes))(kv_pad[:, None, :, :], axes=(1, 2))
        kf_f = (lambda x, axes=(-2, -1): torch.fft.rfft2(x.float(), dim=axes))(kf_pad[:, None, :], axes=(1, 2))
        kf_f = (lambda x, *d: x.permute(*d))(kf_f, 1, 2, 0)
        y_f = kv_f * kf_f[None, :, :, :]
        y = (lambda x, s, axes=(-2, -1): torch.fft.irfft2(x, s=s, dim=axes).to(torch.bfloat16))(y_f, (1, L), axes=(1, 2))[:, 0, :S, :]
        y = y + kv * ssm_D[None, None, :]
        return q * y

    def _B_ref(x, w_in, w_sp, b_sp, w_out):
        B, S, D = x.shape
        F = w_in.shape[-1]
        Fh = F // 2
        z = _gelu(torch.einsum('bsd,df->bsf', x, w_in))
        z1 = z[..., :Fh].clone()
        z2 = _layernorm(z[..., Fh:], axis=-1)
        g = torch.einsum('ts,bsf->btf', w_sp, z2) + b_sp[None, :, None]
        return torch.einsum('bsf,fd->bsd', z1 * g, w_out)
    x = A_q
    mod = (_silu(c) @ w_mod).reshape(c.shape[0], 6, 1, -1)
    sa, ca, ga, sb, cb, gb = (mod[:, 0].clone(), mod[:, 1].clone(), mod[:, 2].clone(), mod[:, 3].clone(), mod[:, 4].clone(), mod[:, 5].clone())
    h = _layernorm(x, axis=-1) * (1 + ca) + sa
    x = x + ga * _A_ref(h, A_k, A_v, A_shift_k, A_ssm_k, A_ssm_D)
    h = _layernorm(x, axis=-1) * (1 + cb) + sb
    x = x + gb * _B_ref(h, B_w_in, B_w_sp, B_b_sp, B_w_out)
    return x
```

```python
class Asm:
    def __init__(self, prefix):
        self.l = []
        self.prefix = prefix
        self.nlab = 0
    def __call__(self, s, *args):
        if args: s = s % args
        for x in s.split("\n"):
            x = x.strip()
            if x: self.l.append("    " + x if not x.endswith(":") else x)
    def label(self, name):
        return "L_%s_%s" % (self.prefix, name)
    def newlabel(self, name="x"):
        self.nlab += 1
        return "L_%s_%s%d" % (self.prefix, name, self.nlab)
    def put(self, lab):
        self.l.append(lab + ":")
    def text(self):
        return "\n".join(self.l)
    def srd(self, s, plo, nbytes, off=0):
        if off:
            self("s_add_u32 s%d, s%d, %d", s, plo, off)
            self("s_addc_u32 s%d, s%d, 0", s + 1, plo + 1)
        else:
            self("s_mov_b32 s%d, s%d", s, plo)
            self("s_mov_b32 s%d, s%d", s + 1, plo + 1)
        self("s_mov_b32 s%d, %d", s + 2, nbytes)
        self("s_mov_b32 s%d, 0x20000", s + 3)

def v(a, n=1):
    return "v%d" % a if n == 1 else "v[%d:%d]" % (a, a + n - 1)
def sr(a, n=1):
    return "s%d" % a if n == 1 else "s[%d:%d]" % (a, a + n - 1)
def f2u(x):
    import struct
    return struct.unpack("<I", struct.pack("<f", x))[0]
def fhex(x):
    return "0x%08x" % f2u(x)

KD = """.section .rodata,"a"
.p2align 6
.amdhsa_kernel {name}
  .amdhsa_next_free_vgpr {vgpr}
  .amdhsa_next_free_sgpr {sgpr}
  .amdhsa_accum_offset {acc}
  .amdhsa_group_segment_fixed_size 0
  .amdhsa_kernarg_size 128
  .amdhsa_user_sgpr_count 2
  .amdhsa_user_sgpr_kernarg_segment_ptr 1
  .amdhsa_system_sgpr_workgroup_id_x 1
  .amdhsa_float_denorm_mode_32 3
.end_amdhsa_kernel
"""
def kernel_text(name, body, vgpr, sgpr=102):
    acc = (vgpr + 3) // 4 * 4
    return (".text\n.globl %s\n.p2align 8\n.type %s,@function\n%s:\n" % (name, name, name) + body +
            "\n    s_endpgm\n" + KD.format(name=name, vgpr=vgpr, sgpr=sgpr, acc=acc))
```

```python
from asmlib import *
MB = 1 << 20
WS_UR = 0
WS_MODP = 4 * MB
WS_MOD = 4 * MB + 512 * 1024
WS_STATS = 4 * MB + 768 * 1024
WS_FLAGS = 5 * MB
WS_YB = 8 * MB
WS_X1 = 12 * MB
WS_H2 = 16 * MB
WS_Z2 = 20 * MB
WS_P = 28 * MB
A_Q, A_K, A_V, A_SK, A_SSMK, A_SSMD, A_BX, A_WIN, A_WSP, A_BSP, A_WOUT, A_C, A_WMOD, A_OUT, A_DBG, A_WS = [8 * i for i in range(16)]
LOG2E = 1.4426950408889634
EPS = 1e-5

def unpack(a, lo, hi, src):
    a("v_lshlrev_b32 v%d, 16, v%d", lo, src)
    a("v_and_b32 v%d, 0xffff0000, v%d", hi, src)

def gen_k1():
    a = Asm("k1")
    end = a.label("end")
    a("s_cmp_ge_u32 s2, 256")
    a("s_cbranch_scc1 %s", end)
    a("s_load_dwordx2 s[4:5], s[0:1], %d", A_K)
    a("s_load_dwordx2 s[6:7], s[0:1], %d", A_V)
    a("s_load_dwordx2 s[8:9], s[0:1], %d", A_SK)
    a("s_load_dwordx2 s[10:11], s[0:1], %d", A_C)
    a("s_load_dwordx2 s[12:13], s[0:1], %d", A_WMOD)
    a("s_load_dwordx2 s[14:15], s[0:1], %d", A_WS)
    VT, VCG, VRG, VL = 0, 1, 2, 3
    VOFF = 4
    VSK, VWM, VC = 15, 16, 17
    RK = 18
    RV = 40
    RW = 56
    RM = 64
    UK = 128
    UW = 172
    RES = 188
    ACC = 220
    TMP = 226
    a("v_and_b32 v%d, 31, v0", VCG)
    a("v_lshrrev_b32 v%d, 5, v0", VRG)
    a("v_and_b32 v%d, 63, v0", VL)
    a("v_lshrrev_b32 v%d, 6, v0", TMP)
    a("s_lshr_b32 s16, s2, 3")
    a("s_and_b32 s17, s2, 7")
    a("v_readfirstlane_b32 s18, v%d", TMP)
    a("s_lshl_b32 s19, s16, 17")
    a("s_lshl_b32 s3, s17, 8")
    a("s_add_u32 s19, s19, s3")
    a("s_sub_u32 s19, s19, %d", 3 * 2048)
    a("v_lshlrev_b32 v%d, 14, v%d", VOFF, VRG)
    a("v_lshl_add_u32 v%d, v%d, 3, v%d", VOFF, VCG, VOFF)
    a("v_add_u32 v%d, s19, v%d", VOFF, VOFF)
    for j in range(1, 11): a("v_add_u32 v%d, %d, v%d", VOFF + j, 2048 * j, VOFF)
    a("s_lshl_b32 s3, s17, 10")
    a("v_lshl_add_u32 v%d, v%d, 5, s3", VSK, VCG)
    a("s_lshr_b32 s52, s2, 4"); a("s_and_b32 s53, s2, 15")
    a("s_lshl_b32 s54, s52, 6"); a("s_lshl_b32 s3, s18, 4"); a("s_add_u32 s54, s54, s3")
    a("s_mul_i32 s55, s54, 12288"); a("s_mul_i32 s3, s53, 768"); a("s_add_u32 s55, s55, s3")
    a("v_mul_u32_u24 v%d, 12, v%d", VWM, VL)
    a("v_and_b32 v%d, 15, v%d", VC, VL)
    a("v_add_u32 v%d, s54, v%d", VC, VC)
    a("v_lshlrev_b32 v%d, 1, v%d", VC, VC)
    a("s_waitcnt lgkmcnt(0)")
    a.srd(20, 4, 4 * MB); a.srd(24, 6, 4 * MB); a.srd(28, 8, 8192); a.srd(32, 10, 2048); a.srd(36, 12, 12 * MB)
    a.srd(40, 14, 4 * MB, WS_UR); a.srd(44, 14, 16 * 24576, WS_MODP); a.srd(48, 14, 256 * 1024 + 4096, WS_STATS)
    a("buffer_load_ushort v%d, v%d, s[32:35], 0 offen", TMP + 1, VC)
    a("buffer_load_dwordx4 v[%d:%d], v%d, s[28:31], 0 offen", RW, RW + 3, VSK)
    a("buffer_load_dwordx4 v[%d:%d], v%d, s[28:31], 0 offen offset:16", RW + 4, RW + 7, VSK)
    for j in range(11): a("buffer_load_dwordx2 v[%d:%d], v%d, s[20:23], 0 offen", RK + 2 * j, RK + 2 * j + 1, VOFF + j)
    for j in range(8): a("buffer_load_dwordx2 v[%d:%d], v%d, s[24:27], 0 offen", RV + 2 * j, RV + 2 * j + 1, VOFF + 3 + j)
    for j in range(16):
        a("buffer_load_dwordx3 v[%d:%d], v%d, s[36:39], s55 offen", RM + 4 * j, RM + 4 * j + 2, VWM)
        if j < 15: a("s_add_u32 s55, s55, 12288")
    a("s_and_b32 s3, s2, 14"); a("s_cmp_eq_u32 s3, 14"); a("s_cselect_b32 s3, 0, -1")
    a("v_mov_b32 v%d, s3", TMP + 2)
    a("s_lshl_b32 s3, s2, 10")
    a("v_lshl_add_u32 v%d, v0, 2, s3", TMP + 3)
    a("buffer_store_dword v%d, v%d, s[48:51], 0 offen", TMP + 2, TMP + 3)
    nf = a.label("nf")
    a("s_cmp_ge_u32 s2, 4"); a("s_cbranch_scc1 %s", nf)
    a("v_mov_b32 v%d, 0", TMP + 4)
    a("v_add_u32 v%d, %d, v%d", TMP + 5, 256 * 1024, TMP + 3)
    a("buffer_store_dword v%d, v%d, s[48:51], 0 offen", TMP + 4, TMP + 5)
    a.put(nf)
    a("s_waitcnt vmcnt(%d)", 11 + 8 + 16 + 1)
    X, E = TMP + 1, TMP + 6
    a("v_lshlrev_b32 v%d, 16, v%d", X, X)
    a("v_mul_f32 v%d, %s, v%d", E, fhex(-LOG2E), X)
    a("v_exp_f32 v%d, v%d", E, E)
    for c in range(4):
        for t in range(4):
            dst = UW + (t * 2 + (c >> 1)) * 2 + (c & 1)
            src = RW + 2 * c + (t >> 1)
            if t & 1: a("v_and_b32 v%d, 0xffff0000, v%d", dst, src)
            else: a("v_lshlrev_b32 v%d, 16, v%d", dst, src)
    a("v_add_f32 v%d, 1.0, v%d", E, E)
    a("v_rcp_f32 v%d, v%d", E, E)
    a("s_nop 0")
    a("v_mul_f32 v%d, v%d, v%d", X, X, E)
    a("v_cvt_pk_bf16_f32 v%d, v%d, v%d", X, X, X)
    a("v_lshlrev_b32 v%d, 16, v%d", X, X)
    a("s_nop 0")
    for j in range(16): a("v_readlane_b32 s%d, v%d, %d", 60 + 2 * j, X, j)
    a("s_waitcnt vmcnt(%d)", 8 + 16 + 1)
    for j in range(11):
        for d in range(2): unpack(a, UK + 4 * j + 2 * d, UK + 4 * j + 2 * d + 1, RK + 2 * j + d)
    for j in range(8):
        for p in range(2):
            dst = RES + 4 * j + 2 * p
            a("v_pk_mul_f32 v[%d:%d], v[%d:%d], v[%d:%d]", dst, dst + 1, UK + 4 * j + 2 * p, UK + 4 * j + 2 * p + 1, UW + (3 * 2 + p) * 2, UW + (3 * 2 + p) * 2 + 1)
            for t in (2, 1, 0):
                kk = UK + 4 * (j + 3 - t) + 2 * p
                w = UW + (t * 2 + p) * 2
                a("v_pk_fma_f32 v[%d:%d], v[%d:%d], v[%d:%d], v[%d:%d]", dst, dst + 1, kk, kk + 1, w, w + 1, dst, dst + 1)
    a("s_waitcnt vmcnt(%d)", 16 + 1)
    for j in range(8):
        for p in range(2):
            t0 = UK + 4 * j + 2 * p
            unpack(a, t0, t0 + 1, RV + 2 * j + p)
    for j in range(8):
        for p in range(2):
            dst = RES + 4 * j + 2 * p; t0 = UK + 4 * j + 2 * p
            a("v_pk_mul_f32 v[%d:%d], v[%d:%d], v[%d:%d]", dst, dst + 1, dst, dst + 1, t0, t0 + 1)
    PK = RK
    for c in range(4):
        for m in range(4):
            a("v_cvt_pk_bf16_f32 v%d, v%d, v%d", PK + 4 * c + m, RES + 4 * (7 - 2 * m) + c, RES + 4 * (6 - 2 * m) + c)
    a("v_sub_u32 v%d, 7, v%d", TMP + 2, VRG)
    a("v_and_b32 v%d, 7, v%d", TMP + 3, VCG)
    a("v_xor_b32 v%d, v%d, v%d", TMP + 2, TMP + 2, TMP + 3)
    a("v_lshlrev_b32 v%d, 4, v%d", TMP + 2, TMP + 2)
    a("v_lshl_add_u32 v%d, v%d, 9, v%d", TMP + 2, VCG, TMP + 2)
    for c in range(4): a("ds_write_b128 v%d, v[%d:%d] offset:%d", TMP + 2, PK + 4 * c, PK + 4 * c + 3, 128 * c)
    for j in range(16):
        a("s_waitcnt vmcnt(%d)", 15 - j + 1)
        for d in range(3): unpack(a, UK + 2 * d, UK + 2 * d + 1, RM + 4 * j + d)
        for d in range(3):
            if j == 0:
                a("v_pk_mul_f32 v[%d:%d], v[%d:%d], s[%d:%d] op_sel_hi:[1,0]", ACC + 2 * d, ACC + 2 * d + 1, UK + 2 * d, UK + 2 * d + 1, 60, 61)
            else:
                a("v_pk_fma_f32 v[%d:%d], v[%d:%d], s[%d:%d], v[%d:%d] op_sel_hi:[1,0,1]", ACC + 2 * d, ACC + 2 * d + 1, UK + 2 * d, UK + 2 * d + 1, 60 + 2 * j, 61 + 2 * j, ACC + 2 * d, ACC + 2 * d + 1)
    a("s_mul_i32 s3, s18, 1536"); a("s_add_u32 s3, s3, 16384")
    a("v_mul_u32_u24 v%d, 24, v%d", TMP + 3, VL)
    a("v_add_u32 v%d, s3, v%d", TMP + 3, TMP + 3)
    for d in range(3): a("ds_write_b64 v%d, v[%d:%d] offset:%d", TMP + 3, ACC + 2 * d, ACC + 2 * d + 1, 8 * d)
    a("v_lshrrev_b32 v%d, 3, v0", TMP + 4)
    a("v_and_b32 v%d, 7, v0", TMP + 5)
    a("v_lshrrev_b32 v%d, 2, v%d", TMP + 6, TMP + 4)
    a("v_xor_b32 v%d, v%d, v%d", TMP + 6, TMP + 6, TMP + 5)
    a("v_lshlrev_b32 v%d, 4, v%d", TMP + 6, TMP + 6)
    a("v_lshl_add_u32 v%d, v%d, 7, v%d", TMP + 6, TMP + 4, TMP + 6)
    a("s_lshl_b32 s3, s17, 19"); a("s_lshl_b32 s19, s16, 7"); a("s_sub_u32 s3, s3, s19"); a("s_add_u32 s3, s3, %d", (2047 - 63) * 2)
    a("v_lshlrev_b32 v%d, 4, v%d", TMP + 5, TMP + 5)
    a("v_lshl_add_u32 v%d, v%d, 12, v%d", TMP + 5, TMP + 4, TMP + 5)
    a("v_add_u32 v%d, s3, v%d", TMP + 5, TMP + 5)
    a("v_lshlrev_b32 v%d, 3, v0", TMP + 7)
    a("s_waitcnt lgkmcnt(0)")
    a("s_barrier")
    for m in range(4): a("ds_read_b128 v[%d:%d], v%d offset:%d", RV + 4 * m, RV + 4 * m + 3, TMP + 6, 4096 * m)
    for w in range(4): a("ds_read_b64 v[%d:%d], v%d offset:%d", UK + 2 * w, UK + 2 * w + 1, TMP + 7, 16384 + 1536 * w)
    for m in range(4):
        a("s_mov_b32 s3, %d", m * 32 * 4096)
        a("s_waitcnt lgkmcnt(%d)", 7 - m)
        a("buffer_store_dwordx4 v[%d:%d], v%d, s[40:43], s3 offen", RV + 4 * m, RV + 4 * m + 3, TMP + 5)
    a("s_cmp_ge_u32 s18, 3"); a("s_cbranch_scc1 %s", end)
    a("s_waitcnt lgkmcnt(0)")
    a("v_pk_add_f32 v[%d:%d], v[%d:%d], v[%d:%d]", UK, UK + 1, UK, UK + 1, UK + 2, UK + 3)
    a("v_pk_add_f32 v[%d:%d], v[%d:%d], v[%d:%d]", UK + 4, UK + 5, UK + 4, UK + 5, UK + 6, UK + 7)
    a("v_pk_add_f32 v[%d:%d], v[%d:%d], v[%d:%d]", UK, UK + 1, UK, UK + 1, UK + 4, UK + 5)
    a("s_mul_i32 s3, s52, 24576"); a("s_mul_i32 s19, s53, 1536"); a("s_add_u32 s3, s3, s19")
    a("buffer_store_dwordx2 v[%d:%d], v%d, s[44:47], s3 offen", UK, UK + 1, TMP + 7)
    a.put(end)
    return a.text(), 236, 16384 + 6144 + 2048

CV_UR = 0; CV_C0 = 4608; CV_C1 = 4608 + 4160; CV_W = 12928
def gen_k2():
    a = Asm("k2")
    end = a.label("end"); fin = a.label("fin")
    a("s_cmp_ge_u32 s2, 256")
    a("s_cbranch_scc1 %s", end)
    a("s_load_dwordx2 s[4:5], s[0:1], %d", A_SSMK)
    a("s_load_dwordx2 s[6:7], s[0:1], %d", A_SSMD)
    a("s_load_dwordx2 s[14:15], s[0:1], %d", A_WS)
    a("v_lshrrev_b32 v1, 6, v0")
    a("v_and_b32 v2, 63, v0")
    a("s_and_b32 s16, s2, 7"); a("s_lshr_b32 s17, s2, 3")
    a("v_readfirstlane_b32 s18, v1")
    a("s_lshl_b32 s16, s16, 7"); a("s_lshl_b32 s17, s17, 2"); a("s_add_u32 s16, s16, s17")
    a("s_add_u32 s16, s16, s18")
    a("s_waitcnt lgkmcnt(0)")
    a.srd(20, 4, 4 * MB); a.srd(24, 6, 2048); a.srd(28, 14, 4 * MB, WS_UR); a.srd(32, 14, 4 * MB, WS_YB)
    a.srd(36, 14, 16 * 24576, WS_MODP); a.srd(40, 14, 12288, WS_MOD)
    a("s_cmp_eq_u32 s18, 4"); a("s_cbranch_scc1 %s", fin)
    VL = 2
    RKr = 8
    ZR = 32
    SH = 36
    a("s_mul_i32 s19, s18, %d", CV_W)
    a("s_lshl_b32 s44, s16, 12")
    a("v_lshlrev_b32 v3, 4, v%d", VL)
    a("s_lshl_b32 s45, s16, 1")
    a("v_mov_b32 v4, s45")
    for m in range(4):
        a("s_add_u32 s46, s44, %d", 1024 * m)
        a("buffer_load_dwordx4 v[%d:%d], v3, s[20:23], s46 offen", RKr + 6 * m, RKr + 6 * m + 3)
        a("buffer_load_dword v%d, v3, s[20:23], s46 offen offset:16", RKr + 6 * m + 4)
    for m in range(4):
        a("s_add_u32 m0, s19, %d", CV_UR + 1024 * m)
        a("s_add_u32 s46, s44, %d", 1024 * m)
        a("buffer_load_dwordx4 v3, s[28:31], s46 offen lds")
    a("buffer_load_ushort v5, v4, s[24:27], 0 offen")
    for r in range(4): a("v_mov_b32 v%d, 0", ZR + r)
    a("v_add_u32 v6, s19, v3")
    a("s_mov_b64 s[48:49], exec")
    a("s_mov_b32 exec_hi, 0")
    a("ds_write_b128 v6, v[%d:%d] offset:%d", ZR, ZR + 3, CV_UR + 4096)
    a("s_mov_b64 exec, 3")
    a("ds_write_b128 v6, v[%d:%d] offset:%d", ZR, ZR + 3, CV_C0)
    a("s_mov_b64 exec, 1")
    a("ds_write_b128 v6, v[%d:%d] offset:%d", ZR, ZR + 3, CV_C1)
    a("s_mov_b64 exec, s[48:49]")
    VA, VB, VE = 56, 60, 61
    a("v_and_b32 v52, 15, v%d", VL)
    a("v_lshrrev_b32 v53, 4, v%d", VL)
    a("v_and_b32 v54, 4, v52"); a("v_lshlrev_b32 v54, 1, v54")
    a("v_lshrrev_b32 v55, 3, v52"); a("v_lshl_add_u32 v54, v55, 2, v54")
    a("v_and_b32 v55, 3, v52"); a("v_add3_u32 v54, v54, v55, 1")
    a("v_and_b32 v55, 1, v54"); a("v_mul_u32_u24 v55, 4160, v55")
    a("v_and_b32 v54, 30, v54"); a("v_lshl_add_u32 v55, v54, 1, v55")
    a("v_lshl_add_u32 v55, v53, 4, v55")
    a("s_add_u32 s46, s19, %d", CV_C0)
    a("v_add_u32 v%d, s46, v55", VA)
    for j in range(1, 4): a("v_add_u32 v%d, %d, v%d", VA + j, 1024 * j, VA)
    a("v_lshlrev_b32 v55, 5, v52"); a("v_sub_u32 v55, 480, v55"); a("v_lshl_add_u32 v55, v53, 4, v55")
    a("v_add_u32 v%d, s19, v55", VB)
    a("v_and_b32 v54, 1, v53"); a("v_lshlrev_b32 v54, 4, v54"); a("v_lshrrev_b32 v55, 1, v53"); a("v_lshl_add_u32 v54, v55, 3, v54")
    a("v_lshl_add_u32 v54, v52, 5, v54"); a("v_sub_u32 v54, 504, v54")
    a("v_add_u32 v%d, s19, v54", VE)
    VS = 62
    a("v_and_b32 v54, 1, v53"); a("v_lshl_add_u32 v54, v52, 1, v54"); a("v_lshl_add_u32 v54, v55, 5, v54")
    a("v_lshlrev_b32 v54, 14, v54"); a("s_lshl_b32 s46, s16, 4"); a("v_add_u32 v%d, s46, v54", VS)
    for m in range(4):
        a("s_waitcnt vmcnt(%d)", 5 + 2 * (3 - m))
        r = RKr + 6 * m
        a("ds_write_b128 v6, v[%d:%d] offset:%d", r, r + 3, CV_C0 + 32 + 1024 * m)
        for j in range(4): a("v_alignbit_b32 v%d, v%d, v%d, 16", SH + 4 * m + j, r + j + 1, r + j)
        a("ds_write_b128 v6, v[%d:%d] offset:%d", SH + 4 * m, SH + 4 * m + 3, CV_C1 + 32 + 1024 * m)
        if m == 0:
            a("v_lshlrev_b32 v%d, 16, v%d", ZR + 3, r)
            a("s_mov_b64 exec, 1")
            a("ds_write_b128 v6, v[%d:%d] offset:%d", ZR, ZR + 3, CV_C1 + 16)
            a("s_mov_b64 exec, s[48:49]")
    ACC = 64; FA = [96, 128]; FB = [160, 192]
    def loads(r, st):
        out = []
        def la(q):
            e = 8 * q + r
            base = VA + (e >> 4); o = (e & 15) * 16
            d = FA[st] + 4 * q
            out.append("ds_read2_b32 v[%d:%d], v%d offset0:%d offset1:%d" % (d, d + 1, base, o, o + 1))
            out.append("ds_read2_b32 v[%d:%d], v%d offset0:%d offset1:%d" % (d + 2, d + 3, base, o + 2, o + 3))
        def lb(t):
            c = 8 * t - r
            d = FB[st] + 4 * t
            out.append("ds_read_b128 v[%d:%d], v%d offset:%d" % (d, d + 3, VB, CV_UR + 64 * (56 - c)))
        la(0)
        for t in range(8): lb(t)
        for q in range(1, 8): la(q)
        return out
    a("s_waitcnt vmcnt(0) lgkmcnt(0)")
    a("v_lshlrev_b32 v5, 16, v5")
    for l in loads(0, 0): a(l)
    for r in range(8):
        st = r & 1
        nxt = loads(r + 1, st ^ 1) if r < 7 else []
        if r == 7:
            nxt = ["ds_read_b64 v[%d:%d], v%d offset:%d" % (FA[0] + 2 * t, FA[0] + 2 * t + 1, VE, CV_UR + 512 * (7 - t)) for t in range(8)]
        a("s_waitcnt lgkmcnt(0)")
        pairs = [(q, t) for q in range(8) for t in range(q, 8)]
        li = 0
        for n, (q, t) in enumerate(pairs):
            acc = ACC + 4 * t
            c = "0" if (r == 0 and q == 0) else v(acc, 4)
            a("v_mfma_f32_16x16x32_bf16 %s, %s, %s, %s", v(acc, 4), v(FA[st] + 4 * q, 4), v(FB[st] + 4 * (t - q), 4), c)
            if li < len(nxt):
                a(nxt[li]); li += 1
        assert li == len(nxt)
    a("s_waitcnt lgkmcnt(0)")
    a("s_nop 7")
    U = FA[0]; T = FA[1]; PKo = FB[0]
    for t in range(8):
        acc = ACC + 4 * t
        unpack(a, T + 3, T + 2, U + 2 * t)
        unpack(a, T + 1, T + 0, U + 2 * t + 1)
        for r in range(4): a("v_fmac_f32 v%d, v5, v%d", acc + r, T + r)
        a("v_cvt_pk_bf16_f32 v%d, v%d, v%d", PKo + 2 * t, acc, acc + 1)
        a("v_cvt_pk_bf16_f32 v%d, v%d, v%d", PKo + 2 * t + 1, acc + 2, acc + 3)
    a("s_nop 1")
    for t in range(0, 8, 2):
        R = PKo + 2 * t
        a("v_permlane32_swap_b32 v%d, v%d", R, R + 2)
        a("v_permlane32_swap_b32 v%d, v%d", R + 1, R + 3)
        a("s_mov_b32 s46, %d", t * 32 * 16384)
        a("buffer_store_dwordx4 v[%d:%d], v%d, s[32:35], s46 offen", R, R + 3, VS)
    a("s_branch %s", end)
    a.put(fin)
    a("s_mul_i32 s44, s2, 24")
    a("v_add_u32 v3, s44, v2")
    a("v_lshlrev_b32 v4, 2, v3")
    a("s_mov_b32 exec_lo, 0xffffff")
    a("s_mov_b32 exec_hi, 0")
    a("s_mov_b32 s45, 0")
    for p in range(16):
        a("buffer_load_dword v%d, v4, s[36:39], s45 offen", 8 + p)
        if p < 15: a("s_add_u32 s45, s45, 24576")
    a("v_lshrrev_b32 v5, 10, v3")
    a("v_cmp_eq_u32 s[46:47], 1, v5")
    a("v_cmp_eq_u32 vcc, 4, v5")
    a("s_nop 3")
    a("s_or_b64 vcc, vcc, s[46:47]")
    a("v_mov_b32 v6, 0")
    a("v_lshlrev_b32 v4, 1, v3")
    a("v_cndmask_b32_e64 v6, 0, 1.0, vcc")
    a("s_waitcnt vmcnt(0)")
    for w in (8, 4, 2, 1):
        for p in range(w): a("v_add_f32 v%d, v%d, v%d", 8 + p, 8 + p, 8 + p + w)
    a("v_cvt_pk_bf16_f32 v8, v8, v8")
    a("v_lshlrev_b32 v8, 16, v8")
    a("v_add_f32 v8, v8, v6")
    a("v_cvt_pk_bf16_f32 v8, v8, v8")
    a("buffer_store_short v8, v4, s[40:43], 0 offen")
    a.put(end)
    return a.text(), 224, 4 * CV_W

def wave_reduce8(a, S, T):
    a("s_nop 1")
    for base in (S, S + 4):
        a("v_permlane32_swap_b32 v%d, v%d", base, base + 2)
        a("v_permlane32_swap_b32 v%d, v%d", base + 1, base + 3)
    for base in (S, S + 4):
        a("v_add_f32 v%d, v%d, v%d", base, base, base + 2)
        a("v_add_f32 v%d, v%d, v%d", base + 1, base + 1, base + 3)
    a("s_nop 0")
    for base in (S, S + 4): a("v_permlane16_swap_b32 v%d, v%d", base, base + 1)
    for base in (S, S + 4): a("v_add_f32 v%d, v%d, v%d", base, base, base + 1)
    for dpp in ("quad_perm:[1,0,3,2]", "quad_perm:[2,3,0,1]", "row_ror:8"):
        a("s_nop 0")
        for base in (S, S + 4): a("v_add_f32_dpp v%d, v%d, v%d %s row_mask:0xf bank_mask:0xf", base, base, base, dpp)

def gen_k3():
    a = Asm("k3")
    end = a.label("end")
    a("s_cmp_ge_u32 s2, 256")
    a("s_cbranch_scc1 %s", end)
    a("s_load_dwordx2 s[4:5], s[0:1], %d", A_Q)
    a("s_load_dwordx2 s[14:15], s[0:1], %d", A_WS)
    VL, VHF, VKK, VQ, VM, VY, VD, VRW, VRR = 1, 2, 3, 4, 5, 6, 7, 8, 9
    a("v_and_b32 v%d, 63, v0", VL)
    a("v_lshrrev_b32 v10, 6, v0")
    a("v_bfe_u32 v%d, v0, 2, 1", VHF)
    a("v_readfirstlane_b32 s18, v10")
    a("v_lshrrev_b32 v11, 3, v0"); a("v_and_b32 v12, 3, v0"); a("v_lshl_add_u32 v%d, v11, 2, v12", VKK)
    a("s_lshl_b32 s16, s2, 14")
    a("v_lshlrev_b32 v11, 13, v%d", VHF); a("v_lshl_add_u32 v11, v%d, 4, v11", VKK); a("v_add_u32 v%d, s16, v11", VQ)
    a("v_add_u32 v13, 4096, v%d", VQ)
    a("v_lshlrev_b32 v%d, 4, v%d", VM, VKK)
    a("v_lshrrev_b32 v11, 4, v%d", VL); a("v_and_b32 v12, 7, v%d", VL); a("v_xor_b32 v11, v11, v12")
    a("v_and_b32 v12, 56, v%d", VL); a("v_or_b32 v11, v11, v12"); a("v_lshlrev_b32 v%d, 4, v11", VD)
    a("v_xor_b32 v14, 64, v%d", VD)
    a("v_bfe_u32 v11, v%d, 1, 3", VKK); a("v_lshlrev_b32 v11, 4, v11")
    a("v_lshlrev_b32 v12, 7, v%d", VKK); a("v_lshl_add_u32 v12, v%d, 3, v12", VHF)
    YA = 16
    for i in range(8):
        a("v_xor_b32 v%d, %d, v11", YA + i, 16 * i); a("v_add_u32 v%d, v12, v%d", YA + i, YA + i)
    a("v_lshrrev_b32 v11, 4, v%d", VL); a("v_lshlrev_b32 v11, 2, v11"); a("v_lshl_add_u32 v11, v%d, 7, v11", VHF)
    a("s_lshl_b32 s17, s18, 5"); a("s_add_u32 s17, s17, 16384"); a("v_add_u32 v%d, s17, v11", VRW)
    a("v_lshlrev_b32 v%d, 7, v%d", VRR, VHF)
    a("v_and_b32 v11, 11, v%d", VL); a("v_cmp_eq_u32 s[50:51], 0, v11")
    a("s_waitcnt lgkmcnt(0)")
    a.srd(20, 4, 4 * MB); a.srd(24, 14, 4 * MB, WS_YB); a.srd(28, 14, 12288, WS_MOD); a.srd(32, 14, 4 * MB, WS_X1); a.srd(36, 14, 4 * MB, WS_H2)
    RQ = 24
    RP = 40
    Q = 64
    PR = 96
    RY = 136
    S = 152
    RS = 160
    MU = 192
    H = 200
    YU = 208
    for j in range(4): a("buffer_load_dwordx4 v[%d:%d], v%d, s[20:23], 0 offen offset:%d", RQ + 4 * j, RQ + 4 * j + 3, VQ if j < 2 else 13, 2048 * (j & 1))
    for u in range(4):
        a("s_lshl_b32 s19, s18, 12"); a("s_add_u32 m0, s19, %d", 1024 * u)
        a("s_add_u32 s19, s19, s16"); a("s_add_u32 s19, s19, %d", 1024 * u)
        a("buffer_load_dwordx4 v%d, s[24:27], s19 offen lds", VD if (u & 1) == 0 else 14)
    for p in range(5):
        a("s_mov_b32 s19, %d", 2048 * p)
        a("buffer_load_dwordx4 v[%d:%d], v%d, s[28:31], s19 offen", RP + 4 * p, RP + 4 * p + 3, VM)
    def stats(X):
        for j in range(4):
            x = X + 8 * j
            a("v_pk_add_f32 v[%d:%d], v[%d:%d], v[%d:%d]", H, H + 1, x, x + 1, x + 2, x + 3)
            a("v_pk_mul_f32 v[%d:%d], v[%d:%d], v[%d:%d]", H + 2, H + 3, x, x + 1, x, x + 1)
            a("v_pk_add_f32 v[%d:%d], v[%d:%d], v[%d:%d]", H + 4, H + 5, x + 4, x + 5, x + 6, x + 7)
            for e in (2, 4, 6): a("v_pk_fma_f32 v[%d:%d], v[%d:%d], v[%d:%d], v[%d:%d]", H + 2, H + 3, x + e, x + e + 1, x + e, x + e + 1, H + 2, H + 3)
            a("v_pk_add_f32 v[%d:%d], v[%d:%d], v[%d:%d]", H, H + 1, H, H + 1, H + 4, H + 5)
            a("v_add_f32 v%d, v%d, v%d", S + 4 + j, H + 2, H + 3)
            a("v_add_f32 v%d, v%d, v%d", S + j, H, H + 1)
        wave_reduce8(a, S, H)
    def cross(off):
        a("s_mov_b64 s[48:49], exec"); a("s_mov_b64 exec, s[50:51]")
        a("ds_write_b32 v%d, v%d offset:%d", VRW, S, off)
        a("ds_write_b32 v%d, v%d offset:%d", VRW, S + 4, off + 16)
        a("s_mov_b64 exec, s[48:49]")
    def cross2(off):
        for w in range(4):
            a("ds_read_b128 v[%d:%d], v%d offset:%d", RS + 8 * w, RS + 8 * w + 3, VRR, 16384 + off + 32 * w)
            a("ds_read_b128 v[%d:%d], v%d offset:%d", RS + 8 * w + 4, RS + 8 * w + 7, VRR, 16384 + off + 32 * w + 16)
    def cross3():
        for (d, s) in ((0, 8), (16, 24), (0, 16)):
            for e in range(0, 8, 2): a("v_pk_add_f32 v[%d:%d], v[%d:%d], v[%d:%d]", RS + d + e, RS + d + e + 1, RS + d + e, RS + d + e + 1, RS + s + e, RS + s + e + 1)
        for j in range(4):
            a("v_mul_f32 v%d, %s, v%d", RS + j, fhex(1.0 / 1024), RS + j)
        for j in range(4):
            a("v_mul_f32 v%d, v%d, v%d", RS + 8 + j, RS + j, RS + j)
        a("s_mov_b32 s19, %s", fhex(1.0 / 1024))
        for j in range(4):
            a("v_fma_f32 v%d, v%d, s19, -v%d", RS + 4 + j, RS + 4 + j, RS + 8 + j)
        for j in range(4):
            a("v_max_f32 v%d, 0, v%d", RS + 4 + j, RS + 4 + j)
        for j in range(4):
            a("v_add_f32 v%d, %s, v%d", RS + 4 + j, fhex(EPS), RS + 4 + j)
        for j in range(4):
            a("v_rsq_f32 v%d, v%d", MU + 2 * j, RS + 4 + j)
        a("s_nop 0")
        for j in range(4):
            a("v_mul_f32_e64 v%d, -v%d, v%d", MU + 2 * j + 1, RS + j, MU + 2 * j)
    a("s_waitcnt vmcnt(9)")
    for j in range(4):
        for d in range(4): unpack(a, Q + 8 * j + 2 * d, Q + 8 * j + 2 * d + 1, RQ + 4 * j + d)
    stats(Q)
    cross(0)
    a("s_waitcnt vmcnt(0) lgkmcnt(0)")
    a("s_barrier")
    cross2(0)
    for i in range(8): a("ds_read_b64 v[%d:%d], v%d", RY + 2 * i, RY + 2 * i + 1, YA + i)
    for p in range(5):
        for d in range(4): unpack(a, PR + 8 * p + 2 * d, PR + 8 * p + 2 * d + 1, RP + 4 * p + d)
    a("s_waitcnt lgkmcnt(8)")
    cross3()
    a("s_waitcnt lgkmcnt(0)")
    for i in range(8):
        unpack(a, YU + i, YU + 8 + i, RY + 2 * i)
        unpack(a, YU + 16 + i, YU + 24 + i, RY + 2 * i + 1)
    SA, CA, GA, SB, CB = PR, PR + 8, PR + 16, PR + 24, PR + 32
    def pk(r): return "v[%d:%d]" % (r, r + 1)
    for j in range(4):
        for e in range(0, 8, 2):
            q = Q + 8 * j + e; y = YU + 8 * j + e
            a("v_pk_fma_f32 %s, %s, %s, %s op_sel:[0,0,1] op_sel_hi:[1,0,1]", pk(H + e), pk(q), pk(MU + 2 * j), pk(MU + 2 * j))
        for e in range(0, 8, 2): a("v_pk_fma_f32 %s, %s, %s, %s", pk(H + e), pk(H + e), pk(CA + e), pk(SA + e))
        for e in range(0, 8, 2): a("v_pk_mul_f32 %s, %s, %s", pk(H + e), pk(H + e), pk(YU + 8 * j + e))
        for e in range(0, 8, 2): a("v_pk_fma_f32 %s, %s, %s, %s", pk(H + e), pk(H + e), pk(GA + e), pk(Q + 8 * j + e))
        for e in range(0, 8, 2): a("v_cvt_pk_bf16_f32 v%d, v%d, v%d", RQ + 4 * j + e // 2, H + e, H + e + 1)
        a("buffer_store_dwordx4 v[%d:%d], v%d, s[32:35], 0 offen offset:%d", RQ + 4 * j, RQ + 4 * j + 3, VQ if j < 2 else 13, 2048 * (j & 1))
        for d in range(4): unpack(a, Q + 8 * j + 2 * d, Q + 8 * j + 2 * d + 1, RQ + 4 * j + d)
    stats(Q)
    cross(256)
    a("s_waitcnt lgkmcnt(0)")
    a("s_barrier")
    cross2(256)
    a("s_waitcnt lgkmcnt(0)")
    cross3()
    for j in range(4):
        for e in range(0, 8, 2):
            a("v_pk_fma_f32 %s, %s, %s, %s op_sel:[0,0,1] op_sel_hi:[1,0,1]", pk(H + e), pk(Q + 8 * j + e), pk(MU + 2 * j), pk(MU + 2 * j))
        for e in range(0, 8, 2): a("v_pk_fma_f32 %s, %s, %s, %s", pk(H + e), pk(H + e), pk(CB + e), pk(SB + e))
        for e in range(0, 8, 2): a("v_cvt_pk_bf16_f32 v%d, v%d, v%d", RY + 4 * j + e // 2, H + e, H + e + 1)
        a("buffer_store_dwordx4 v[%d:%d], v%d, s[36:39], 0 offen offset:%d", RY + 4 * j, RY + 4 * j + 3, VQ if j < 2 else 13, 2048 * (j & 1))
    a.put(end)
    return a.text(), 240, 16384 + 512
```

```python
from asmlib import *
from gen_front import *
GC0 = -2.0 * 0.7978845608028654 * LOG2E
GC1 = GC0 * 0.044715
def pk(r): return "v[%d:%d]" % (r, r + 1)

class VmTrack:
    def __init__(self): self.ops = []
    def issue(self, tag): self.ops.append(tag)
    def wait_for(self, pred):
        last = -1
        for n, t in enumerate(self.ops):
            if pred(t): last = n
        if last < 0: return None
        cnt = len(self.ops) - 1 - last
        self.ops = self.ops[last + 1:]
        return cnt

def gelu_block(a, regs, SC, T):
    G = 4
    for g0 in range(0, len(regs), G):
        grp = regs[g0:g0 + G]
        t = [T + 2 * n for n in range(G)]
        for n, r in enumerate(grp): a("v_pk_mul_f32 %s, %s, %s", pk(t[n]), pk(r), pk(r))
        for n, r in enumerate(grp): a("v_pk_fma_f32 %s, %s, s[%d:%d], %s", pk(t[n]), pk(t[n]), SC, SC + 1, pk(T + 8))
        for n, r in enumerate(grp): a("v_pk_mul_f32 %s, %s, %s", pk(t[n]), pk(t[n]), pk(r))
        for n, r in enumerate(grp):
            a("v_exp_f32 v%d, v%d", t[n], t[n]); a("v_exp_f32 v%d, v%d", t[n] + 1, t[n] + 1)
        for n, r in enumerate(grp): a("v_pk_add_f32 %s, %s, %s", pk(t[n]), pk(t[n]), pk(T + 10))
        for n, r in enumerate(grp):
            a("v_rcp_f32 v%d, v%d", t[n], t[n]); a("v_rcp_f32 v%d, v%d", t[n] + 1, t[n] + 1)
        a("s_nop 0")
        for n, r in enumerate(grp): a("v_pk_mul_f32 %s, %s, %s", pk(r), pk(r), pk(t[n]))

LDS_Y = 65536
LDS_ST = 131072
LDS_FIN = 131072 + 2048
KG_LDS = 131072 + 3072
NZ, NG = 16, 32
NST = 2 * NZ + NG
EV = dict(pub=16, poll=19, chk=21, norm=22, drain=24, fpoll=26, fchk=28)

def gen_kg(ev=EV):
    a = Asm("kg")
    end = a.label("end"); prod = a.label("prod")
    a("s_cmp_ge_u32 s2, 256"); a("s_cbranch_scc1 %s", end)
    a("s_and_b32 s16, s2, 7"); a("s_lshr_b32 s17, s2, 3")
    a("s_cmp_ge_u32 s17, 28"); a("s_cbranch_scc1 %s", end)
    a("s_load_dwordx2 s[4:5], s[0:1], %d", A_WIN)
    a("s_load_dwordx2 s[6:7], s[0:1], %d", A_WSP)
    a("s_load_dwordx2 s[8:9], s[0:1], %d", A_BSP)
    a("s_load_dwordx2 s[14:15], s[0:1], %d", A_WS)
    SI, SJ, SW = 12, 13, 18
    a("s_lshr_b32 s%d, s16, 1", SI); a("s_lshl_b32 s%d, s%d, 2", SI, SI); a("s_and_b32 s3, s17, 3"); a("s_add_u32 s%d, s%d, s3", SI, SI)
    a("s_and_b32 s%d, s16, 1", SJ); a("s_mul_i32 s%d, s%d, 7", SJ, SJ); a("s_lshr_b32 s3, s17, 2"); a("s_add_u32 s%d, s%d, s3", SJ, SJ)
    a("v_lshrrev_b32 v2, 6, v0")
    a("v_and_b32 v1, 63, v0")
    a("v_readfirstlane_b32 s%d, v2", SW)
    a("s_waitcnt lgkmcnt(0)")
    R_H2, R_WIN, R_WSP, R_Z2, R_ST, R_P, R_BSP = 20, 24, 28, 32, 36, 40, 44
    a.srd(R_H2, 14, 4 * MB, WS_H2); a.srd(R_WIN, 4, 1024 * 7168); a.srd(R_WSP, 6, 8 * MB)
    a.srd(R_Z2, 14, 14 * 524288, WS_Z2); a.srd(R_ST, 14, 256 * 1024 + 4096, WS_STATS); a.srd(R_P, 14, 16 * 56 * 8192, WS_P)
    a.srd(R_BSP, 8, 4096)
    a("s_cmp_ge_u32 s%d, 4", SW); a("s_cbranch_scc1 %s", prod)

    XA, YZ, YG, VSW, VSF, VZ, VP, VB = 2, 4, 8, 10, 11, 12, 13, 14
    T = 16; AA = 32; AB = 96; F = [160, 192]; ZK = 224; S = 224
    SWM, SWN = 48, 49
    a("s_and_b32 s%d, s%d, 1", SWM, SW); a("s_lshr_b32 s%d, s%d, 1", SWN, SW)
    c, h, g, r_, cq = 20, 21, 21, 22, 23
    a("v_and_b32 v%d, 15, v1", c); a("v_lshrrev_b32 v%d, 4, v1", h)
    a("v_bfe_u32 v%d, v1, 2, 2", r_); a("v_and_b32 v%d, 3, v1", cq)
    a("s_lshl_b32 s3, s%d, 7", SI); a("s_lshl_b32 s19, s%d, 6", SWM); a("s_add_u32 s3, s3, s19"); a("s_lshl_b32 s3, s3, 1")
    a("v_lshl_add_u32 v24, v%d, 1, s3", c)
    BS = [14, 15, 28, 29]
    for mt in range(4): a("buffer_load_ushort v%d, v24, s[%d:%d], 0 offen offset:%d", BS[mt], R_BSP, R_BSP + 3, 32 * mt)
    a("v_lshrrev_b32 v24, 1, v%d", c); a("v_xor_b32 v24, v24, v%d", h); a("v_lshlrev_b32 v24, 4, v24")
    a("v_lshl_add_u32 v24, v%d, 7, v24", c); a("s_lshl_b32 s3, s%d, 13", SWM); a("v_add_u32 v%d, s3, v24", XA)
    a("v_xor_b32 v%d, 64, v%d", XA + 1, XA)
    a("v_lshl_add_u32 v24, v%d, 3, v%d", g, r_); a("v_lshlrev_b32 v24, 8, v24"); a("v_lshl_add_u32 v24, v%d, 3, v24", cq)
    a("v_and_b32 v25, 1, v%d", g); a("v_xor_b32 v25, s%d, v25", SWN); a("v_lshl_add_u32 v24, v25, 7, v24")
    a("v_add_u32 v24, %d, v24", LDS_Y)
    for nt in range(4):
        a("v_xor_b32 v25, %d, v%d", nt, r_); a("v_lshl_add_u32 v%d, v25, 5, v24", YZ + nt)
    a("v_and_b32 v24, 1, v%d", g); a("v_lshl_add_u32 v24, v24, 3, v%d", r_)
    a("v_lshrrev_b32 v25, 1, v%d", cq); a("v_lshl_add_u32 v24, v25, 2, v24"); a("v_lshl_add_u32 v24, v25, 5, v24")
    a("v_lshrrev_b32 v25, 1, v%d", g); a("v_lshl_add_u32 v24, v25, 4, v24"); a("v_lshlrev_b32 v24, 4, v24")
    a("v_and_b32 v25, 1, v%d", cq); a("v_lshl_add_u32 v24, v25, 3, v24")
    a("s_lshl_b32 s3, s%d, 12", SWN); a("s_add_u32 s3, s3, %d", LDS_Y); a("v_add_u32 v%d, s3, v24", YG)
    a("v_xor_b32 v%d, 64, v%d", YG + 1, YG)
    a("s_lshl_b32 s3, s%d, 10", SWN); a("s_lshl_b32 s19, s%d, 9", SWM); a("s_add_u32 s3, s3, s19"); a("s_add_u32 s3, s3, %d", LDS_ST)
    a("v_lshl_add_u32 v%d, v1, 3, s3", VSW)
    a("s_add_u32 s3, s19, %d", LDS_FIN); a("v_lshl_add_u32 v%d, v%d, 3, s3", VSF, c)
    a("v_lshrrev_b32 v24, 1, v%d", h); a("v_lshlrev_b32 v24, 2, v24"); a("v_xor_b32 v24, v24, v%d", c); a("v_lshl_add_u32 v24, v%d, 4, v24", h)
    a("s_lshl_b32 s3, s%d, 19", SJ); a("s_lshl_b32 s19, s%d, 15", SI); a("s_add_u32 s3, s3, s19")
    a("s_lshl_b32 s19, s%d, 14", SWM); a("s_add_u32 s3, s3, s19"); a("s_lshl_b32 s19, s%d, 12", SWN); a("s_add_u32 s3, s3, s19")
    a("v_lshl_add_u32 v%d, v24, 4, s3", VZ)
    a("s_mul_i32 s3, s%d, 458752", SI); a("s_lshl_b32 s19, s%d, 15", SJ); a("s_add_u32 s3, s3, s19")
    a("s_lshl_b32 s19, s%d, 14", SWN); a("s_add_u32 s3, s3, s19"); a("s_lshl_b32 s19, s%d, 12", SWM); a("s_add_u32 s3, s3, s19")
    a("v_lshl_add_u32 v%d, v1, 4, s3", VP)
    SC = 52
    a("s_mov_b32 s%d, %s", SC, fhex(GC1)); a("s_mov_b32 s%d, %s", SC + 1, fhex(GC1))
    a("s_mov_b32 s54, 8192")
    def gelu_consts():
        a("v_mov_b32 v%d, %s", T + 8, fhex(GC0)); a("v_mov_b32 v%d, %s", T + 9, fhex(GC0))
        a("v_mov_b32 v%d, 1.0", T + 10); a("v_mov_b32 v%d, 1.0", T + 11)
    gelu_consts()

    def part_of(s): return "z2" if s < NZ else ("z1" if s < 2 * NZ else "g")
    def frag_loads(s, ks, fs):
        slot = s & 3; out = []
        def X(mt): out.append(("ds_read_b128 %s, v%d offset:%d" % (v(F[fs] + 4 * mt, 4), XA + ks, slot * 16384 + mt * 2048), "x", mt))
        def Y(nt):
            for hh in range(2):
                d = F[fs] + 16 + 4 * nt + 2 * hh
                if part_of(s) == "g":
                    out.append(("ds_read_b64_tr_b16 %s, v%d offset:%d" % (v(d, 2), YG + hh, slot * 16384 + (ks * 8 + nt) * 1024), "y", nt))
                else:
                    out.append(("ds_read_b64_tr_b16 %s, v%d offset:%d" % (v(d, 2), YZ + nt, slot * 16384 + (32 * ks + 4 * hh) * 256), "y", nt))
        X(0); Y(0); X(1); X(2); X(3); Y(1); Y(2); Y(3)
        return out
    def phase(acc, fs, first, nxt, waits):
        need = {}
        order = [("x", 0), ("y", 0), ("y", 0), ("x", 1), ("x", 2), ("x", 3), ("y", 1), ("y", 1), ("y", 2), ("y", 2), ("y", 3), ("y", 3)]
        for n, k in enumerate(order): need[k] = n
        done = -1; li = 0
        for nt in range(4):
            for mt in range(4):
                if waits:
                    p = max(need[("x", mt)], need[("y", nt)])
                    if p > done:
                        a("s_waitcnt lgkmcnt(%d)", min(15, 11 - p + li)); done = p
                d = acc + 4 * (mt * 4 + nt)
                a("v_mfma_f32_16x16x32_bf16 %s, %s, %s, %s", v(d, 4), v(F[fs] + 16 + 4 * nt, 4), v(F[fs] + 4 * mt, 4), "0" if first else v(d, 4))
                if li < len(nxt):
                    a(nxt[li][0]); li += 1
        assert li == len(nxt)
    def burst_z2():
        a("s_nop 7")
        gelu_block(a, [AA + 2 * n for n in range(32)], SC, T)
        for mt in range(4):
            x = AA + 16 * mt
            a("v_pk_add_f32 %s, %s, %s", pk(T), pk(x), pk(x + 2))
            a("v_pk_mul_f32 %s, %s, %s", pk(T + 2), pk(x), pk(x))
            a("v_pk_add_f32 %s, %s, %s", pk(T + 4), pk(x + 4), pk(x + 6))
            a("v_pk_mul_f32 %s, %s, %s", pk(T + 6), pk(x + 2), pk(x + 2))
            for e in range(4, 16, 4):
                a("v_pk_fma_f32 %s, %s, %s, %s", pk(T + 2), pk(x + e), pk(x + e), pk(T + 2))
                a("v_pk_fma_f32 %s, %s, %s, %s", pk(T + 6), pk(x + e + 2), pk(x + e + 2), pk(T + 6))
            for e in range(8, 16, 4):
                a("v_pk_add_f32 %s, %s, %s", pk(T), pk(T), pk(x + e))
                a("v_pk_add_f32 %s, %s, %s", pk(T + 4), pk(T + 4), pk(x + e + 2))
            a("v_pk_add_f32 %s, %s, %s", pk(T), pk(T), pk(T + 4))
            a("v_pk_add_f32 %s, %s, %s", pk(T + 2), pk(T + 2), pk(T + 6))
            a("v_add_f32 v%d, v%d, v%d", S + mt, T, T + 1)
            a("v_add_f32 v%d, v%d, v%d", S + 4 + mt, T + 2, T + 3)
        a("s_nop 1")
        for base in (S, S + 4):
            a("v_permlane32_swap_b32 v%d, v%d", base, base + 2)
            a("v_permlane32_swap_b32 v%d, v%d", base + 1, base + 3)
        for base in (S, S + 4):
            a("v_add_f32 v%d, v%d, v%d", base, base, base + 2)
            a("v_add_f32 v%d, v%d, v%d", base + 1, base + 1, base + 3)
        a("s_nop 0")
        for base in (S, S + 4): a("v_permlane16_swap_b32 v%d, v%d", base, base + 1)
        a("v_add_f32 v%d, v%d, v%d", S, S, S + 1)
        a("v_add_f32 v%d, v%d, v%d", S + 1, S + 4, S + 5)
        a("ds_write_b64 v%d, %s", VSW, pk(S))
        a("s_waitcnt lgkmcnt(0)")
    def burst_norm():
        for mt in range(4): a("ds_read_b64 %s, v%d offset:%d", pk(T + 2 * mt), VSF, 128 * mt)
        a("s_waitcnt lgkmcnt(0)")
        n = 0
        for mp in range(2):
            for nt in range(4):
                R = ZK + 4 * n; n += 1
                for q in range(2):
                    mt = 2 * mp + q; x = AA + 4 * (mt * 4 + nt)
                    for e in (0, 2): a("v_pk_fma_f32 %s, %s, %s, %s op_sel:[0,0,1] op_sel_hi:[1,0,1]", pk(x + e), pk(x + e), pk(T + 2 * mt), pk(T + 2 * mt))
                for q in range(2):
                    mt = 2 * mp + q; x = AA + 4 * (mt * 4 + nt)
                    for e in (0, 2): a("v_cvt_pk_bf16_f32 v%d, v%d, v%d", R + 2 * q + e // 2, x + e, x + e + 1)
                if n > 1: store_z(n - 2)
        a("s_nop 1")
        store_z(7)
    def store_z(n):
        R = ZK + 4 * n; mp, nt = n // 4, n % 4
        a("v_permlane16_swap_b32 v%d, v%d", R, R + 2)
        a("v_permlane16_swap_b32 v%d, v%d", R + 1, R + 3)
        a("buffer_store_dwordx4 %s, v%d, s[%d:%d], %s offen offset:%d sc1", v(R, 4), VZ, R_Z2, R_Z2 + 3, "s54" if mp else "0", 1024 * nt)
    def burst_z1():
        a("s_nop 7")
        gelu_consts()
        gelu_block(a, [AB + 2 * n for n in range(32)], SC, T)
    def burst_p():
        a("s_nop 7")
        for mt in range(4): a("v_lshlrev_b32 v%d, 16, v%d", T + 2 * mt, BS[mt])
        for pr in range(2):
            for mt in range(4):
                R = F[0] + 4 * (pr * 4 + mt)
                for q in range(2):
                    o = 4 * (mt * 4 + 2 * pr + q)
                    for e in (0, 2): a("v_pk_add_f32 %s, %s, %s op_sel_hi:[1,0]", pk(AA + o + e), pk(AA + o + e), pk(T + 2 * mt))
                for q in range(2):
                    o = 4 * (mt * 4 + 2 * pr + q)
                    for e in (0, 2): a("v_pk_mul_f32 %s, %s, %s", pk(AA + o + e), pk(AA + o + e), pk(AB + o + e))
                for q in range(2):
                    o = 4 * (mt * 4 + 2 * pr + q)
                    for e in (0, 2): a("v_cvt_pk_bf16_f32 v%d, v%d, v%d", R + 2 * q + e // 2, AA + o + e, AA + o + e + 1)
                a("buffer_store_dwordx4 %s, v%d, s[%d:%d], %s offen offset:%d", v(R, 4), VP, R_P, R_P + 3, "s54" if pr else "0", 1024 * mt)
    def cstage(s):
        p = part_of(s)
        acc = AB if p == "z1" else AA
        first = s in (0, NZ, 2 * NZ)
        phase(acc, 0, first, frag_loads(s, 1, 1), True)
        if s == ev["drain"]: a("s_waitcnt vmcnt(0) lgkmcnt(0)")
        else: a("s_waitcnt lgkmcnt(0)")
        a("s_barrier")
        phase(acc, 1, False, frag_loads(s + 1, 0, 0) if s + 1 < NST else [], False)
        if s == NZ - 1: burst_z2()
        if s == ev["norm"]: burst_norm()
        if s == 2 * NZ - 1: burst_z1()
        if s == NST - 1: burst_p()
    a("s_waitcnt vmcnt(0)")
    a("s_barrier")
    for l in frag_loads(0, 0, 0): a(l[0])
    def cloop(s0, iters):
        lab = a.newlabel("cl")
        a("s_mov_b32 s50, %d", iters)
        a.put(lab)
        for s in range(s0, s0 + 4): cstage(s)
        a("s_sub_u32 s50, s50, 1"); a("s_cmp_lg_u32 s50, 0"); a("s_cbranch_scc1 %s", lab)
    for s in range(0, 4): cstage(s)
    cloop(4, 2)
    for s in range(12, 36): cstage(s)
    cloop(36, 6)
    for s in range(60, 64): cstage(s)
    a("s_branch %s", end)

    a.put(prod)
    XZ, XG, YZp, YGp, VPUB, VLD, VPOLL, VFIN, VFP, VONE, VZERO = 4, 8, 12, 16, 20, 21, 22, 23, 24, 25, 26
    PV = 48; SLX, SLY, SX, SY = 49, 50, 51, 52
    a("s_sub_u32 s%d, s%d, 4", PV, SW)
    a("s_lshl_b32 s%d, s%d, 10", SLX, PV)
    a("s_lshl_b32 s%d, s%d, 12", SLY, PV); a("s_add_u32 s%d, s%d, %d", SLY, SLY, LDS_Y)
    a("v_lshrrev_b32 v30, 4, v1"); a("s_and_b32 s3, s%d, 1", PV); a("s_lshl_b32 s3, s3, 2"); a("v_add_u32 v30, s3, v30")
    a("v_and_b32 v31, 7, v1"); a("v_xor_b32 v30, v30, v31"); a("v_lshlrev_b32 v30, 4, v30")
    a("v_lshrrev_b32 v31, 3, v1"); a("s_lshl_b32 s3, s%d, 7", SI); a("s_lshl_b32 s19, s%d, 3", PV); a("s_add_u32 s3, s3, s19"); a("v_add_u32 v31, s3, v31")
    a("v_lshl_add_u32 v%d, v31, 11, v30", XZ); a("v_lshl_add_u32 v%d, v31, 12, v30", XG)
    for u in range(1, 4):
        a("v_add_u32 v%d, %d, v%d", XZ + u, u * 32 * 2048, XZ); a("v_add_u32 v%d, %d, v%d", XG + u, u * 32 * 4096, XG)
    a("v_lshrrev_b32 v30, 4, v1"); a("v_bfe_u32 v31, v1, 1, 3"); a("v_xor_b32 v31, v31, v30"); a("v_lshlrev_b32 v31, 5, v31")
    a("v_and_b32 v32, 1, v1"); a("v_lshl_add_u32 v31, v32, 4, v31")
    a("s_lshl_b32 s3, s%d, 4", PV); a("v_add_u32 v30, s3, v30"); a("v_mul_u32_u24 v30, 7168, v30")
    a("s_lshl_b32 s3, s%d, 8", SJ); a("v_add_u32 v30, s3, v30")
    for u in range(4):
        if u == 2: a("v_xor_b32 v31, 128, v31")
        a("v_add_u32 v32, %d, v30", u * 4 * 7168) if u else a("v_mov_b32 v32, v30")
        a("v_add_u32 v%d, v31, v32", YZp + u)
    a("s_lshl_b32 s3, s%d, 19", SJ); a("s_lshl_b32 s19, s%d, 12", PV); a("s_add_u32 s3, s3, s19")
    a("v_lshl_add_u32 v%d, v1, 4, s3", YGp)
    for u in range(1, 4): a("v_add_u32 v%d, %d, v%d", YGp + u, 1024 * u, YGp)
    a("s_lshl_b32 s3, s%d, 4", SI); a("s_add_u32 s3, s3, s%d", SJ); a("s_lshl_b32 s3, s3, 10")
    a("v_lshl_add_u32 v%d, v1, 4, s3", VPUB)
    a("v_lshlrev_b32 v%d, 4, v1", VLD); a("v_add_u32 v%d, %d, v%d", VLD, LDS_ST, VLD)
    a("v_lshrrev_b32 v30, 4, v1"); a("v_and_b32 v31, 15, v1"); a("v_lshlrev_b32 v30, 10, v30"); a("v_lshl_add_u32 v30, v31, 4, v30")
    a("s_lshl_b32 s3, s%d, 14", SI); a("s_lshl_b32 s19, s%d, 8", PV); a("s_add_u32 s3, s3, s19"); a("v_add_u32 v%d, s3, v30", VPOLL)
    a("v_lshrrev_b32 v30, 5, v1"); a("v_lshl_add_u32 v30, v31, 1, v30"); a("s_add_u32 s3, s19, %d", LDS_FIN); a("v_lshl_add_u32 v%d, v30, 3, s3", VFIN)
    a("s_lshl_b32 s3, s%d, 7", SJ); a("s_add_u32 s3, s3, %d", 256 * 1024); a("v_lshl_add_u32 v%d, v31, 2, s3", VFP)
    a("s_lshl_b32 s19, s%d, 2", SI); a("s_add_u32 s53, s3, s19")
    a("v_mov_b32 v%d, 1", VONE); a("v_mov_b32 v%d, 0", VZERO)
    for u in range(1, 4): a("s_mov_b32 s%d, %d", 56 + u, 4096 * u)
    vt = VmTrack()
    def issue(s, track=True):
        p = part_of(s); slot = s & 3
        if s == 0: a("s_mov_b32 s%d, 0", SX); a("s_mov_b32 s%d, 3584", SY)
        if s == NZ: a("s_mov_b32 s%d, 0", SX); a("s_mov_b32 s%d, 0", SY)
        if s == 2 * NZ: a("s_mov_b32 s%d, 0", SX); a("s_mov_b32 s%d, 0", SY)
        for u in range(4):
            a("s_add_u32 m0, s%d, %d", SLX, slot * 16384 + u * 4096)
            a("s_nop 0")
            if p == "g": a("buffer_load_dwordx4 v%d, s[%d:%d], s%d offen lds", XG + u, R_WSP, R_WSP + 3, SX)
            else: a("buffer_load_dwordx4 v%d, s[%d:%d], s%d offen lds", XZ + u, R_H2, R_H2 + 3, SX)
            a("s_add_u32 m0, s%d, %d", SLY, slot * 16384 + u * 1024)
            a("s_nop 0")
            if p == "g": a("buffer_load_dwordx4 v%d, s[%d:%d], s%d offen sc1 lds", YGp + u, R_Z2, R_Z2 + 3, SY)
            else: a("buffer_load_dwordx4 v%d, s[%d:%d], s%d offen lds", YZp + u, R_WIN, R_WIN + 3, SY)
            vt.issue(("st", s)); vt.issue(("st", s))
        a("s_add_u32 s%d, s%d, 128", SX, SX)
        a("s_add_u32 s%d, s%d, %d", SY, SY, 16384 if p == "g" else 64 * 7168)
    def wait(pred, lg=False):
        n = vt.wait_for(pred)
        if n is not None: a("s_waitcnt vmcnt(%d)%s", n, " lgkmcnt(0)" if lg else "")
        elif lg: a("s_waitcnt lgkmcnt(0)")
    PS = 32
    def poll_loads():
        for u in range(4):
            a("buffer_load_dwordx4 %s, v%d, s[%d:%d], %s offen sc1", v(PS + 4 * u, 4), VPOLL, R_ST, R_ST + 3, "s%d" % (56 + u) if u else "0")
    def poll_check(out):
        first = True
        for u in range(4):
            for e in (1, 3):
                if first: a("v_cmp_eq_u32 vcc, -1, v%d", PS + 4 * u + e); first = False
                else:
                    a("v_cmp_eq_u32 s[60:61], -1, v%d", PS + 4 * u + e)
                    a("s_nop 0")
                    a("s_or_b64 vcc, vcc, s[60:61]")
        a("s_nop 4")
        a("s_cbranch_vccz %s", out)
    def spin(loads, check):
        ok = a.newlabel("ok"); again = a.newlabel("sp")
        check(ok)
        a("s_mov_b32 s62, 0")
        a.put(again)
        a("s_sleep 1")
        loads()
        a("s_add_u32 s62, s62, 1")
        a("s_cmp_gt_u32 s62, 0x40000"); a("s_cbranch_scc1 %s", ok)
        a("s_waitcnt vmcnt(0)")
        check(ok)
        a("s_branch %s", again)
        a.put(ok)
        a("s_waitcnt vmcnt(63)")
    def fpoll_load(): a("buffer_load_dword v48, v%d, s[%d:%d], 0 offen sc1", VFP, R_ST, R_ST + 3)
    def fpoll_check(out):
        a("v_cmp_eq_u32 vcc, 0, v48"); a("s_nop 4"); a("s_cbranch_vccz %s", out)
    def pstage(k):
        lg = (k == ev["chk"] + 1)
        wait(lambda t: t == ("st", k + 1), lg)
        a("s_barrier")
        if k == ev["fchk"]:
            wait(lambda t: t[0] == "fp")
            spin(fpoll_load, fpoll_check)
        if k + 4 < NST: issue(k + 4)
        if k == ev["pub"]:
            sk = a.newlabel("np")
            a("s_cmp_lg_u32 s%d, 0", PV); a("s_cbranch_scc1 %s", sk)
            a("ds_read_b128 v[32:35], v%d", VLD); a("ds_read_b128 v[36:39], v%d offset:1024", VLD)
            a("s_waitcnt lgkmcnt(0)")
            a("v_pk_add_f32 v[32:33], v[32:33], v[36:37]"); a("v_pk_add_f32 v[34:35], v[34:35], v[38:39]")
            a("buffer_store_dwordx4 v[32:35], v%d, s[%d:%d], 0 offen sc1", VPUB, R_ST, R_ST + 3)
            a("s_nop 1")
            a.put(sk)
        if k == ev["poll"]:
            poll_loads()
            for u in range(4): vt.issue(("sp", u))
        if k == ev["chk"]:
            wait(lambda t: t[0] == "sp")
            spin(poll_loads, poll_check)
            for (d, s) in ((0, 4), (8, 12), (0, 8)):
                for e in (0, 2): a("v_pk_add_f32 %s, %s, %s", pk(PS + d + e), pk(PS + d + e), pk(PS + s + e))
            a("s_nop 1")
            a("v_permlane32_swap_b32 v%d, v%d", PS, PS + 2); a("v_permlane32_swap_b32 v%d, v%d", PS + 1, PS + 3)
            a("v_add_f32 v%d, v%d, v%d", PS, PS, PS + 2); a("v_add_f32 v%d, v%d, v%d", PS + 1, PS + 1, PS + 3)
            a("v_mov_b32 v%d, v%d", PS + 2, PS); a("v_mov_b32 v%d, v%d", PS + 3, PS + 1)
            a("s_nop 1")
            a("v_permlane16_swap_b32 v%d, v%d", PS + 2, PS); a("v_permlane16_swap_b32 v%d, v%d", PS + 3, PS + 1)
            a("v_add_f32 v%d, v%d, v%d", PS, PS, PS + 2); a("v_add_f32 v%d, v%d, v%d", PS + 1, PS + 1, PS + 3)
            a("s_mov_b32 s62, %s", fhex(1.0 / 1792))
            a("v_mul_f32 v%d, s62, v%d", PS, PS)
            a("v_mul_f32 v%d, v%d, v%d", PS + 2, PS, PS)
            a("v_fma_f32 v%d, v%d, s62, -v%d", PS + 1, PS + 1, PS + 2)
            a("v_max_f32 v%d, 0, v%d", PS + 1, PS + 1)
            a("v_add_f32 v%d, %s, v%d", PS + 1, fhex(EPS), PS + 1)
            a("v_rsq_f32 v%d, v%d", PS + 2, PS + 1)
            a("s_nop 0")
            a("v_mul_f32_e64 v%d, -v%d, v%d", PS + 3, PS, PS + 2)
            a("ds_write_b64 v%d, %s", VFIN, pk(PS + 2))
        if k == ev["drain"]:
            sk = a.newlabel("nf")
            a("s_cmp_lg_u32 s%d, 0", PV); a("s_cbranch_scc1 %s", sk)
            a("s_mov_b64 s[60:61], exec"); a("s_mov_b64 exec, 1")
            a("buffer_store_dword v%d, v%d, s[%d:%d], s53 offen sc1", VONE, VZERO, R_ST, R_ST + 3)
            a("s_mov_b64 exec, s[60:61]")
            a.put(sk)
        if k == ev["fpoll"]:
            fpoll_load(); vt.issue(("fp", 0))
    for s in range(4): issue(s)
    wait(lambda t: t == ("st", 0))
    a("s_barrier")
    def ploop(k0, iters):
        lab = a.newlabel("pl")
        a("s_mov_b32 s63, %d", iters)
        a.put(lab)
        before = [t[0] for t in vt.ops]
        for k in range(k0, k0 + 4): pstage(k)
        assert [t[0] for t in vt.ops] == before
        a("s_sub_u32 s63, s63, 1"); a("s_cmp_lg_u32 s63, 0"); a("s_cbranch_scc1 %s", lab)
        sh = 4 * (iters - 1)
        vt.ops = [(t[0], t[1] + sh) for t in vt.ops]
    ploop(0, 3)
    for k in range(12, 32): pstage(k)
    ploop(32, 7)
    for k in range(60, 64): pstage(k)
    a.put(end)
    return a.text(), 256, KG_LDS

K6_S = 6
K6_Y = K6_S * 16384
K6_LDS = K6_S * 24576
def gen_k6():
    a = Asm("k6")
    S_ = K6_S; NK = 28
    end = a.label("end"); prod = a.label("prod"); fin = a.label("fin")
    a("s_cmp_ge_u32 s2, 256"); a("s_cbranch_scc1 %s", end)
    a("s_load_dwordx2 s[4:5], s[0:1], %d", A_WOUT)
    a("s_load_dwordx2 s[6:7], s[0:1], %d", A_OUT)
    a("s_load_dwordx2 s[14:15], s[0:1], %d", A_WS)
    a("s_and_b32 s16, s2, 7"); a("s_lshr_b32 s17, s2, 3")
    SI, SJ, SW = 12, 13, 18
    a("s_lshr_b32 s%d, s16, 1", SI); a("s_lshl_b32 s%d, s%d, 2", SI, SI); a("s_and_b32 s3, s17, 3"); a("s_add_u32 s%d, s%d, s3", SI, SI)
    a("s_and_b32 s%d, s16, 1", SJ); a("s_lshl_b32 s%d, s%d, 3", SJ, SJ); a("s_lshr_b32 s3, s17, 2"); a("s_add_u32 s%d, s%d, s3", SJ, SJ)
    a("v_lshrrev_b32 v2, 6, v0")
    a("v_and_b32 v1, 63, v0")
    a("v_readfirstlane_b32 s%d, v2", SW)
    VO, VG, VSR = 120, 121, 122
    X1R, GBR = 124, 132
    a("v_lshrrev_b32 v3, 3, v0"); a("v_and_b32 v4, 7, v0")
    a("s_lshl_b32 s3, s%d, 18", SI); a("s_lshl_b32 s19, s%d, 7", SJ); a("s_add_u32 s3, s3, s19")
    a("v_lshlrev_b32 v5, 4, v4"); a("v_lshl_add_u32 v6, v3, 11, v5"); a("v_add_u32 v%d, s3, v6", VO)
    a("s_add_u32 s19, s19, %d", 5 * 2048); a("v_add_u32 v%d, s19, v5", VG)
    a("v_and_b32 v5, 7, v3"); a("v_xor_b32 v5, v5, v4"); a("v_lshlrev_b32 v5, 4, v5"); a("v_lshl_add_u32 v%d, v3, 7, v5", VSR)
    a("s_waitcnt lgkmcnt(0)")
    R_W, R_O, R_P, R_X1, R_M = 20, 24, 28, 32, 36
    a.srd(R_W, 4, 1792 * 2048); a.srd(R_O, 6, 4 * MB); a.srd(R_P, 14, 16 * 458752, WS_P); a.srd(R_X1, 14, 4 * MB, WS_X1); a.srd(R_M, 14, 12288, WS_MOD)
    a("s_mov_b32 s54, %d", 64 * 2048)
    a("s_cmp_ge_u32 s%d, 4", SW); a("s_cbranch_scc1 %s", prod)
    def final_loads():
        a("buffer_load_dwordx4 %s, v%d, s[%d:%d], 0 offen", v(X1R, 4), VO, R_X1, R_X1 + 3)
        a("buffer_load_dwordx4 %s, v%d, s[%d:%d], s54 offen", v(X1R + 4, 4), VO, R_X1, R_X1 + 3)
        a("buffer_load_dwordx4 %s, v%d, s[%d:%d], 0 offen", v(GBR, 4), VG, R_M, R_M + 3)
    final_loads()
    XA, YA, VSW = 2, 4, 8
    ACC = 16; F = [48, 72]
    c, g, r_, cq = 10, 11, 12, 13
    a("v_and_b32 v%d, 15, v1", c); a("v_lshrrev_b32 v%d, 4, v1", g); a("v_bfe_u32 v%d, v1, 2, 2", r_); a("v_and_b32 v%d, 3, v1", cq)
    a("s_lshl_b32 s3, s%d, 11", SW); a("v_lshl_add_u32 v%d, v1, 4, s3", XA); a("v_add_u32 v%d, 65536, v%d", XA + 1, XA)
    a("v_lshl_add_u32 v14, v%d, 2, v%d", g, r_); a("v_bfe_u32 v15, v14, 1, 2")
    a("v_lshlrev_b32 v14, 7, v14"); a("v_lshl_add_u32 v14, v%d, 3, v14", cq); a("v_add_u32 v14, %d, v14", K6_Y)
    for dt in range(4):
        a("v_xor_b32 v9, %d, v15", dt); a("v_lshl_add_u32 v%d, v9, 5, v14", YA + dt)
    a("v_lshrrev_b32 v14, 1, v%d", g); a("v_and_b32 v15, 7, v%d", c); a("v_xor_b32 v14, v14, v15"); a("v_lshlrev_b32 v14, 4, v14")
    a("v_and_b32 v15, 1, v%d", g); a("v_lshl_add_u32 v14, v15, 3, v14"); a("v_lshl_add_u32 v14, v%d, 7, v14", c)
    a("s_lshl_b32 s3, s%d, 12", SW); a("v_add_u32 v%d, s3, v14", VSW)
    def frag_loads(s, ks, fs):
        slot = s % S_; out = []
        def X(tt):
            o = slot * 16384 + ks * 8192 + tt * 1024
            out.append("ds_read_b128 %s, v%d offset:%d" % (v(F[fs] + 4 * tt, 4), XA + (o >> 16), o & 65535))
        def Y(dt):
            for hh in range(2):
                out.append("ds_read_b64_tr_b16 %s, v%d offset:%d" % (v(F[fs] + 8 + 4 * dt + 2 * hh, 2), YA + dt, slot * 8192 + (32 * ks + 16 * hh) * 128))
        X(0); Y(0); X(1); Y(1); Y(2); Y(3)
        return out
    def phase(fs, first, nxt, waits):
        need = {("x", 0): 0, ("y", 0): 2, ("x", 1): 3, ("y", 1): 5, ("y", 2): 7, ("y", 3): 9}
        done = -1; li = 0; n = 0
        for dt in range(4):
            for tt in range(2):
                if waits:
                    p = max(need[("x", tt)], need[("y", dt)])
                    if p > done:
                        a("s_waitcnt lgkmcnt(%d)", min(15, 9 - p + li)); done = p
                d = ACC + 4 * (tt * 4 + dt)
                a("v_mfma_f32_16x16x32_bf16 %s, %s, %s, %s", v(d, 4), v(F[fs] + 8 + 4 * dt, 4), v(F[fs] + 4 * tt, 4), "0" if first else v(d, 4))
                n += 1
                for _ in range(2 if n <= 2 else 1):
                    if li < len(nxt):
                        a(nxt[li]); li += 1
        assert li == len(nxt)
    def cstage(s):
        phase(0, s == 0, frag_loads(s, 1, 1), True)
        a("s_waitcnt lgkmcnt(0)")
        a("s_barrier")
        phase(1, False, frag_loads(s + 1, 0, 0) if s + 1 < NK else [], False)
    a("s_barrier")
    for l in frag_loads(0, 0, 0): a(l)
    for s in range(0, 6): cstage(s)
    lab = a.newlabel("cl")
    a("s_mov_b32 s50, 3")
    a.put(lab)
    for s in range(6, 12): cstage(s)
    a("s_sub_u32 s50, s50, 1"); a("s_cmp_lg_u32 s50, 0"); a("s_cbranch_scc1 %s", lab)
    for s in range(24, 28): cstage(s)
    a("s_nop 7")
    for tt in range(2):
        for dt in range(4):
            d = ACC + 4 * (tt * 4 + dt); R = F[0] + 2 * (tt * 4 + dt)
            a("v_cvt_pk_bf16_f32 v%d, v%d, v%d", R, d, d + 1); a("v_cvt_pk_bf16_f32 v%d, v%d, v%d", R + 1, d + 2, d + 3)
    for dt in range(4):
        if dt: a("v_xor_b32 v9, %d, v%d", 32 * dt, VSW)
        for tt in range(2):
            R = F[0] + 2 * (tt * 4 + dt)
            a("ds_write_b64 v%d, %s offset:%d", 9 if dt else VSW, pk(R), 2048 * tt)
    a("s_branch %s", fin)
    a.put(prod)
    XP, YP = 4, 8
    PV, SLX, SLY, SX, SY = 48, 49, 50, 51, 52
    a("s_sub_u32 s%d, s%d, 4", PV, SW)
    a("s_lshl_b32 s%d, s%d, 12", SLX, PV)
    a("s_lshl_b32 s%d, s%d, 11", SLY, PV); a("s_add_u32 s%d, s%d, %d", SLY, SLY, K6_Y)
    a("s_mul_i32 s3, s%d, 458752", SI); a("s_add_u32 s3, s3, s%d", SLX); a("v_lshl_add_u32 v%d, v1, 4, s3", XP)
    for u in range(1, 4): a("v_add_u32 v%d, %d, v%d", XP + u, 1024 * u, XP)
    a("v_lshrrev_b32 v10, 4, v1"); a("v_lshlrev_b32 v10, 1, v10"); a("v_and_b32 v11, 7, v1"); a("v_xor_b32 v10, v10, v11"); a("v_lshlrev_b32 v10, 4, v10")
    a("v_lshrrev_b32 v11, 3, v1"); a("v_lshl_add_u32 v10, v11, 11, v10")
    a("s_lshl_b32 s3, s%d, 15", PV); a("s_lshl_b32 s19, s%d, 7", SJ); a("s_add_u32 s3, s3, s19"); a("v_add_u32 v%d, s3, v10", YP)
    a("v_add_u32 v%d, %d, v%d", YP + 1, 8 * 2048, YP)
    a("s_mov_b32 s%d, 0", SX); a("s_mov_b32 s%d, 0", SY)
    vt = VmTrack()
    def issue(s):
        slot = s % S_
        for u in range(4):
            a("s_add_u32 m0, s%d, %d", SLX, slot * 16384 + u * 1024)
            a("s_nop 0")
            a("buffer_load_dwordx4 v%d, s[%d:%d], s%d offen lds", XP + u, R_P, R_P + 3, SX); vt.issue(("st", s))
            if u < 2:
                a("s_add_u32 m0, s%d, %d", SLY, slot * 8192 + u * 1024)
                a("s_nop 0")
                a("buffer_load_dwordx4 v%d, s[%d:%d], s%d offen lds", YP + u, R_W, R_W + 3, SY); vt.issue(("st", s))
        a("s_add_u32 s%d, s%d, 16384", SX, SX); a("s_add_u32 s%d, s%d, %d", SY, SY, 64 * 2048)
    def wait(pred):
        n = vt.wait_for(pred)
        if n is not None: a("s_waitcnt vmcnt(%d)", n)
    def pstage(k):
        wait(lambda t: t == ("st", k + 1))
        a("s_barrier")
        if k + S_ < NK: issue(k + S_)
        if k + S_ == NK:
            final_loads()
            for _ in range(3): vt.issue(("fl", 0))
    for s in range(S_): issue(s)
    wait(lambda t: t == ("st", 0))
    a("s_barrier")
    lab = a.newlabel("pl")
    a("s_mov_b32 s63, 3")
    a.put(lab)
    for k in range(0, 6): pstage(k)
    a("s_sub_u32 s63, s63, 1"); a("s_cmp_lg_u32 s63, 0"); a("s_cbranch_scc1 %s", lab)
    vt.ops = [(t[0], t[1] + 12) for t in vt.ops]
    for k in range(18, 28): pstage(k)
    a.put(fin)
    a("s_waitcnt vmcnt(0) lgkmcnt(0)")
    a("s_barrier")
    B = 48; U = 64; G = 96
    for rr in range(2): a("ds_read_b128 %s, v%d offset:%d", v(B + 4 * rr, 4), VSR, 8192 * rr)
    for d in range(4): unpack(a, G + 2 * d, G + 2 * d + 1, GBR + d)
    for rr in range(2):
        for d in range(4): unpack(a, U + 16 * rr + 8 + 2 * d, U + 16 * rr + 8 + 2 * d + 1, X1R + 4 * rr + d)
    for rr in range(2):
        a("s_waitcnt lgkmcnt(%d)", 1 - rr)
        for d in range(4): unpack(a, U + 16 * rr + 2 * d, U + 16 * rr + 2 * d + 1, B + 4 * rr + d)
        for d in range(4):
            x = U + 16 * rr + 2 * d
            a("v_pk_fma_f32 %s, %s, %s, %s", pk(x), pk(x), pk(G + 2 * d), pk(x + 8))
        for d in range(4):
            x = U + 16 * rr + 2 * d
            a("v_cvt_pk_bf16_f32 v%d, v%d, v%d", B + 8 + 4 * rr + d, x, x + 1)
        a("buffer_store_dwordx4 %s, v%d, s[%d:%d], %s offen", v(B + 8 + 4 * rr, 4), VO, R_O, R_O + 3, "s54" if rr else "0")
    a.put(end)
    return a.text(), 136, K6_LDS
```

```python
import sys
from asmlib import *
import gen_front, gen_gemm
NAME = "adaLN_cond__ssm_conv_h3__mixer_gmlp__prompt"
def build(extra_launches=()):
    ks = [("k1_kernel", gen_front.gen_k1(), 256), ("k2_kernel", gen_front.gen_k2(), 320), ("k3_kernel", gen_front.gen_k3(), 256),
          ("kg_kernel", gen_gemm.gen_kg(), 512), ("k6_kernel", gen_gemm.gen_k6(), 512)]
    hdr = open("cdna_kernels/%s.s.ref" % NAME).read().split("\n")
    head = [l for l in hdr if l.startswith(";") and "@launch" not in l and "Override launch" not in l and "grid=ceil" not in l]
    head = head[:head.index([l for l in head if "d_ws" in l][0]) + 1]
    out = list(head)
    for n, (body, vg, lds), blk in ks:
        out.append("; @launch kernel=%s grid=(256,1,1) block=(%d,1,1) lds=%d" % (n, blk, lds))
    out.append('.amdgcn_target "amdgcn-amd-amdhsa--gfx950"')
    for n, (body, vg, lds), blk in ks:
        out.append(kernel_text(n, body, vg))
    return "\n".join(out) + "\n"
if __name__ == "__main__":
    path = sys.argv[1] if len(sys.argv) > 1 else "cdna_kernels/%s.s" % NAME
    open(path, "w").write(build())
    print("wrote", path)
```

```python
import sys
from asmlib import *
import gen_front, gen_gemm
from gen_front import *
NAME = "adaLN_cond__ssm_conv_h3__mixer_gmlp__prompt"
def gen_empty():
    return "", 8, 0
def gen_pref(items, name):
    a = Asm(name)
    end = a.label("end")
    a("s_cmp_ge_u32 s2, 256"); a("s_cbranch_scc1 %s", end)
    a("s_lshl_b32 s3, s2, 12")
    a("v_lshl_add_u32 v1, v0, 4, s3")
    for n, (off, nb) in enumerate(items):
        a("s_load_dwordx2 s[4:5], s[0:1], %d", off)
        a("s_waitcnt lgkmcnt(0)")
        a.srd(8, 4, nb)
        for m in range((nb + (1 << 20) - 1) >> 20):
            a("s_mov_b32 s3, %d", m << 20)
            a("buffer_load_dwordx4 v[4:7], v1, s[8:11], s3 offen")
    a("s_waitcnt vmcnt(0)")
    a.put(end)
    return a.text(), 8, 0
def kernels():
    return {"k1": (gen_front.gen_k1(), 256), "k2": (gen_front.gen_k2(), 320), "k3": (gen_front.gen_k3(), 256),
            "kg": (gen_gemm.gen_kg(), 512), "k6": (gen_gemm.gen_k6(), 512),
            "ke": (gen_empty(), 256),
            "pa": (gen_pref([(A_K, 4 * MB), (A_V, 4 * MB), (A_WMOD, 12 * MB), (A_SSMK, 4 * MB), (A_Q, 4 * MB), (A_WIN, 7 * MB), (A_WSP, 8 * MB), (A_WOUT, 1792 * 2048)], "pa"), 256),
            "pw": (gen_pref([(A_WIN, 7 * MB), (A_WSP, 8 * MB), (A_WOUT, 1792 * 2048)], "pw"), 256),
            }
def build(order=("k1", "k2", "k3", "kg", "k6"), ks=None):
    ks = ks or kernels()
    hdr = open("cdna_kernels/%s.s.ref" % NAME).read().split("\n")
    head = [l for l in hdr if l.startswith(";") and "@launch" not in l]
    head = head[:head.index([l for l in head if "d_ws" in l][0]) + 1]
    out = list(head)
    for n in order:
        (body, vg, lds), blk = ks[n]
        out.append("; @launch kernel=%s_kernel grid=(256,1,1) block=(%d,1,1) lds=%d" % (n, blk, lds))
    out.append('.amdgcn_target "amdgcn-amd-amdhsa--gfx950"')
    for n in dict.fromkeys(order):
        (body, vg, lds), blk = ks[n]
        out.append(kernel_text(n + "_kernel", body, vg))
    return "\n".join(out) + "\n"
if __name__ == "__main__":
    path = sys.argv[1] if len(sys.argv) > 1 else "cdna_kernels/%s.s" % NAME
    order = sys.argv[2].split(",") if len(sys.argv) > 2 else ("k1", "k2", "k3", "kg", "k6")
    open(path, "w").write(build(order))
    print("wrote", path)
```

```python
import sys
from asmlib import *
import gen_front, gen_gemm
from gen_front import *
NAME = "adaLN_cond__ssm_conv_h3__mixer_gmlp__prompt"
def gen_empty():
    return "", 8, 0
def gen_pref(items, name):
    a = Asm(name)
    end = a.label("end")
    a("s_cmp_ge_u32 s2, 256"); a("s_cbranch_scc1 %s", end)
    a("s_lshl_b32 s3, s2, 12")
    a("v_lshl_add_u32 v1, v0, 4, s3")
    for n, (off, nb) in enumerate(items):
        a("s_load_dwordx2 s[4:5], s[0:1], %d", off)
        a("s_waitcnt lgkmcnt(0)")
        a.srd(8, 4, nb)
        for m in range((nb + (1 << 20) - 1) >> 20):
            a("s_mov_b32 s3, %d", m << 20)
            a("buffer_load_dwordx4 v[4:7], v1, s[8:11], s3 offen")
    a("s_waitcnt vmcnt(0)")
    a.put(end)
    return a.text(), 8, 0
WS_DIAG = 6 * MB
def stamp(n, pre):
    a = Asm("%s_st%d" % (pre, n))
    sk = a.label("sk")
    a("s_cmp_lg_u32 s2, 0"); a("s_cbranch_scc1 %s", sk)
    a("s_memrealtime s[90:91]")
    a("s_load_dwordx2 s[92:93], s[0:1], %d", A_WS)
    a("s_waitcnt lgkmcnt(0)")
    a.srd(84, 92, 4096, WS_DIAG)
    a("v_mov_b32 v2, s90"); a("v_mov_b32 v3, %d", 4 * n)
    a("buffer_store_dword v2, v3, s[84:87], 0 offen")
    a("s_waitcnt vmcnt(0)")
    a.put(sk)
    return a.text() + "\n"
def gen_spin(n):
    a = Asm("kz")
    end = a.label("end"); lp = a.label("lp")
    a("s_cmp_lg_u32 s2, 0"); a("s_cbranch_scc1 %s", end)
    a("s_load_dwordx2 s[92:93], s[0:1], %d", A_WS)
    a("s_waitcnt lgkmcnt(0)")
    a.srd(84, 92, 4096, WS_DIAG)
    a("v_mov_b32 v3, %d", 4 * n)
    a("buffer_load_dword v2, v3, s[84:87], 0 offen")
    a("s_waitcnt vmcnt(0)")
    a("v_readfirstlane_b32 s10, v2")
    a("s_mov_b32 s11, 0")
    a.put(lp)
    a("s_memrealtime s[90:91]")
    a("s_add_u32 s11, s11, 1")
    a("s_waitcnt lgkmcnt(0)")
    a("s_sub_u32 s12, s90, s10")
    a("s_cmp_gt_u32 s11, 200000"); a("s_cbranch_scc1 %s", end)
    a("s_cmp_lt_u32 s12, 20000"); a("s_cbranch_scc1 %s", lp)
    a.put(end)
    return a.text(), 8, 0
def diag(order, n):
    ks = kernels()
    for i, k in enumerate(order):
        (body, vg, lds), blk = ks[k]
        ks[k] = ((stamp(i, k) + body, vg, lds), blk)
    ks["kz"] = (gen_spin(n), 64)
    if n == len(order):
        (body, vg, lds), blk = ks["kz"]
        ks["kz"] = ((stamp(n, "kz") + body, vg, lds), blk)
    return build(list(order) + ["kz"], ks)
def kernels():
    return {"k1": (gen_front.gen_k1(), 256), "k2": (gen_front.gen_k2(), 320), "k3": (gen_front.gen_k3(), 256),
            "kg": (gen_gemm.gen_kg(), 512), "k6": (gen_gemm.gen_k6(), 512),
            "ke": (gen_empty(), 256),
            "pa": (gen_pref([(A_K, 4 * MB), (A_V, 4 * MB), (A_WMOD, 12 * MB), (A_SSMK, 4 * MB), (A_Q, 4 * MB), (A_WIN, 7 * MB), (A_WSP, 8 * MB), (A_WOUT, 1792 * 2048)], "pa"), 256),
            "pw": (gen_pref([(A_WIN, 7 * MB), (A_WSP, 8 * MB), (A_WOUT, 1792 * 2048)], "pw"), 256),
            }
def build(order=("k1", "k2", "k3", "kg", "k6"), ks=None):
    ks = ks or kernels()
    hdr = open("cdna_kernels/%s.s.ref" % NAME).read().split("\n")
    head = [l for l in hdr if l.startswith(";") and "@launch" not in l]
    head = head[:head.index([l for l in head if "d_ws" in l][0]) + 1]
    out = list(head)
    for n in order:
        (body, vg, lds), blk = ks[n]
        out.append("; @launch kernel=%s_kernel grid=(256,1,1) block=(%d,1,1) lds=%d" % (n, blk, lds))
    out.append('.amdgcn_target "amdgcn-amd-amdhsa--gfx950"')
    for n in dict.fromkeys(order):
        (body, vg, lds), blk = ks[n]
        out.append(kernel_text(n + "_kernel", body, vg))
    return "\n".join(out) + "\n"
if __name__ == "__main__":
    path = sys.argv[1] if len(sys.argv) > 1 else "cdna_kernels/%s.s" % NAME
    order = sys.argv[2].split(",") if len(sys.argv) > 2 else ("k1", "k2", "k3", "kg", "k6")
    if len(sys.argv) > 3: open(path, "w").write(diag(order, int(sys.argv[3])))
    else: open(path, "w").write(build(order))
    print("wrote", path)
```

```python
DIAG = [False]
class Asm:
    def __init__(self, prefix):
        self.l = []
        self.prefix = prefix
        self.nlab = 0
    def __call__(self, s, *args):
        if args: s = s % args
        for x in s.split("\n"):
            x = x.strip()
            if x: self.l.append("    " + x if not x.endswith(":") else x)
    def label(self, name):
        return "L_%s_%s" % (self.prefix, name)
    def newlabel(self, name="x"):
        self.nlab += 1
        return "L_%s_%s%d" % (self.prefix, name, self.nlab)
    def put(self, lab):
        self.l.append(lab + ":")
    def text(self):
        return "\n".join(self.l)
    diag = None
    def st_init(self, kidx, vreg):
        if not DIAG[0]: return
        self.diag = (kidx, vreg)
        self("s_memrealtime s[98:99]")
        self("s_mov_b32 s100, 1")
        self("s_waitcnt lgkmcnt(0)")
        self("v_mov_b32 v%d, s98", vreg)
    def st(self):
        if not DIAG[0]: return
        self("s_memrealtime s[98:99]")
        self("s_mov_b32 s101, m0")
        self("s_mov_b32 m0, s100")
        self("s_add_u32 s100, s100, 1")
        self("s_waitcnt lgkmcnt(0)")
        self("v_writelane_b32 v%d, s98, m0", self.diag[1])
        self("s_mov_b32 m0, s101")
    def st_flush(self, t0, t1):
        if not DIAG[0]: return
        self.st()
        self("s_mov_b64 exec, -1")
        self("s_load_dwordx2 s[98:99], s[0:1], 120")
        self("s_waitcnt lgkmcnt(0)")
        self("s_add_u32 s4, s98, %d", 64 << 20); self("s_addc_u32 s5, s99, 0"); self("s_mov_b32 s6, %d", 16 << 20); self("s_mov_b32 s7, 0x20000")
        self("s_lshl_b32 s3, s2, 3"); self("s_add_u32 s3, s3, s18"); self("s_add_u32 s3, s3, %d", self.diag[0] * 2048); self("s_lshl_b32 s3, s3, 8")
        self("v_mbcnt_lo_u32_b32 v%d, -1, 0", t0); self("v_mbcnt_hi_u32_b32 v%d, -1, v%d", t0, t0)
        self("v_lshlrev_b32 v%d, 2, v%d", t0, t0)
        self("v_writelane_b32 v%d, s100, 63", self.diag[1])
        self("buffer_store_dword v%d, v%d, s[4:7], s3 offen", self.diag[1], t0)
    def srd(self, s, plo, nbytes, off=0):
        if off:
            self("s_add_u32 s%d, s%d, %d", s, plo, off)
            self("s_addc_u32 s%d, s%d, 0", s + 1, plo + 1)
        else:
            self("s_mov_b32 s%d, s%d", s, plo)
            self("s_mov_b32 s%d, s%d", s + 1, plo + 1)
        self("s_mov_b32 s%d, %d", s + 2, nbytes)
        self("s_mov_b32 s%d, 0x20000", s + 3)

def v(a, n=1):
    return "v%d" % a if n == 1 else "v[%d:%d]" % (a, a + n - 1)
def sr(a, n=1):
    return "s%d" % a if n == 1 else "s[%d:%d]" % (a, a + n - 1)
def f2u(x):
    import struct
    return struct.unpack("<I", struct.pack("<f", x))[0]
def fhex(x):
    return "0x%08x" % f2u(x)

KD = """.section .rodata,"a"
.p2align 6
.amdhsa_kernel {name}
  .amdhsa_next_free_vgpr {vgpr}
  .amdhsa_next_free_sgpr {sgpr}
  .amdhsa_accum_offset {acc}
  .amdhsa_group_segment_fixed_size 0
  .amdhsa_kernarg_size 128
  .amdhsa_user_sgpr_count 2
  .amdhsa_user_sgpr_kernarg_segment_ptr 1
  .amdhsa_system_sgpr_workgroup_id_x 1
  .amdhsa_float_denorm_mode_32 3
.end_amdhsa_kernel
"""
def kernel_text(name, body, vgpr, sgpr=102):
    acc = (vgpr + 3) // 4 * 4
    return (".text\n.globl %s\n.p2align 8\n.type %s,@function\n%s:\n" % (name, name, name) + body +
            "\n    s_endpgm\n" + KD.format(name=name, vgpr=vgpr, sgpr=sgpr, acc=acc))
```

```python
from asmlib import *
MB = 1 << 20
WS_UR = 0
WS_MODP = 4 * MB
WS_MOD = 4 * MB + 512 * 1024
WS_STATS = 4 * MB + 768 * 1024
WS_FLAGS = 5 * MB
WS_YB = 8 * MB
WS_X1 = 12 * MB
WS_H2 = 16 * MB
WS_Z2 = 20 * MB
WS_P = 28 * MB
A_Q, A_K, A_V, A_SK, A_SSMK, A_SSMD, A_BX, A_WIN, A_WSP, A_BSP, A_WOUT, A_C, A_WMOD, A_OUT, A_DBG, A_WS = [8 * i for i in range(16)]
LOG2E = 1.4426950408889634
EPS = 1e-5

def unpack(a, lo, hi, src):
    a("v_lshlrev_b32 v%d, 16, v%d", lo, src)
    a("v_and_b32 v%d, 0xffff0000, v%d", hi, src)

def gen_k1():
    a = Asm("k1")
    end = a.label("end")
    a("s_cmp_ge_u32 s2, 256")
    a("s_cbranch_scc1 %s", end)
    a.st_init(0, 240)
    a("s_load_dwordx2 s[4:5], s[0:1], %d", A_K)
    a("s_load_dwordx2 s[6:7], s[0:1], %d", A_V)
    a("s_load_dwordx2 s[8:9], s[0:1], %d", A_SK)
    a("s_load_dwordx2 s[10:11], s[0:1], %d", A_C)
    a("s_load_dwordx2 s[12:13], s[0:1], %d", A_WMOD)
    a("s_load_dwordx2 s[14:15], s[0:1], %d", A_WS)
    VT, VCG, VRG, VL = 0, 1, 2, 3
    VOFF = 4
    VSK, VWM, VC = 15, 16, 17
    RK = 18
    RV = 40
    RW = 56
    RM = 64
    UK = 128
    UW = 172
    RES = 188
    ACC = 220
    TMP = 226
    a("v_and_b32 v%d, 31, v0", VCG)
    a("v_lshrrev_b32 v%d, 5, v0", VRG)
    a("v_and_b32 v%d, 63, v0", VL)
    a("v_lshrrev_b32 v%d, 6, v0", TMP)
    a("s_lshr_b32 s16, s2, 3")
    a("s_and_b32 s17, s2, 7")
    a("v_readfirstlane_b32 s18, v%d", TMP)
    a("s_lshl_b32 s19, s16, 17")
    a("s_lshl_b32 s3, s17, 8")
    a("s_add_u32 s19, s19, s3")
    a("s_sub_u32 s19, s19, %d", 3 * 2048)
    a("v_lshlrev_b32 v%d, 14, v%d", VOFF, VRG)
    a("v_lshl_add_u32 v%d, v%d, 3, v%d", VOFF, VCG, VOFF)
    a("v_add_u32 v%d, s19, v%d", VOFF, VOFF)
    for j in range(1, 11): a("v_add_u32 v%d, %d, v%d", VOFF + j, 2048 * j, VOFF)
    a("s_lshl_b32 s3, s17, 10")
    a("v_lshl_add_u32 v%d, v%d, 5, s3", VSK, VCG)
    a("s_lshr_b32 s52, s2, 4"); a("s_and_b32 s53, s2, 15")
    a("s_lshl_b32 s54, s52, 6"); a("s_lshl_b32 s3, s18, 4"); a("s_add_u32 s54, s54, s3")
    a("s_mul_i32 s55, s54, 12288"); a("s_mul_i32 s3, s53, 768"); a("s_add_u32 s55, s55, s3")
    a("v_mul_u32_u24 v%d, 12, v%d", VWM, VL)
    a("v_and_b32 v%d, 15, v%d", VC, VL)
    a("v_add_u32 v%d, s54, v%d", VC, VC)
    a("v_lshlrev_b32 v%d, 1, v%d", VC, VC)
    a("s_waitcnt lgkmcnt(0)")
    a.srd(20, 4, 4 * MB); a.srd(24, 6, 4 * MB); a.srd(28, 8, 8192); a.srd(32, 10, 2048); a.srd(36, 12, 12 * MB)
    a.srd(40, 14, 4 * MB, WS_UR); a.srd(44, 14, 16 * 24576, WS_MODP); a.srd(48, 14, 256 * 1024 + 4096, WS_STATS)
    a("buffer_load_ushort v%d, v%d, s[32:35], 0 offen", TMP + 1, VC)
    a("buffer_load_dwordx4 v[%d:%d], v%d, s[28:31], 0 offen", RW, RW + 3, VSK)
    a("buffer_load_dwordx4 v[%d:%d], v%d, s[28:31], 0 offen offset:16", RW + 4, RW + 7, VSK)
    for j in range(11): a("buffer_load_dwordx2 v[%d:%d], v%d, s[20:23], 0 offen", RK + 2 * j, RK + 2 * j + 1, VOFF + j)
    for j in range(8): a("buffer_load_dwordx2 v[%d:%d], v%d, s[24:27], 0 offen", RV + 2 * j, RV + 2 * j + 1, VOFF + 3 + j)
    for j in range(16):
        a("buffer_load_dwordx3 v[%d:%d], v%d, s[36:39], s55 offen", RM + 4 * j, RM + 4 * j + 2, VWM)
        if j < 15: a("s_add_u32 s55, s55, 12288")
    a("s_and_b32 s3, s2, 14"); a("s_cmp_eq_u32 s3, 14"); a("s_cselect_b32 s3, 0, -1")
    a("v_mov_b32 v%d, s3", TMP + 2)
    a("s_lshl_b32 s3, s2, 10")
    a("v_lshl_add_u32 v%d, v0, 2, s3", TMP + 3)
    a("buffer_store_dword v%d, v%d, s[48:51], 0 offen", TMP + 2, TMP + 3)
    nf = a.label("nf")
    a("s_cmp_ge_u32 s2, 4"); a("s_cbranch_scc1 %s", nf)
    a("v_mov_b32 v%d, 0", TMP + 4)
    a("v_add_u32 v%d, %d, v%d", TMP + 5, 256 * 1024, TMP + 3)
    a("buffer_store_dword v%d, v%d, s[48:51], 0 offen", TMP + 4, TMP + 5)
    a.put(nf)
    a("s_waitcnt vmcnt(%d)", 11 + 8 + 16 + 1)
    X, E = TMP + 1, TMP + 6
    a("v_lshlrev_b32 v%d, 16, v%d", X, X)
    a("v_mul_f32 v%d, %s, v%d", E, fhex(-LOG2E), X)
    a("v_exp_f32 v%d, v%d", E, E)
    for c in range(4):
        for t in range(4):
            dst = UW + (t * 2 + (c >> 1)) * 2 + (c & 1)
            src = RW + 2 * c + (t >> 1)
            if t & 1: a("v_and_b32 v%d, 0xffff0000, v%d", dst, src)
            else: a("v_lshlrev_b32 v%d, 16, v%d", dst, src)
    a("v_add_f32 v%d, 1.0, v%d", E, E)
    a("v_rcp_f32 v%d, v%d", E, E)
    a("s_nop 0")
    a("v_mul_f32 v%d, v%d, v%d", X, X, E)
    a("v_cvt_pk_bf16_f32 v%d, v%d, v%d", X, X, X)
    a("v_lshlrev_b32 v%d, 16, v%d", X, X)
    a("s_nop 0")
    for j in range(16): a("v_readlane_b32 s%d, v%d, %d", 60 + 2 * j, X, j)
    a("s_waitcnt vmcnt(%d)", 8 + 16 + 1)
    a.st()
    for j in range(11):
        for d in range(2): unpack(a, UK + 4 * j + 2 * d, UK + 4 * j + 2 * d + 1, RK + 2 * j + d)
    for j in range(8):
        for p in range(2):
            dst = RES + 4 * j + 2 * p
            a("v_pk_mul_f32 v[%d:%d], v[%d:%d], v[%d:%d]", dst, dst + 1, UK + 4 * j + 2 * p, UK + 4 * j + 2 * p + 1, UW + (3 * 2 + p) * 2, UW + (3 * 2 + p) * 2 + 1)
            for t in (2, 1, 0):
                kk = UK + 4 * (j + 3 - t) + 2 * p
                w = UW + (t * 2 + p) * 2
                a("v_pk_fma_f32 v[%d:%d], v[%d:%d], v[%d:%d], v[%d:%d]", dst, dst + 1, kk, kk + 1, w, w + 1, dst, dst + 1)
    a("s_waitcnt vmcnt(%d)", 16 + 1)
    for j in range(8):
        for p in range(2):
            t0 = UK + 4 * j + 2 * p
            unpack(a, t0, t0 + 1, RV + 2 * j + p)
    for j in range(8):
        for p in range(2):
            dst = RES + 4 * j + 2 * p; t0 = UK + 4 * j + 2 * p
            a("v_pk_mul_f32 v[%d:%d], v[%d:%d], v[%d:%d]", dst, dst + 1, dst, dst + 1, t0, t0 + 1)
    PK = RK
    for c in range(4):
        for m in range(4):
            a("v_cvt_pk_bf16_f32 v%d, v%d, v%d", PK + 4 * c + m, RES + 4 * (7 - 2 * m) + c, RES + 4 * (6 - 2 * m) + c)
    a("v_sub_u32 v%d, 7, v%d", TMP + 2, VRG)
    a("v_and_b32 v%d, 7, v%d", TMP + 3, VCG)
    a("v_xor_b32 v%d, v%d, v%d", TMP + 2, TMP + 2, TMP + 3)
    a("v_lshlrev_b32 v%d, 4, v%d", TMP + 2, TMP + 2)
    a("v_lshl_add_u32 v%d, v%d, 9, v%d", TMP + 2, VCG, TMP + 2)
    for c in range(4): a("ds_write_b128 v%d, v[%d:%d] offset:%d", TMP + 2, PK + 4 * c, PK + 4 * c + 3, 128 * c)
    a.st()
    for j in range(16):
        a("s_waitcnt vmcnt(%d)", 15 - j + 1)
        for d in range(3): unpack(a, UK + 2 * d, UK + 2 * d + 1, RM + 4 * j + d)
        for d in range(3):
            if j == 0:
                a("v_pk_mul_f32 v[%d:%d], v[%d:%d], s[%d:%d] op_sel_hi:[1,0]", ACC + 2 * d, ACC + 2 * d + 1, UK + 2 * d, UK + 2 * d + 1, 60, 61)
            else:
                a("v_pk_fma_f32 v[%d:%d], v[%d:%d], s[%d:%d], v[%d:%d] op_sel_hi:[1,0,1]", ACC + 2 * d, ACC + 2 * d + 1, UK + 2 * d, UK + 2 * d + 1, 60 + 2 * j, 61 + 2 * j, ACC + 2 * d, ACC + 2 * d + 1)
    a("s_mul_i32 s3, s18, 1536"); a("s_add_u32 s3, s3, 16384")
    a("v_mul_u32_u24 v%d, 24, v%d", TMP + 3, VL)
    a("v_add_u32 v%d, s3, v%d", TMP + 3, TMP + 3)
    for d in range(3): a("ds_write_b64 v%d, v[%d:%d] offset:%d", TMP + 3, ACC + 2 * d, ACC + 2 * d + 1, 8 * d)
    a("v_lshrrev_b32 v%d, 3, v0", TMP + 4)
    a("v_and_b32 v%d, 7, v0", TMP + 5)
    a("v_lshrrev_b32 v%d, 2, v%d", TMP + 6, TMP + 4)
    a("v_xor_b32 v%d, v%d, v%d", TMP + 6, TMP + 6, TMP + 5)
    a("v_lshlrev_b32 v%d, 4, v%d", TMP + 6, TMP + 6)
    a("v_lshl_add_u32 v%d, v%d, 7, v%d", TMP + 6, TMP + 4, TMP + 6)
    a("s_lshl_b32 s3, s17, 19"); a("s_lshl_b32 s19, s16, 7"); a("s_sub_u32 s3, s3, s19"); a("s_add_u32 s3, s3, %d", (2047 - 63) * 2)
    a("v_lshlrev_b32 v%d, 4, v%d", TMP + 5, TMP + 5)
    a("v_lshl_add_u32 v%d, v%d, 12, v%d", TMP + 5, TMP + 4, TMP + 5)
    a("v_add_u32 v%d, s3, v%d", TMP + 5, TMP + 5)
    a("v_lshlrev_b32 v%d, 3, v0", TMP + 7)
    a("s_waitcnt lgkmcnt(0)")
    a.st()
    a("s_barrier")
    for m in range(4): a("ds_read_b128 v[%d:%d], v%d offset:%d", RV + 4 * m, RV + 4 * m + 3, TMP + 6, 4096 * m)
    for w in range(4): a("ds_read_b64 v[%d:%d], v%d offset:%d", UK + 2 * w, UK + 2 * w + 1, TMP + 7, 16384 + 1536 * w)
    for m in range(4):
        a("s_mov_b32 s3, %d", m * 32 * 4096)
        a("s_waitcnt lgkmcnt(%d)", 7 - m)
        a("buffer_store_dwordx4 v[%d:%d], v%d, s[40:43], s3 offen", RV + 4 * m, RV + 4 * m + 3, TMP + 5)
    a.st_flush(241, 242)
    a("s_cmp_ge_u32 s18, 3"); a("s_cbranch_scc1 %s", end)
    a("s_waitcnt lgkmcnt(0)")
    a("v_pk_add_f32 v[%d:%d], v[%d:%d], v[%d:%d]", UK, UK + 1, UK, UK + 1, UK + 2, UK + 3)
    a("v_pk_add_f32 v[%d:%d], v[%d:%d], v[%d:%d]", UK + 4, UK + 5, UK + 4, UK + 5, UK + 6, UK + 7)
    a("v_pk_add_f32 v[%d:%d], v[%d:%d], v[%d:%d]", UK, UK + 1, UK, UK + 1, UK + 4, UK + 5)
    a("s_mul_i32 s3, s52, 24576"); a("s_mul_i32 s19, s53, 1536"); a("s_add_u32 s3, s3, s19")
    a("buffer_store_dwordx2 v[%d:%d], v%d, s[44:47], s3 offen", UK, UK + 1, TMP + 7)
    a.put(end)
    return a.text(), 244 if DIAG[0] else 236, 16384 + 6144 + 2048

CV_UR = 0; CV_C0 = 4608; CV_C1 = 4608 + 4160; CV_W = 12928
def gen_k2():
    a = Asm("k2")
    end = a.label("end"); fin = a.label("fin")
    a("s_cmp_ge_u32 s2, 256")
    a("s_cbranch_scc1 %s", end)
    a.st_init(1, 230)
    a("s_load_dwordx2 s[4:5], s[0:1], %d", A_SSMK)
    a("s_load_dwordx2 s[6:7], s[0:1], %d", A_SSMD)
    a("s_load_dwordx2 s[14:15], s[0:1], %d", A_WS)
    a("v_lshrrev_b32 v1, 6, v0")
    a("v_and_b32 v2, 63, v0")
    a("s_and_b32 s16, s2, 7"); a("s_lshr_b32 s17, s2, 3")
    a("v_readfirstlane_b32 s18, v1")
    a("s_lshl_b32 s16, s16, 7"); a("s_lshl_b32 s17, s17, 2"); a("s_add_u32 s16, s16, s17")
    a("s_add_u32 s16, s16, s18")
    a("s_waitcnt lgkmcnt(0)")
    a.srd(20, 4, 4 * MB); a.srd(24, 6, 2048); a.srd(28, 14, 4 * MB, WS_UR); a.srd(32, 14, 4 * MB, WS_YB)
    a.srd(36, 14, 16 * 24576, WS_MODP); a.srd(40, 14, 12288, WS_MOD)
    a("s_cmp_eq_u32 s18, 4"); a("s_cbranch_scc1 %s", fin)
    VL = 2
    RKr = 8
    ZR = 32
    SH = 36
    a("s_mul_i32 s19, s18, %d", CV_W)
    a("s_lshl_b32 s44, s16, 12")
    a("v_lshlrev_b32 v3, 4, v%d", VL)
    a("s_lshl_b32 s45, s16, 1")
    a("v_mov_b32 v4, s45")
    for m in range(4):
        a("s_add_u32 s46, s44, %d", 1024 * m)
        a("buffer_load_dwordx4 v[%d:%d], v3, s[20:23], s46 offen", RKr + 6 * m, RKr + 6 * m + 3)
        a("buffer_load_dword v%d, v3, s[20:23], s46 offen offset:16", RKr + 6 * m + 4)
    for m in range(4):
        a("s_add_u32 m0, s19, %d", CV_UR + 1024 * m)
        a("s_add_u32 s46, s44, %d", 1024 * m)
        a("buffer_load_dwordx4 v3, s[28:31], s46 offen lds")
    a("buffer_load_ushort v5, v4, s[24:27], 0 offen")
    for r in range(4): a("v_mov_b32 v%d, 0", ZR + r)
    a("v_add_u32 v6, s19, v3")
    a("s_mov_b64 s[48:49], exec")
    a("s_mov_b32 exec_hi, 0")
    a("ds_write_b128 v6, v[%d:%d] offset:%d", ZR, ZR + 3, CV_UR + 4096)
    a("s_mov_b64 exec, 3")
    a("ds_write_b128 v6, v[%d:%d] offset:%d", ZR, ZR + 3, CV_C0)
    a("s_mov_b64 exec, 1")
    a("ds_write_b128 v6, v[%d:%d] offset:%d", ZR, ZR + 3, CV_C1)
    a("s_mov_b64 exec, s[48:49]")
    VA, VB, VE = 56, 60, 61
    a("v_and_b32 v52, 15, v%d", VL)
    a("v_lshrrev_b32 v53, 4, v%d", VL)
    a("v_and_b32 v54, 4, v52"); a("v_lshlrev_b32 v54, 1, v54")
    a("v_lshrrev_b32 v55, 3, v52"); a("v_lshl_add_u32 v54, v55, 2, v54")
    a("v_and_b32 v55, 3, v52"); a("v_add3_u32 v54, v54, v55, 1")
    a("v_and_b32 v55, 1, v54"); a("v_mul_u32_u24 v55, 4160, v55")
    a("v_and_b32 v54, 30, v54"); a("v_lshl_add_u32 v55, v54, 1, v55")
    a("v_lshl_add_u32 v55, v53, 4, v55")
    a("s_add_u32 s46, s19, %d", CV_C0)
    a("v_add_u32 v%d, s46, v55", VA)
    for j in range(1, 4): a("v_add_u32 v%d, %d, v%d", VA + j, 1024 * j, VA)
    a("v_lshlrev_b32 v55, 5, v52"); a("v_sub_u32 v55, 480, v55"); a("v_lshl_add_u32 v55, v53, 4, v55")
    a("v_add_u32 v%d, s19, v55", VB)
    a("v_and_b32 v54, 1, v53"); a("v_lshlrev_b32 v54, 4, v54"); a("v_lshrrev_b32 v55, 1, v53"); a("v_lshl_add_u32 v54, v55, 3, v54")
    a("v_lshl_add_u32 v54, v52, 5, v54"); a("v_sub_u32 v54, 504, v54")
    a("v_add_u32 v%d, s19, v54", VE)
    VS = 62
    a("v_and_b32 v54, 1, v53"); a("v_lshl_add_u32 v54, v52, 1, v54"); a("v_lshl_add_u32 v54, v55, 5, v54")
    a("v_lshlrev_b32 v54, 14, v54"); a("s_lshl_b32 s46, s16, 4"); a("v_add_u32 v%d, s46, v54", VS)
    for m in range(4):
        a("s_waitcnt vmcnt(%d)", 5 + 2 * (3 - m))
        r = RKr + 6 * m
        a("ds_write_b128 v6, v[%d:%d] offset:%d", r, r + 3, CV_C0 + 32 + 1024 * m)
        for j in range(4): a("v_alignbit_b32 v%d, v%d, v%d, 16", SH + 4 * m + j, r + j + 1, r + j)
        a("ds_write_b128 v6, v[%d:%d] offset:%d", SH + 4 * m, SH + 4 * m + 3, CV_C1 + 32 + 1024 * m)
        if m == 0:
            a("v_lshlrev_b32 v%d, 16, v%d", ZR + 3, r)
            a("s_mov_b64 exec, 1")
            a("ds_write_b128 v6, v[%d:%d] offset:%d", ZR, ZR + 3, CV_C1 + 16)
            a("s_mov_b64 exec, s[48:49]")
    ACC = 64; FA = [96, 128]; FB = [160, 192]
    def loads(r, st):
        out = []
        def la(q):
            e = 8 * q + r
            base = VA + (e >> 4); o = (e & 15) * 16
            d = FA[st] + 4 * q
            out.append("ds_read2_b32 v[%d:%d], v%d offset0:%d offset1:%d" % (d, d + 1, base, o, o + 1))
            out.append("ds_read2_b32 v[%d:%d], v%d offset0:%d offset1:%d" % (d + 2, d + 3, base, o + 2, o + 3))
        def lb(t):
            c = 8 * t - r
            d = FB[st] + 4 * t
            out.append("ds_read_b128 v[%d:%d], v%d offset:%d" % (d, d + 3, VB, CV_UR + 64 * (56 - c)))
        la(0)
        for t in range(8): lb(t)
        for q in range(1, 8): la(q)
        return out
    a("s_waitcnt vmcnt(0) lgkmcnt(0)")
    a.st()
    a("v_lshlrev_b32 v5, 16, v5")
    for l in loads(0, 0): a(l)
    for r in range(8):
        st = r & 1
        nxt = loads(r + 1, st ^ 1) if r < 7 else []
        if r == 7:
            nxt = ["ds_read_b64 v[%d:%d], v%d offset:%d" % (FA[0] + 2 * t, FA[0] + 2 * t + 1, VE, CV_UR + 512 * (7 - t)) for t in range(8)]
        a("s_waitcnt lgkmcnt(0)")
        pairs = [(q, t) for q in range(8) for t in range(q, 8)]
        li = 0
        for n, (q, t) in enumerate(pairs):
            acc = ACC + 4 * t
            c = "0" if (r == 0 and q == 0) else v(acc, 4)
            a("v_mfma_f32_16x16x32_bf16 %s, %s, %s, %s", v(acc, 4), v(FA[st] + 4 * q, 4), v(FB[st] + 4 * (t - q), 4), c)
            if li < len(nxt):
                a(nxt[li]); li += 1
        assert li == len(nxt)
    a("s_waitcnt lgkmcnt(0)")
    a("s_nop 7")
    a.st()
    U = FA[0]; T = FA[1]; PKo = FB[0]
    for t in range(8):
        acc = ACC + 4 * t
        unpack(a, T + 3, T + 2, U + 2 * t)
        unpack(a, T + 1, T + 0, U + 2 * t + 1)
        for r in range(4): a("v_fmac_f32 v%d, v5, v%d", acc + r, T + r)
        a("v_cvt_pk_bf16_f32 v%d, v%d, v%d", PKo + 2 * t, acc, acc + 1)
        a("v_cvt_pk_bf16_f32 v%d, v%d, v%d", PKo + 2 * t + 1, acc + 2, acc + 3)
    a("s_nop 1")
    for t in range(0, 8, 2):
        R = PKo + 2 * t
        a("v_permlane32_swap_b32 v%d, v%d", R, R + 2)
        a("v_permlane32_swap_b32 v%d, v%d", R + 1, R + 3)
        a("s_mov_b32 s46, %d", t * 32 * 16384)
        a("buffer_store_dwordx4 v[%d:%d], v%d, s[32:35], s46 offen", R, R + 3, VS)
    a.st_flush(231, 232)
    a("s_branch %s", end)
    a.put(fin)
    a("s_mul_i32 s44, s2, 24")
    a("v_add_u32 v3, s44, v2")
    a("v_lshlrev_b32 v4, 2, v3")
    a("s_mov_b32 exec_lo, 0xffffff")
    a("s_mov_b32 exec_hi, 0")
    a("s_mov_b32 s45, 0")
    for p in range(16):
        a("buffer_load_dword v%d, v4, s[36:39], s45 offen", 8 + p)
        if p < 15: a("s_add_u32 s45, s45, 24576")
    a("v_lshrrev_b32 v5, 10, v3")
    a("v_cmp_eq_u32 s[46:47], 1, v5")
    a("v_cmp_eq_u32 vcc, 4, v5")
    a("s_nop 3")
    a("s_or_b64 vcc, vcc, s[46:47]")
    a("v_mov_b32 v6, 0")
    a("v_lshlrev_b32 v4, 1, v3")
    a("v_cndmask_b32_e64 v6, 0, 1.0, vcc")
    a("s_waitcnt vmcnt(0)")
    for w in (8, 4, 2, 1):
        for p in range(w): a("v_add_f32 v%d, v%d, v%d", 8 + p, 8 + p, 8 + p + w)
    a("v_cvt_pk_bf16_f32 v8, v8, v8")
    a("v_lshlrev_b32 v8, 16, v8")
    a("v_add_f32 v8, v8, v6")
    a("v_cvt_pk_bf16_f32 v8, v8, v8")
    a("buffer_store_short v8, v4, s[40:43], 0 offen")
    a.put(end)
    return a.text(), 236 if DIAG[0] else 224, 4 * CV_W

def wave_reduce8(a, S, T):
    a("s_nop 1")
    for base in (S, S + 4):
        a("v_permlane32_swap_b32 v%d, v%d", base, base + 2)
        a("v_permlane32_swap_b32 v%d, v%d", base + 1, base + 3)
    for base in (S, S + 4):
        a("v_add_f32 v%d, v%d, v%d", base, base, base + 2)
        a("v_add_f32 v%d, v%d, v%d", base + 1, base + 1, base + 3)
    a("s_nop 0")
    for base in (S, S + 4): a("v_permlane16_swap_b32 v%d, v%d", base, base + 1)
    for base in (S, S + 4): a("v_add_f32 v%d, v%d, v%d", base, base, base + 1)
    for dpp in ("quad_perm:[1,0,3,2]", "quad_perm:[2,3,0,1]", "row_ror:8"):
        a("s_nop 0")
        for base in (S, S + 4): a("v_add_f32_dpp v%d, v%d, v%d %s row_mask:0xf bank_mask:0xf", base, base, base, dpp)

def gen_k3():
    a = Asm("k3")
    end = a.label("end")
    a("s_cmp_ge_u32 s2, 256")
    a("s_cbranch_scc1 %s", end)
    a.st_init(2, 244)
    a("s_load_dwordx2 s[4:5], s[0:1], %d", A_Q)
    a("s_load_dwordx2 s[14:15], s[0:1], %d", A_WS)
    VL, VHF, VKK, VQ, VM, VY, VD, VRW, VRR = 1, 2, 3, 4, 5, 6, 7, 8, 9
    a("v_and_b32 v%d, 63, v0", VL)
    a("v_lshrrev_b32 v10, 6, v0")
    a("v_bfe_u32 v%d, v0, 2, 1", VHF)
    a("v_readfirstlane_b32 s18, v10")
    a("v_lshrrev_b32 v11, 3, v0"); a("v_and_b32 v12, 3, v0"); a("v_lshl_add_u32 v%d, v11, 2, v12", VKK)
    a("s_lshl_b32 s16, s2, 14")
    a("v_lshlrev_b32 v11, 13, v%d", VHF); a("v_lshl_add_u32 v11, v%d, 4, v11", VKK); a("v_add_u32 v%d, s16, v11", VQ)
    a("v_add_u32 v13, 4096, v%d", VQ)
    a("v_lshlrev_b32 v%d, 4, v%d", VM, VKK)
    a("v_lshrrev_b32 v11, 4, v%d", VL); a("v_and_b32 v12, 7, v%d", VL); a("v_xor_b32 v11, v11, v12")
    a("v_and_b32 v12, 56, v%d", VL); a("v_or_b32 v11, v11, v12"); a("v_lshlrev_b32 v%d, 4, v11", VD)
    a("v_xor_b32 v14, 64, v%d", VD)
    a("v_bfe_u32 v11, v%d, 1, 3", VKK); a("v_lshlrev_b32 v11, 4, v11")
    a("v_lshlrev_b32 v12, 7, v%d", VKK); a("v_lshl_add_u32 v12, v%d, 3, v12", VHF)
    YA = 16
    for i in range(8):
        a("v_xor_b32 v%d, %d, v11", YA + i, 16 * i); a("v_add_u32 v%d, v12, v%d", YA + i, YA + i)
    a("v_lshrrev_b32 v11, 4, v%d", VL); a("v_lshlrev_b32 v11, 2, v11"); a("v_lshl_add_u32 v11, v%d, 7, v11", VHF)
    a("s_lshl_b32 s17, s18, 5"); a("s_add_u32 s17, s17, 16384"); a("v_add_u32 v%d, s17, v11", VRW)
    a("v_lshlrev_b32 v%d, 7, v%d", VRR, VHF)
    a("v_and_b32 v11, 11, v%d", VL); a("v_cmp_eq_u32 s[50:51], 0, v11")
    a("s_waitcnt lgkmcnt(0)")
    a.srd(20, 4, 4 * MB); a.srd(24, 14, 4 * MB, WS_YB); a.srd(28, 14, 12288, WS_MOD); a.srd(32, 14, 4 * MB, WS_X1); a.srd(36, 14, 4 * MB, WS_H2)
    RQ = 24
    RP = 40
    Q = 64
    PR = 96
    RY = 136
    S = 152
    RS = 160
    MU = 192
    H = 200
    YU = 208
    for j in range(4): a("buffer_load_dwordx4 v[%d:%d], v%d, s[20:23], 0 offen offset:%d", RQ + 4 * j, RQ + 4 * j + 3, VQ if j < 2 else 13, 2048 * (j & 1))
    for u in range(4):
        a("s_lshl_b32 s19, s18, 12"); a("s_add_u32 m0, s19, %d", 1024 * u)
        a("s_add_u32 s19, s19, s16"); a("s_add_u32 s19, s19, %d", 1024 * u)
        a("buffer_load_dwordx4 v%d, s[24:27], s19 offen lds", VD if (u & 1) == 0 else 14)
    for p in range(5):
        a("s_mov_b32 s19, %d", 2048 * p)
        a("buffer_load_dwordx4 v[%d:%d], v%d, s[28:31], s19 offen", RP + 4 * p, RP + 4 * p + 3, VM)
    def stats(X):
        for j in range(4):
            x = X + 8 * j
            a("v_pk_add_f32 v[%d:%d], v[%d:%d], v[%d:%d]", H, H + 1, x, x + 1, x + 2, x + 3)
            a("v_pk_mul_f32 v[%d:%d], v[%d:%d], v[%d:%d]", H + 2, H + 3, x, x + 1, x, x + 1)
            a("v_pk_add_f32 v[%d:%d], v[%d:%d], v[%d:%d]", H + 4, H + 5, x + 4, x + 5, x + 6, x + 7)
            for e in (2, 4, 6): a("v_pk_fma_f32 v[%d:%d], v[%d:%d], v[%d:%d], v[%d:%d]", H + 2, H + 3, x + e, x + e + 1, x + e, x + e + 1, H + 2, H + 3)
            a("v_pk_add_f32 v[%d:%d], v[%d:%d], v[%d:%d]", H, H + 1, H, H + 1, H + 4, H + 5)
            a("v_add_f32 v%d, v%d, v%d", S + 4 + j, H + 2, H + 3)
            a("v_add_f32 v%d, v%d, v%d", S + j, H, H + 1)
        wave_reduce8(a, S, H)
    def cross(off):
        a("s_mov_b64 s[48:49], exec"); a("s_mov_b64 exec, s[50:51]")
        a("ds_write_b32 v%d, v%d offset:%d", VRW, S, off)
        a("ds_write_b32 v%d, v%d offset:%d", VRW, S + 4, off + 16)
        a("s_mov_b64 exec, s[48:49]")
    def cross2(off):
        for w in range(4):
            a("ds_read_b128 v[%d:%d], v%d offset:%d", RS + 8 * w, RS + 8 * w + 3, VRR, 16384 + off + 32 * w)
            a("ds_read_b128 v[%d:%d], v%d offset:%d", RS + 8 * w + 4, RS + 8 * w + 7, VRR, 16384 + off + 32 * w + 16)
    def cross3():
        for (d, s) in ((0, 8), (16, 24), (0, 16)):
            for e in range(0, 8, 2): a("v_pk_add_f32 v[%d:%d], v[%d:%d], v[%d:%d]", RS + d + e, RS + d + e + 1, RS + d + e, RS + d + e + 1, RS + s + e, RS + s + e + 1)
        for j in range(4):
            a("v_mul_f32 v%d, %s, v%d", RS + j, fhex(1.0 / 1024), RS + j)
        for j in range(4):
            a("v_mul_f32 v%d, v%d, v%d", RS + 8 + j, RS + j, RS + j)
        a("s_mov_b32 s19, %s", fhex(1.0 / 1024))
        for j in range(4):
            a("v_fma_f32 v%d, v%d, s19, -v%d", RS + 4 + j, RS + 4 + j, RS + 8 + j)
        for j in range(4):
            a("v_max_f32 v%d, 0, v%d", RS + 4 + j, RS + 4 + j)
        for j in range(4):
            a("v_add_f32 v%d, %s, v%d", RS + 4 + j, fhex(EPS), RS + 4 + j)
        for j in range(4):
            a("v_rsq_f32 v%d, v%d", MU + 2 * j, RS + 4 + j)
        a("s_nop 0")
        for j in range(4):
            a("v_mul_f32_e64 v%d, -v%d, v%d", MU + 2 * j + 1, RS + j, MU + 2 * j)
    a("s_waitcnt vmcnt(9)")
    a.st()
    for j in range(4):
        for d in range(4): unpack(a, Q + 8 * j + 2 * d, Q + 8 * j + 2 * d + 1, RQ + 4 * j + d)
    stats(Q)
    cross(0)
    a("s_waitcnt vmcnt(0) lgkmcnt(0)")
    a.st()
    a("s_barrier")
    cross2(0)
    for i in range(8): a("ds_read_b64 v[%d:%d], v%d", RY + 2 * i, RY + 2 * i + 1, YA + i)
    for p in range(5):
        for d in range(4): unpack(a, PR + 8 * p + 2 * d, PR + 8 * p + 2 * d + 1, RP + 4 * p + d)
    a("s_waitcnt lgkmcnt(8)")
    cross3()
    a("s_waitcnt lgkmcnt(0)")
    for i in range(8):
        unpack(a, YU + i, YU + 8 + i, RY + 2 * i)
        unpack(a, YU + 16 + i, YU + 24 + i, RY + 2 * i + 1)
    SA, CA, GA, SB, CB = PR, PR + 8, PR + 16, PR + 24, PR + 32
    def pk(r): return "v[%d:%d]" % (r, r + 1)
    for j in range(4):
        for e in range(0, 8, 2):
            q = Q + 8 * j + e; y = YU + 8 * j + e
            a("v_pk_fma_f32 %s, %s, %s, %s op_sel:[0,0,1] op_sel_hi:[1,0,1]", pk(H + e), pk(q), pk(MU + 2 * j), pk(MU + 2 * j))
        for e in range(0, 8, 2): a("v_pk_fma_f32 %s, %s, %s, %s", pk(H + e), pk(H + e), pk(CA + e), pk(SA + e))
        for e in range(0, 8, 2): a("v_pk_mul_f32 %s, %s, %s", pk(H + e), pk(H + e), pk(YU + 8 * j + e))
        for e in range(0, 8, 2): a("v_pk_fma_f32 %s, %s, %s, %s", pk(H + e), pk(H + e), pk(GA + e), pk(Q + 8 * j + e))
        for e in range(0, 8, 2): a("v_cvt_pk_bf16_f32 v%d, v%d, v%d", RQ + 4 * j + e // 2, H + e, H + e + 1)
        a("buffer_store_dwordx4 v[%d:%d], v%d, s[32:35], 0 offen offset:%d", RQ + 4 * j, RQ + 4 * j + 3, VQ if j < 2 else 13, 2048 * (j & 1))
        for d in range(4): unpack(a, Q + 8 * j + 2 * d, Q + 8 * j + 2 * d + 1, RQ + 4 * j + d)
    stats(Q)
    cross(256)
    a("s_waitcnt lgkmcnt(0)")
    a.st()
    a("s_barrier")
    cross2(256)
    a("s_waitcnt lgkmcnt(0)")
    cross3()
    for j in range(4):
        for e in range(0, 8, 2):
            a("v_pk_fma_f32 %s, %s, %s, %s op_sel:[0,0,1] op_sel_hi:[1,0,1]", pk(H + e), pk(Q + 8 * j + e), pk(MU + 2 * j), pk(MU + 2 * j))
        for e in range(0, 8, 2): a("v_pk_fma_f32 %s, %s, %s, %s", pk(H + e), pk(H + e), pk(CB + e), pk(SB + e))
        for e in range(0, 8, 2): a("v_cvt_pk_bf16_f32 v%d, v%d, v%d", RY + 4 * j + e // 2, H + e, H + e + 1)
        a("buffer_store_dwordx4 v[%d:%d], v%d, s[36:39], 0 offen offset:%d", RY + 4 * j, RY + 4 * j + 3, VQ if j < 2 else 13, 2048 * (j & 1))
    a.st_flush(245, 246)
    a.put(end)
    return a.text(), 248 if DIAG[0] else 240, 16384 + 512
```

```python
from asmlib import *
from gen_front import *
GC0 = -2.0 * 0.7978845608028654 * LOG2E
GC1 = GC0 * 0.044715
def pk(r): return "v[%d:%d]" % (r, r + 1)

class VmTrack:
    def __init__(self): self.ops = []
    def issue(self, tag): self.ops.append(tag)
    def wait_for(self, pred):
        last = -1
        for n, t in enumerate(self.ops):
            if pred(t): last = n
        if last < 0: return None
        cnt = len(self.ops) - 1 - last
        self.ops = self.ops[last + 1:]
        return cnt

def gelu_block(a, regs, SC, T):
    G = 4
    for g0 in range(0, len(regs), G):
        grp = regs[g0:g0 + G]
        t = [T + 2 * n for n in range(G)]
        for n, r in enumerate(grp): a("v_pk_mul_f32 %s, %s, %s", pk(t[n]), pk(r), pk(r))
        for n, r in enumerate(grp): a("v_pk_fma_f32 %s, %s, s[%d:%d], %s", pk(t[n]), pk(t[n]), SC, SC + 1, pk(T + 8))
        for n, r in enumerate(grp): a("v_pk_mul_f32 %s, %s, %s", pk(t[n]), pk(t[n]), pk(r))
        for n, r in enumerate(grp):
            a("v_exp_f32 v%d, v%d", t[n], t[n]); a("v_exp_f32 v%d, v%d", t[n] + 1, t[n] + 1)
        for n, r in enumerate(grp): a("v_pk_add_f32 %s, %s, %s", pk(t[n]), pk(t[n]), pk(T + 10))
        for n, r in enumerate(grp):
            a("v_rcp_f32 v%d, v%d", t[n], t[n]); a("v_rcp_f32 v%d, v%d", t[n] + 1, t[n] + 1)
        a("s_nop 0")
        for n, r in enumerate(grp): a("v_pk_mul_f32 %s, %s, %s", pk(r), pk(r), pk(t[n]))

LDS_Y = 65536
LDS_ST = 131072
LDS_FIN = 131072 + 2048
KG_LDS = 131072 + 3072
NZ, NG = 16, 32
NST = 2 * NZ + NG
EV = dict(pub=16, poll=19, chk=21, norm=22, drain=24, fpoll=26, fchk=28)

def gen_kg(ev=EV):
    a = Asm("kg")
    end = a.label("end"); prod = a.label("prod")
    a("s_cmp_ge_u32 s2, 256"); a("s_cbranch_scc1 %s", end)
    a("s_and_b32 s16, s2, 7"); a("s_lshr_b32 s17, s2, 3")
    a("s_cmp_ge_u32 s17, 28"); a("s_cbranch_scc1 %s", end)
    a.st_init(3, 30)
    a("s_load_dwordx2 s[4:5], s[0:1], %d", A_WIN)
    a("s_load_dwordx2 s[6:7], s[0:1], %d", A_WSP)
    a("s_load_dwordx2 s[8:9], s[0:1], %d", A_BSP)
    a("s_load_dwordx2 s[14:15], s[0:1], %d", A_WS)
    SI, SJ, SW = 12, 13, 18
    a("s_lshr_b32 s%d, s16, 1", SI); a("s_lshl_b32 s%d, s%d, 2", SI, SI); a("s_and_b32 s3, s17, 3"); a("s_add_u32 s%d, s%d, s3", SI, SI)
    a("s_and_b32 s%d, s16, 1", SJ); a("s_mul_i32 s%d, s%d, 7", SJ, SJ); a("s_lshr_b32 s3, s17, 2"); a("s_add_u32 s%d, s%d, s3", SJ, SJ)
    a("v_lshrrev_b32 v2, 6, v0")
    a("v_and_b32 v1, 63, v0")
    a("v_readfirstlane_b32 s%d, v2", SW)
    a("s_waitcnt lgkmcnt(0)")
    R_H2, R_WIN, R_WSP, R_Z2, R_ST, R_P, R_BSP = 20, 24, 28, 32, 36, 40, 44
    a.srd(R_H2, 14, 4 * MB, WS_H2); a.srd(R_WIN, 4, 1024 * 7168); a.srd(R_WSP, 6, 8 * MB)
    a.srd(R_Z2, 14, 14 * 524288, WS_Z2); a.srd(R_ST, 14, 256 * 1024 + 4096, WS_STATS); a.srd(R_P, 14, 16 * 56 * 8192, WS_P)
    a.srd(R_BSP, 8, 4096)
    a("s_cmp_ge_u32 s%d, 4", SW); a("s_cbranch_scc1 %s", prod)

    XA, YZ, YG, VSW, VSF, VZ, VP, VB = 2, 4, 8, 10, 11, 12, 13, 14
    T = 16; AA = 32; AB = 96; F = [160, 192]; ZK = 224; S = 224
    SWM, SWN = 48, 49
    a("s_and_b32 s%d, s%d, 1", SWM, SW); a("s_lshr_b32 s%d, s%d, 1", SWN, SW)
    c, h, g, r_, cq = 20, 21, 21, 22, 23
    a("v_and_b32 v%d, 15, v1", c); a("v_lshrrev_b32 v%d, 4, v1", h)
    a("v_bfe_u32 v%d, v1, 2, 2", r_); a("v_and_b32 v%d, 3, v1", cq)
    a("s_lshl_b32 s3, s%d, 7", SI); a("s_lshl_b32 s19, s%d, 6", SWM); a("s_add_u32 s3, s3, s19"); a("s_lshl_b32 s3, s3, 1")
    a("v_lshl_add_u32 v24, v%d, 1, s3", c)
    BS = [14, 15, 28, 29]
    for mt in range(4): a("buffer_load_ushort v%d, v24, s[%d:%d], 0 offen offset:%d", BS[mt], R_BSP, R_BSP + 3, 32 * mt)
    a("v_lshrrev_b32 v24, 1, v%d", c); a("v_xor_b32 v24, v24, v%d", h); a("v_lshlrev_b32 v24, 4, v24")
    a("v_lshl_add_u32 v24, v%d, 7, v24", c); a("s_lshl_b32 s3, s%d, 13", SWM); a("v_add_u32 v%d, s3, v24", XA)
    a("v_xor_b32 v%d, 64, v%d", XA + 1, XA)
    a("v_lshl_add_u32 v24, v%d, 3, v%d", g, r_); a("v_lshlrev_b32 v24, 8, v24"); a("v_lshl_add_u32 v24, v%d, 3, v24", cq)
    a("v_and_b32 v25, 1, v%d", g); a("v_xor_b32 v25, s%d, v25", SWN); a("v_lshl_add_u32 v24, v25, 7, v24")
    a("v_add_u32 v24, %d, v24", LDS_Y)
    for nt in range(4):
        a("v_xor_b32 v25, %d, v%d", nt, r_); a("v_lshl_add_u32 v%d, v25, 5, v24", YZ + nt)
    a("v_and_b32 v24, 1, v%d", g); a("v_lshl_add_u32 v24, v24, 3, v%d", r_)
    a("v_lshrrev_b32 v25, 1, v%d", cq); a("v_lshl_add_u32 v24, v25, 2, v24"); a("v_lshl_add_u32 v24, v25, 5, v24")
    a("v_lshrrev_b32 v25, 1, v%d", g); a("v_lshl_add_u32 v24, v25, 4, v24"); a("v_lshlrev_b32 v24, 4, v24")
    a("v_and_b32 v25, 1, v%d", cq); a("v_lshl_add_u32 v24, v25, 3, v24")
    a("s_lshl_b32 s3, s%d, 12", SWN); a("s_add_u32 s3, s3, %d", LDS_Y); a("v_add_u32 v%d, s3, v24", YG)
    a("v_xor_b32 v%d, 64, v%d", YG + 1, YG)
    a("s_lshl_b32 s3, s%d, 10", SWN); a("s_lshl_b32 s19, s%d, 9", SWM); a("s_add_u32 s3, s3, s19"); a("s_add_u32 s3, s3, %d", LDS_ST)
    a("v_lshl_add_u32 v%d, v1, 3, s3", VSW)
    a("s_add_u32 s3, s19, %d", LDS_FIN); a("v_lshl_add_u32 v%d, v%d, 3, s3", VSF, c)
    a("v_lshrrev_b32 v24, 1, v%d", h); a("v_lshlrev_b32 v24, 2, v24"); a("v_xor_b32 v24, v24, v%d", c); a("v_lshl_add_u32 v24, v%d, 4, v24", h)
    a("s_lshl_b32 s3, s%d, 19", SJ); a("s_lshl_b32 s19, s%d, 15", SI); a("s_add_u32 s3, s3, s19")
    a("s_lshl_b32 s19, s%d, 14", SWM); a("s_add_u32 s3, s3, s19"); a("s_lshl_b32 s19, s%d, 12", SWN); a("s_add_u32 s3, s3, s19")
    a("v_lshl_add_u32 v%d, v24, 4, s3", VZ)
    a("s_mul_i32 s3, s%d, 458752", SI); a("s_lshl_b32 s19, s%d, 15", SJ); a("s_add_u32 s3, s3, s19")
    a("s_lshl_b32 s19, s%d, 14", SWN); a("s_add_u32 s3, s3, s19"); a("s_lshl_b32 s19, s%d, 12", SWM); a("s_add_u32 s3, s3, s19")
    a("v_lshl_add_u32 v%d, v1, 4, s3", VP)
    SC = 52
    a("s_mov_b32 s%d, %s", SC, fhex(GC1)); a("s_mov_b32 s%d, %s", SC + 1, fhex(GC1))
    a("s_mov_b32 s54, 8192")
    def gelu_consts():
        a("v_mov_b32 v%d, %s", T + 8, fhex(GC0)); a("v_mov_b32 v%d, %s", T + 9, fhex(GC0))
        a("v_mov_b32 v%d, 1.0", T + 10); a("v_mov_b32 v%d, 1.0", T + 11)
    gelu_consts()

    def part_of(s): return "z2" if s < NZ else ("z1" if s < 2 * NZ else "g")
    def frag_loads(s, ks, fs):
        slot = s & 3; out = []
        def X(mt): out.append(("ds_read_b128 %s, v%d offset:%d" % (v(F[fs] + 4 * mt, 4), XA + ks, slot * 16384 + mt * 2048), "x", mt))
        def Y(nt):
            for hh in range(2):
                d = F[fs] + 16 + 4 * nt + 2 * hh
                if part_of(s) == "g":
                    out.append(("ds_read_b64_tr_b16 %s, v%d offset:%d" % (v(d, 2), YG + hh, slot * 16384 + (ks * 8 + nt) * 1024), "y", nt))
                else:
                    out.append(("ds_read_b64_tr_b16 %s, v%d offset:%d" % (v(d, 2), YZ + nt, slot * 16384 + (32 * ks + 4 * hh) * 256), "y", nt))
        X(0); Y(0); X(1); X(2); X(3); Y(1); Y(2); Y(3)
        return out
    def phase(acc, fs, first, nxt, waits):
        need = {}
        order = [("x", 0), ("y", 0), ("y", 0), ("x", 1), ("x", 2), ("x", 3), ("y", 1), ("y", 1), ("y", 2), ("y", 2), ("y", 3), ("y", 3)]
        for n, k in enumerate(order): need[k] = n
        done = -1; li = 0
        for nt in range(4):
            for mt in range(4):
                if waits:
                    p = max(need[("x", mt)], need[("y", nt)])
                    if p > done:
                        a("s_waitcnt lgkmcnt(%d)", min(15, 11 - p + li)); done = p
                d = acc + 4 * (mt * 4 + nt)
                a("v_mfma_f32_16x16x32_bf16 %s, %s, %s, %s", v(d, 4), v(F[fs] + 16 + 4 * nt, 4), v(F[fs] + 4 * mt, 4), "0" if first else v(d, 4))
                if li < len(nxt):
                    a(nxt[li][0]); li += 1
        assert li == len(nxt)
    def burst_z2():
        a("s_nop 7")
        gelu_block(a, [AA + 2 * n for n in range(32)], SC, T)
        for mt in range(4):
            x = AA + 16 * mt
            a("v_pk_add_f32 %s, %s, %s", pk(T), pk(x), pk(x + 2))
            a("v_pk_mul_f32 %s, %s, %s", pk(T + 2), pk(x), pk(x))
            a("v_pk_add_f32 %s, %s, %s", pk(T + 4), pk(x + 4), pk(x + 6))
            a("v_pk_mul_f32 %s, %s, %s", pk(T + 6), pk(x + 2), pk(x + 2))
            for e in range(4, 16, 4):
                a("v_pk_fma_f32 %s, %s, %s, %s", pk(T + 2), pk(x + e), pk(x + e), pk(T + 2))
                a("v_pk_fma_f32 %s, %s, %s, %s", pk(T + 6), pk(x + e + 2), pk(x + e + 2), pk(T + 6))
            for e in range(8, 16, 4):
                a("v_pk_add_f32 %s, %s, %s", pk(T), pk(T), pk(x + e))
                a("v_pk_add_f32 %s, %s, %s", pk(T + 4), pk(T + 4), pk(x + e + 2))
            a("v_pk_add_f32 %s, %s, %s", pk(T), pk(T), pk(T + 4))
            a("v_pk_add_f32 %s, %s, %s", pk(T + 2), pk(T + 2), pk(T + 6))
            a("v_add_f32 v%d, v%d, v%d", S + mt, T, T + 1)
            a("v_add_f32 v%d, v%d, v%d", S + 4 + mt, T + 2, T + 3)
        a("s_nop 1")
        for base in (S, S + 4):
            a("v_permlane32_swap_b32 v%d, v%d", base, base + 2)
            a("v_permlane32_swap_b32 v%d, v%d", base + 1, base + 3)
        for base in (S, S + 4):
            a("v_add_f32 v%d, v%d, v%d", base, base, base + 2)
            a("v_add_f32 v%d, v%d, v%d", base + 1, base + 1, base + 3)
        a("s_nop 0")
        for base in (S, S + 4): a("v_permlane16_swap_b32 v%d, v%d", base, base + 1)
        a("v_add_f32 v%d, v%d, v%d", S, S, S + 1)
        a("v_add_f32 v%d, v%d, v%d", S + 1, S + 4, S + 5)
        a("ds_write_b64 v%d, %s", VSW, pk(S))
        a("s_waitcnt lgkmcnt(0)")
    def burst_norm():
        for mt in range(4): a("ds_read_b64 %s, v%d offset:%d", pk(T + 2 * mt), VSF, 128 * mt)
        a("s_waitcnt lgkmcnt(0)")
        n = 0
        for mp in range(2):
            for nt in range(4):
                R = ZK + 4 * n; n += 1
                for q in range(2):
                    mt = 2 * mp + q; x = AA + 4 * (mt * 4 + nt)
                    for e in (0, 2): a("v_pk_fma_f32 %s, %s, %s, %s op_sel:[0,0,1] op_sel_hi:[1,0,1]", pk(x + e), pk(x + e), pk(T + 2 * mt), pk(T + 2 * mt))
                for q in range(2):
                    mt = 2 * mp + q; x = AA + 4 * (mt * 4 + nt)
                    for e in (0, 2): a("v_cvt_pk_bf16_f32 v%d, v%d, v%d", R + 2 * q + e // 2, x + e, x + e + 1)
                if n > 1: store_z(n - 2)
        a("s_nop 1")
        store_z(7)
    def store_z(n):
        R = ZK + 4 * n; mp, nt = n // 4, n % 4
        a("v_permlane16_swap_b32 v%d, v%d", R, R + 2)
        a("v_permlane16_swap_b32 v%d, v%d", R + 1, R + 3)
        a("buffer_store_dwordx4 %s, v%d, s[%d:%d], %s offen offset:%d sc1", v(R, 4), VZ, R_Z2, R_Z2 + 3, "s54" if mp else "0", 1024 * nt)
    def burst_z1():
        a("s_nop 7")
        gelu_consts()
        gelu_block(a, [AB + 2 * n for n in range(32)], SC, T)
    def burst_p():
        a("s_nop 7")
        for mt in range(4): a("v_lshlrev_b32 v%d, 16, v%d", T + 2 * mt, BS[mt])
        for pr in range(2):
            for mt in range(4):
                R = F[0] + 4 * (pr * 4 + mt)
                for q in range(2):
                    o = 4 * (mt * 4 + 2 * pr + q)
                    for e in (0, 2): a("v_pk_add_f32 %s, %s, %s op_sel_hi:[1,0]", pk(AA + o + e), pk(AA + o + e), pk(T + 2 * mt))
                for q in range(2):
                    o = 4 * (mt * 4 + 2 * pr + q)
                    for e in (0, 2): a("v_pk_mul_f32 %s, %s, %s", pk(AA + o + e), pk(AA + o + e), pk(AB + o + e))
                for q in range(2):
                    o = 4 * (mt * 4 + 2 * pr + q)
                    for e in (0, 2): a("v_cvt_pk_bf16_f32 v%d, v%d, v%d", R + 2 * q + e // 2, AA + o + e, AA + o + e + 1)
                a("buffer_store_dwordx4 %s, v%d, s[%d:%d], %s offen offset:%d", v(R, 4), VP, R_P, R_P + 3, "s54" if pr else "0", 1024 * mt)
    def cstage(s):
        p = part_of(s)
        acc = AB if p == "z1" else AA
        first = s in (0, NZ, 2 * NZ)
        phase(acc, 0, first, frag_loads(s, 1, 1), True)
        if s == ev["drain"]: a("s_waitcnt vmcnt(0) lgkmcnt(0)")
        else: a("s_waitcnt lgkmcnt(0)")
        a("s_barrier")
        if s % 4 == 3 or 12 <= s < 36: a.st()
        phase(acc, 1, False, frag_loads(s + 1, 0, 0) if s + 1 < NST else [], False)
        if s == NZ - 1: burst_z2()
        if s == ev["norm"]: burst_norm()
        if s == 2 * NZ - 1: burst_z1()
        if s == NST - 1: burst_p()
    a("s_waitcnt vmcnt(0)")
    a("s_barrier")
    a.st()
    for l in frag_loads(0, 0, 0): a(l[0])
    def cloop(s0, iters):
        lab = a.newlabel("cl")
        a("s_mov_b32 s50, %d", iters)
        a.put(lab)
        for s in range(s0, s0 + 4): cstage(s)
        a("s_sub_u32 s50, s50, 1"); a("s_cmp_lg_u32 s50, 0"); a("s_cbranch_scc1 %s", lab)
    for s in range(0, 4): cstage(s)
    cloop(4, 2)
    for s in range(12, 36): cstage(s)
    cloop(36, 6)
    for s in range(60, 64): cstage(s)
    a.st_flush(16, 17)
    a("s_branch %s", end)

    a.put(prod)
    XZ, XG, YZp, YGp, VPUB, VLD, VPOLL, VFIN, VFP, VONE, VZERO = 4, 8, 12, 16, 20, 21, 22, 23, 24, 25, 26
    PV = 48; SLX, SLY, SX, SY = 49, 50, 51, 52
    a("s_sub_u32 s%d, s%d, 4", PV, SW)
    a("s_lshl_b32 s%d, s%d, 10", SLX, PV)
    a("s_lshl_b32 s%d, s%d, 12", SLY, PV); a("s_add_u32 s%d, s%d, %d", SLY, SLY, LDS_Y)
    a("v_lshrrev_b32 v30, 4, v1"); a("s_and_b32 s3, s%d, 1", PV); a("s_lshl_b32 s3, s3, 2"); a("v_add_u32 v30, s3, v30")
    a("v_and_b32 v31, 7, v1"); a("v_xor_b32 v30, v30, v31"); a("v_lshlrev_b32 v30, 4, v30")
    a("v_lshrrev_b32 v31, 3, v1"); a("s_lshl_b32 s3, s%d, 7", SI); a("s_lshl_b32 s19, s%d, 3", PV); a("s_add_u32 s3, s3, s19"); a("v_add_u32 v31, s3, v31")
    a("v_lshl_add_u32 v%d, v31, 11, v30", XZ); a("v_lshl_add_u32 v%d, v31, 12, v30", XG)
    for u in range(1, 4):
        a("v_add_u32 v%d, %d, v%d", XZ + u, u * 32 * 2048, XZ); a("v_add_u32 v%d, %d, v%d", XG + u, u * 32 * 4096, XG)
    a("v_lshrrev_b32 v30, 4, v1"); a("v_bfe_u32 v31, v1, 1, 3"); a("v_xor_b32 v31, v31, v30"); a("v_lshlrev_b32 v31, 5, v31")
    a("v_and_b32 v32, 1, v1"); a("v_lshl_add_u32 v31, v32, 4, v31")
    a("s_lshl_b32 s3, s%d, 4", PV); a("v_add_u32 v30, s3, v30"); a("v_mul_u32_u24 v30, 7168, v30")
    a("s_lshl_b32 s3, s%d, 8", SJ); a("v_add_u32 v30, s3, v30")
    for u in range(4):
        if u == 2: a("v_xor_b32 v31, 128, v31")
        a("v_add_u32 v32, %d, v30", u * 4 * 7168) if u else a("v_mov_b32 v32, v30")
        a("v_add_u32 v%d, v31, v32", YZp + u)
    a("s_lshl_b32 s3, s%d, 19", SJ); a("s_lshl_b32 s19, s%d, 12", PV); a("s_add_u32 s3, s3, s19")
    a("v_lshl_add_u32 v%d, v1, 4, s3", YGp)
    for u in range(1, 4): a("v_add_u32 v%d, %d, v%d", YGp + u, 1024 * u, YGp)
    a("s_lshl_b32 s3, s%d, 4", SI); a("s_add_u32 s3, s3, s%d", SJ); a("s_lshl_b32 s3, s3, 10")
    a("v_lshl_add_u32 v%d, v1, 4, s3", VPUB)
    a("v_lshlrev_b32 v%d, 4, v1", VLD); a("v_add_u32 v%d, %d, v%d", VLD, LDS_ST, VLD)
    a("v_lshrrev_b32 v30, 4, v1"); a("v_and_b32 v31, 15, v1"); a("v_lshlrev_b32 v30, 10, v30"); a("v_lshl_add_u32 v30, v31, 4, v30")
    a("s_lshl_b32 s3, s%d, 14", SI); a("s_lshl_b32 s19, s%d, 8", PV); a("s_add_u32 s3, s3, s19"); a("v_add_u32 v%d, s3, v30", VPOLL)
    a("v_lshrrev_b32 v30, 5, v1"); a("v_lshl_add_u32 v30, v31, 1, v30"); a("s_add_u32 s3, s19, %d", LDS_FIN); a("v_lshl_add_u32 v%d, v30, 3, s3", VFIN)
    a("s_lshl_b32 s3, s%d, 7", SJ); a("s_add_u32 s3, s3, %d", 256 * 1024); a("v_lshl_add_u32 v%d, v31, 2, s3", VFP)
    a("s_lshl_b32 s19, s%d, 2", SI); a("s_add_u32 s53, s3, s19")
    a("v_mov_b32 v%d, 1", VONE); a("v_mov_b32 v%d, 0", VZERO)
    for u in range(1, 4): a("s_mov_b32 s%d, %d", 56 + u, 4096 * u)
    vt = VmTrack()
    def issue(s, track=True):
        p = part_of(s); slot = s & 3
        if s == 0: a("s_mov_b32 s%d, 0", SX); a("s_mov_b32 s%d, 3584", SY)
        if s == NZ: a("s_mov_b32 s%d, 0", SX); a("s_mov_b32 s%d, 0", SY)
        if s == 2 * NZ: a("s_mov_b32 s%d, 0", SX); a("s_mov_b32 s%d, 0", SY)
        for u in range(4):
            a("s_add_u32 m0, s%d, %d", SLX, slot * 16384 + u * 4096)
            a("s_nop 0")
            if p == "g": a("buffer_load_dwordx4 v%d, s[%d:%d], s%d offen lds", XG + u, R_WSP, R_WSP + 3, SX)
            else: a("buffer_load_dwordx4 v%d, s[%d:%d], s%d offen lds", XZ + u, R_H2, R_H2 + 3, SX)
            a("s_add_u32 m0, s%d, %d", SLY, slot * 16384 + u * 1024)
            a("s_nop 0")
            if p == "g": a("buffer_load_dwordx4 v%d, s[%d:%d], s%d offen sc1 lds", YGp + u, R_Z2, R_Z2 + 3, SY)
            else: a("buffer_load_dwordx4 v%d, s[%d:%d], s%d offen lds", YZp + u, R_WIN, R_WIN + 3, SY)
            vt.issue(("st", s)); vt.issue(("st", s))
        a("s_add_u32 s%d, s%d, 128", SX, SX)
        a("s_add_u32 s%d, s%d, %d", SY, SY, 16384 if p == "g" else 64 * 7168)
    def wait(pred, lg=False):
        n = vt.wait_for(pred)
        if n is not None: a("s_waitcnt vmcnt(%d)%s", n, " lgkmcnt(0)" if lg else "")
        elif lg: a("s_waitcnt lgkmcnt(0)")
    PS = 32
    def poll_loads():
        for u in range(4):
            a("buffer_load_dwordx4 %s, v%d, s[%d:%d], %s offen sc1", v(PS + 4 * u, 4), VPOLL, R_ST, R_ST + 3, "s%d" % (56 + u) if u else "0")
    def poll_check(out):
        first = True
        for u in range(4):
            for e in (1, 3):
                if first: a("v_cmp_eq_u32 vcc, -1, v%d", PS + 4 * u + e); first = False
                else:
                    a("v_cmp_eq_u32 s[60:61], -1, v%d", PS + 4 * u + e)
                    a("s_nop 0")
                    a("s_or_b64 vcc, vcc, s[60:61]")
        a("s_nop 4")
        a("s_cbranch_vccz %s", out)
    def spin(loads, check):
        ok = a.newlabel("ok"); again = a.newlabel("sp")
        check(ok)
        a("s_mov_b32 s62, 0")
        a.put(again)
        a("s_sleep 1")
        loads()
        a("s_add_u32 s62, s62, 1")
        a("s_cmp_gt_u32 s62, 0x40000"); a("s_cbranch_scc1 %s", ok)
        a("s_waitcnt vmcnt(0)")
        check(ok)
        a("s_branch %s", again)
        a.put(ok)
        a("s_waitcnt vmcnt(63)")
    def fpoll_load(): a("buffer_load_dword v48, v%d, s[%d:%d], 0 offen sc1", VFP, R_ST, R_ST + 3)
    def fpoll_check(out):
        a("v_cmp_eq_u32 vcc, 0, v48"); a("s_nop 4"); a("s_cbranch_vccz %s", out)
    def pstage(k):
        lg = (k == ev["chk"] + 1)
        wait(lambda t: t == ("st", k + 1), lg)
        a("s_barrier")
        if k == ev["fchk"]:
            wait(lambda t: t[0] == "fp")
            spin(fpoll_load, fpoll_check)
        if k + 4 < NST: issue(k + 4)
        if k == ev["pub"]:
            sk = a.newlabel("np")
            a("s_cmp_lg_u32 s%d, 0", PV); a("s_cbranch_scc1 %s", sk)
            a("ds_read_b128 v[32:35], v%d", VLD); a("ds_read_b128 v[36:39], v%d offset:1024", VLD)
            a("s_waitcnt lgkmcnt(0)")
            a("v_pk_add_f32 v[32:33], v[32:33], v[36:37]"); a("v_pk_add_f32 v[34:35], v[34:35], v[38:39]")
            a("buffer_store_dwordx4 v[32:35], v%d, s[%d:%d], 0 offen sc1", VPUB, R_ST, R_ST + 3)
            a("s_nop 1")
            a.put(sk)
        if k == ev["poll"]:
            poll_loads()
            for u in range(4): vt.issue(("sp", u))
        if k == ev["chk"]:
            wait(lambda t: t[0] == "sp")
            spin(poll_loads, poll_check)
            for (d, s) in ((0, 4), (8, 12), (0, 8)):
                for e in (0, 2): a("v_pk_add_f32 %s, %s, %s", pk(PS + d + e), pk(PS + d + e), pk(PS + s + e))
            a("s_nop 1")
            a("v_permlane32_swap_b32 v%d, v%d", PS, PS + 2); a("v_permlane32_swap_b32 v%d, v%d", PS + 1, PS + 3)
            a("v_add_f32 v%d, v%d, v%d", PS, PS, PS + 2); a("v_add_f32 v%d, v%d, v%d", PS + 1, PS + 1, PS + 3)
            a("v_mov_b32 v%d, v%d", PS + 2, PS); a("v_mov_b32 v%d, v%d", PS + 3, PS + 1)
            a("s_nop 1")
            a("v_permlane16_swap_b32 v%d, v%d", PS + 2, PS); a("v_permlane16_swap_b32 v%d, v%d", PS + 3, PS + 1)
            a("v_add_f32 v%d, v%d, v%d", PS, PS, PS + 2); a("v_add_f32 v%d, v%d, v%d", PS + 1, PS + 1, PS + 3)
            a("s_mov_b32 s62, %s", fhex(1.0 / 1792))
            a("v_mul_f32 v%d, s62, v%d", PS, PS)
            a("v_mul_f32 v%d, v%d, v%d", PS + 2, PS, PS)
            a("v_fma_f32 v%d, v%d, s62, -v%d", PS + 1, PS + 1, PS + 2)
            a("v_max_f32 v%d, 0, v%d", PS + 1, PS + 1)
            a("v_add_f32 v%d, %s, v%d", PS + 1, fhex(EPS), PS + 1)
            a("v_rsq_f32 v%d, v%d", PS + 2, PS + 1)
            a("s_nop 0")
            a("v_mul_f32_e64 v%d, -v%d, v%d", PS + 3, PS, PS + 2)
            a("ds_write_b64 v%d, %s", VFIN, pk(PS + 2))
        if k == ev["drain"]:
            sk = a.newlabel("nf")
            a("s_cmp_lg_u32 s%d, 0", PV); a("s_cbranch_scc1 %s", sk)
            a("s_mov_b64 s[60:61], exec"); a("s_mov_b64 exec, 1")
            a("buffer_store_dword v%d, v%d, s[%d:%d], s53 offen sc1", VONE, VZERO, R_ST, R_ST + 3)
            a("s_mov_b64 exec, s[60:61]")
            a.put(sk)
        if k == ev["fpoll"]:
            fpoll_load(); vt.issue(("fp", 0))
    for s in range(4): issue(s)
    wait(lambda t: t == ("st", 0))
    a("s_barrier")
    def ploop(k0, iters):
        lab = a.newlabel("pl")
        a("s_mov_b32 s63, %d", iters)
        a.put(lab)
        before = [t[0] for t in vt.ops]
        for k in range(k0, k0 + 4): pstage(k)
        assert [t[0] for t in vt.ops] == before
        a("s_sub_u32 s63, s63, 1"); a("s_cmp_lg_u32 s63, 0"); a("s_cbranch_scc1 %s", lab)
        sh = 4 * (iters - 1)
        vt.ops = [(t[0], t[1] + sh) for t in vt.ops]
    ploop(0, 3)
    for k in range(12, 32): pstage(k)
    ploop(32, 7)
    for k in range(60, 64): pstage(k)
    a.put(end)
    return a.text(), 256, KG_LDS

K6_S = 6
K6_Y = K6_S * 16384
K6_LDS = K6_S * 24576
def gen_k6():
    a = Asm("k6")
    S_ = K6_S; NK = 28
    end = a.label("end"); prod = a.label("prod"); fin = a.label("fin")
    a("s_cmp_ge_u32 s2, 256"); a("s_cbranch_scc1 %s", end)
    a.st_init(4, 118)
    a("s_load_dwordx2 s[4:5], s[0:1], %d", A_WOUT)
    a("s_load_dwordx2 s[6:7], s[0:1], %d", A_OUT)
    a("s_load_dwordx2 s[14:15], s[0:1], %d", A_WS)
    a("s_and_b32 s16, s2, 7"); a("s_lshr_b32 s17, s2, 3")
    SI, SJ, SW = 12, 13, 18
    a("s_lshr_b32 s%d, s16, 1", SI); a("s_lshl_b32 s%d, s%d, 2", SI, SI); a("s_and_b32 s3, s17, 3"); a("s_add_u32 s%d, s%d, s3", SI, SI)
    a("s_and_b32 s%d, s16, 1", SJ); a("s_lshl_b32 s%d, s%d, 3", SJ, SJ); a("s_lshr_b32 s3, s17, 2"); a("s_add_u32 s%d, s%d, s3", SJ, SJ)
    a("v_lshrrev_b32 v2, 6, v0")
    a("v_and_b32 v1, 63, v0")
    a("v_readfirstlane_b32 s%d, v2", SW)
    VO, VG, VSR = 120, 121, 122
    X1R, GBR = 124, 132
    a("v_lshrrev_b32 v3, 3, v0"); a("v_and_b32 v4, 7, v0")
    a("s_lshl_b32 s3, s%d, 18", SI); a("s_lshl_b32 s19, s%d, 7", SJ); a("s_add_u32 s3, s3, s19")
    a("v_lshlrev_b32 v5, 4, v4"); a("v_lshl_add_u32 v6, v3, 11, v5"); a("v_add_u32 v%d, s3, v6", VO)
    a("s_add_u32 s19, s19, %d", 5 * 2048); a("v_add_u32 v%d, s19, v5", VG)
    a("v_and_b32 v5, 7, v3"); a("v_xor_b32 v5, v5, v4"); a("v_lshlrev_b32 v5, 4, v5"); a("v_lshl_add_u32 v%d, v3, 7, v5", VSR)
    a("s_waitcnt lgkmcnt(0)")
    R_W, R_O, R_P, R_X1, R_M = 20, 24, 28, 32, 36
    a.srd(R_W, 4, 1792 * 2048); a.srd(R_O, 6, 4 * MB); a.srd(R_P, 14, 16 * 458752, WS_P); a.srd(R_X1, 14, 4 * MB, WS_X1); a.srd(R_M, 14, 12288, WS_MOD)
    a("s_mov_b32 s54, %d", 64 * 2048)
    a("s_cmp_ge_u32 s%d, 4", SW); a("s_cbranch_scc1 %s", prod)
    def final_loads():
        a("buffer_load_dwordx4 %s, v%d, s[%d:%d], 0 offen", v(X1R, 4), VO, R_X1, R_X1 + 3)
        a("buffer_load_dwordx4 %s, v%d, s[%d:%d], s54 offen", v(X1R + 4, 4), VO, R_X1, R_X1 + 3)
        a("buffer_load_dwordx4 %s, v%d, s[%d:%d], 0 offen", v(GBR, 4), VG, R_M, R_M + 3)
    final_loads()
    XA, YA, VSW = 2, 4, 8
    ACC = 16; F = [48, 72]
    c, g, r_, cq = 10, 11, 12, 13
    a("v_and_b32 v%d, 15, v1", c); a("v_lshrrev_b32 v%d, 4, v1", g); a("v_bfe_u32 v%d, v1, 2, 2", r_); a("v_and_b32 v%d, 3, v1", cq)
    a("s_lshl_b32 s3, s%d, 11", SW); a("v_lshl_add_u32 v%d, v1, 4, s3", XA); a("v_add_u32 v%d, 65536, v%d", XA + 1, XA)
    a("v_lshl_add_u32 v14, v%d, 2, v%d", g, r_); a("v_bfe_u32 v15, v14, 1, 2")
    a("v_lshlrev_b32 v14, 7, v14"); a("v_lshl_add_u32 v14, v%d, 3, v14", cq); a("v_add_u32 v14, %d, v14", K6_Y)
    for dt in range(4):
        a("v_xor_b32 v9, %d, v15", dt); a("v_lshl_add_u32 v%d, v9, 5, v14", YA + dt)
    a("v_lshrrev_b32 v14, 1, v%d", g); a("v_and_b32 v15, 7, v%d", c); a("v_xor_b32 v14, v14, v15"); a("v_lshlrev_b32 v14, 4, v14")
    a("v_and_b32 v15, 1, v%d", g); a("v_lshl_add_u32 v14, v15, 3, v14"); a("v_lshl_add_u32 v14, v%d, 7, v14", c)
    a("s_lshl_b32 s3, s%d, 12", SW); a("v_add_u32 v%d, s3, v14", VSW)
    def frag_loads(s, ks, fs):
        slot = s % S_; out = []
        def X(tt):
            o = slot * 16384 + ks * 8192 + tt * 1024
            out.append("ds_read_b128 %s, v%d offset:%d" % (v(F[fs] + 4 * tt, 4), XA + (o >> 16), o & 65535))
        def Y(dt):
            for hh in range(2):
                out.append("ds_read_b64_tr_b16 %s, v%d offset:%d" % (v(F[fs] + 8 + 4 * dt + 2 * hh, 2), YA + dt, slot * 8192 + (32 * ks + 16 * hh) * 128))
        X(0); Y(0); X(1); Y(1); Y(2); Y(3)
        return out
    def phase(fs, first, nxt, waits):
        need = {("x", 0): 0, ("y", 0): 2, ("x", 1): 3, ("y", 1): 5, ("y", 2): 7, ("y", 3): 9}
        done = -1; li = 0; n = 0
        for dt in range(4):
            for tt in range(2):
                if waits:
                    p = max(need[("x", tt)], need[("y", dt)])
                    if p > done:
                        a("s_waitcnt lgkmcnt(%d)", min(15, 9 - p + li)); done = p
                d = ACC + 4 * (tt * 4 + dt)
                a("v_mfma_f32_16x16x32_bf16 %s, %s, %s, %s", v(d, 4), v(F[fs] + 8 + 4 * dt, 4), v(F[fs] + 4 * tt, 4), "0" if first else v(d, 4))
                n += 1
                for _ in range(2 if n <= 2 else 1):
                    if li < len(nxt):
                        a(nxt[li]); li += 1
        assert li == len(nxt)
    def cstage(s):
        phase(0, s == 0, frag_loads(s, 1, 1), True)
        a("s_waitcnt lgkmcnt(0)")
        a("s_barrier")
        if s % 2 == 1: a.st()
        phase(1, False, frag_loads(s + 1, 0, 0) if s + 1 < NK else [], False)
    a("s_barrier")
    a.st()
    for l in frag_loads(0, 0, 0): a(l)
    for s in range(0, 6): cstage(s)
    lab = a.newlabel("cl")
    a("s_mov_b32 s50, 3")
    a.put(lab)
    for s in range(6, 12): cstage(s)
    a("s_sub_u32 s50, s50, 1"); a("s_cmp_lg_u32 s50, 0"); a("s_cbranch_scc1 %s", lab)
    for s in range(24, 28): cstage(s)
    a("s_nop 7")
    for tt in range(2):
        for dt in range(4):
            d = ACC + 4 * (tt * 4 + dt); R = F[0] + 2 * (tt * 4 + dt)
            a("v_cvt_pk_bf16_f32 v%d, v%d, v%d", R, d, d + 1); a("v_cvt_pk_bf16_f32 v%d, v%d, v%d", R + 1, d + 2, d + 3)
    for dt in range(4):
        if dt: a("v_xor_b32 v9, %d, v%d", 32 * dt, VSW)
        for tt in range(2):
            R = F[0] + 2 * (tt * 4 + dt)
            a("ds_write_b64 v%d, %s offset:%d", 9 if dt else VSW, pk(R), 2048 * tt)
    a("s_branch %s", fin)
    a.put(prod)
    XP, YP = 4, 8
    PV, SLX, SLY, SX, SY = 48, 49, 50, 51, 52
    a("s_sub_u32 s%d, s%d, 4", PV, SW)
    a("s_lshl_b32 s%d, s%d, 12", SLX, PV)
    a("s_lshl_b32 s%d, s%d, 11", SLY, PV); a("s_add_u32 s%d, s%d, %d", SLY, SLY, K6_Y)
    a("s_mul_i32 s3, s%d, 458752", SI); a("s_add_u32 s3, s3, s%d", SLX); a("v_lshl_add_u32 v%d, v1, 4, s3", XP)
    for u in range(1, 4): a("v_add_u32 v%d, %d, v%d", XP + u, 1024 * u, XP)
    a("v_lshrrev_b32 v10, 4, v1"); a("v_lshlrev_b32 v10, 1, v10"); a("v_and_b32 v11, 7, v1"); a("v_xor_b32 v10, v10, v11"); a("v_lshlrev_b32 v10, 4, v10")
    a("v_lshrrev_b32 v11, 3, v1"); a("v_lshl_add_u32 v10, v11, 11, v10")
    a("s_lshl_b32 s3, s%d, 15", PV); a("s_lshl_b32 s19, s%d, 7", SJ); a("s_add_u32 s3, s3, s19"); a("v_add_u32 v%d, s3, v10", YP)
    a("v_add_u32 v%d, %d, v%d", YP + 1, 8 * 2048, YP)
    a("s_mov_b32 s%d, 0", SX); a("s_mov_b32 s%d, 0", SY)
    vt = VmTrack()
    def issue(s):
        slot = s % S_
        for u in range(4):
            a("s_add_u32 m0, s%d, %d", SLX, slot * 16384 + u * 1024)
            a("s_nop 0")
            a("buffer_load_dwordx4 v%d, s[%d:%d], s%d offen lds", XP + u, R_P, R_P + 3, SX); vt.issue(("st", s))
            if u < 2:
                a("s_add_u32 m0, s%d, %d", SLY, slot * 8192 + u * 1024)
                a("s_nop 0")
                a("buffer_load_dwordx4 v%d, s[%d:%d], s%d offen lds", YP + u, R_W, R_W + 3, SY); vt.issue(("st", s))
        a("s_add_u32 s%d, s%d, 16384", SX, SX); a("s_add_u32 s%d, s%d, %d", SY, SY, 64 * 2048)
    def wait(pred):
        n = vt.wait_for(pred)
        if n is not None: a("s_waitcnt vmcnt(%d)", n)
    def pstage(k):
        wait(lambda t: t == ("st", k + 1))
        a("s_barrier")
        if k + S_ < NK: issue(k + S_)
        if k + S_ == NK:
            final_loads()
            for _ in range(3): vt.issue(("fl", 0))
    for s in range(S_): issue(s)
    wait(lambda t: t == ("st", 0))
    a("s_barrier")
    lab = a.newlabel("pl")
    a("s_mov_b32 s63, 3")
    a.put(lab)
    for k in range(0, 6): pstage(k)
    a("s_sub_u32 s63, s63, 1"); a("s_cmp_lg_u32 s63, 0"); a("s_cbranch_scc1 %s", lab)
    vt.ops = [(t[0], t[1] + 12) for t in vt.ops]
    for k in range(18, 28): pstage(k)
    a.put(fin)
    a("s_waitcnt vmcnt(0) lgkmcnt(0)")
    a("s_barrier")
    B = 48; U = 64; G = 96
    for rr in range(2): a("ds_read_b128 %s, v%d offset:%d", v(B + 4 * rr, 4), VSR, 8192 * rr)
    for d in range(4): unpack(a, G + 2 * d, G + 2 * d + 1, GBR + d)
    for rr in range(2):
        for d in range(4): unpack(a, U + 16 * rr + 8 + 2 * d, U + 16 * rr + 8 + 2 * d + 1, X1R + 4 * rr + d)
    for rr in range(2):
        a("s_waitcnt lgkmcnt(%d)", 1 - rr)
        for d in range(4): unpack(a, U + 16 * rr + 2 * d, U + 16 * rr + 2 * d + 1, B + 4 * rr + d)
        for d in range(4):
            x = U + 16 * rr + 2 * d
            a("v_pk_fma_f32 %s, %s, %s, %s", pk(x), pk(x), pk(G + 2 * d), pk(x + 8))
        for d in range(4):
            x = U + 16 * rr + 2 * d
            a("v_cvt_pk_bf16_f32 v%d, v%d, v%d", B + 8 + 4 * rr + d, x, x + 1)
        a("buffer_store_dwordx4 %s, v%d, s[%d:%d], %s offen", v(B + 8 + 4 * rr, 4), VO, R_O, R_O + 3, "s54" if rr else "0")
    a.st_flush(16, 17)
    a.put(end)
    return a.text(), 136, K6_LDS
```

```python
from asmlib import *
from gen_front import *
from gen_gemm import VmTrack, gelu_block, pk, GC0, GC1
P_Q, P_K, P_V, P_SK, P_SSMK, P_SSMD, P_BX, P_WIN, P_WSP, P_BSP, P_WOUT, P_C, P_WMOD, P_OUT, P_DBG, P_WS = [64 + 2 * n for n in range(16)]
SI, SJ, SJD, TAG, SX_, SIDX, SW = 12, 13, 14, 15, 16, 17, 18
R_SY = 44
SY0 = 256 * 1024
FA_OLD, FG, FC, FZ, FD, CB, WT = SY0, SY0 + 1024, SY0 + 2048, SY0 + 4096, SY0 + 6144, SY0 + 8192, SY0 + 12288
FB2, FX = SY0 + 16384, SY0 + 20480
CN, GOG, GOC, GOD = SY0 + 32768, SY0 + 49152, SY0 + 53248, SY0 + 57344
FAS = 128
L_T1 = 65536; L_GV = 81920; L_Y = 65536; L_ST = 131072; L_FIN = L_ST + 2048
L_QT = 135168; QROW = 2080; L_L1S = 151808; L_CNT = 151872
L_Y3 = 131072; L_CD = 98304
LDS_TOTAL = 163840
NZ, NG = 16, 32
NST = 2 * NZ + NG
EV = dict(pub=16, poll=19, chk=21, norm=22, drain=24, fpoll=26, fchk=28)
SPIN_MAX = 0x20000

FA = SY0 + 65536
def srdr(r): return "s[%d:%d]" % (r, r + 3)

def poll(a, vaddr, vt, target, soff="0", n=16, sleep=0):
    lp = a.newlabel("pl"); ok = a.newlabel("pk")
    a("s_mov_b32 s11, 0")
    a("s_mov_b32 exec_lo, 0x%x", (1 << n) - 1); a("s_mov_b32 exec_hi, 0")
    a.put(lp)
    a("buffer_load_dword v%d, v%d, %s, %s offen sc1", vt, vaddr, srdr(R_SY), soff)
    a("s_add_u32 s11, s11, 1")
    a("s_cmp_gt_u32 s11, %d", SPIN_MAX); a("s_cbranch_scc1 %s", ok)
    a("s_waitcnt vmcnt(0)")
    a("v_cmp_ne_u32 vcc, s%d, v%d", target, vt)
    if sleep: a("s_sleep %d", sleep)
    else: a("s_nop 4")
    a("s_cbranch_vccnz %s", lp)
    a.put(ok)
    a("s_mov_b64 exec, -1")

def lead_poll(a, pv, cnt, t0, fn):
    oth = a.newlabel("ot"); done = a.newlabel("dn"); lp = a.newlabel("lw")
    a("v_mov_b32 v%d, %d", t0, L_CNT + 4 * cnt if cnt < 8 else cnt)
    a("s_cmp_lg_u32 s%d, 0", pv); a("s_cbranch_scc1 %s", oth)
    fn()
    a("v_mov_b32 v%d, 1", t0 + 1)
    a("ds_write_b32 v%d, v%d", t0, t0 + 1)
    a("s_branch %s", done)
    a.put(oth)
    a("s_mov_b32 s11, 0")
    a.put(lp)
    a("ds_read_b32 v%d, v%d", t0 + 1, t0)
    a("s_add_u32 s11, s11, 1")
    a("s_cmp_gt_u32 s11, %d", SPIN_MAX * 16); a("s_cbranch_scc1 %s", done)
    a("s_waitcnt lgkmcnt(0)")
    a("v_readfirstlane_b32 s10, v%d", t0 + 1)
    a("s_sleep 1")
    a("s_cmp_eq_u32 s10, 0"); a("s_cbranch_scc1 %s", lp)
    a.put(done)
    a("s_waitcnt vmcnt(0)")

def flag_store(a, vtag, vzero, soff):
    a("s_mov_b64 s[10:11], exec"); a("s_mov_b64 exec, 1")
    a("buffer_store_dword v%d, v%d, %s, %s offen sc1", vtag, vzero, srdr(R_SY), soff)
    a("s_mov_b64 exec, s[10:11]")

def arrive(a, scnt, n, sgo, nrep, vtag, vzero, vrep, t0):
    nl = a.newlabel("ar")
    a("s_mov_b64 exec, 1")
    a("v_mov_b32 v%d, 1", t0)
    a("buffer_atomic_add v%d, v%d, %s, s%d offen sc0 sc1", t0, vzero, srdr(R_SY), scnt)
    a("s_add_u32 s10, s%d, %d", TAG, n - 1)
    a("s_waitcnt vmcnt(0)")
    a("v_readfirstlane_b32 s11, v%d", t0)
    a("s_mov_b64 exec, %d", (1 << nrep) - 1)
    a("s_cmp_lg_u32 s11, s10"); a("s_cbranch_scc1 %s", nl)
    a("buffer_store_dword v%d, v%d, %s, s%d offen sc1", vtag, vrep, srdr(R_SY), sgo)
    a.put(nl)
    a("s_mov_b64 exec, -1")

def lds_sync(a, cnt, t0, sleep=1):
    lp = a.newlabel("ls"); ok = a.newlabel("lk")
    a("v_mov_b32 v%d, %d", t0, L_CNT + 4 * cnt); a("v_mov_b32 v%d, 1", t0 + 1)
    a("s_waitcnt lgkmcnt(0)")
    a("s_mov_b64 s[10:11], exec"); a("s_mov_b64 exec, 1")
    a("ds_add_u32 v%d, v%d", t0, t0 + 1)
    a("s_mov_b64 exec, s[10:11]")
    a("s_mov_b32 s11, 0")
    a.put(lp)
    a("ds_read_b32 v%d, v%d", t0 + 1, t0)
    a("s_add_u32 s11, s11, 1")
    a("s_cmp_gt_u32 s11, %d", SPIN_MAX * 8); a("s_cbranch_scc1 %s", ok)
    a("s_waitcnt lgkmcnt(0)")
    a("v_readfirstlane_b32 s10, v%d", t0 + 1)
    a("s_sleep %d", sleep)
    a("s_cmp_lt_u32 s10, 4"); a("s_cbranch_scc1 %s", lp)
    a.put(ok)

def rstd_calc(a, sm, sq, tmp, out, inv_n):
    a("s_mov_b32 s10, %s", fhex(inv_n))
    a("v_mul_f32 v%d, s10, v%d", sm, sm)
    a("v_mul_f32 v%d, v%d, v%d", tmp, sm, sm)
    a("v_fma_f32 v%d, v%d, s10, -v%d", sq, sq, tmp)
    a("v_max_f32 v%d, 0, v%d", sq, sq)
    a("v_add_f32 v%d, %s, v%d", sq, fhex(EPS), sq)
    a("v_rsq_f32 v%d, v%d", out, sq)
    a("s_nop 0")
    a("v_mul_f32_e64 v%d, -v%d, v%d", out + 1, sm, out)

def gen_mega(ev=EV, opt=None):
    opt = opt or {}
    a = Asm("m")
    end = a.label("end"); prod = a.label("prod")
    a("s_cmp_ge_u32 s2, 256"); a("s_cbranch_scc1 %s", end)
    a.st_init(0, 250)
    a("s_load_dwordx16 s[64:79], s[0:1], 0")
    a("s_load_dwordx16 s[80:95], s[0:1], 64")
    a("v_lshrrev_b32 v2, 6, v0")
    a("v_and_b32 v1, 63, v0")
    a("s_and_b32 s%d, s2, 7", SX_); a("s_lshr_b32 s%d, s2, 3", SIDX)
    a("v_readfirstlane_b32 s%d, v2", SW)
    a("s_lshr_b32 s%d, s%d, 1", SI, SX_); a("s_lshl_b32 s%d, s%d, 2", SI, SI); a("s_and_b32 s3, s%d, 3", SIDX); a("s_add_u32 s%d, s%d, s3", SI, SI)
    a("s_and_b32 s19, s%d, 1", SX_); a("s_lshr_b32 s3, s%d, 2", SIDX)
    a("s_mul_i32 s%d, s19, 7", SJ); a("s_add_u32 s%d, s%d, s3", SJ, SJ)
    a("s_lshl_b32 s%d, s19, 3", SJD); a("s_add_u32 s%d, s%d, s3", SJD, SJD)
    a("v_mov_b32 v3, %d", WT)
    a("s_waitcnt lgkmcnt(0)")
    a.srd(R_SY, P_WS, SY0 + 65536 + 32768, WS_STATS)
    a("buffer_load_dword v2, v3, %s, 0 offen sc1", srdr(R_SY))
    def get_tag():
        a("v_readfirstlane_b32 s%d, v2", TAG)
        a("s_nop 0")
        a("s_mul_i32 s%d, s%d, 0x9E3779B1", TAG, TAG); a("s_add_u32 s%d, s%d, 0x7F4A7C15", TAG, TAG)
    a("s_cmp_ge_u32 s%d, 4", SW); a("s_cbranch_scc1 %s", prod)

    VCG, VRG = 3, 17
    VOFF, VSK = 4, 15
    RK, RV, RW, UK, UW, RES, TMP = 18, 40, 56, 128, 172, 188, 226
    VD_ = 240
    a.srd(20, P_K, 4 * MB); a.srd(24, P_V, 4 * MB); a.srd(28, P_SK, 8192); a.srd(32, P_WS, 4 * MB, WS_UR); a.srd(36, P_SSMD, 2048)
    a.srd(40, P_WS, 4 * MB, WS_YB)
    a("v_and_b32 v%d, 31, v0", VCG); a("v_lshrrev_b32 v%d, 5, v0", VRG)
    a("s_lshl_b32 s19, s%d, 17", SIDX); a("s_lshl_b32 s3, s%d, 8", SX_); a("s_add_u32 s19, s19, s3"); a("s_sub_u32 s19, s19, %d", 3 * 2048)
    a("v_lshlrev_b32 v%d, 14, v%d", VOFF, VRG); a("v_lshl_add_u32 v%d, v%d, 3, v%d", VOFF, VCG, VOFF); a("v_add_u32 v%d, s19, v%d", VOFF, VOFF)
    a("s_lshl_b32 s3, s%d, 10", SX_); a("v_lshl_add_u32 v%d, v%d, 5, s3", VSK, VCG)
    a("buffer_load_dwordx4 v[%d:%d], v%d, s[28:31], 0 offen", RW, RW + 3, VSK)
    a("buffer_load_dwordx4 v[%d:%d], v%d, s[28:31], 0 offen offset:16", RW + 4, RW + 7, VSK)
    for j in range(11):
        if j: a("v_add_u32 v%d, %d, v%d", VOFF + j, 2048 * j, VOFF)
        a("buffer_load_dwordx2 v[%d:%d], v%d, s[20:23], 0 offen", RK + 2 * j, RK + 2 * j + 1, VOFF + j)
    for j in range(8): a("buffer_load_dwordx2 v[%d:%d], v%d, s[24:27], 0 offen", RV + 2 * j, RV + 2 * j + 1, VOFF + 3 + j)
    SD = 48
    a("s_lshl_b32 s%d, s%d, 7", SD, SX_); a("s_lshl_b32 s3, s%d, 2", SIDX); a("s_add_u32 s%d, s%d, s3", SD, SD)
    a("s_add_u32 s49, s%d, s%d", SD, SW)
    a("s_lshl_b32 s3, s49, 1"); a("v_mov_b32 v%d, s3", TMP)
    a("buffer_load_ushort v%d, v%d, s[36:39], 0 offen", VD_, TMP)
    a("s_barrier")
    a("s_waitcnt vmcnt(20)")
    get_tag()
    for c in range(4):
        for t in range(4):
            dst = UW + (t * 2 + (c >> 1)) * 2 + (c & 1); src = RW + 2 * c + (t >> 1)
            if t & 1: a("v_and_b32 v%d, 0xffff0000, v%d", dst, src)
            else: a("v_lshlrev_b32 v%d, 16, v%d", dst, src)
    a("s_and_b32 s3, s2, 14"); a("s_cmp_eq_u32 s3, 14"); a("s_cselect_b32 s3, 0, -1")
    a("v_mov_b32 v%d, s3", TMP + 2); a("s_lshl_b32 s3, s2, 10"); a("v_lshl_add_u32 v%d, v0, 2, s3", TMP + 3)
    VTAG, VZERO = 241, 242
    a("v_mov_b32 v%d, s%d", VTAG, TAG); a("v_mov_b32 v%d, 0", VZERO)
    a("s_waitcnt vmcnt(9)")
    a.st()
    for j in range(11):
        for d in range(2): unpack(a, UK + 4 * j + 2 * d, UK + 4 * j + 2 * d + 1, RK + 2 * j + d)
    for j in range(8):
        for p in range(2):
            dst = RES + 4 * j + 2 * p
            a("v_pk_mul_f32 %s, %s, %s", pk(dst), pk(UK + 4 * j + 2 * p), pk(UW + (3 * 2 + p) * 2))
            for t in (2, 1, 0):
                a("v_pk_fma_f32 %s, %s, %s, %s", pk(dst), pk(UK + 4 * (j + 3 - t) + 2 * p), pk(UW + (t * 2 + p) * 2), pk(dst))
    a("s_waitcnt vmcnt(1)")
    for j in range(8):
        for p in range(2): unpack(a, UK + 4 * j + 2 * p, UK + 4 * j + 2 * p + 1, RV + 2 * j + p)
    for j in range(8):
        for p in range(2): a("v_pk_mul_f32 %s, %s, %s", pk(RES + 4 * j + 2 * p), pk(RES + 4 * j + 2 * p), pk(UK + 4 * j + 2 * p))
    PK = RK
    for c in range(4):
        for m in range(4): a("v_cvt_pk_bf16_f32 v%d, v%d, v%d", PK + 4 * c + m, RES + 4 * (7 - 2 * m) + c, RES + 4 * (6 - 2 * m) + c)
    a("v_sub_u32 v%d, 7, v%d", TMP + 4, VRG); a("v_and_b32 v%d, 7, v%d", TMP + 5, VCG); a("v_xor_b32 v%d, v%d, v%d", TMP + 4, TMP + 4, TMP + 5)
    a("v_lshlrev_b32 v%d, 4, v%d", TMP + 4, TMP + 4); a("v_lshl_add_u32 v%d, v%d, 9, v%d", TMP + 4, VCG, TMP + 4); a("v_add_u32 v%d, %d, v%d", TMP + 4, L_T1, TMP + 4)
    for c in range(4): a("ds_write_b128 v%d, v[%d:%d] offset:%d", TMP + 4, PK + 4 * c, PK + 4 * c + 3, 128 * c)
    a("buffer_store_dword v%d, v%d, %s, 0 offen sc1", TMP + 2, TMP + 3, srdr(R_SY))
    nc = a.newlabel("nc")
    a("s_cmp_ge_u32 s2, 96"); a("s_cbranch_scc1 %s", nc)
    a("s_cmp_lg_u32 s%d, 0", SW); a("s_cbranch_scc1 %s", nc)
    a("s_lshl_b32 s3, s2, 7"); a("s_add_u32 s3, s3, %d", CN)
    flag_store(a, VTAG, VZERO, "s3")
    a.put(nc)
    a("v_lshrrev_b32 v%d, 3, v0", TMP + 4); a("v_and_b32 v%d, 7, v0", TMP + 5); a("v_lshrrev_b32 v%d, 2, v%d", TMP + 6, TMP + 4)
    a("v_xor_b32 v%d, v%d, v%d", TMP + 6, TMP + 6, TMP + 5); a("v_lshlrev_b32 v%d, 4, v%d", TMP + 6, TMP + 6)
    a("v_lshl_add_u32 v%d, v%d, 7, v%d", TMP + 6, TMP + 4, TMP + 6); a("v_add_u32 v%d, %d, v%d", TMP + 6, L_T1, TMP + 6)
    a("s_lshl_b32 s3, s%d, 19", SX_); a("s_lshl_b32 s19, s%d, 7", SIDX); a("s_sub_u32 s3, s3, s19"); a("s_add_u32 s3, s3, %d", (2047 - 63) * 2)
    a("v_lshlrev_b32 v%d, 4, v%d", TMP + 5, TMP + 5); a("v_lshl_add_u32 v%d, v%d, 12, v%d", TMP + 5, TMP + 4, TMP + 5); a("v_add_u32 v%d, s3, v%d", TMP + 5, TMP + 5)
    a("s_waitcnt lgkmcnt(0)")
    a.st()
    a("s_barrier")
    for m in range(4): a("ds_read_b128 v[%d:%d], v%d offset:%d", RV + 4 * m, RV + 4 * m + 3, TMP + 6, 4096 * m)
    for m in range(4):
        a("s_mov_b32 s3, %d", m * 32 * 4096)
        a("s_waitcnt lgkmcnt(%d)", 3 - m)
        a("buffer_store_dwordx4 v[%d:%d], v%d, s[32:35], s3 offen sc1", RV + 4 * m, RV + 4 * m + 3, TMP + 5)
    SLB = 50
    a("s_mul_i32 s%d, s%d, %d", SLB, SW, CV_W)
    a("s_nop 1")
    VA, VB, VE, VS, VSG, VSR_, VPA = 56, 60, 61, 62, 63, 4, 5
    a("v_and_b32 v52, 15, v1"); a("v_lshrrev_b32 v53, 4, v1")
    a("v_and_b32 v54, 4, v52"); a("v_lshlrev_b32 v54, 1, v54"); a("v_lshrrev_b32 v55, 3, v52"); a("v_lshl_add_u32 v54, v55, 2, v54")
    a("v_and_b32 v55, 3, v52"); a("v_add3_u32 v54, v54, v55, 1")
    a("v_and_b32 v55, 1, v54"); a("v_mul_u32_u24 v55, 4160, v55"); a("v_and_b32 v54, 30, v54"); a("v_lshl_add_u32 v55, v54, 1, v55")
    a("v_lshl_add_u32 v55, v53, 4, v55"); a("s_add_u32 s3, s%d, %d", SLB, CV_C0); a("v_add_u32 v%d, s3, v55", VA)
    for j in range(1, 4): a("v_add_u32 v%d, %d, v%d", VA + j, 1024 * j, VA)
    a("v_lshlrev_b32 v55, 5, v52"); a("v_sub_u32 v55, 480, v55"); a("v_lshl_add_u32 v55, v53, 4, v55"); a("v_add_u32 v%d, s%d, v55", VB, SLB)
    a("v_and_b32 v54, 1, v53"); a("v_lshlrev_b32 v54, 4, v54"); a("v_lshrrev_b32 v55, 1, v53"); a("v_lshl_add_u32 v54, v55, 3, v54")
    a("v_lshl_add_u32 v54, v52, 5, v54"); a("v_sub_u32 v54, 504, v54"); a("v_add_u32 v%d, s%d, v54", VE, SLB)
    a("v_and_b32 v54, 1, v53"); a("v_lshl_add_u32 v54, v52, 1, v54"); a("v_lshl_add_u32 v54, v55, 5, v54")
    a("v_lshlrev_b32 v54, 2, v54"); a("v_add_u32 v54, s%d, v54", SW); a("v_and_b32 v55, 7, v52"); a("v_xor_b32 v54, v54, v55")
    a("v_lshlrev_b32 v54, 4, v54"); a("v_add_u32 v%d, %d, v54", VS, L_T1)
    a("v_bfe_u32 v54, v0, 3, 3"); a("v_xor_b32 v54, v54, v0"); a("v_lshlrev_b32 v54, 4, v54"); a("v_add_u32 v%d, %d, v54", VSR_, L_T1)
    a("v_lshrrev_b32 v54, 2, v0"); a("v_lshlrev_b32 v54, 14, v54"); a("v_and_b32 v55, 3, v0"); a("v_lshl_add_u32 v54, v55, 4, v54")
    a("s_lshl_b32 s3, s%d, 4", SD); a("v_add_u32 v%d, s3, v54", VSG)
    a("v_and_b32 v54, 31, v1"); a("v_mul_u32_u24 v%d, %d, v54", VPA, FAS)
    a("v_lshlrev_b32 v3, 4, v1")
    a("s_waitcnt vmcnt(0)")
    a.st()
    a("s_barrier")
    nf = a.newlabel("nf")
    a("s_mul_i32 s51, s%d, %d", SX_, max(128, 32 * FAS)); a("s_add_u32 s51, s51, %d", FA)
    a("s_cmp_lg_u32 s%d, 0", SW); a("s_cbranch_scc1 %s", nf)
    a("s_mul_i32 s3, s%d, %d", SIDX, FAS); a("s_add_u32 s3, s3, s51")
    flag_store(a, VTAG, VZERO, "s3")
    a.put(nf)
    lead_poll(a, SW, 3, 8, lambda: poll(a, VPA, 6, TAG, "s51", n=32))
    a.st()
    a("s_lshl_b32 s52, s49, 12")
    for m in range(4):
        a("s_add_u32 m0, s%d, %d", SLB, CV_UR + 1024 * m)
        a("s_add_u32 s3, s52, %d", 1024 * m)
        a("buffer_load_dwordx4 v3, s[32:35], s3 offen sc1 lds")
    a("v_lshlrev_b32 v%d, 16, v%d", VD_, VD_)
    a("s_waitcnt vmcnt(0)")
    a("s_barrier")
    a.st()
    ACC = 64; FA_ = [96, 128]; FB_ = [160, 192]
    def cloads(r, st):
        out = []
        def la(q):
            e = 8 * q + r; base = VA + (e >> 4); o = (e & 15) * 16; d = FA_[st] + 4 * q
            out.append("ds_read2_b32 v[%d:%d], v%d offset0:%d offset1:%d" % (d, d + 1, base, o, o + 1))
            out.append("ds_read2_b32 v[%d:%d], v%d offset0:%d offset1:%d" % (d + 2, d + 3, base, o + 2, o + 3))
        def lb(t):
            d = FB_[st] + 4 * t
            out.append("ds_read_b128 v[%d:%d], v%d offset:%d" % (d, d + 3, VB, CV_UR + 64 * (56 - (8 * t - r))))
        la(0)
        for t in range(8): lb(t)
        for q in range(1, 8): la(q)
        return out
    for l in cloads(0, 0): a(l)
    for r in range(8):
        st = r & 1
        nxt = cloads(r + 1, st ^ 1) if r < 7 else ["ds_read_b64 v[%d:%d], v%d offset:%d" % (FA_[0] + 2 * t, FA_[0] + 2 * t + 1, VE, CV_UR + 512 * (7 - t)) for t in range(8)]
        a("s_waitcnt lgkmcnt(0)")
        li = 0
        for q in range(8):
            ts = list(range(q, 8))
            if q & 1: ts.reverse()
            for t in ts:
                acc = ACC + 4 * t
                a("v_mfma_f32_16x16x32_bf16 %s, %s, %s, %s", v(acc, 4), v(FA_[st] + 4 * q, 4), v(FB_[st] + 4 * (t - q), 4), "0" if (r == 0 and q == 0) else v(acc, 4))
                if li < len(nxt): a(nxt[li]); li += 1
        assert li == len(nxt)
    a("s_waitcnt lgkmcnt(0)")
    a("s_nop 7")
    a.st()
    U = FA_[0]; T = FA_[1]; PKo = FB_[0]
    for t in range(8):
        acc = ACC + 4 * t
        unpack(a, T + 3, T + 2, U + 2 * t); unpack(a, T + 1, T + 0, U + 2 * t + 1)
        for r in range(4): a("v_fmac_f32 v%d, v%d, v%d", acc + r, VD_, T + r)
        a("v_cvt_pk_bf16_f32 v%d, v%d, v%d", PKo + 2 * t, acc, acc + 1); a("v_cvt_pk_bf16_f32 v%d, v%d, v%d", PKo + 2 * t + 1, acc + 2, acc + 3)
    a("s_nop 1")
    for t in range(0, 8, 2):
        R = PKo + 2 * t
        a("v_permlane32_swap_b32 v%d, v%d", R, R + 2); a("v_permlane32_swap_b32 v%d, v%d", R + 1, R + 3)
        a("ds_write_b128 v%d, v[%d:%d] offset:%d", VS, R, R + 3, t * 32 * 64)
    lds_sync(a, 2, 8)
    for m in range(4): a("ds_read_b128 v[%d:%d], v%d offset:%d", 96 + 4 * m, 99 + 4 * m, VSR_, 4096 * m)
    for m in range(4):
        a("s_mov_b32 s3, %d", m * 64 * 16384)
        a("s_waitcnt lgkmcnt(%d)", 3 - m)
        a("buffer_store_dwordx4 v[%d:%d], v%d, s[40:43], s3 offen sc1", 96 + 4 * m, 99 + 4 * m, VSG)
    VHF, VKK, VQ, VM, VRW, VRR, VQ2, VQL, VLS = 2, 3, 4, 5, 8, 9, 13, 6, 7
    YA = 16
    RQ, RP, Q, PR, RY, S, RS, MU, H, YU = 24, 40, 64, 96, 136, 152, 160, 192, 200, 208
    HG = 160
    a.srd(20, P_WS, 12288, WS_MOD); a.srd(24, P_WS, 4 * MB, WS_X1); a.srd(28, P_WS, 4 * MB, WS_H2)
    a("v_bfe_u32 v%d, v0, 2, 1", VHF)
    a("v_lshrrev_b32 v11, 3, v0"); a("v_and_b32 v12, 3, v0"); a("v_lshl_add_u32 v%d, v11, 2, v12", VKK)
    a("s_lshl_b32 s3, s2, 14")
    a("v_lshlrev_b32 v11, 13, v%d", VHF); a("v_lshl_add_u32 v11, v%d, 4, v11", VKK); a("v_add_u32 v%d, s3, v11", VQ); a("v_add_u32 v%d, 4096, v%d", VQ2, VQ)
    a("v_lshlrev_b32 v%d, 4, v%d", VM, VKK)
    a("v_mul_u32_u24 v11, %d, v%d", 4 * QROW, VHF); a("v_add3_u32 v%d, v11, v%d, 0", VQL, VM); a("v_add_u32 v%d, %d, v%d", VQL, L_QT, VQL)
    a("v_lshlrev_b32 v11, 5, v%d", VHF); a("v_add_u32 v%d, %d, v11", VLS, L_L1S)
    a("v_bfe_u32 v11, v%d, 1, 3", VKK); a("v_lshlrev_b32 v11, 4, v11"); a("v_lshlrev_b32 v12, 7, v%d", VKK); a("v_lshl_add_u32 v12, v%d, 3, v12", VHF)
    for i in range(8):
        a("v_xor_b32 v%d, %d, v11", YA + i, 16 * i); a("v_add_u32 v%d, v12, v%d", YA + i, YA + i)
    a("v_lshrrev_b32 v11, 4, v1"); a("v_lshlrev_b32 v11, 2, v11"); a("v_lshl_add_u32 v11, v%d, 7, v11", VHF)
    a("s_lshl_b32 s3, s%d, 5", SW); a("s_add_u32 s3, s3, 16384"); a("v_add_u32 v%d, s3, v11", VRW)
    a("v_lshlrev_b32 v%d, 7, v%d", VRR, VHF)
    a("v_and_b32 v11, 11, v1"); a("v_cmp_eq_u32 s[52:53], 0, v11")
    a("v_lshlrev_b32 v10, 8, v1"); a("v_lshlrev_b32 v14, 2, v1"); a("v_mov_b32 v12, 1")
    a("s_waitcnt vmcnt(0)")
    a.st()
    a("s_barrier")
    nb = a.newlabel("nb"); na = a.newlabel("na")
    for j in range(4): a("ds_read_b128 v[%d:%d], v%d offset:%d", RQ + 4 * j, RQ + 4 * j + 3, VQL, QROW * j)
    for j in range(2): a("ds_read_b128 v[%d:%d], v%d offset:%d", MU + 4 * j, MU + 4 * j + 3, VLS, 16 * j)
    a("s_cmp_lg_u32 s%d, 0", SW); a("s_cbranch_scc1 %s", na)
    a("s_and_b32 s55, s2, 15"); a("s_lshl_b32 s3, s55, 7"); a("s_add_u32 s3, s3, %d", CN)
    a("s_mov_b64 exec, 1")
    a("buffer_atomic_add v12, v%d, %s, s3 offen sc0 sc1", VZERO, srdr(R_SY))
    a("s_add_u32 s54, s%d, 15", TAG); a("s_lshl_b32 s3, s55, 2"); a("s_add_u32 s3, s3, %d", FB2)
    a("s_lshl_b32 s55, s%d, 8", SX_); a("s_add_u32 s55, s55, %d", FB2)
    a("s_mov_b64 exec, -1")
    a.put(na)
    a("s_waitcnt lgkmcnt(0)")
    for j in range(4):
        for d in range(4): unpack(a, Q + 8 * j + 2 * d, Q + 8 * j + 2 * d + 1, RQ + 4 * j + d)
    for j in range(4):
        for e in range(0, 8, 2):
            a("v_pk_fma_f32 %s, %s, %s, %s op_sel:[0,0,1] op_sel_hi:[1,0,1]", pk(HG + 8 * j + e), pk(Q + 8 * j + e), pk(MU + 2 * j), pk(MU + 2 * j))
    a("s_cmp_lg_u32 s%d, 0", SW); a("s_cbranch_scc1 %s", nb)
    a("s_waitcnt vmcnt(0)")
    a("v_readfirstlane_b32 s19, v12")
    nl = a.newlabel("nl")
    a("s_mov_b64 exec, 0xff")
    a("s_cmp_lg_u32 s19, s54"); a("s_cbranch_scc1 %s", nl)
    a("buffer_store_dword v%d, v10, %s, s3 offen sc1", VTAG, srdr(R_SY))
    a.put(nl)
    poll(a, 14, 11, TAG, "s55", n=16)
    a("s_cmp_lg_u32 s2, 0"); a("s_cbranch_scc1 %s", nb)
    a("s_mov_b32 s3, %d", WT)
    flag_store(a, VTAG, VZERO, "s3")
    a.put(nb)
    a("s_barrier")
    a.st()
    for p in (1, 0, 2, 4, 3):
        a("s_mov_b32 s3, %d", 2048 * p)
        a("buffer_load_dwordx4 v[%d:%d], v%d, s[20:23], s3 offen sc1", RP + 4 * p, RP + 4 * p + 3, VM)
    SA, CA, GA, SB, CBp = PR, PR + 8, PR + 16, PR + 24, PR + 32
    def unp_param(p):
        for d in range(4): unpack(a, PR + 8 * p + 2 * d, PR + 8 * p + 2 * d + 1, RP + 4 * p + d)
    a("s_waitcnt vmcnt(3)")
    unp_param(1); unp_param(0)
    for j in range(4):
        for e in range(0, 8, 2): a("v_pk_fma_f32 %s, %s, %s, %s", pk(HG + 8 * j + e), pk(HG + 8 * j + e), pk(CA + e), pk(SA + e))
    a("s_waitcnt vmcnt(2)")
    unp_param(2)
    for j in range(4):
        for e in range(0, 8, 2): a("v_pk_mul_f32 %s, %s, %s", pk(HG + 8 * j + e), pk(HG + 8 * j + e), pk(GA + e))
    a.st()
    a("s_barrier")
    a.st()
    for i in range(8): a("ds_read_b64 v[%d:%d], v%d", RY + 2 * i, RY + 2 * i + 1, YA + i)
    a("s_waitcnt vmcnt(0)")
    unp_param(4); unp_param(3)
    for i in range(8):
        a("s_waitcnt lgkmcnt(%d)", 7 - i)
        unpack(a, YU + i, YU + 8 + i, RY + 2 * i); unpack(a, YU + 16 + i, YU + 24 + i, RY + 2 * i + 1)
    for j in range(4):
        for e in range(0, 8, 2): a("v_pk_fma_f32 %s, %s, %s, %s", pk(H + e), pk(HG + 8 * j + e), pk(YU + 8 * j + e), pk(Q + 8 * j + e))
        for e in range(0, 8, 2): a("v_cvt_pk_bf16_f32 v%d, v%d, v%d", RQ + 4 * j + e // 2, H + e, H + e + 1)
        for d in range(4): unpack(a, Q + 8 * j + 2 * d, Q + 8 * j + 2 * d + 1, RQ + 4 * j + d)
    for j in range(4):
        x = Q + 8 * j
        a("v_pk_add_f32 %s, %s, %s", pk(H), pk(x), pk(x + 2)); a("v_pk_mul_f32 %s, %s, %s", pk(H + 2), pk(x), pk(x))
        a("v_pk_add_f32 %s, %s, %s", pk(H + 4), pk(x + 4), pk(x + 6))
        for e in (2, 4, 6): a("v_pk_fma_f32 %s, %s, %s, %s", pk(H + 2), pk(x + e), pk(x + e), pk(H + 2))
        a("v_pk_add_f32 %s, %s, %s", pk(H), pk(H), pk(H + 4))
        a("v_add_f32 v%d, v%d, v%d", S + 4 + j, H + 2, H + 3); a("v_add_f32 v%d, v%d, v%d", S + j, H, H + 1)
    wave_reduce8(a, S, H)
    a("s_mov_b64 exec, s[52:53]")
    a("ds_write_b32 v%d, v%d", VRW, S); a("ds_write_b32 v%d, v%d offset:16", VRW, S + 4)
    a("s_mov_b64 exec, -1")
    a("s_waitcnt lgkmcnt(0)")
    a("s_barrier")
    a.st()
    for w in range(4):
        a("ds_read_b128 v[%d:%d], v%d offset:%d", RS + 8 * w, RS + 8 * w + 3, VRR, 16384 + 32 * w)
        a("ds_read_b128 v[%d:%d], v%d offset:%d", RS + 8 * w + 4, RS + 8 * w + 7, VRR, 16384 + 32 * w + 16)
    a("s_waitcnt lgkmcnt(0)")
    for (d, s) in ((0, 8), (16, 24), (0, 16)):
        for e in range(0, 8, 2): a("v_pk_add_f32 %s, %s, %s", pk(RS + d + e), pk(RS + d + e), pk(RS + s + e))
    a("s_mov_b32 s10, %s", fhex(1.0 / 1024))
    for j in range(4): a("v_mul_f32 v%d, s10, v%d", RS + j, RS + j)
    for j in range(4): a("v_mul_f32 v%d, v%d, v%d", RS + 8 + j, RS + j, RS + j)
    for j in range(4): a("v_fma_f32 v%d, v%d, s10, -v%d", RS + 4 + j, RS + 4 + j, RS + 8 + j)
    for j in range(4): a("v_max_f32 v%d, 0, v%d", RS + 4 + j, RS + 4 + j)
    for j in range(4): a("v_add_f32 v%d, %s, v%d", RS + 4 + j, fhex(EPS), RS + 4 + j)
    for j in range(4): a("v_rsq_f32 v%d, v%d", MU + 2 * j, RS + 4 + j)
    a("s_nop 0")
    for j in range(4): a("v_mul_f32_e64 v%d, -v%d, v%d", MU + 2 * j + 1, RS + j, MU + 2 * j)
    for j in range(4):
        for e in range(0, 8, 2):
            a("v_pk_fma_f32 %s, %s, %s, %s op_sel:[0,0,1] op_sel_hi:[1,0,1]", pk(H + e), pk(Q + 8 * j + e), pk(MU + 2 * j), pk(MU + 2 * j))
        for e in range(0, 8, 2): a("v_pk_fma_f32 %s, %s, %s, %s", pk(H + e), pk(H + e), pk(CBp + e), pk(SB + e))
        for e in range(0, 8, 2): a("v_cvt_pk_bf16_f32 v%d, v%d, v%d", RY + 4 * j + e // 2, H + e, H + e + 1)
        a("buffer_store_dwordx4 v[%d:%d], v%d, s[28:31], 0 offen offset:%d sc1", RY + 4 * j, RY + 4 * j + 3, VQ if j < 2 else VQ2, 2048 * (j & 1))
    a.st()
    a("s_waitcnt vmcnt(0)")
    a.st()
    a("s_barrier")
    nf = a.newlabel("nf")
    a("s_cmp_lg_u32 s%d, 0", SW); a("s_cbranch_scc1 %s", nf)
    a("s_lshr_b32 s3, s2, 4"); a("s_lshl_b32 s19, s3, 8"); a("s_add_u32 s19, s19, %d", GOC); a("s_lshl_b32 s3, s3, 7"); a("s_add_u32 s3, s3, %d", CN + 32 * 128)
    a("v_lshlrev_b32 v10, 7, v1")
    arrive(a, 3, 16, 19, 2, VTAG, VZERO, 10, 11)
    a.put(nf)
    for j in range(4):
        a("buffer_store_dwordx4 v[%d:%d], v%d, s[24:27], 0 offen offset:%d sc1", RQ + 4 * j, RQ + 4 * j + 3, VQ if j < 2 else VQ2, 2048 * (j & 1))
    a("s_nop 1")
    c_spare = a.label("cspare"); c_g3 = a.label("cg3")
    a("s_cmp_ge_u32 s%d, 28", SIDX); a("s_cbranch_scc1 %s", c_spare)

    if DIAG[0]: a("v_mov_b32 v31, v250"); a.diag = (0, 31)
    R_Z2, R_P, R_BSP = 32, 40, 36
    a.srd(R_Z2, P_WS, 14 * 524288, WS_Z2); a.srd(R_P, P_WS, 16 * 458752, WS_P); a.srd(R_BSP, P_BSP, 4096)
    XA, YZ, YG, VSW, VSF, VZ, VP = 2, 4, 8, 10, 11, 12, 13
    T = 16; AA = 32; AB = 96; F = [160, 192]; ZK = 224; S = 224
    SWM, SWN = 48, 49
    a("s_and_b32 s%d, s%d, 1", SWM, SW); a("s_lshr_b32 s%d, s%d, 1", SWN, SW)
    c, h, g, r_, cq = 20, 21, 21, 22, 23
    a("v_and_b32 v%d, 15, v1", c); a("v_lshrrev_b32 v%d, 4, v1", h); a("v_bfe_u32 v%d, v1, 2, 2", r_); a("v_and_b32 v%d, 3, v1", cq)
    a("s_lshl_b32 s3, s%d, 7", SI); a("s_lshl_b32 s19, s%d, 6", SWM); a("s_add_u32 s3, s3, s19"); a("s_lshl_b32 s3, s3, 1")
    a("v_lshl_add_u32 v24, v%d, 1, s3", c)
    BS = [14, 15, 28, 29]
    for mt in range(4): a("buffer_load_ushort v%d, v24, %s, 0 offen offset:%d", BS[mt], srdr(R_BSP), 32 * mt)
    a("v_lshrrev_b32 v24, 1, v%d", c); a("v_xor_b32 v24, v24, v%d", h); a("v_lshlrev_b32 v24, 4, v24")
    a("v_lshl_add_u32 v24, v%d, 7, v24", c); a("s_lshl_b32 s3, s%d, 13", SWM); a("v_add_u32 v%d, s3, v24", XA); a("v_xor_b32 v%d, 64, v%d", XA + 1, XA)
    a("v_lshl_add_u32 v24, v%d, 3, v%d", g, r_); a("v_lshlrev_b32 v24, 8, v24"); a("v_lshl_add_u32 v24, v%d, 3, v24", cq)
    a("v_and_b32 v25, 1, v%d", g); a("v_xor_b32 v25, s%d, v25", SWN); a("v_lshl_add_u32 v24, v25, 7, v24"); a("v_add_u32 v24, %d, v24", L_Y)
    for nt in range(4):
        a("v_xor_b32 v25, %d, v%d", nt, r_); a("v_lshl_add_u32 v%d, v25, 5, v24", YZ + nt)
    a("v_and_b32 v24, 1, v%d", g); a("v_lshl_add_u32 v24, v24, 3, v%d", r_)
    a("v_lshrrev_b32 v25, 1, v%d", cq); a("v_lshl_add_u32 v24, v25, 2, v24"); a("v_lshl_add_u32 v24, v25, 5, v24")
    a("v_lshrrev_b32 v25, 1, v%d", g); a("v_lshl_add_u32 v24, v25, 4, v24"); a("v_lshlrev_b32 v24, 4, v24")
    a("v_and_b32 v25, 1, v%d", cq); a("v_lshl_add_u32 v24, v25, 3, v24")
    a("s_lshl_b32 s3, s%d, 12", SWN); a("s_add_u32 s3, s3, %d", L_Y); a("v_add_u32 v%d, s3, v24", YG); a("v_xor_b32 v%d, 64, v%d", YG + 1, YG)
    a("s_lshl_b32 s3, s%d, 10", SWN); a("s_lshl_b32 s19, s%d, 9", SWM); a("s_add_u32 s3, s3, s19"); a("s_add_u32 s3, s3, %d", L_ST)
    a("v_lshl_add_u32 v%d, v1, 3, s3", VSW)
    a("s_add_u32 s3, s19, %d", L_FIN); a("v_lshl_add_u32 v%d, v%d, 3, s3", VSF, c)
    a("v_lshrrev_b32 v24, 1, v%d", h); a("v_lshlrev_b32 v24, 2, v24"); a("v_xor_b32 v24, v24, v%d", c); a("v_lshl_add_u32 v24, v%d, 4, v24", h)
    a("s_lshl_b32 s3, s%d, 19", SJ); a("s_lshl_b32 s19, s%d, 15", SI); a("s_add_u32 s3, s3, s19")
    a("s_lshl_b32 s19, s%d, 14", SWM); a("s_add_u32 s3, s3, s19"); a("s_lshl_b32 s19, s%d, 12", SWN); a("s_add_u32 s3, s3, s19")
    a("v_lshl_add_u32 v%d, v24, 4, s3", VZ)
    a("s_mul_i32 s3, s%d, 458752", SI); a("s_lshl_b32 s19, s%d, 15", SJ); a("s_add_u32 s3, s3, s19")
    a("s_lshl_b32 s19, s%d, 14", SWN); a("s_add_u32 s3, s3, s19"); a("s_lshl_b32 s19, s%d, 12", SWM); a("s_add_u32 s3, s3, s19")
    a("v_lshl_add_u32 v%d, v1, 4, s3", VP)
    SC = 52
    a("s_mov_b32 s%d, %s", SC, fhex(GC1)); a("s_mov_b32 s%d, %s", SC + 1, fhex(GC1)); a("s_mov_b32 s54, 8192")
    a("v_mov_b32 v%d, %s", T + 8, fhex(GC0)); a("v_mov_b32 v%d, %s", T + 9, fhex(GC0)); a("v_mov_b32 v%d, 1.0", T + 10); a("v_mov_b32 v%d, 1.0", T + 11)
    def part_of(s): return "z2" if s < NZ else ("z1" if s < 2 * NZ else "g")
    def frag_loads(s, ks, fs):
        slot = s & 3; out = []
        def X(mt): out.append("ds_read_b128 %s, v%d offset:%d" % (v(F[fs] + 4 * mt, 4), XA + ks, slot * 16384 + mt * 2048))
        def Y(nt):
            for hh in range(2):
                d = F[fs] + 16 + 4 * nt + 2 * hh
                if part_of(s) == "g": out.append("ds_read_b64_tr_b16 %s, v%d offset:%d" % (v(d, 2), YG + hh, slot * 16384 + (ks * 8 + nt) * 1024))
                else: out.append("ds_read_b64_tr_b16 %s, v%d offset:%d" % (v(d, 2), YZ + nt, slot * 16384 + (32 * ks + 4 * hh) * 256))
        X(0); Y(0); X(1); X(2); X(3); Y(1); Y(2); Y(3)
        return out
    def phase(acc, fs, first, nxt, waits):
        need = {("x", 0): 0, ("y", 0): 2, ("x", 1): 3, ("x", 2): 4, ("x", 3): 5, ("y", 1): 7, ("y", 2): 9, ("y", 3): 11}
        done = -1; li = 0
        for nt in range(4):
            for mt in (range(4) if nt % 2 == 0 else range(3, -1, -1)):
                if waits:
                    p = max(need[("x", mt)], need[("y", nt)])
                    if p > done:
                        a("s_waitcnt lgkmcnt(%d)", min(15, 11 - p + li)); done = p
                d = acc + 4 * (mt * 4 + nt)
                a("v_mfma_f32_16x16x32_bf16 %s, %s, %s, %s", v(d, 4), v(F[fs] + 16 + 4 * nt, 4), v(F[fs] + 4 * mt, 4), "0" if first else v(d, 4))
                if li < len(nxt): a(nxt[li]); li += 1
        assert li == len(nxt)
    def burst_z2():
        a("s_nop 7")
        gelu_block(a, [AA + 2 * n for n in range(32)], SC, T)
        for mt in range(4):
            x = AA + 16 * mt
            a("v_pk_add_f32 %s, %s, %s", pk(T), pk(x), pk(x + 2)); a("v_pk_mul_f32 %s, %s, %s", pk(T + 2), pk(x), pk(x))
            a("v_pk_add_f32 %s, %s, %s", pk(T + 4), pk(x + 4), pk(x + 6)); a("v_pk_mul_f32 %s, %s, %s", pk(T + 6), pk(x + 2), pk(x + 2))
            for e in range(4, 16, 4):
                a("v_pk_fma_f32 %s, %s, %s, %s", pk(T + 2), pk(x + e), pk(x + e), pk(T + 2))
                a("v_pk_fma_f32 %s, %s, %s, %s", pk(T + 6), pk(x + e + 2), pk(x + e + 2), pk(T + 6))
            for e in range(8, 16, 4):
                a("v_pk_add_f32 %s, %s, %s", pk(T), pk(T), pk(x + e)); a("v_pk_add_f32 %s, %s, %s", pk(T + 4), pk(T + 4), pk(x + e + 2))
            a("v_pk_add_f32 %s, %s, %s", pk(T), pk(T), pk(T + 4)); a("v_pk_add_f32 %s, %s, %s", pk(T + 2), pk(T + 2), pk(T + 6))
            a("v_add_f32 v%d, v%d, v%d", S + mt, T, T + 1); a("v_add_f32 v%d, v%d, v%d", S + 4 + mt, T + 2, T + 3)
        a("s_nop 1")
        for base in (S, S + 4):
            a("v_permlane32_swap_b32 v%d, v%d", base, base + 2); a("v_permlane32_swap_b32 v%d, v%d", base + 1, base + 3)
        for base in (S, S + 4):
            a("v_add_f32 v%d, v%d, v%d", base, base, base + 2); a("v_add_f32 v%d, v%d, v%d", base + 1, base + 1, base + 3)
        a("s_nop 0")
        for base in (S, S + 4): a("v_permlane16_swap_b32 v%d, v%d", base, base + 1)
        a("v_add_f32 v%d, v%d, v%d", S, S, S + 1); a("v_add_f32 v%d, v%d, v%d", S + 1, S + 4, S + 5)
        a("ds_write_b64 v%d, %s", VSW, pk(S))
        a("s_waitcnt lgkmcnt(0)")
    def store_z(n):
        R = ZK + 4 * n; mp, nt = n // 4, n % 4
        a("v_permlane16_swap_b32 v%d, v%d", R, R + 2); a("v_permlane16_swap_b32 v%d, v%d", R + 1, R + 3)
        a("buffer_store_dwordx4 %s, v%d, %s, %s offen offset:%d sc1", v(R, 4), VZ, srdr(R_Z2), "s54" if mp else "0", 1024 * nt)
    def burst_norm():
        for mt in range(4): a("ds_read_b64 %s, v%d offset:%d", pk(T + 2 * mt), VSF, 128 * mt)
        a("s_waitcnt lgkmcnt(0)")
        n = 0
        for mp in range(2):
            for nt in range(4):
                R = ZK + 4 * n; n += 1
                for q in range(2):
                    mt = 2 * mp + q; x = AA + 4 * (mt * 4 + nt)
                    for e in (0, 2): a("v_pk_fma_f32 %s, %s, %s, %s op_sel:[0,0,1] op_sel_hi:[1,0,1]", pk(x + e), pk(x + e), pk(T + 2 * mt), pk(T + 2 * mt))
                for q in range(2):
                    mt = 2 * mp + q; x = AA + 4 * (mt * 4 + nt)
                    for e in (0, 2): a("v_cvt_pk_bf16_f32 v%d, v%d, v%d", R + 2 * q + e // 2, x + e, x + e + 1)
                if n > 1: store_z(n - 2)
        a("s_nop 1")
        store_z(7)
    def burst_z1():
        a("s_nop 7")
        gelu_block(a, [AB + 2 * n for n in range(32)], SC, T)
    def burst_p():
        a("s_nop 7")
        for mt in range(4): a("v_lshlrev_b32 v%d, 16, v%d", T + 2 * mt, BS[mt])
        for pr in range(2):
            for mt in range(4):
                R = F[0] + 4 * (pr * 4 + mt)
                os_ = [4 * (mt * 4 + 2 * pr + q) + e for q in range(2) for e in (0, 2)]
                for o in os_: a("v_pk_add_f32 %s, %s, %s op_sel_hi:[1,0]", pk(AA + o), pk(AA + o), pk(T + 2 * mt))
                for o in os_: a("v_pk_mul_f32 %s, %s, %s", pk(AA + o), pk(AA + o), pk(AB + o))
                for n, o in enumerate(os_): a("v_cvt_pk_bf16_f32 v%d, v%d, v%d", R + n, AA + o, AA + o + 1)
                a("buffer_store_dwordx4 %s, v%d, %s, %s offen offset:%d sc1", v(R, 4), VP, srdr(R_P), "s54" if pr else "0", 1024 * mt)
    def cstage(s):
        p = part_of(s); acc = AB if p == "z1" else AA
        phase(acc, 0, s in (0, NZ, 2 * NZ), frag_loads(s, 1, 1), True)
        a("s_waitcnt vmcnt(0) lgkmcnt(0)" if s == ev["drain"] else "s_waitcnt lgkmcnt(0)")
        a("s_barrier")
        if s % 4 == 3 or 14 <= s < 33: a.st()
        phase(acc, 1, False, frag_loads(s + 1, 0, 0) if s + 1 < NST else [], False)
        if s == NZ - 1: burst_z2()
        if s == ev["norm"]: burst_norm()
        if s == 2 * NZ - 1: burst_z1()
        if s == NST - 1: burst_p()
    a("s_waitcnt vmcnt(0)")
    a("s_barrier")
    a.st()
    for l in frag_loads(0, 0, 0): a(l)
    def cloop(s0, iters):
        lab = a.newlabel("cl")
        a("s_mov_b32 s50, %d", iters)
        a.put(lab)
        for s in range(s0, s0 + 4): cstage(s)
        a("s_sub_u32 s50, s50, 1"); a("s_cmp_lg_u32 s50, 0"); a("s_cbranch_scc1 %s", lab)
    for s in range(0, 4): cstage(s)
    cloop(4, 2)
    for s in range(12, 36): cstage(s)
    cloop(36, 6)
    for s in range(60, 64): cstage(s)
    if DIAG[0]: a("v_mov_b32 v250, v31"); a.diag = (0, 250)
    a("s_waitcnt vmcnt(0)")
    a("s_barrier")
    a.st()
    a("s_branch %s", c_g3)

    def spare_stream():
        a.srd(20, P_WIN, 1024 * 7168); a.srd(24, P_WSP, 8 * MB); a.srd(28, P_WOUT, 1792 * 2048)
        a("s_sub_u32 s3, s%d, 28", SIDX); a("s_lshl_b32 s19, s%d, 2", SX_); a("s_add_u32 s3, s3, s19"); a("s_lshl_b32 s3, s3, 3"); a("s_add_u32 s48, s3, s%d", SW)
        a("s_lshl_b32 s3, s48, 6"); a("v_add_u32 v2, s3, v1")
        a("s_mov_b32 s49, 9363"); a("s_mov_b32 s50, 3584")
        a("v_and_b32 v3, 2047, v2"); a("v_lshrrev_b32 v4, 11, v2"); a("v_lshlrev_b32 v3, 12, v3"); a("v_lshl_add_u32 v3, v4, 7, v3")
        for it in range(4): a("buffer_load_dword v10, v3, s[24:27], 0 offen offset:%d", 1024 * it)
        a("v_lshlrev_b32 v3, 7, v2"); a("s_mov_b32 s50, %d", 16384 * 128)
        a("buffer_load_dword v10, v3, s[28:31], 0 offen"); a("buffer_load_dword v10, v3, s[28:31], s50 offen")
        a("s_waitcnt vmcnt(0)")
    a.put(c_spare)
    a("s_waitcnt vmcnt(0)")
    a("s_barrier")
    spare_stream()

    a.put(c_g3)
    S3 = 4; NK = 28
    VO, VG, VSR, X1R, GBR = 120, 121, 122, 124, 132
    R_W, R_O, R_P3, R_X1, R_M = 20, 24, 28, 32, 36
    def g3_final_setup():
        a.srd(R_O, P_OUT, 4 * MB); a.srd(R_X1, P_WS, 4 * MB, WS_X1); a.srd(R_M, P_WS, 12288, WS_MOD)
        a("v_lshrrev_b32 v110, 3, v0"); a("v_and_b32 v111, 7, v0")
        a("s_lshl_b32 s3, s%d, 18", SI); a("s_lshl_b32 s19, s%d, 7", SJD); a("s_add_u32 s3, s3, s19")
        a("v_lshlrev_b32 v112, 4, v111"); a("v_lshl_add_u32 v113, v110, 11, v112"); a("v_add_u32 v%d, s3, v113", VO)
        a("s_add_u32 s19, s19, %d", 5 * 2048); a("v_add_u32 v%d, s19, v112", VG)
        a("v_and_b32 v112, 7, v110"); a("v_xor_b32 v112, v112, v111"); a("v_lshlrev_b32 v112, 4, v112"); a("v_lshl_add_u32 v%d, v110, 7, v112", VSR)
        a("s_mov_b32 s9, %d", 64 * 2048)
    def final_loads():
        a("buffer_load_dwordx4 %s, v%d, %s, 0 offen sc1", v(X1R, 4), VO, srdr(R_X1))
        a("buffer_load_dwordx4 %s, v%d, %s, s9 offen sc1", v(X1R + 4, 4), VO, srdr(R_X1))
        a("buffer_load_dwordx4 %s, v%d, %s, 0 offen sc1", v(GBR, 4), VG, srdr(R_M))
    g3_final_setup()
    XA3, YA3, VSW3 = 2, 4, 8
    ACC3 = 16; F3 = [48, 72]
    c, g, r_, cq = 10, 11, 12, 13
    a("v_and_b32 v%d, 15, v1", c); a("v_lshrrev_b32 v%d, 4, v1", g); a("v_bfe_u32 v%d, v1, 2, 2", r_); a("v_and_b32 v%d, 3, v1", cq)
    a("s_lshl_b32 s3, s%d, 11", SW); a("v_lshl_add_u32 v%d, v1, 4, s3", XA3)
    a("v_lshl_add_u32 v14, v%d, 2, v%d", g, r_); a("v_bfe_u32 v15, v14, 1, 2")
    a("v_lshlrev_b32 v14, 7, v14"); a("v_lshl_add_u32 v14, v%d, 3, v14", cq); a("v_add_u32 v14, %d, v14", L_Y3)
    for dt in range(4):
        a("v_xor_b32 v9, %d, v15", dt); a("v_lshl_add_u32 v%d, v9, 5, v14", YA3 + dt)
    a("v_lshrrev_b32 v14, 1, v%d", g); a("v_and_b32 v15, 7, v%d", c); a("v_xor_b32 v14, v14, v15"); a("v_lshlrev_b32 v14, 4, v14")
    a("v_and_b32 v15, 1, v%d", g); a("v_lshl_add_u32 v14, v15, 3, v14"); a("v_lshl_add_u32 v14, v%d, 7, v14", c)
    a("s_lshl_b32 s3, s%d, 12", SW); a("s_add_u32 s3, s3, 65536"); a("v_add_u32 v%d, s3, v14", VSW3)
    def frag3(s, ks, fs):
        slot = s % S3; out = []
        def X(tt): out.append("ds_read_b128 %s, v%d offset:%d" % (v(F3[fs] + 4 * tt, 4), XA3, slot * 16384 + ks * 8192 + tt * 1024))
        def Y(dt):
            for hh in range(2):
                out.append("ds_read_b64_tr_b16 %s, v%d offset:%d" % (v(F3[fs] + 8 + 4 * dt + 2 * hh, 2), YA3 + dt, slot * 8192 + (32 * ks + 16 * hh) * 128))
        X(0); Y(0); X(1); Y(1); Y(2); Y(3)
        return out
    def phase3(fs, first, nxt, waits):
        need = {("x", 0): 0, ("y", 0): 2, ("x", 1): 3, ("y", 1): 5, ("y", 2): 7, ("y", 3): 9}
        done = -1; li = 0; n = 0
        for dt in range(4):
            for tt in ((0, 1) if dt % 2 == 0 else (1, 0)):
                if waits:
                    p = max(need[("x", tt)], need[("y", dt)])
                    if p > done:
                        a("s_waitcnt lgkmcnt(%d)", min(15, 9 - p + li)); done = p
                d = ACC3 + 4 * (tt * 4 + dt)
                a("v_mfma_f32_16x16x32_bf16 %s, %s, %s, %s", v(d, 4), v(F3[fs] + 8 + 4 * dt, 4), v(F3[fs] + 4 * tt, 4), "0" if first else v(d, 4))
                n += 1
                for _ in range(2 if n <= 2 else 1):
                    if li < len(nxt): a(nxt[li]); li += 1
        assert li == len(nxt)
    def cst3(s):
        phase3(0, s == 0, frag3(s, 1, 1), True)
        a("s_waitcnt lgkmcnt(0)")
        a("s_barrier")
        if s % 4 == 3: a.st()
        phase3(1, False, frag3(s + 1, 0, 0) if s + 1 < NK else [], False)
    a("s_barrier")
    a.st()
    final_loads()
    for l in frag3(0, 0, 0): a(l)
    for s in range(0, 4): cst3(s)
    lab = a.newlabel("cl")
    a("s_mov_b32 s50, 5")
    a.put(lab)
    for s in range(4, 8): cst3(s)
    a("s_sub_u32 s50, s50, 1"); a("s_cmp_lg_u32 s50, 0"); a("s_cbranch_scc1 %s", lab)
    for s in range(24, 28): cst3(s)
    a("s_nop 7")
    for tt in range(2):
        for dt in range(4):
            d = ACC3 + 4 * (tt * 4 + dt); R = F3[0] + 2 * (tt * 4 + dt)
            a("v_cvt_pk_bf16_f32 v%d, v%d, v%d", R, d, d + 1); a("v_cvt_pk_bf16_f32 v%d, v%d, v%d", R + 1, d + 2, d + 3)
    for dt in range(4):
        if dt: a("v_xor_b32 v9, %d, v%d", 32 * dt, VSW3)
        for tt in range(2):
            a("ds_write_b64 v%d, %s offset:%d", 9 if dt else VSW3, pk(F3[0] + 2 * (tt * 4 + dt)), 2048 * tt)
    fin = a.label("fin")
    a("s_branch %s", fin)

    a.put(prod)
    PV = 48
    a("s_sub_u32 s%d, s%d, 4", PV, SW)
    a.srd(20, P_SSMK, 4 * MB); a.srd(24, P_Q, 4 * MB); a.srd(28, P_C, 2048); a.srd(32, P_WMOD, 12 * MB)
    a.srd(36, P_WS, 16 * 24576, WS_MODP); a.srd(40, P_WS, 12288, WS_MOD)
    RKr, ZR, SH = 64, 88, 92
    a("s_mul_i32 s49, s%d, %d", PV, CV_W)
    a("s_lshl_b32 s50, s%d, 7", SX_); a("s_lshl_b32 s3, s%d, 2", SIDX); a("s_add_u32 s50, s50, s3"); a("s_add_u32 s50, s50, s%d", PV); a("s_lshl_b32 s50, s50, 12")
    a("v_lshlrev_b32 v3, 4, v1")
    a("v_add_u32 v6, s49, v3")
    for r in range(4): a("v_mov_b32 v%d, 0", ZR + r)
    a("s_mov_b32 exec_hi, 0")
    a("ds_write_b128 v6, v[%d:%d] offset:%d", ZR, ZR + 3, CV_UR + 4096)
    a("s_mov_b64 exec, 3")
    a("ds_write_b128 v6, v[%d:%d] offset:%d", ZR, ZR + 3, CV_C0)
    a("s_mov_b64 exec, 1")
    a("ds_write_b128 v6, v[%d:%d] offset:%d", ZR, ZR + 3, CV_C1)
    a("v_mov_b32 v7, %d", L_CNT)
    a("ds_write_b128 v7, v[%d:%d]", ZR, ZR + 3)
    a("ds_write_b128 v7, v[%d:%d] offset:16", ZR, ZR + 3)
    a("v_mov_b32 v7, %d", L_CD)
    a("ds_write_b32 v7, v%d", ZR)
    a("s_mov_b64 exec, -1")
    SG_R, SG_C = 51, 52
    a("s_lshr_b32 s%d, s%d, 1", SG_R, SIDX); a("s_lshl_b32 s%d, s%d, 1", SG_C, SX_); a("s_and_b32 s3, s%d, 1", SIDX); a("s_add_u32 s%d, s%d, s3", SG_C, SG_C)
    a("s_lshl_b32 s4, s%d, 6", SG_R); a("s_lshl_b32 s3, s%d, 4", PV); a("s_add_u32 s4, s4, s3")
    a("v_and_b32 v4, 15, v1"); a("v_add_u32 v4, s4, v4"); a("v_lshlrev_b32 v4, 1, v4")
    a("s_mul_i32 s5, s4, 12288"); a("s_mul_i32 s3, s%d, 768", SG_C); a("s_add_u32 s5, s5, s3")
    a("s_waitcnt lgkmcnt(0)")
    a("s_barrier")
    for m in range(4):
        a("s_add_u32 s3, s50, %d", 1024 * m)
        a("buffer_load_dwordx4 v[%d:%d], v3, s[20:23], s3 offen", RKr + 6 * m, RKr + 6 * m + 3)
        a("buffer_load_dword v%d, v3, s[20:23], s3 offen offset:16", RKr + 6 * m + 4)
    a("buffer_load_ushort v5, v4, s[28:31], 0 offen")
    a("s_waitcnt vmcnt(9)")
    get_tag()
    XZ, XG, YZp, YGp, VPUB, VLD, VPOLL, VFIN, VFP, VTG, VZR = 8, 12, 16, 20, 24, 25, 26, 27, 28, 29, 30
    VYD, XP, YP, VF16, VFD = 50, 52, 56, 58, 59
    SLX, SLY, SXo, SYo = 49, 50, 53, 54
    a("s_lshl_b32 s%d, s%d, 10", SLX, PV)
    a("s_lshl_b32 s%d, s%d, 12", SLY, PV); a("s_add_u32 s%d, s%d, %d", SLY, SLY, L_Y)
    a("v_lshrrev_b32 v60, 4, v1"); a("s_and_b32 s3, s%d, 1", PV); a("s_lshl_b32 s3, s3, 2"); a("v_add_u32 v60, s3, v60")
    a("v_and_b32 v61, 7, v1"); a("v_xor_b32 v60, v60, v61"); a("v_lshlrev_b32 v60, 4, v60")
    a("v_lshrrev_b32 v61, 3, v1"); a("s_lshl_b32 s3, s%d, 7", SI); a("s_lshl_b32 s19, s%d, 3", PV); a("s_add_u32 s3, s3, s19"); a("v_add_u32 v61, s3, v61")
    a("v_lshl_add_u32 v%d, v61, 11, v60", XZ); a("v_lshl_add_u32 v%d, v61, 12, v60", XG)
    for u in range(1, 4):
        a("v_add_u32 v%d, %d, v%d", XZ + u, u * 32 * 2048, XZ); a("v_add_u32 v%d, %d, v%d", XG + u, u * 32 * 4096, XG)
    a("v_lshrrev_b32 v60, 4, v1"); a("v_bfe_u32 v61, v1, 1, 3"); a("v_xor_b32 v61, v61, v60"); a("v_lshlrev_b32 v61, 5, v61")
    a("v_and_b32 v62, 1, v1"); a("v_lshl_add_u32 v61, v62, 4, v61")
    a("s_lshl_b32 s3, s%d, 4", PV); a("v_add_u32 v60, s3, v60"); a("v_mul_u32_u24 v60, 7168, v60")
    a("s_lshl_b32 s3, s%d, 8", SJ); a("v_add_u32 v60, s3, v60")
    for u in range(4):
        if u == 2: a("v_xor_b32 v61, 128, v61")
        if u: a("v_add_u32 v62, %d, v60", u * 4 * 7168)
        a("v_add_u32 v%d, v61, v%d", YZp + u, 62 if u else 60)
    a("s_lshl_b32 s3, s%d, 19", SJ); a("s_lshl_b32 s19, s%d, 12", PV); a("s_add_u32 s3, s3, s19")
    a("v_lshl_add_u32 v%d, v1, 4, s3", YGp)
    for u in range(1, 4): a("v_add_u32 v%d, %d, v%d", YGp + u, 1024 * u, YGp)
    a("s_lshl_b32 s3, s%d, 4", SI); a("s_add_u32 s3, s3, s%d", SJ); a("s_lshl_b32 s3, s3, 10"); a("v_lshl_add_u32 v%d, v1, 4, s3", VPUB)
    a("v_add_u32 v%d, %d, v3", VLD, L_ST)
    a("v_lshrrev_b32 v60, 4, v1"); a("v_and_b32 v61, 15, v1"); a("v_lshlrev_b32 v60, 10, v60"); a("v_lshl_add_u32 v60, v61, 4, v60")
    a("s_lshl_b32 s3, s%d, 14", SI); a("s_lshl_b32 s19, s%d, 8", PV); a("s_add_u32 s3, s3, s19"); a("v_add_u32 v%d, s3, v60", VPOLL)
    a("v_lshrrev_b32 v60, 5, v1"); a("v_lshl_add_u32 v60, v61, 1, v60"); a("s_add_u32 s3, s19, %d", L_FIN); a("v_lshl_add_u32 v%d, v60, 3, s3", VFIN)
    a("v_lshlrev_b32 v%d, 2, v61", VF16)
    a("s_lshl_b32 s3, s%d, 7", SJ); a("s_add_u32 s3, s3, %d", FZ); a("v_add_u32 v%d, s3, v%d", VFP, VF16)
    a("s_lshl_b32 s19, s%d, 2", SI); a("s_add_u32 s55, s3, s19")
    a("s_lshl_b32 s3, s%d, 7", SI); a("s_add_u32 s19, s3, %d", FX); a("v_lshl_add_u32 v%d, v61, 2, s19", VFD)
    a("s_add_u32 s56, s3, %d", CN + 64 * 128)
    a("s_lshl_b32 s8, s%d, 8", SI); a("s_add_u32 s8, s8, %d", GOD)
    a("s_and_b32 s3, s%d, 1", SX_); a("s_lshl_b32 s3, s3, 7"); a("s_add_u32 s3, s3, s8")
    a("v_writelane_b32 v%d, s3, 16", VFD)
    a("v_mov_b32 v%d, s%d", VTG, TAG); a("v_mov_b32 v%d, 0", VZR)
    for u in range(1, 4): a("s_mov_b32 s%d, %d", 56 + u, 4096 * u)
    a("v_lshrrev_b32 v60, 4, v1"); a("v_and_b32 v61, 7, v1"); a("v_xor_b32 v60, v60, v61"); a("v_and_b32 v61, 56, v1"); a("v_or_b32 v60, v60, v61")
    a("v_lshlrev_b32 v%d, 4, v60", VYD); a("v_xor_b32 v%d, 64, v%d", VYD + 1, VYD)
    a("s_mul_i32 s3, s%d, 458752", SI); a("s_lshl_b32 s19, s%d, 12", PV); a("s_add_u32 s3, s3, s19"); a("v_lshl_add_u32 v%d, v1, 4, s3", XP)
    for u in range(1, 4): a("v_add_u32 v%d, %d, v%d", XP + u, 1024 * u, XP)
    a("v_lshrrev_b32 v60, 4, v1"); a("v_lshlrev_b32 v60, 1, v60"); a("v_and_b32 v61, 7, v1"); a("v_xor_b32 v60, v60, v61"); a("v_lshlrev_b32 v60, 4, v60")
    a("v_lshrrev_b32 v61, 3, v1"); a("v_lshl_add_u32 v60, v61, 11, v60")
    a("s_lshl_b32 s3, s%d, 15", PV); a("s_lshl_b32 s19, s%d, 7", SJD); a("s_add_u32 s3, s3, s19"); a("v_add_u32 v%d, s3, v60", YP)
    a("v_add_u32 v%d, %d, v%d", YP + 1, 8 * 2048, YP)
    a("s_barrier")
    a("s_barrier")
    for m in range(4):
        a("s_waitcnt vmcnt(%d)", 1 + 2 * (3 - m))
        r = RKr + 6 * m
        a("ds_write_b128 v6, v[%d:%d] offset:%d", r, r + 3, CV_C0 + 32 + 1024 * m)
        for j in range(4): a("v_alignbit_b32 v%d, v%d, v%d, 16", SH + 4 * m + j, r + j + 1, r + j)
        a("ds_write_b128 v6, v[%d:%d] offset:%d", SH + 4 * m, SH + 4 * m + 3, CV_C1 + 32 + 1024 * m)
        if m == 0:
            a("v_lshlrev_b32 v%d, 16, v%d", ZR + 3, r)
            a("s_mov_b64 exec, 1")
            a("ds_write_b128 v6, v[%d:%d] offset:%d", ZR, ZR + 3, CV_C1 + 16)
            a("s_mov_b64 exec, -1")
    a("s_waitcnt vmcnt(0)")
    a("v_lshlrev_b32 v5, 16, v5"); a("v_mul_f32 v4, %s, v5", fhex(-LOG2E)); a("v_exp_f32 v4, v4"); a("s_nop 0")
    a("v_add_f32 v4, 1.0, v4"); a("v_rcp_f32 v4, v4"); a("s_nop 0"); a("v_mul_f32 v5, v5, v4")
    a("v_cvt_pk_bf16_f32 v5, v5, v5"); a("v_and_b32 v5, 0xffff, v5")
    a("v_mul_u32_u24 v4, 12, v1")
    a("s_waitcnt lgkmcnt(0)")
    a("s_barrier")
    a.st()
    RM, UKp, ACCp = 64, 128, 136
    a("s_lshl_b32 s6, s2, 14"); a("s_lshl_b32 s3, s%d, 12", PV); a("s_add_u32 s6, s6, s3")
    a("s_mul_i32 s7, s%d, %d", PV, 2 * QROW); a("s_add_u32 s7, s7, %d", L_QT)
    for u in range(4):
        a("s_add_u32 m0, s7, %d", (u >> 1) * QROW + (u & 1) * 1024)
        a("s_add_u32 s3, s6, %d", 1024 * u)
        a("buffer_load_dwordx4 v3, s[24:27], s3 offen lds")
    for j in range(16):
        a("buffer_load_dwordx3 v[%d:%d], v4, s[32:35], s5 offen", RM + 4 * j, RM + 4 * j + 2)
        if j < 15: a("s_add_u32 s5, s5, 12288")
    a.srd(28, P_WIN, 1024 * 7168)
    a("s_lshl_b32 s3, s2, 2"); a("s_add_u32 s3, s3, s%d", PV); a("s_mul_i32 s3, s3, 7168")
    a("v_lshlrev_b32 v60, 7, v1")
    a("s_mov_b32 exec_hi, 0xffffff")
    if opt.get("winpf", 1): a("buffer_load_dword v200, v60, s[28:31], s3 offen")
    else: a("buffer_load_dword v200, v30, s[28:31], 0 offen")
    a("s_mov_b64 exec, -1")
    a("s_waitcnt vmcnt(17)")
    a("v_add_u32 v7, s7, v3")
    for u in range(4): a("ds_read_b128 v[%d:%d], v7 offset:%d", 144 + 4 * u, 147 + 4 * u, (u >> 1) * QROW + (u & 1) * 1024)
    a("s_waitcnt lgkmcnt(0)")
    for rr in range(2):
        X = 160 + 16 * rr
        for d in range(8): unpack(a, X + 2 * d, X + 2 * d + 1, 144 + 8 * rr + d)
        a("v_pk_add_f32 v[192:193], %s, %s", pk(X), pk(X + 2)); a("v_pk_mul_f32 v[194:195], %s, %s", pk(X), pk(X))
        for e in range(2, 16, 2): a("v_pk_fma_f32 v[194:195], %s, %s, v[194:195]", pk(X + e), pk(X + e))
        for e in range(4, 16, 2): a("v_pk_add_f32 v[192:193], v[192:193], %s", pk(X + e))
        a("v_add_f32 v%d, v192, v193", 196 + rr); a("v_add_f32 v%d, v194, v195", 198 + rr)
    a("s_nop 1")
    a("v_permlane32_swap_b32 v196, v197"); a("v_permlane32_swap_b32 v198, v199")
    a("v_add_f32 v196, v196, v197"); a("v_add_f32 v198, v198, v199")
    a("v_mov_b32 v197, v196"); a("v_mov_b32 v199, v198")
    a("s_nop 1")
    a("v_permlane16_swap_b32 v197, v196"); a("v_permlane16_swap_b32 v199, v198")
    a("v_add_f32 v196, v196, v197"); a("v_add_f32 v198, v198, v199")
    for dpp in ("row_ror:8", "row_ror:4", "quad_perm:[1,0,3,2]", "quad_perm:[2,3,0,1]"):
        a("s_nop 0")
        a("v_add_f32_dpp v196, v196, v196 %s row_mask:0xf bank_mask:0xf", dpp); a("v_add_f32_dpp v198, v198, v198 %s row_mask:0xf bank_mask:0xf", dpp)
    rstd_calc(a, 196, 198, 197, 192, 1.0 / 1024)
    a("v_lshrrev_b32 v7, 5, v1"); a("v_lshlrev_b32 v7, 3, v7"); a("s_lshl_b32 s3, s%d, 4", PV); a("s_add_u32 s3, s3, %d", L_L1S); a("v_add_u32 v7, s3, v7")
    a("ds_write_b64 v7, v[192:193]")
    for j in range(16):
        a("v_readlane_b32 s4, v5, %d", j)
        if j == 0:
            for d in range(6): a("v_mov_b32 v%d, 0", ACCp + d)
        a("s_waitcnt vmcnt(%d)", 16 - j)
        if opt.get("gemv", "pk") == "dot":
            a("s_lshl_b32 s5, s4, 16")
            for d in range(3): a("v_dot2c_f32_bf16 v%d, s4, v%d", ACCp + 2 * d, RM + 4 * j + d)
            for d in range(3): a("v_dot2c_f32_bf16 v%d, s5, v%d", ACCp + 2 * d + 1, RM + 4 * j + d)
        else:
            a("s_lshl_b32 s4, s4, 16")
            for d in range(3): unpack(a, UKp + 2 * d, UKp + 2 * d + 1, RM + 4 * j + d)
            for d in range(3): a("v_pk_fma_f32 %s, %s, s[4:5], %s op_sel_hi:[1,0,1]", pk(ACCp + 2 * d), pk(UKp + 2 * d), pk(ACCp + 2 * d))
    a("s_mul_i32 s3, s%d, 1536", PV); a("s_add_u32 s3, s3, %d", L_GV)
    a("v_mul_u32_u24 v60, 24, v1"); a("v_add_u32 v60, s3, v60"); a("s_nop 0")
    for d in range(3): a("ds_write_b64 v60, %s offset:%d", pk(ACCp + 2 * d), 8 * d)
    a.st()
    lds_sync(a, 0, 62, 4)
    finz = a.label("finz"); pb5 = a.label("pb5")
    a("s_lshl_b32 s6, s%d, 7", SX_); a("s_add_u32 s6, s6, %d", GOG)
    a("s_cmp_eq_u32 s%d, 3", PV); a("s_cbranch_scc1 %s", finz)
    a("s_lshl_b32 s3, s%d, 9", PV); a("v_lshl_add_u32 v60, v1, 3, s3"); a("v_add_u32 v61, %d, v60", L_GV)
    for w in range(4): a("ds_read_b64 %s, v61 offset:%d", pk(UKp + 2 * w), 1536 * w)
    a("s_mul_i32 s3, s%d, 24576", SG_R); a("s_mul_i32 s19, s%d, 1536", SG_C); a("s_add_u32 s3, s3, s19")
    a("v_mov_b32 v62, %d", L_CNT + 4); a("v_mov_b32 v63, 1")
    a("s_waitcnt lgkmcnt(0)")
    a("v_pk_add_f32 %s, %s, %s", pk(UKp), pk(UKp), pk(UKp + 2)); a("v_pk_add_f32 %s, %s, %s", pk(UKp + 4), pk(UKp + 4), pk(UKp + 6))
    a("v_pk_add_f32 %s, %s, %s", pk(UKp), pk(UKp), pk(UKp + 4))
    a("buffer_store_dwordx2 %s, v60, s[36:39], s3 offen sc1", pk(UKp))
    a("s_waitcnt vmcnt(0)")
    a("s_mov_b64 exec, 1")
    a("ds_add_rtn_u32 v63, v62, v63")
    a("s_waitcnt lgkmcnt(0)")
    a("v_readfirstlane_b32 s4, v63")
    a("s_mov_b64 exec, -1")
    a("s_cmp_lg_u32 s4, 2"); a("s_cbranch_scc1 %s", pb5)
    a("s_lshl_b32 s3, s%d, 7", SX_); a("s_add_u32 s3, s3, %d", CN + 16 * 128)
    arrive(a, 3, 32, 6, 1, VTG, VZR, VZR, 63)
    a("s_branch %s", pb5)
    a.put(finz)
    a("s_cmp_ge_u32 s%d, 24", SIDX); a("s_cbranch_scc1 %s", pb5)
    a("v_lshlrev_b32 v60, 2, v1")
    a("s_mul_i32 s4, s%d, 768", SX_); a("s_lshl_b32 s3, s%d, 5", SIDX); a("s_add_u32 s4, s4, s3")
    a("s_lshr_b32 s3, s4, 10"); a("s_cmp_eq_u32 s3, 1"); a("s_cselect_b32 s7, 1.0, 0"); a("s_cmp_eq_u32 s3, 4"); a("s_cselect_b32 s7, 1.0, s7")
    a("s_lshl_b32 s5, s4, 2"); a("s_lshl_b32 s4, s4, 1")
    a("v_lshlrev_b32 v63, 3, v1")
    poll(a, VZR, 61, TAG, "s6", n=1, sleep=2)
    a("s_mov_b64 exec, 0xffff")
    for p in range(16):
        a("buffer_load_dwordx2 %s, v63, s[36:39], s5 offen sc1", pk(64 + 2 * p))
        if p < 15: a("s_add_u32 s5, s5, 24576")
    for w in (8, 4, 2, 1):
        for p in range(w):
            if w == 8: a("s_waitcnt vmcnt(%d)", 7 - p)
            a("v_pk_add_f32 %s, %s, %s", pk(64 + 2 * p), pk(64 + 2 * p), pk(64 + 2 * (p + w)))
    a("v_cvt_pk_bf16_f32 v66, v64, v65"); unpack(a, 64, 65, 66)
    a("v_add_f32 v64, s7, v64"); a("v_add_f32 v65, s7, v65"); a("v_cvt_pk_bf16_f32 v64, v64, v65")
    a("buffer_store_dword v64, v60, s[40:43], s4 offen sc1")
    a("s_mov_b64 exec, -1")
    a.put(pb5)
    R_H2, R_WIN, R_WSP, R_Z2p, R_YB = 20, 24, 28, 32, 36
    a("s_waitcnt vmcnt(0)")
    a.srd(R_H2, P_WS, 4 * MB, WS_H2); a.srd(R_WIN, P_WIN, 1024 * 7168); a.srd(R_WSP, P_WSP, 8 * MB); a.srd(R_Z2p, P_WS, 14 * 524288, WS_Z2)
    a.srd(R_YB, P_WS, 4 * MB, WS_YB)
    a.st()
    a("s_barrier")
    a("s_lshl_b32 s4, s%d, 12", PV); a("s_lshl_b32 s5, s2, 14"); a("s_add_u32 s5, s5, s4")
    a("s_barrier")
    for u in range(4):
        a("s_add_u32 m0, s4, %d", 1024 * u); a("s_add_u32 s3, s5, %d", 1024 * u)
        a("buffer_load_dwordx4 v%d, %s, s3 offen sc1 lds", VYD + (u & 1), srdr(R_YB))
    vt = VmTrack()
    def issue(s, which="xy"):
        p = part_of(s); slot = s & 3
        if s in (NZ, 2 * NZ): a("s_mov_b32 s%d, 0", SXo); a("s_mov_b32 s%d, 0", SYo)
        for u in range(4):
            if "x" in which:
                a("s_add_u32 m0, s%d, %d", SLX, slot * 16384 + u * 4096); a("s_nop 0")
                if p == "g": a("buffer_load_dwordx4 v%d, %s, s%d offen lds", XG + u, srdr(R_WSP), SXo)
                else: a("buffer_load_dwordx4 v%d, %s, s%d offen sc1 lds", XZ + u, srdr(R_H2), SXo)
                vt.issue(("st", s))
            if "y" in which:
                a("s_add_u32 m0, s%d, %d", SLY, slot * 16384 + u * 1024); a("s_nop 0")
                if p == "g": a("buffer_load_dwordx4 v%d, %s, s%d offen sc1 lds", YGp + u, srdr(R_Z2p), SYo)
                else: a("buffer_load_dwordx4 v%d, %s, s%d offen lds", YZp + u, srdr(R_WIN), SYo)
                vt.issue(("st", s))
        if "x" in which: a("s_add_u32 s%d, s%d, 128", SXo, SXo)
        if "y" in which: a("s_add_u32 s%d, s%d, %d", SYo, SYo, 16384 if p == "g" else 64 * 7168)
    def wait(pred, lg=False):
        n = vt.wait_for(pred)
        if n is not None: a("s_waitcnt vmcnt(%d)%s", n, " lgkmcnt(0)" if lg else "")
        elif lg: a("s_waitcnt lgkmcnt(0)")
    p_spare = a.label("pspare"); p_g3 = a.label("pg3"); ny = a.label("ny"); ny2 = a.label("ny2")
    a("s_mov_b32 s%d, 0", SXo); a("s_mov_b32 s%d, 3584", SYo)
    NPRE = opt.get("npre", 2)
    a("s_cmp_ge_u32 s%d, 28", SIDX); a("s_cbranch_scc1 %s", ny)
    for s in range(NPRE): issue(s, "y")
    a("s_waitcnt vmcnt(%d)", 4 * NPRE)
    a("s_branch %s", ny2)
    a.put(ny)
    a("s_waitcnt vmcnt(0)")
    a.put(ny2)
    a("s_barrier")
    a("s_barrier")
    a("s_barrier")
    a("s_cmp_ge_u32 s%d, 28", SIDX); a("s_cbranch_scc1 %s", p_spare)
    for s in range(NPRE, 4): issue(s, "y")
    a("s_lshl_b32 s4, s%d, 1", SI); a("s_and_b32 s3, s%d, 1", SX_); a("s_add_u32 s4, s4, s3"); a("s_lshl_b32 s4, s4, 7"); a("s_add_u32 s4, s4, %d", GOC)
    lead_poll(a, PV, 4, 62, lambda: poll(a, VZR, 60, TAG, "s4", n=1))
    vt.ops = []
    a.st()
    for s in range(4): issue(s, "x")
    PS = 32
    def poll_loads():
        for u in range(4): a("buffer_load_dwordx4 %s, v%d, %s, %s offen sc1", v(PS + 4 * u, 4), VPOLL, srdr(R_SY), "s%d" % (56 + u) if u else "0")
    def poll_check(out):
        first = True
        for u in range(4):
            for e in (1, 3):
                if first: a("v_cmp_eq_u32 vcc, -1, v%d", PS + 4 * u + e); first = False
                else:
                    a("v_cmp_eq_u32 s[60:61], -1, v%d", PS + 4 * u + e); a("s_nop 0"); a("s_or_b64 vcc, vcc, s[60:61]")
        a("s_nop 4")
        a("s_cbranch_vccz %s", out)
    def spin(loads, check):
        ok = a.newlabel("ok"); again = a.newlabel("sp")
        check(ok)
        a("s_mov_b32 s62, 0")
        a.put(again)
        loads()
        a("s_add_u32 s62, s62, 1")
        a("s_cmp_gt_u32 s62, %d", SPIN_MAX); a("s_cbranch_scc1 %s", ok)
        a("s_waitcnt vmcnt(0)")
        check(ok)
        a("s_branch %s", again)
        a.put(ok)
    def fpoll_load(): a("buffer_load_dword v48, v%d, %s, 0 offen sc1", VFP, srdr(R_SY))
    def fpoll_check(out):
        a("v_cmp_ne_u32 vcc, s%d, v48", TAG); a("s_nop 4"); a("s_cbranch_vccz %s", out)
    SLX3, SLY3 = 49, 50
    def issue3(s, which="xy"):
        slot = s % S3
        for u in range(4):
            if "x" in which:
                a("s_add_u32 m0, s%d, %d", SLX3, slot * 16384 + u * 1024); a("s_nop 0")
                a("buffer_load_dwordx4 v%d, %s, s%d offen sc1 lds", XP + u, srdr(R_P3), SXo); vt.issue(("s3", s))
            if u < 2 and "y" in which:
                a("s_add_u32 m0, s%d, %d", SLY3, slot * 8192 + u * 1024); a("s_nop 0")
                a("buffer_load_dwordx4 v%d, %s, s%d offen lds", YP + u, srdr(R_W), SYo); vt.issue(("s3", s))
        if "x" in which: a("s_add_u32 s%d, s%d, 16384", SXo, SXo)
        if "y" in which: a("s_add_u32 s%d, s%d, %d", SYo, SYo, 64 * 2048)
    def g3_pre():
        a.srd(R_W, P_WOUT, 1792 * 2048); a.srd(R_P3, P_WS, 16 * 458752, WS_P)
        a("s_lshl_b32 s%d, s%d, 12", SLX3, PV)
        a("s_lshl_b32 s%d, s%d, 11", SLY3, PV); a("s_add_u32 s%d, s%d, %d", SLY3, SLY3, L_Y3)
        a("s_mov_b32 s%d, 0", SXo); a("s_mov_b32 s%d, 0", SYo)
        for s in range(S3): issue3(s, "y")
    def pstage(k):
        wait(lambda t: t == ("st", k + 1), k in (ev["chk"] + 1, NST - 1))
        a("s_barrier")
        if k == ev["fchk"]:
            wait(lambda t: t[0] == "fp")
            spin(fpoll_load, fpoll_check)
        if k + 4 < NST: issue(k + 4)
        if k + 4 == NST: g3_pre()
        if k == NST - 2:
            a("v_mov_b32 v62, %d", L_CD)
            a("ds_write_b32 v62, v%d", VZR)
        if k == ev["pub"]:
            sk = a.newlabel("np")
            a("s_cmp_lg_u32 s%d, 0", PV); a("s_cbranch_scc1 %s", sk)
            a("ds_read_b128 v[32:35], v%d", VLD); a("ds_read_b128 v[36:39], v%d offset:1024", VLD)
            a("s_waitcnt lgkmcnt(0)")
            a("v_pk_add_f32 v[32:33], v[32:33], v[36:37]"); a("v_pk_add_f32 v[34:35], v[34:35], v[38:39]")
            a("buffer_store_dwordx4 v[32:35], v%d, %s, 0 offen sc1", VPUB, srdr(R_SY))
            a("s_nop 1")
            a.put(sk)
        if k == ev["poll"]:
            poll_loads()
            for u in range(4): vt.issue(("sp", u))
        if k == ev["chk"]:
            wait(lambda t: t[0] == "sp")
            spin(poll_loads, poll_check)
            for (d, s) in ((0, 4), (8, 12), (0, 8)):
                for e in (0, 2): a("v_pk_add_f32 %s, %s, %s", pk(PS + d + e), pk(PS + d + e), pk(PS + s + e))
            a("s_nop 1")
            a("v_permlane32_swap_b32 v%d, v%d", PS, PS + 2); a("v_permlane32_swap_b32 v%d, v%d", PS + 1, PS + 3)
            a("v_add_f32 v%d, v%d, v%d", PS, PS, PS + 2); a("v_add_f32 v%d, v%d, v%d", PS + 1, PS + 1, PS + 3)
            a("v_mov_b32 v%d, v%d", PS + 2, PS); a("v_mov_b32 v%d, v%d", PS + 3, PS + 1)
            a("s_nop 1")
            a("v_permlane16_swap_b32 v%d, v%d", PS + 2, PS); a("v_permlane16_swap_b32 v%d, v%d", PS + 3, PS + 1)
            a("v_add_f32 v%d, v%d, v%d", PS, PS, PS + 2); a("v_add_f32 v%d, v%d, v%d", PS + 1, PS + 1, PS + 3)
            rstd_calc(a, PS, PS + 1, PS + 2, PS + 2, 1.0 / 1792)
            a("ds_write_b64 v%d, %s", VFIN, pk(PS + 2))
        if k == ev["drain"]:
            sk = a.newlabel("nf")
            a("s_cmp_lg_u32 s%d, 0", PV); a("s_cbranch_scc1 %s", sk)
            flag_store(a, VTG, VZR, "s55")
            a.put(sk)
        if k == ev["fpoll"]:
            fpoll_load(); vt.issue(("fp", 0))
    wait(lambda t: t == ("st", 0))
    a("s_barrier")
    nx = a.newlabel("nx")
    a("s_cmp_lg_u32 s%d, 4", SW); a("s_cbranch_scc1 %s", nx)
    a("s_lshr_b32 s3, s2, 4"); a("s_lshl_b32 s3, s3, 7"); a("s_and_b32 s19, s2, 15"); a("s_lshl_b32 s19, s19, 2"); a("s_add_u32 s3, s3, s19"); a("s_add_u32 s3, s3, %d", FX)
    flag_store(a, VTG, VZR, "s3")
    a.put(nx)
    def ploop(k0, iters, fn):
        lab = a.newlabel("pl")
        a("s_mov_b32 s63, %d", iters)
        a.put(lab)
        for k in range(k0, k0 + 4): fn(k)
        a("s_sub_u32 s63, s63, 1"); a("s_cmp_lg_u32 s63, 0"); a("s_cbranch_scc1 %s", lab)
        sh = 4 * (iters - 1)
        vt.ops = [(t[0], t[1] + sh) for t in vt.ops]
    for k in range(0, 4): pstage(k)
    ploop(4, 2, pstage)
    for k in range(12, 32): pstage(k)
    ploop(32, 7, pstage)
    for k in range(60, 64): pstage(k)
    a("s_barrier")
    sk = a.newlabel("nf")
    a("s_cmp_lg_u32 s%d, 0", PV); a("s_cbranch_scc1 %s", sk)
    a("v_lshlrev_b32 v62, 7, v1")
    arrive(a, 56, 14, 8, 2, VTG, VZR, 62, 63)
    a.put(sk)
    a("s_branch %s", p_g3)
    a.put(p_spare)
    a("s_barrier")
    nx = a.newlabel("nx")
    a("s_cmp_lg_u32 s%d, 4", SW); a("s_cbranch_scc1 %s", nx)
    a("s_lshr_b32 s3, s2, 4"); a("s_lshl_b32 s3, s3, 7"); a("s_and_b32 s19, s2, 15"); a("s_lshl_b32 s19, s19, 2"); a("s_add_u32 s3, s3, s19"); a("s_add_u32 s3, s3, %d", FX)
    flag_store(a, VTG, VZR, "s3")
    a.put(nx)
    spare_stream()
    a("s_sub_u32 s%d, s%d, 4", PV, SW)
    g3_pre()
    a.put(p_g3)
    g3_final_setup()
    lead_poll(a, PV, L_CD, 62, lambda: poll(a, VFD, 60, TAG, n=17))
    vt.ops = []
    a.st()
    for s in range(S3): issue3(s, "x")
    def pst3(k):
        wait(lambda t: t == ("s3", k + 1))
        a("s_barrier")
        if k + S3 < NK: issue3(k + S3)
        if k + S3 == NK:
            final_loads()
            for _ in range(3): vt.issue(("fl", 0))
    wait(lambda t: t == ("s3", 0))
    a("s_barrier")
    for k in range(0, 4): pst3(k)
    ploop(4, 5, pst3)
    for k in range(24, 28): pst3(k)
    a.put(fin)
    a("s_waitcnt vmcnt(0) lgkmcnt(0)")
    a("s_barrier")
    B = 48; U = 64; G = 96
    a("v_add_u32 v%d, 65536, v%d", VSR, VSR)
    for rr in range(2): a("ds_read_b128 %s, v%d offset:%d", v(B + 4 * rr, 4), VSR, 8192 * rr)
    for d in range(4): unpack(a, G + 2 * d, G + 2 * d + 1, GBR + d)
    for rr in range(2):
        for d in range(4): unpack(a, U + 16 * rr + 8 + 2 * d, U + 16 * rr + 8 + 2 * d + 1, X1R + 4 * rr + d)
    for rr in range(2):
        a("s_waitcnt lgkmcnt(%d)", 1 - rr)
        for d in range(4): unpack(a, U + 16 * rr + 2 * d, U + 16 * rr + 2 * d + 1, B + 4 * rr + d)
        for d in range(4):
            x = U + 16 * rr + 2 * d
            a("v_pk_fma_f32 %s, %s, %s, %s", pk(x), pk(x), pk(G + 2 * d), pk(x + 8))
        for d in range(4):
            x = U + 16 * rr + 2 * d
            a("v_cvt_pk_bf16_f32 v%d, v%d, v%d", B + 8 + 4 * rr + d, x, x + 1)
        a("buffer_store_dwordx4 %s, v%d, %s, %s offen %s", v(B + 8 + 4 * rr, 4), VO, srdr(R_O), "s9" if rr else "0", opt.get("outflag", ""))
    a.st_flush(16, 17)
    a.put(end)
    return a.text(), 256, LDS_TOTAL
```

```python
import sys
from asmlib import *
import gen_front, gen_gemm, gen_mega
from gen_front import *
NAME = "adaLN_cond__ssm_conv_h3__mixer_gmlp__prompt"
def gen_empty():
    return "", 8, 0
def gen_pref(items, name):
    a = Asm(name)
    end = a.label("end")
    a("s_cmp_ge_u32 s2, 256"); a("s_cbranch_scc1 %s", end)
    a("s_lshl_b32 s3, s2, 12")
    a("v_lshl_add_u32 v1, v0, 4, s3")
    for n, (off, nb) in enumerate(items):
        a("s_load_dwordx2 s[4:5], s[0:1], %d", off)
        a("s_waitcnt lgkmcnt(0)")
        a.srd(8, 4, nb)
        for m in range((nb + (1 << 20) - 1) >> 20):
            a("s_mov_b32 s3, %d", m << 20)
            a("buffer_load_dwordx4 v[4:7], v1, s[8:11], s3 offen")
    a("s_waitcnt vmcnt(0)")
    a.put(end)
    return a.text(), 8, 0
WS_DIAG = 6 * MB
OPT = {}
def stamp(n, pre):
    a = Asm("%s_st%d" % (pre, n))
    sk = a.label("sk")
    a("s_cmp_lg_u32 s2, 0"); a("s_cbranch_scc1 %s", sk)
    a("s_memrealtime s[90:91]")
    a("s_load_dwordx2 s[92:93], s[0:1], %d", A_WS)
    a("s_waitcnt lgkmcnt(0)")
    a.srd(84, 92, 4096, WS_DIAG)
    a("v_mov_b32 v2, s90"); a("v_mov_b32 v3, %d", 4 * n)
    a("buffer_store_dword v2, v3, s[84:87], 0 offen")
    a("s_waitcnt vmcnt(0)")
    a.put(sk)
    return a.text() + "\n"
def gen_spin(n):
    a = Asm("kz")
    end = a.label("end"); lp = a.label("lp")
    a("s_cmp_lg_u32 s2, 0"); a("s_cbranch_scc1 %s", end)
    a("s_load_dwordx2 s[92:93], s[0:1], %d", A_WS)
    a("s_waitcnt lgkmcnt(0)")
    a.srd(84, 92, 4096, WS_DIAG)
    a("v_mov_b32 v3, %d", 4 * n)
    a("buffer_load_dword v2, v3, s[84:87], 0 offen")
    a("s_waitcnt vmcnt(0)")
    a("v_readfirstlane_b32 s10, v2")
    a("s_mov_b32 s11, 0")
    a.put(lp)
    a("s_memrealtime s[90:91]")
    a("s_add_u32 s11, s11, 1")
    a("s_waitcnt lgkmcnt(0)")
    a("s_sub_u32 s12, s90, s10")
    a("s_cmp_gt_u32 s11, 200000"); a("s_cbranch_scc1 %s", end)
    a("s_cmp_lt_u32 s12, 20000"); a("s_cbranch_scc1 %s", lp)
    a.put(end)
    return a.text(), 8, 0
def diag(order, n):
    ks = kernels()
    for i, k in enumerate(order):
        (body, vg, lds), blk = ks[k]
        ks[k] = ((stamp(i, k) + body, vg, lds), blk)
    ks["kz"] = (gen_spin(n), 64)
    if n == len(order):
        (body, vg, lds), blk = ks["kz"]
        ks["kz"] = ((stamp(n, "kz") + body, vg, lds), blk)
    return build(list(order) + ["kz"], ks)
def kernels():
    return {"k1": (gen_front.gen_k1(), 256), "k2": (gen_front.gen_k2(), 320), "k3": (gen_front.gen_k3(), 256),
            "kg": (gen_gemm.gen_kg(), 512), "k6": (gen_gemm.gen_k6(), 512),
            "ke": (gen_empty(), 256), "mega": (gen_mega.gen_mega(opt=OPT), 512),
            "pa": (gen_pref([(A_K, 4 * MB), (A_V, 4 * MB), (A_WMOD, 12 * MB), (A_SSMK, 4 * MB), (A_Q, 4 * MB), (A_WIN, 7 * MB), (A_WSP, 8 * MB), (A_WOUT, 1792 * 2048)], "pa"), 256),
            "pw": (gen_pref([(A_WIN, 7 * MB), (A_WSP, 8 * MB), (A_WOUT, 1792 * 2048)], "pw"), 256),
            }
def build(order=("k1", "k2", "k3", "kg", "k6"), ks=None):
    ks = ks or kernels()
    hdr = open("cdna_kernels/%s.s.ref" % NAME).read().split("\n")
    head = [l for l in hdr if l.startswith(";") and "@launch" not in l]
    head = head[:head.index([l for l in head if "d_ws" in l][0]) + 1]
    out = list(head)
    for n in order:
        (body, vg, lds), blk = ks[n]
        out.append("; @launch kernel=%s_kernel grid=(256,1,1) block=(%d,1,1) lds=%d" % (n, blk, lds))
    out.append('.amdgcn_target "amdgcn-amd-amdhsa--gfx950"')
    for n in dict.fromkeys(order):
        (body, vg, lds), blk = ks[n]
        out.append(kernel_text(n + "_kernel", body, vg))
    return "\n".join(out) + "\n"
if __name__ == "__main__":
    for x in [x for x in sys.argv if "=" in x]:
        k_, v_ = x.split("="); OPT[k_] = int(v_) if v_.lstrip("-").isdigit() else v_; sys.argv.remove(x)
    if "--diag" in sys.argv:
        DIAG[0] = True; sys.argv.remove("--diag")
    path = sys.argv[1] if len(sys.argv) > 1 else "cdna_kernels/%s.s" % NAME
    order = sys.argv[2].split(",") if len(sys.argv) > 2 else ("k1", "k2", "k3", "kg", "k6")
    if len(sys.argv) > 3: open(path, "w").write(diag(order, int(sys.argv[3])))
    else: open(path, "w").write(build(order))
    print("wrote", path)
```

```python
import sys
from asmlib import *
import gen_front, gen_gemm, gen_mega
from gen_front import *
NAME = "adaLN_cond__ssm_conv_h3__mixer_gmlp__prompt"
def gen_empty():
    return "", 8, 0
def gen_pref(items, name):
    a = Asm(name)
    end = a.label("end")
    a("s_cmp_ge_u32 s2, 256"); a("s_cbranch_scc1 %s", end)
    a("s_lshl_b32 s3, s2, 12")
    a("v_lshl_add_u32 v1, v0, 4, s3")
    for n, (off, nb) in enumerate(items):
        a("s_load_dwordx2 s[4:5], s[0:1], %d", off)
        a("s_waitcnt lgkmcnt(0)")
        a.srd(8, 4, nb)
        for m in range((nb + (1 << 20) - 1) >> 20):
            a("s_mov_b32 s3, %d", m << 20)
            a("buffer_load_dwordx4 v[4:7], v1, s[8:11], s3 offen")
    a("s_waitcnt vmcnt(0)")
    a.put(end)
    return a.text(), 8, 0
WS_DIAG = 6 * MB
OPT = {}
def stamp(n, pre):
    a = Asm("%s_st%d" % (pre, n))
    sk = a.label("sk")
    a("s_cmp_lg_u32 s2, 0"); a("s_cbranch_scc1 %s", sk)
    a("s_memrealtime s[90:91]")
    a("s_load_dwordx2 s[92:93], s[0:1], %d", A_WS)
    a("s_waitcnt lgkmcnt(0)")
    a.srd(84, 92, 4096, WS_DIAG)
    a("v_mov_b32 v2, s90"); a("v_mov_b32 v3, %d", 4 * n)
    a("buffer_store_dword v2, v3, s[84:87], 0 offen")
    a("s_waitcnt vmcnt(0)")
    a.put(sk)
    return a.text() + "\n"
def gen_spin(n):
    a = Asm("kz")
    end = a.label("end"); lp = a.label("lp")
    a("s_cmp_lg_u32 s2, 0"); a("s_cbranch_scc1 %s", end)
    a("s_load_dwordx2 s[92:93], s[0:1], %d", A_WS)
    a("s_waitcnt lgkmcnt(0)")
    a.srd(84, 92, 4096, WS_DIAG)
    a("v_mov_b32 v3, %d", 4 * n)
    a("buffer_load_dword v2, v3, s[84:87], 0 offen")
    a("s_waitcnt vmcnt(0)")
    a("v_readfirstlane_b32 s10, v2")
    a("s_mov_b32 s11, 0")
    a.put(lp)
    a("s_memrealtime s[90:91]")
    a("s_add_u32 s11, s11, 1")
    a("s_waitcnt lgkmcnt(0)")
    a("s_sub_u32 s12, s90, s10")
    a("s_cmp_gt_u32 s11, 200000"); a("s_cbranch_scc1 %s", end)
    a("s_cmp_lt_u32 s12, 20000"); a("s_cbranch_scc1 %s", lp)
    a.put(end)
    return a.text(), 8, 0
def diag(order, n):
    ks = kernels()
    for i, k in enumerate(order):
        (body, vg, lds), blk = ks[k]
        ks[k] = ((stamp(i, k) + body, vg, lds), blk)
    ks["kz"] = (gen_spin(n), 64)
    if n == len(order):
        (body, vg, lds), blk = ks["kz"]
        ks["kz"] = ((stamp(n, "kz") + body, vg, lds), blk)
    return build(list(order) + ["kz"], ks)
def kernels():
    return {"k1": (gen_front.gen_k1(), 256), "k2": (gen_front.gen_k2(), 320), "k3": (gen_front.gen_k3(), 256),
            "kg": (gen_gemm.gen_kg(), 512), "k6": (gen_gemm.gen_k6(), 512),
            "ke": (gen_empty(), 256), "mega": (gen_mega.gen_mega(opt=OPT), 512),
            "pa": (gen_pref([(A_K, 4 * MB), (A_V, 4 * MB), (A_WMOD, 12 * MB), (A_SSMK, 4 * MB), (A_Q, 4 * MB), (A_WIN, 7 * MB), (A_WSP, 8 * MB), (A_WOUT, 1792 * 2048)], "pa"), 256),
            "pw": (gen_pref([(A_WIN, 7 * MB), (A_WSP, 8 * MB), (A_WOUT, 1792 * 2048)], "pw"), 256),
            }
def build(order=("k1", "k2", "k3", "kg", "k6"), ks=None):
    ks = ks or kernels()
    hdr = open("cdna_kernels/%s.s.ref" % NAME).read().split("\n")
    head = [l for l in hdr if l.startswith(";") and "@launch" not in l]
    head = head[:head.index([l for l in head if "d_ws" in l][0]) + 1]
    out = list(head)
    if list(order) == ["mega"] and not OPT.get("aslist"):
        (body, vg, lds), blk = ks["mega"]
        out.append("; @launch grid=(256,1,1) block=(%d,1,1) lds=%d" % (blk, lds))
        out.append('.amdgcn_target "amdgcn-amd-amdhsa--gfx950"')
        out.append(kernel_text(NAME + "_kernel", body, vg))
        return "\n".join(out) + "\n"
    for n in order:
        (body, vg, lds), blk = ks[n]
        out.append("; @launch kernel=%s_kernel grid=(256,1,1) block=(%d,1,1) lds=%d" % (n, blk, lds))
    out.append('.amdgcn_target "amdgcn-amd-amdhsa--gfx950"')
    for n in dict.fromkeys(order):
        (body, vg, lds), blk = ks[n]
        out.append(kernel_text(n + "_kernel", body, vg))
    return "\n".join(out) + "\n"
if __name__ == "__main__":
    for x in [x for x in sys.argv if "=" in x]:
        k_, v_ = x.split("="); OPT[k_] = int(v_) if v_.lstrip("-").isdigit() else v_; sys.argv.remove(x)
    if "--diag" in sys.argv:
        DIAG[0] = True; sys.argv.remove("--diag")
    path = sys.argv[1] if len(sys.argv) > 1 else "cdna_kernels/%s.s" % NAME
    order = sys.argv[2].split(",") if len(sys.argv) > 2 else ("k1", "k2", "k3", "kg", "k6")
    if len(sys.argv) > 3: open(path, "w").write(diag(order, int(sys.argv[3])))
    else: open(path, "w").write(build(order))
    print("wrote", path)
```

```python
import sys
from asmlib import *
import gen_front, gen_gemm
import importlib, os
gen_mega = importlib.import_module(os.environ.get('GM', 'gen_mega5'))
from gen_front import *
NAME = "adaLN_cond__ssm_conv_h3__mixer_gmlp__prompt"
def gen_empty():
    return "", 8, 0
def gen_pref(items, name):
    a = Asm(name)
    end = a.label("end")
    a("s_cmp_ge_u32 s2, 256"); a("s_cbranch_scc1 %s", end)
    a("s_lshl_b32 s3, s2, 12")
    a("v_lshl_add_u32 v1, v0, 4, s3")
    for n, (off, nb) in enumerate(items):
        a("s_load_dwordx2 s[4:5], s[0:1], %d", off)
        a("s_waitcnt lgkmcnt(0)")
        a.srd(8, 4, nb)
        for m in range((nb + (1 << 20) - 1) >> 20):
            a("s_mov_b32 s3, %d", m << 20)
            a("buffer_load_dwordx4 v[4:7], v1, s[8:11], s3 offen")
    a("s_waitcnt vmcnt(0)")
    a.put(end)
    return a.text(), 8, 0
WS_DIAG = 6 * MB
OPT = {}
def stamp(n, pre):
    a = Asm("%s_st%d" % (pre, n))
    sk = a.label("sk")
    a("s_cmp_lg_u32 s2, 0"); a("s_cbranch_scc1 %s", sk)
    a("s_memrealtime s[90:91]")
    a("s_load_dwordx2 s[92:93], s[0:1], %d", A_WS)
    a("s_waitcnt lgkmcnt(0)")
    a.srd(84, 92, 4096, WS_DIAG)
    a("v_mov_b32 v2, s90"); a("v_mov_b32 v3, %d", 4 * n)
    a("buffer_store_dword v2, v3, s[84:87], 0 offen")
    a("s_waitcnt vmcnt(0)")
    a.put(sk)
    return a.text() + "\n"
def gen_spin(n):
    a = Asm("kz")
    end = a.label("end"); lp = a.label("lp")
    a("s_cmp_lg_u32 s2, 0"); a("s_cbranch_scc1 %s", end)
    a("s_load_dwordx2 s[92:93], s[0:1], %d", A_WS)
    a("s_waitcnt lgkmcnt(0)")
    a.srd(84, 92, 4096, WS_DIAG)
    a("v_mov_b32 v3, %d", 4 * n)
    a("buffer_load_dword v2, v3, s[84:87], 0 offen")
    a("s_waitcnt vmcnt(0)")
    a("v_readfirstlane_b32 s10, v2")
    a("s_mov_b32 s11, 0")
    a.put(lp)
    a("s_memrealtime s[90:91]")
    a("s_add_u32 s11, s11, 1")
    a("s_waitcnt lgkmcnt(0)")
    a("s_sub_u32 s12, s90, s10")
    a("s_cmp_gt_u32 s11, 200000"); a("s_cbranch_scc1 %s", end)
    a("s_cmp_lt_u32 s12, 20000"); a("s_cbranch_scc1 %s", lp)
    a.put(end)
    return a.text(), 8, 0
def diagm(n, wg=0, wave=0):
    DIAG[0] = True
    ks = kernels()
    body, vg, lds = gen_spin(n)
    body = body.replace("s_add_u32 s84, s92, %d" % WS_DIAG, "s_add_u32 s84, s92, %d" % ((64 << 20) + (wg * 8 + wave) * 256))
    body = body.replace("s_cmp_lt_u32 s12, 20000", "s_cmp_lt_u32 s12, %d" % (100 * OPT.get("t0", 200)))
    ks["kz"] = ((body, vg, lds), 64)
    return build(["mega", "kz"], ks)
def diag(order, n):
    ks = kernels()
    for i, k in enumerate(order):
        (body, vg, lds), blk = ks[k]
        ks[k] = ((stamp(i, k) + body, vg, lds), blk)
    ks["kz"] = (gen_spin(n), 64)
    if n == len(order):
        (body, vg, lds), blk = ks["kz"]
        ks["kz"] = ((stamp(n, "kz") + body, vg, lds), blk)
    return build(list(order) + ["kz"], ks)
def kernels():
    return {"k1": (gen_front.gen_k1(), 256), "k2": (gen_front.gen_k2(), 320), "k3": (gen_front.gen_k3(), 256),
            "kg": (gen_gemm.gen_kg(), 512), "k6": (gen_gemm.gen_k6(), 512),
            "ke": (gen_empty(), 256), "mega": (gen_mega.gen_mega(opt=OPT), 512),
            "pa": (gen_pref([(A_K, 4 * MB), (A_V, 4 * MB), (A_WMOD, 12 * MB), (A_SSMK, 4 * MB), (A_Q, 4 * MB), (A_WIN, 7 * MB), (A_WSP, 8 * MB), (A_WOUT, 1792 * 2048)], "pa"), 256),
            "pw": (gen_pref([(A_WIN, 7 * MB), (A_WSP, 8 * MB), (A_WOUT, 1792 * 2048)], "pw"), 256),
            }
def build(order=("k1", "k2", "k3", "kg", "k6"), ks=None):
    ks = ks or kernels()
    hdr = open("cdna_kernels/%s.s.ref" % NAME).read().split("\n")
    head = [l for l in hdr if l.startswith(";") and "@launch" not in l]
    head = head[:head.index([l for l in head if "d_ws" in l][0]) + 1]
    out = list(head)
    if list(order) == ["mega"] and not OPT.get("aslist"):
        (body, vg, lds), blk = ks["mega"]
        out.append("; @launch grid=(256,1,1) block=(%d,1,1) lds=%d" % (blk, lds))
        out.append('.amdgcn_target "amdgcn-amd-amdhsa--gfx950"')
        out.append(kernel_text(NAME + "_kernel", body, vg))
        return "\n".join(out) + "\n"
    for n in order:
        (body, vg, lds), blk = ks[n]
        out.append("; @launch kernel=%s_kernel grid=(256,1,1) block=(%d,1,1) lds=%d" % (n, blk, lds))
    out.append('.amdgcn_target "amdgcn-amd-amdhsa--gfx950"')
    for n in dict.fromkeys(order):
        (body, vg, lds), blk = ks[n]
        out.append(kernel_text(n + "_kernel", body, vg))
    return "\n".join(out) + "\n"
if __name__ == "__main__":
    for x in [x for x in sys.argv if "=" in x]:
        k_, v_ = x.split("="); OPT[k_] = int(v_) if v_.lstrip("-").isdigit() else v_; sys.argv.remove(x)
    if "--diag" in sys.argv:
        DIAG[0] = True; sys.argv.remove("--diag")
    path = sys.argv[1] if len(sys.argv) > 1 else "cdna_kernels/%s.s" % NAME
    order = sys.argv[2].split(",") if len(sys.argv) > 2 else ("k1", "k2", "k3", "kg", "k6")
    if "pt" in OPT: open(path, "w").write(diagm(OPT["pt"], OPT.get("wg", 0), OPT.get("wave", 0)))
    elif len(sys.argv) > 3: open(path, "w").write(diag(order, int(sys.argv[3])))
    else: open(path, "w").write(build(order))
    print("wrote", path)
```

```python
from asmlib import *
from gen_front import *
from gen_gemm import VmTrack, gelu_block, pk, GC0, GC1
P_Q, P_K, P_V, P_SK, P_SSMK, P_SSMD, P_BX, P_WIN, P_WSP, P_BSP, P_WOUT, P_C, P_WMOD, P_OUT, P_DBG, P_WS = [64 + 2 * n for n in range(16)]
SI, SJ, SJD, TAG, SX_, SIDX, SW = 12, 13, 14, 15, 16, 17, 18
R_SY = 44
SY0 = 256 * 1024
FA_OLD, FG, FC, FZ, FD, CB, WT = SY0, SY0 + 1024, SY0 + 2048, SY0 + 4096, SY0 + 6144, SY0 + 8192, SY0 + 12288
FB2, FX = SY0 + 16384, SY0 + 20480
CN, GOG, GOC, GOD = SY0 + 32768, SY0 + 49152, SY0 + 53248, SY0 + 57344
FAS = 128
L_T1 = 65536; L_WM = 81920; L_Y = 65536; L_ST = 131072; L_FIN = L_ST + 2048
L_QT = 135168; QROW = 2080; L_L1S = 151808; L_CNT = 151872
L_Y3 = 131072; L_CD = 98304
LDS_TOTAL = 163840
NZ, NG = 16, 32
NST = 2 * NZ + NG
EV = dict(pub=16, poll=19, chk=21, norm=22, drain=24, fpoll=26, fchk=28)
SPIN_MAX = 0x20000

FA = SY0 + 65536
FC1, FD1 = SY0 + 98304, SY0 + 163840
SY_END = SY0 + 229376
def srdr(r): return "s[%d:%d]" % (r, r + 3)

def poll(a, vaddr, vt, target, soff="0", n=16, sleep=0):
    lp = a.newlabel("pl"); ok = a.newlabel("pk")
    a("s_mov_b32 s11, 0")
    a("s_mov_b32 exec_lo, 0x%x", (1 << n) - 1); a("s_mov_b32 exec_hi, 0")
    a.put(lp)
    a("buffer_load_dword v%d, v%d, %s, %s offen sc1", vt, vaddr, srdr(R_SY), soff)
    a("s_add_u32 s11, s11, 1")
    a("s_cmp_gt_u32 s11, %d", SPIN_MAX); a("s_cbranch_scc1 %s", ok)
    a("s_waitcnt vmcnt(0)")
    a("v_cmp_ne_u32 vcc, s%d, v%d", target, vt)
    if sleep: a("s_sleep %d", sleep)
    else: a("s_nop 4")
    a("s_cbranch_vccnz %s", lp)
    a.put(ok)
    a("s_mov_b64 exec, -1")

def lead_poll(a, pv, cnt, t0, fn):
    oth = a.newlabel("ot"); done = a.newlabel("dn"); lp = a.newlabel("lw")
    a("v_mov_b32 v%d, %d", t0, L_CNT + 4 * cnt if cnt < 8 else cnt)
    a("s_cmp_lg_u32 s%d, 0", pv); a("s_cbranch_scc1 %s", oth)
    fn()
    a("v_mov_b32 v%d, 1", t0 + 1)
    a("ds_write_b32 v%d, v%d", t0, t0 + 1)
    a("s_branch %s", done)
    a.put(oth)
    a("s_mov_b32 s11, 0")
    a.put(lp)
    a("ds_read_b32 v%d, v%d", t0 + 1, t0)
    a("s_add_u32 s11, s11, 1")
    a("s_cmp_gt_u32 s11, %d", SPIN_MAX * 16); a("s_cbranch_scc1 %s", done)
    a("s_waitcnt lgkmcnt(0)")
    a("v_readfirstlane_b32 s10, v%d", t0 + 1)
    a("s_sleep 1")
    a("s_cmp_eq_u32 s10, 0"); a("s_cbranch_scc1 %s", lp)
    a.put(done)
    a("s_waitcnt vmcnt(0)")

def flag_store(a, vtag, vzero, soff):
    a("s_mov_b64 s[10:11], exec"); a("s_mov_b64 exec, 1")
    a("buffer_store_dword v%d, v%d, %s, %s offen sc1", vtag, vzero, srdr(R_SY), soff)
    a("s_mov_b64 exec, s[10:11]")

def arrive(a, scnt, n, sgo, nrep, vtag, vzero, vrep, t0):
    nl = a.newlabel("ar")
    a("s_mov_b64 exec, 1")
    a("v_mov_b32 v%d, 1", t0)
    a("buffer_atomic_add v%d, v%d, %s, s%d offen sc0 sc1", t0, vzero, srdr(R_SY), scnt)
    a("s_add_u32 s10, s%d, %d", TAG, n - 1)
    a("s_waitcnt vmcnt(0)")
    a("v_readfirstlane_b32 s11, v%d", t0)
    a("s_mov_b64 exec, %d", (1 << nrep) - 1)
    a("s_cmp_lg_u32 s11, s10"); a("s_cbranch_scc1 %s", nl)
    a("buffer_store_dword v%d, v%d, %s, s%d offen sc1", vtag, vrep, srdr(R_SY), sgo)
    a.put(nl)
    a("s_mov_b64 exec, -1")

def lds_inc(a, cnt, t0, t1):
    a("v_mov_b32 v%d, %d", t0, L_CNT + 4 * cnt); a("v_mov_b32 v%d, 1", t1)
    a("s_mov_b64 exec, 1")
    a("ds_add_u32 v%d, v%d", t0, t1)
    a("s_mov_b64 exec, -1")

def lds_wait(a, cnt, n, t0, t1, sleep=1):
    lp = a.newlabel("lw"); ok = a.newlabel("lo")
    a("v_mov_b32 v%d, %d", t0, L_CNT + 4 * cnt)
    a("s_mov_b32 s11, 0")
    a.put(lp)
    a("ds_read_b32 v%d, v%d", t1, t0)
    a("s_add_u32 s11, s11, 1")
    a("s_cmp_gt_u32 s11, %d", SPIN_MAX * 16); a("s_cbranch_scc1 %s", ok)
    a("s_waitcnt lgkmcnt(0)")
    a("v_readfirstlane_b32 s10, v%d", t1)
    a("s_nop 0")
    a("s_cmp_ge_u32 s10, %d", n); a("s_cbranch_scc1 %s", ok)
    a("s_sleep %d", sleep)
    a("s_branch %s", lp)
    a.put(ok)

def lds_sync(a, cnt, t0, sleep=1):
    lp = a.newlabel("ls"); ok = a.newlabel("lk")
    a("v_mov_b32 v%d, %d", t0, L_CNT + 4 * cnt); a("v_mov_b32 v%d, 1", t0 + 1)
    a("s_waitcnt lgkmcnt(0)")
    a("s_mov_b64 s[10:11], exec"); a("s_mov_b64 exec, 1")
    a("ds_add_u32 v%d, v%d", t0, t0 + 1)
    a("s_mov_b64 exec, s[10:11]")
    a("s_mov_b32 s11, 0")
    a.put(lp)
    a("ds_read_b32 v%d, v%d", t0 + 1, t0)
    a("s_add_u32 s11, s11, 1")
    a("s_cmp_gt_u32 s11, %d", SPIN_MAX * 8); a("s_cbranch_scc1 %s", ok)
    a("s_waitcnt lgkmcnt(0)")
    a("v_readfirstlane_b32 s10, v%d", t0 + 1)
    a("s_sleep %d", sleep)
    a("s_cmp_lt_u32 s10, 4"); a("s_cbranch_scc1 %s", lp)
    a.put(ok)

def rstd_calc(a, sm, sq, tmp, out, inv_n):
    a("s_mov_b32 s10, %s", fhex(inv_n))
    a("v_mul_f32 v%d, s10, v%d", sm, sm)
    a("v_mul_f32 v%d, v%d, v%d", tmp, sm, sm)
    a("v_fma_f32 v%d, v%d, s10, -v%d", sq, sq, tmp)
    a("v_max_f32 v%d, 0, v%d", sq, sq)
    a("v_add_f32 v%d, %s, v%d", sq, fhex(EPS), sq)
    a("v_rsq_f32 v%d, v%d", out, sq)
    a("s_nop 0")
    a("v_mul_f32_e64 v%d, -v%d, v%d", out + 1, sm, out)

def gen_mega(ev=EV, opt=None):
    opt = opt or {}
    a = Asm("m")
    end = a.label("end"); prod = a.label("prod")
    a("s_cmp_ge_u32 s2, 256"); a("s_cbranch_scc1 %s", end)
    a.st_init(0, 250)
    a("s_getpc_b64 s[96:97]")
    a.put(a.label("pc0"))
    a("s_load_dwordx16 s[64:79], s[0:1], 0")
    a("s_load_dwordx16 s[80:95], s[0:1], 64")
    a("v_lshrrev_b32 v2, 6, v0")
    a("v_and_b32 v1, 63, v0")
    a("s_and_b32 s%d, s2, 7", SX_); a("s_lshr_b32 s%d, s2, 3", SIDX)
    a("v_readfirstlane_b32 s%d, v2", SW)
    a("s_lshr_b32 s%d, s%d, 1", SI, SX_); a("s_lshl_b32 s%d, s%d, 2", SI, SI); a("s_and_b32 s3, s%d, 3", SIDX); a("s_add_u32 s%d, s%d, s3", SI, SI)
    a("s_and_b32 s19, s%d, 1", SX_); a("s_lshr_b32 s3, s%d, 2", SIDX)
    a("s_mul_i32 s%d, s19, 7", SJ); a("s_add_u32 s%d, s%d, s3", SJ, SJ)
    a("s_lshl_b32 s%d, s19, 3", SJD); a("s_add_u32 s%d, s%d, s3", SJD, SJD)
    a("v_mov_b32 v3, %d", WT)
    a("s_waitcnt lgkmcnt(0)")
    a.srd(R_SY, P_WS, SY_END, WS_STATS)
    a("buffer_load_dword v2, v3, %s, 0 offen sc1", srdr(R_SY))
    def get_tag():
        a("v_readfirstlane_b32 s%d, v2", TAG)
        a("s_nop 0")
        a("s_mul_i32 s%d, s%d, 0x9E3779B1", TAG, TAG); a("s_add_u32 s%d, s%d, 0x7F4A7C15", TAG, TAG)
    a("s_cmp_ge_u32 s%d, 4", SW); a("s_cbranch_scc1 %s", prod)

    VCG, VRG = 3, 17
    VOFF, VSK = 4, 15
    RK, RV, RW, UK, UW, RES, TMP = 18, 40, 56, 128, 172, 188, 226
    VD_ = 240
    a.srd(20, P_K, 4 * MB); a.srd(24, P_V, 4 * MB); a.srd(28, P_SK, 8192); a.srd(32, P_WS, 4 * MB, WS_UR); a.srd(36, P_SSMD, 2048)
    a.srd(40, P_WS, 4 * MB, WS_YB)
    a("v_and_b32 v%d, 31, v0", VCG); a("v_lshrrev_b32 v%d, 5, v0", VRG)
    a("s_lshl_b32 s19, s%d, 17", SIDX); a("s_lshl_b32 s3, s%d, 8", SX_); a("s_add_u32 s19, s19, s3"); a("s_sub_u32 s19, s19, %d", 3 * 2048)
    a("v_lshlrev_b32 v%d, 14, v%d", VOFF, VRG); a("v_lshl_add_u32 v%d, v%d, 3, v%d", VOFF, VCG, VOFF); a("v_add_u32 v%d, s19, v%d", VOFF, VOFF)
    a("s_lshl_b32 s3, s%d, 10", SX_); a("v_lshl_add_u32 v%d, v%d, 5, s3", VSK, VCG)
    a("buffer_load_dwordx4 v[%d:%d], v%d, s[28:31], 0 offen", RW, RW + 3, VSK)
    a("buffer_load_dwordx4 v[%d:%d], v%d, s[28:31], 0 offen offset:16", RW + 4, RW + 7, VSK)
    for j in range(11):
        if j: a("v_add_u32 v%d, %d, v%d", VOFF + j, 2048 * j, VOFF)
        a("buffer_load_dwordx2 v[%d:%d], v%d, s[20:23], 0 offen", RK + 2 * j, RK + 2 * j + 1, VOFF + j)
    for j in range(8): a("buffer_load_dwordx2 v[%d:%d], v%d, s[24:27], 0 offen", RV + 2 * j, RV + 2 * j + 1, VOFF + 3 + j)
    SD = 48
    a("s_lshl_b32 s%d, s%d, 7", SD, SX_); a("s_lshl_b32 s3, s%d, 2", SIDX); a("s_add_u32 s%d, s%d, s3", SD, SD)
    a("s_add_u32 s49, s%d, s%d", SD, SW)
    a("s_lshl_b32 s3, s49, 1"); a("v_mov_b32 v%d, s3", TMP)
    a("buffer_load_ushort v%d, v%d, s[36:39], 0 offen", VD_, TMP)
    a("s_barrier")
    PK = 96
    VTAG, VZERO = 241, 242
    VW1, VR1, VG1 = TMP + 4, TMP + 6, TMP + 5
    a("v_sub_u32 v%d, 7, v%d", TMP + 4, VRG); a("v_and_b32 v%d, 7, v%d", TMP + 5, VCG); a("v_xor_b32 v%d, v%d, v%d", TMP + 4, TMP + 4, TMP + 5)
    a("v_lshlrev_b32 v%d, 4, v%d", TMP + 4, TMP + 4); a("v_lshl_add_u32 v%d, v%d, 9, v%d", TMP + 4, VCG, TMP + 4); a("v_add_u32 v%d, %d, v%d", VW1, L_T1, TMP + 4)
    a("v_lshrrev_b32 v%d, 3, v0", TMP + 7); a("v_and_b32 v%d, 7, v0", TMP + 5); a("v_lshrrev_b32 v%d, 2, v%d", TMP + 6, TMP + 7)
    a("v_xor_b32 v%d, v%d, v%d", TMP + 6, TMP + 6, TMP + 5); a("v_lshlrev_b32 v%d, 4, v%d", TMP + 6, TMP + 6)
    a("v_lshl_add_u32 v%d, v%d, 7, v%d", TMP + 6, TMP + 7, TMP + 6); a("v_add_u32 v%d, %d, v%d", VR1, L_T1, TMP + 6)
    a("s_lshl_b32 s3, s%d, 19", SX_); a("s_lshl_b32 s19, s%d, 7", SIDX); a("s_sub_u32 s3, s3, s19"); a("s_add_u32 s3, s3, %d", (2047 - 63) * 2)
    a("v_lshlrev_b32 v%d, 4, v%d", TMP + 5, TMP + 5); a("v_lshl_add_u32 v%d, v%d, 12, v%d", TMP + 5, TMP + 7, TMP + 5); a("v_add_u32 v%d, s3, v%d", VG1, TMP + 5)
    a("v_mov_b32 v%d, 0", VZERO)
    p1 = a.newlabel("p1"); p1e = a.newlabel("p1e")
    a("s_mov_b32 s53, %d", 0 if opt.get("dry1", 0) else 1)
    a.put(p1)
    a("s_cmp_eq_u32 s53, 0")
    def cwait(n, extra=None):
        sk = a.newlabel("w")
        a("s_cbranch_scc1 %s", sk)
        a("s_waitcnt vmcnt(%d)", n)
        if extra:
            extra(); a("s_cmp_eq_u32 s53, 0")
        a.put(sk)
    def tag_and_counter():
        get_tag()
        a("v_mov_b32 v%d, s%d", VTAG, TAG)
    cwait(20, tag_and_counter)
    for c in range(4):
        for t in range(4):
            dst = UW + (t * 2 + (c >> 1)) * 2 + (c & 1); src = RW + 2 * c + (t >> 1)
            if t & 1: a("v_and_b32 v%d, 0xffff0000, v%d", dst, src)
            else: a("v_lshlrev_b32 v%d, 16, v%d", dst, src)
    cwait(9, a.st if DIAG[0] else None)
    for j in range(11):
        for d in range(2): unpack(a, UK + 4 * j + 2 * d, UK + 4 * j + 2 * d + 1, RK + 2 * j + d)
    for j in range(8):
        for p in range(2):
            dst = RES + 4 * j + 2 * p
            a("v_pk_mul_f32 %s, %s, %s", pk(dst), pk(UK + 4 * j + 2 * p), pk(UW + (3 * 2 + p) * 2))
            for t in (2, 1, 0):
                a("v_pk_fma_f32 %s, %s, %s, %s", pk(dst), pk(UK + 4 * (j + 3 - t) + 2 * p), pk(UW + (t * 2 + p) * 2), pk(dst))
    cwait(1)
    for j in range(8):
        for p in range(2): unpack(a, UK + 4 * j + 2 * p, UK + 4 * j + 2 * p + 1, RV + 2 * j + p)
    for j in range(8):
        for p in range(2): a("v_pk_mul_f32 %s, %s, %s", pk(RES + 4 * j + 2 * p), pk(RES + 4 * j + 2 * p), pk(UK + 4 * j + 2 * p))
    for c in range(4):
        for m in range(4): a("v_cvt_pk_bf16_f32 v%d, v%d, v%d", PK + 4 * c + m, RES + 4 * (7 - 2 * m) + c, RES + 4 * (6 - 2 * m) + c)
    a("s_cbranch_scc0 %s", p1e)
    a("s_mov_b32 s53, 1")
    a("s_branch %s", p1)
    a.put(p1e)
    for c in range(4): a("ds_write_b128 v%d, v[%d:%d] offset:%d", VW1, PK + 4 * c, PK + 4 * c + 3, 128 * c)
    nc = a.newlabel("nc")
    a("s_cmp_ge_u32 s2, 16"); a("s_cbranch_scc1 %s", nc)
    a("s_cmp_lg_u32 s%d, 0", SW); a("s_cbranch_scc1 %s", nc)
    a("s_lshl_b32 s3, s2, 7"); a("s_add_u32 s3, s3, %d", CN)
    flag_store(a, VTAG, VZERO, "s3")
    a.put(nc)
    a("s_waitcnt lgkmcnt(0)")
    a.st()
    a("s_barrier")
    for m in range(4): a("ds_read_b128 v[%d:%d], v%d offset:%d", RV + 4 * m, RV + 4 * m + 3, VR1, 4096 * m)
    for m in range(4):
        a("s_mov_b32 s3, %d", m * 32 * 4096)
        a("s_waitcnt lgkmcnt(%d)", 3 - m)
        a("buffer_store_dwordx4 v[%d:%d], v%d, s[32:35], s3 offen sc1", RV + 4 * m, RV + 4 * m + 3, VG1)
    SLB = 50
    a("s_mul_i32 s%d, s%d, %d", SLB, SW, CV_W)
    VA, VB, VE, VS, VSG, VSR_, VPA, VL16 = 112, 116, 117, 118, 119, 120, 121, 122
    a("v_and_b32 v244, 15, v1"); a("v_lshrrev_b32 v245, 4, v1")
    a("v_and_b32 v246, 4, v244"); a("v_lshlrev_b32 v246, 1, v246"); a("v_lshrrev_b32 v247, 3, v244"); a("v_lshl_add_u32 v246, v247, 2, v246")
    a("v_and_b32 v247, 3, v244"); a("v_add3_u32 v246, v246, v247, 1")
    a("v_and_b32 v247, 1, v246"); a("v_mul_u32_u24 v247, 4160, v247"); a("v_and_b32 v246, 30, v246"); a("v_lshl_add_u32 v247, v246, 1, v247")
    a("v_lshl_add_u32 v247, v245, 4, v247"); a("s_add_u32 s3, s%d, %d", SLB, CV_C0); a("v_add_u32 v%d, s3, v247", VA)
    for j in range(1, 4): a("v_add_u32 v%d, %d, v%d", VA + j, 1024 * j, VA)
    a("v_lshlrev_b32 v247, 5, v244"); a("v_sub_u32 v247, 480, v247"); a("v_lshl_add_u32 v247, v245, 4, v247"); a("v_add_u32 v%d, s%d, v247", VB, SLB)
    a("v_and_b32 v246, 1, v245"); a("v_lshlrev_b32 v246, 4, v246"); a("v_lshrrev_b32 v247, 1, v245"); a("v_lshl_add_u32 v246, v247, 3, v246")
    a("v_lshl_add_u32 v246, v244, 5, v246"); a("v_sub_u32 v246, 504, v246"); a("v_add_u32 v%d, s%d, v246", VE, SLB)
    a("v_and_b32 v246, 1, v245"); a("v_lshl_add_u32 v246, v244, 1, v246"); a("v_lshl_add_u32 v246, v247, 5, v246")
    a("v_lshlrev_b32 v246, 2, v246"); a("v_add_u32 v246, s%d, v246", SW); a("v_and_b32 v247, 7, v244"); a("v_xor_b32 v246, v246, v247")
    a("v_lshlrev_b32 v246, 4, v246"); a("v_add_u32 v%d, %d, v246", VS, L_T1)
    a("v_bfe_u32 v246, v0, 3, 3"); a("v_xor_b32 v246, v246, v0"); a("v_lshlrev_b32 v246, 4, v246"); a("v_add_u32 v%d, %d, v246", VSR_, L_T1)
    a("v_lshrrev_b32 v246, 2, v0"); a("v_lshlrev_b32 v246, 14, v246"); a("v_and_b32 v247, 3, v0"); a("v_lshl_add_u32 v246, v247, 4, v246")
    a("s_lshl_b32 s3, s%d, 4", SD); a("v_add_u32 v%d, s3, v246", VSG)
    a("v_and_b32 v246, 31, v1"); a("v_mul_u32_u24 v%d, %d, v246", VPA, FAS)
    a("v_lshlrev_b32 v%d, 4, v1", VL16)
    ACC = 64; FA_ = [128, 160]; FB_ = [192, 4]
    for r in range(32): a("v_mov_b32 v%d, 0", ACC + r)
    a("s_waitcnt vmcnt(0)")
    a.st()
    a("s_barrier")
    nf = a.newlabel("nf")
    a("s_mul_i32 s51, s%d, %d", SX_, max(128, 32 * FAS)); a("s_add_u32 s51, s51, %d", FA)
    a("s_cmp_lg_u32 s%d, 0", SW); a("s_cbranch_scc1 %s", nf)
    a("s_mul_i32 s3, s%d, %d", SIDX, FAS); a("s_add_u32 s3, s3, s51")
    flag_store(a, VTAG, VZERO, "s3")
    a.put(nf)
    lead_poll(a, SW, 3, 244, lambda: poll(a, VPA, 246, TAG, "s51", n=32))
    a.st()
    a("s_lshl_b32 s52, s49, 12")
    for m in range(4):
        a("s_add_u32 m0, s%d, %d", SLB, CV_UR + 1024 * m)
        a("s_add_u32 s3, s52, %d", 1024 * m)
        a("buffer_load_dwordx4 v%d, s[32:35], s3 offen sc1 lds", VL16)
    lds_inc(a, 7, 244, 245)
    a("v_lshlrev_b32 v%d, 16, v%d", VD_, VD_)
    lds_wait(a, 6, 4, 244, 245)
    a("s_waitcnt vmcnt(0)")
    a.st()
    def cloads(rr, st):
        out = []
        def la(q):
            base = VA + (q >> 1); o = ((q & 1) * 8 + rr) * 16; d = FA_[st] + 4 * q
            out.append("ds_read2_b32 v[%d:%d], v%d offset0:%d offset1:%d" % (d, d + 1, base, o, o + 1))
            out.append("ds_read2_b32 v[%d:%d], v%d offset0:%d offset1:%d" % (d + 2, d + 3, base, o + 2, o + 3))
        def lb(t):
            d = FB_[st] + 4 * t
            out.append("ds_read_b128 v[%d:%d], v%d offset:%d" % (d, d + 3, VB, CV_UR + 64 * (56 - 8 * t + rr)))
        la(0)
        for t in range(8): lb(t)
        for q in range(1, 8): la(q)
        return out
    for l in cloads(0, 0): a(l)
    a("s_mov_b32 s53, 4")
    cvl = a.newlabel("cv")
    a.put(cvl)
    for st in range(2):
        nxt = cloads(st + 1, st ^ 1)
        if st == 1: nxt += ["v_add_u32 v%d, 128, v%d" % (r, r) for r in (VA, VA + 1, VA + 2, VA + 3, VB)] + ["s_sub_u32 s53, s53, 1", "s_cmp_lg_u32 s53, 0"]
        a("s_waitcnt lgkmcnt(0)")
        li = 0
        for q in range(8):
            ts = list(range(q, 8))
            if q & 1: ts.reverse()
            for t in ts:
                acc = ACC + 4 * t
                a("v_mfma_f32_16x16x32_bf16 %s, %s, %s, %s", v(acc, 4), v(FA_[st] + 4 * q, 4), v(FB_[st] + 4 * (t - q), 4), v(acc, 4))
                if li < len(nxt): a(nxt[li]); li += 1
        assert li == len(nxt)
    a("s_cbranch_scc1 %s", cvl)
    a("s_waitcnt lgkmcnt(0)")
    for t in range(8): a("ds_read_b64 v[%d:%d], v%d offset:%d", FA_[0] + 2 * t, FA_[0] + 2 * t + 1, VE, CV_UR + 512 * (7 - t))
    a.st()
    a("s_waitcnt lgkmcnt(0)")
    U = FA_[0]; T = FA_[1]; PKo = FB_[0]
    for t in range(8):
        acc = ACC + 4 * t
        unpack(a, T + 3, T + 2, U + 2 * t); unpack(a, T + 1, T + 0, U + 2 * t + 1)
        for r in range(4): a("v_fmac_f32 v%d, v%d, v%d", acc + r, VD_, T + r)
        a("v_cvt_pk_bf16_f32 v%d, v%d, v%d", PKo + 2 * t, acc, acc + 1); a("v_cvt_pk_bf16_f32 v%d, v%d, v%d", PKo + 2 * t + 1, acc + 2, acc + 3)
    a("s_nop 1")
    for t in range(0, 8, 2):
        R = PKo + 2 * t
        a("v_permlane32_swap_b32 v%d, v%d", R, R + 2); a("v_permlane32_swap_b32 v%d, v%d", R + 1, R + 3)
        a("ds_write_b128 v%d, v[%d:%d] offset:%d", VS, R, R + 3, t * 32 * 64)
    lds_sync(a, 2, 244)
    for m in range(4): a("ds_read_b128 v[%d:%d], v%d offset:%d", 96 + 4 * m, 99 + 4 * m, VSR_, 4096 * m)
    for m in range(4):
        a("s_mov_b32 s3, %d", m * 64 * 16384)
        a("s_waitcnt lgkmcnt(%d)", 3 - m)
        a("buffer_store_dwordx4 v[%d:%d], v%d, s[40:43], s3 offen sc1", 96 + 4 * m, 99 + 4 * m, VSG)
    VHF, VKK, VQ, VM, VRW, VRR, VQ2, VQL, VLS = 2, 3, 4, 5, 8, 9, 13, 6, 7
    YA = 16
    RQ, RP, Q, PR, RY, S, RS, MU, H, YU = 24, 40, 64, 96, 136, 152, 160, 192, 200, 208
    HG = 160
    a.srd(20, P_WS, 12288, WS_MOD); a.srd(24, P_WS, 4 * MB, WS_X1); a.srd(28, P_WS, 4 * MB, WS_H2)
    a("v_bfe_u32 v%d, v0, 2, 1", VHF)
    a("v_lshrrev_b32 v11, 3, v0"); a("v_and_b32 v12, 3, v0"); a("v_lshl_add_u32 v%d, v11, 2, v12", VKK)
    a("s_lshl_b32 s3, s2, 14")
    a("v_lshlrev_b32 v11, 13, v%d", VHF); a("v_lshl_add_u32 v11, v%d, 4, v11", VKK); a("v_add_u32 v%d, s3, v11", VQ); a("v_add_u32 v%d, 4096, v%d", VQ2, VQ)
    a("v_lshlrev_b32 v%d, 4, v%d", VM, VKK)
    a("v_mul_u32_u24 v11, %d, v%d", 4 * QROW, VHF); a("v_add3_u32 v%d, v11, v%d, 0", VQL, VM); a("v_add_u32 v%d, %d, v%d", VQL, L_QT, VQL)
    a("v_lshlrev_b32 v11, 5, v%d", VHF); a("v_add_u32 v%d, %d, v11", VLS, L_L1S)
    a("v_bfe_u32 v11, v%d, 1, 3", VKK); a("v_lshlrev_b32 v11, 4, v11"); a("v_lshlrev_b32 v12, 7, v%d", VKK); a("v_lshl_add_u32 v12, v%d, 3, v12", VHF)
    for i in range(8):
        a("v_xor_b32 v%d, %d, v11", YA + i, 16 * i); a("v_add_u32 v%d, v12, v%d", YA + i, YA + i)
    a("v_lshrrev_b32 v11, 4, v1"); a("v_lshlrev_b32 v11, 2, v11"); a("v_lshl_add_u32 v11, v%d, 7, v11", VHF)
    a("s_lshl_b32 s3, s%d, 5", SW); a("s_add_u32 s3, s3, 16384"); a("v_add_u32 v%d, s3, v11", VRW)
    a("v_lshlrev_b32 v%d, 7, v%d", VRR, VHF)
    a("v_and_b32 v11, 11, v1"); a("v_cmp_eq_u32 s[52:53], 0, v11")
    a("v_lshlrev_b32 v10, 8, v1"); a("v_lshlrev_b32 v14, 2, v1"); a("v_mov_b32 v12, 1")
    a("v_mov_b32 v11, %d", L_CNT + 20); a("v_mov_b32 v15, 1")
    a("s_waitcnt vmcnt(0)")
    a.st()
    a("s_mov_b64 exec, 1")
    a("ds_add_rtn_u32 v15, v11, v15")
    a("s_waitcnt lgkmcnt(0)")
    a("v_readfirstlane_b32 s56, v15")
    nb = a.newlabel("nb"); na = a.newlabel("na")
    a("s_and_b32 s55, s2, 15"); a("s_lshl_b32 s3, s55, 7"); a("s_add_u32 s3, s3, %d", CN)
    a("s_cmp_lg_u32 s56, 3"); a("s_cbranch_scc1 %s", na)
    a("buffer_atomic_add v12, v%d, %s, s3 offen sc0 sc1", VZERO, srdr(R_SY))
    a.put(na)
    a("s_mov_b64 exec, -1")
    lds_wait(a, 1, 4, 11, 15)
    for j in range(4): a("ds_read_b128 v[%d:%d], v%d offset:%d", RQ + 4 * j, RQ + 4 * j + 3, VQL, QROW * j)
    for j in range(2): a("ds_read_b128 v[%d:%d], v%d offset:%d", MU + 4 * j, MU + 4 * j + 3, VLS, 16 * j)
    a("s_add_u32 s54, s%d, 15", TAG); a("s_lshl_b32 s3, s55, 2"); a("s_add_u32 s3, s3, %d", FB2)
    a("s_lshl_b32 s55, s%d, 8", SX_); a("s_add_u32 s55, s55, %d", FB2)
    a("s_waitcnt lgkmcnt(0)")
    for j in range(4):
        for d in range(4): unpack(a, Q + 8 * j + 2 * d, Q + 8 * j + 2 * d + 1, RQ + 4 * j + d)
    for j in range(4):
        for e in range(0, 8, 2):
            a("v_pk_fma_f32 %s, %s, %s, %s op_sel:[0,0,1] op_sel_hi:[1,0,1]", pk(HG + 8 * j + e), pk(Q + 8 * j + e), pk(MU + 2 * j), pk(MU + 2 * j))
    a("s_cmp_lg_u32 s56, 3"); a("s_cbranch_scc1 %s", nb)
    a("s_waitcnt vmcnt(0)")
    a("v_readfirstlane_b32 s19, v12")
    nl = a.newlabel("nl")
    a("s_mov_b64 exec, 0xff")
    a("s_cmp_lg_u32 s19, s54"); a("s_cbranch_scc1 %s", nl)
    a("buffer_store_dword v%d, v10, %s, s3 offen sc1", VTAG, srdr(R_SY))
    a.put(nl)
    poll(a, 14, 11, TAG, "s55", n=16)
    a("s_cmp_lg_u32 s2, 0"); a("s_cbranch_scc1 %s", nb)
    a("s_mov_b32 s3, %d", WT)
    flag_store(a, VTAG, VZERO, "s3")
    a.put(nb)
    a("s_barrier")
    a.st()
    SA, CA, GA, SB, CBp = PR, PR + 8, PR + 16, PR + 24, PR + 32
    def unp_param(p):
        for d in range(4): unpack(a, PR + 8 * p + 2 * d, PR + 8 * p + 2 * d + 1, RP + 4 * p + d)
    ml = a.newlabel("ml"); mo = a.newlabel("mo")
    a("s_mov_b32 s11, 0")
    a.put(ml)
    for p in range(5):
        a("s_mov_b32 s3, %d", 2048 * p)
        a("buffer_load_dwordx4 v[%d:%d], v%d, s[20:23], s3 offen sc1", RP + 4 * p, RP + 4 * p + 3, VM)
    a("s_add_u32 s11, s11, 1")
    a("s_cmp_gt_u32 s11, %d", SPIN_MAX); a("s_cbranch_scc1 %s", mo)
    a("s_waitcnt vmcnt(0)")
    a("v_max3_u32 v11, v%d, v%d, v%d", RP, RP + 4, RP + 8); a("v_max3_u32 v11, v11, v%d, v%d", RP + 12, RP + 16)
    a("v_cmp_eq_u32 vcc, -1, v11"); a("s_nop 4"); a("s_cbranch_vccnz %s", ml)
    a.put(mo)
    unp_param(1); unp_param(0)
    for j in range(4):
        for e in range(0, 8, 2): a("v_pk_fma_f32 %s, %s, %s, %s", pk(HG + 8 * j + e), pk(HG + 8 * j + e), pk(CA + e), pk(SA + e))
    unp_param(2)
    for j in range(4):
        for e in range(0, 8, 2): a("v_pk_mul_f32 %s, %s, %s", pk(HG + 8 * j + e), pk(HG + 8 * j + e), pk(GA + e))
    a.st()
    a("s_barrier")
    a.st()
    for i in range(8): a("ds_read_b64 v[%d:%d], v%d", RY + 2 * i, RY + 2 * i + 1, YA + i)
    unp_param(4); unp_param(3)
    for i in range(8):
        a("s_waitcnt lgkmcnt(%d)", 7 - i)
        unpack(a, YU + i, YU + 8 + i, RY + 2 * i); unpack(a, YU + 16 + i, YU + 24 + i, RY + 2 * i + 1)
    for j in range(4):
        for e in range(0, 8, 2): a("v_pk_fma_f32 %s, %s, %s, %s", pk(H + e), pk(HG + 8 * j + e), pk(YU + 8 * j + e), pk(Q + 8 * j + e))
        for e in range(0, 8, 2): a("v_cvt_pk_bf16_f32 v%d, v%d, v%d", RQ + 4 * j + e // 2, H + e, H + e + 1)
        a("buffer_store_dwordx4 v[%d:%d], v%d, s[24:27], 0 offen offset:%d sc1", RQ + 4 * j, RQ + 4 * j + 3, VQ if j < 2 else VQ2, 2048 * (j & 1))
        for d in range(4): unpack(a, Q + 8 * j + 2 * d, Q + 8 * j + 2 * d + 1, RQ + 4 * j + d)
    for j in range(4):
        x = Q + 8 * j
        a("v_pk_add_f32 %s, %s, %s", pk(H), pk(x), pk(x + 2)); a("v_pk_mul_f32 %s, %s, %s", pk(H + 2), pk(x), pk(x))
        a("v_pk_add_f32 %s, %s, %s", pk(H + 4), pk(x + 4), pk(x + 6))
        for e in (2, 4, 6): a("v_pk_fma_f32 %s, %s, %s, %s", pk(H + 2), pk(x + e), pk(x + e), pk(H + 2))
        a("v_pk_add_f32 %s, %s, %s", pk(H), pk(H), pk(H + 4))
        a("v_add_f32 v%d, v%d, v%d", S + 4 + j, H + 2, H + 3); a("v_add_f32 v%d, v%d, v%d", S + j, H, H + 1)
    wave_reduce8(a, S, H)
    a("s_mov_b64 exec, s[52:53]")
    a("ds_write_b32 v%d, v%d", VRW, S); a("ds_write_b32 v%d, v%d offset:16", VRW, S + 4)
    a("s_mov_b64 exec, -1")
    a("s_waitcnt lgkmcnt(0)")
    a("s_barrier")
    a.st()
    for w in range(4):
        a("ds_read_b128 v[%d:%d], v%d offset:%d", RS + 8 * w, RS + 8 * w + 3, VRR, 16384 + 32 * w)
        a("ds_read_b128 v[%d:%d], v%d offset:%d", RS + 8 * w + 4, RS + 8 * w + 7, VRR, 16384 + 32 * w + 16)
    a("s_waitcnt lgkmcnt(0)")
    for (d, s) in ((0, 8), (16, 24), (0, 16)):
        for e in range(0, 8, 2): a("v_pk_add_f32 %s, %s, %s", pk(RS + d + e), pk(RS + d + e), pk(RS + s + e))
    a("s_mov_b32 s10, %s", fhex(1.0 / 1024))
    for j in range(4): a("v_mul_f32 v%d, s10, v%d", RS + j, RS + j)
    for j in range(4): a("v_mul_f32 v%d, v%d, v%d", RS + 8 + j, RS + j, RS + j)
    for j in range(4): a("v_fma_f32 v%d, v%d, s10, -v%d", RS + 4 + j, RS + 4 + j, RS + 8 + j)
    for j in range(4): a("v_max_f32 v%d, 0, v%d", RS + 4 + j, RS + 4 + j)
    for j in range(4): a("v_add_f32 v%d, %s, v%d", RS + 4 + j, fhex(EPS), RS + 4 + j)
    for j in range(4): a("v_rsq_f32 v%d, v%d", MU + 2 * j, RS + 4 + j)
    a("s_nop 0")
    for j in range(4): a("v_mul_f32_e64 v%d, -v%d, v%d", MU + 2 * j + 1, RS + j, MU + 2 * j)
    for j in range(4):
        for e in range(0, 8, 2):
            a("v_pk_fma_f32 %s, %s, %s, %s op_sel:[0,0,1] op_sel_hi:[1,0,1]", pk(H + e), pk(Q + 8 * j + e), pk(MU + 2 * j), pk(MU + 2 * j))
        for e in range(0, 8, 2): a("v_pk_fma_f32 %s, %s, %s, %s", pk(H + e), pk(H + e), pk(CBp + e), pk(SB + e))
        for e in range(0, 8, 2): a("v_cvt_pk_bf16_f32 v%d, v%d, v%d", RY + 4 * j + e // 2, H + e, H + e + 1)
        a("buffer_store_dwordx4 v[%d:%d], v%d, s[28:31], 0 offen offset:%d sc1", RY + 4 * j, RY + 4 * j + 3, VQ if j < 2 else VQ2, 2048 * (j & 1))
    a.st()
    a("s_waitcnt vmcnt(0)")
    a.st()
    a("s_barrier")
    nf = a.newlabel("nf")
    a("s_cmp_lg_u32 s%d, 0", SW); a("s_cbranch_scc1 %s", nf)
    a("s_lshr_b32 s3, s2, 4"); a("s_lshl_b32 s3, s3, 12"); a("s_and_b32 s19, s2, 15"); a("s_lshl_b32 s19, s19, 7"); a("s_add_u32 s3, s3, s19"); a("s_add_u32 s3, s3, %d", FC1)
    a("v_lshlrev_b32 v10, 11, v1")
    a("s_mov_b64 exec, 3")
    a("buffer_store_dword v%d, v10, %s, s3 offen sc1", VTAG, srdr(R_SY))
    a("s_mov_b64 exec, -1")
    a.put(nf)
    c_spare = a.label("cspare"); c_g3 = a.label("cg3")
    a("s_cmp_ge_u32 s%d, 28", SIDX); a("s_cbranch_scc1 %s", c_spare)

    if DIAG[0]: a("v_mov_b32 v31, v250"); a.diag = (0, 31)
    R_Z2, R_P, R_BSP = 32, 40, 36
    a.srd(R_Z2, P_WS, 14 * 524288, WS_Z2); a.srd(R_P, P_WS, 16 * 458752, WS_P); a.srd(R_BSP, P_BSP, 4096)
    XA, YB, YG, VSW, VSF, KC, T, VZ, VP, VBS = 2, 4, 12, 14, 15, 16, 20, 28, 29, 30
    AC = 32; HO = 96; F = [160, 192]; ZK = 224; S = 240; BS = 240
    SWM, SWN = 48, 49
    a("s_and_b32 s%d, s%d, 1", SWM, SW); a("s_lshr_b32 s%d, s%d, 1", SWN, SW)
    c, h, g, r_, cq = 20, 21, 21, 22, 23
    a("v_and_b32 v%d, 15, v1", c); a("v_lshrrev_b32 v%d, 4, v1", h); a("v_bfe_u32 v%d, v1, 2, 2", r_); a("v_and_b32 v%d, 3, v1", cq)
    a("s_lshl_b32 s3, s%d, 7", SI); a("s_lshl_b32 s19, s%d, 6", SWM); a("s_add_u32 s3, s3, s19"); a("s_lshl_b32 s3, s3, 1")
    a("v_lshl_add_u32 v%d, v%d, 1, s3", VBS, c)
    a("v_lshrrev_b32 v24, 1, v%d", c); a("v_xor_b32 v24, v24, v%d", h); a("v_lshlrev_b32 v24, 4, v24")
    a("v_lshl_add_u32 v24, v%d, 7, v24", c); a("s_lshl_b32 s3, s%d, 13", SWM); a("v_add_u32 v%d, s3, v24", XA); a("v_xor_b32 v%d, 64, v%d", XA + 1, XA)
    a("v_lshl_add_u32 v24, v%d, 3, v%d", g, r_); a("v_lshlrev_b32 v24, 8, v24"); a("v_lshl_add_u32 v24, v%d, 3, v24", cq)
    a("v_and_b32 v25, 1, v%d", g); a("v_xor_b32 v25, s%d, v25", SWN); a("v_lshl_add_u32 v24, v25, 7, v24"); a("v_add_u32 v24, %d, v24", L_Y)
    for nt in range(4):
        a("v_xor_b32 v25, %d, v%d", nt, r_); a("v_lshl_add_u32 v%d, v25, 5, v24", YB + 2 * nt); a("v_add_u32 v%d, 1024, v%d", YB + 2 * nt + 1, YB + 2 * nt)
    a("v_and_b32 v24, 1, v%d", g); a("v_lshl_add_u32 v24, v24, 3, v%d", r_)
    a("v_lshrrev_b32 v25, 1, v%d", cq); a("v_lshl_add_u32 v24, v25, 2, v24"); a("v_lshl_add_u32 v24, v25, 5, v24")
    a("v_lshrrev_b32 v25, 1, v%d", g); a("v_lshl_add_u32 v24, v25, 4, v24"); a("v_lshlrev_b32 v24, 4, v24")
    a("v_and_b32 v25, 1, v%d", cq); a("v_lshl_add_u32 v24, v25, 3, v24")
    a("s_lshl_b32 s3, s%d, 12", SWN); a("s_add_u32 s3, s3, %d", L_Y); a("v_add_u32 v%d, s3, v24", YG); a("v_xor_b32 v%d, 64, v%d", YG + 1, YG)
    a("s_lshl_b32 s3, s%d, 10", SWN); a("s_lshl_b32 s19, s%d, 9", SWM); a("s_add_u32 s3, s3, s19"); a("s_add_u32 s3, s3, %d", L_ST)
    a("v_lshl_add_u32 v%d, v1, 3, s3", VSW)
    a("s_add_u32 s3, s19, %d", L_FIN); a("v_lshl_add_u32 v%d, v%d, 3, s3", VSF, c)
    a("v_lshrrev_b32 v24, 1, v%d", h); a("v_lshlrev_b32 v24, 2, v24"); a("v_xor_b32 v24, v24, v%d", c); a("v_lshl_add_u32 v24, v%d, 4, v24", h)
    a("s_lshl_b32 s3, s%d, 19", SJ); a("s_lshl_b32 s19, s%d, 15", SI); a("s_add_u32 s3, s3, s19")
    a("s_lshl_b32 s19, s%d, 14", SWM); a("s_add_u32 s3, s3, s19"); a("s_lshl_b32 s19, s%d, 12", SWN); a("s_add_u32 s3, s3, s19")
    a("v_lshl_add_u32 v%d, v24, 4, s3", VZ)
    a("s_mul_i32 s3, s%d, 458752", SI); a("s_lshl_b32 s19, s%d, 15", SJ); a("s_add_u32 s3, s3, s19")
    a("s_lshl_b32 s19, s%d, 14", SWN); a("s_add_u32 s3, s3, s19"); a("s_lshl_b32 s19, s%d, 12", SWM); a("s_add_u32 s3, s3, s19")
    a("v_lshl_add_u32 v%d, v1, 4, s3", VP)
    SC = 52
    a("s_mov_b32 s%d, %s", SC, fhex(GC1)); a("s_mov_b32 s%d, %s", SC + 1, fhex(GC1)); a("s_mov_b32 s54, 8192")
    a("v_mov_b32 v%d, %s", KC, fhex(GC0)); a("v_mov_b32 v%d, %s", KC + 1, fhex(GC0)); a("v_mov_b32 v%d, 1.0", KC + 2); a("v_mov_b32 v%d, 1.0", KC + 3)
    a("s_mov_b32 s50, 0"); a("s_mov_b32 s51, %d", (1 << 4) | (1 << 8) | (1 << 16))
    def frag_loads(slot, ks, fs):
        out = []
        def X(mt): out.append("ds_read_b128 %s, v%d offset:%d" % (v(F[fs] + 4 * mt, 4), XA + ks, slot * 16384 + mt * 2048))
        def Y(nt):
            for hh in range(2): out.append("ds_read_b64_tr_b16 %s, v%d offset:%d" % (v(F[fs] + 16 + 4 * nt + 2 * hh, 2), YB + 2 * nt + hh, slot * 16384 + ks * 8192))
        X(0); Y(0); X(1); X(2); X(3); Y(1); Y(2); Y(3)
        return out
    def phase(fs, first, nxt, waits):
        need = {("x", 0): 0, ("y", 0): 2, ("x", 1): 3, ("x", 2): 4, ("x", 3): 5, ("y", 1): 7, ("y", 2): 9, ("y", 3): 11}
        done = -1; li = 0; nds = 0
        for nt in range(4):
            for mt in (range(4) if nt % 2 == 0 else range(3, -1, -1)):
                if waits:
                    p = max(need[("x", mt)], need[("y", nt)])
                    if p > done:
                        a("s_waitcnt lgkmcnt(%d)", min(15, 11 - p + nds)); done = p
                d = AC + 4 * (mt * 4 + nt)
                a("v_mfma_f32_16x16x32_bf16 %s, %s, %s, %s", v(d, 4), v(F[fs] + 16 + 4 * nt, 4), v(F[fs] + 4 * mt, 4), "0" if first else v(d, 4))
                if li < len(nxt):
                    a(nxt[li]); nds += nxt[li].startswith("ds_"); li += 1
        assert li == len(nxt)
    def gelu():
        G = 2; NGp = 32 // G
        def tm(gi): return [ZK + 4 * (gi % 4) + 2 * n for n in range(G)]
        def pre(gi):
            t = tm(gi); x = [AC + 2 * (G * gi + n) for n in range(G)]
            return ([("v_pk_mul_f32 %s, %s, %s" % (pk(t[n]), pk(x[n]), pk(x[n]))) for n in range(G)] +
                    [("v_pk_fma_f32 %s, %s, s[%d:%d], %s" % (pk(t[n]), pk(t[n]), SC, SC + 1, pk(KC))) for n in range(G)] +
                    [("v_pk_mul_f32 %s, %s, %s" % (pk(t[n]), pk(t[n]), pk(x[n]))) for n in range(G)])
        def ex(gi): return ["v_exp_f32 v%d, v%d" % (r, r) for t in tm(gi) for r in (t, t + 1)]
        def ad(gi): return ["v_pk_add_f32 %s, %s, %s" % (pk(t), pk(t), pk(KC + 2)) for t in tm(gi)]
        def rc(gi): return ["v_rcp_f32 v%d, v%d" % (r, r) for t in tm(gi) for r in (t, t + 1)]
        def fin_(gi): return ["v_pk_mul_f32 %s, %s, %s" % (pk(HO + 2 * (G * gi + n)), pk(AC + 2 * (G * gi + n)), pk(tm(gi)[n])) for n in range(G)]
        for step in range(NGp + 3):
            tr = (ex(step - 1) if 0 <= step - 1 < NGp else []) + (rc(step - 2) if 0 <= step - 2 < NGp else [])
            al = (ad(step - 2) if 0 <= step - 2 < NGp else []) + (fin_(step - 3) if 0 <= step - 3 < NGp else []) + (pre(step) if step < NGp else [])
            out = []
            while tr or al:
                if al: out.append(al.pop(0))
                if tr: out.append(tr.pop(0))
            if not (0 <= step - 1 < NGp) and 0 <= step - 2 < NGp:
                out = ad(step - 2) + [o for o in out if o not in ad(step - 2)]
            for o in out: a(o)
            if step >= NGp: a("s_nop 0")
    def stats_z2():
        for mt in range(4):
            x = HO + 16 * mt
            a("v_pk_add_f32 %s, %s, %s", pk(T), pk(x), pk(x + 2)); a("v_pk_mul_f32 %s, %s, %s", pk(T + 2), pk(x), pk(x))
            a("v_pk_add_f32 %s, %s, %s", pk(T + 4), pk(x + 4), pk(x + 6)); a("v_pk_mul_f32 %s, %s, %s", pk(T + 6), pk(x + 2), pk(x + 2))
            for e in range(4, 16, 4):
                a("v_pk_fma_f32 %s, %s, %s, %s", pk(T + 2), pk(x + e), pk(x + e), pk(T + 2))
                a("v_pk_fma_f32 %s, %s, %s, %s", pk(T + 6), pk(x + e + 2), pk(x + e + 2), pk(T + 6))
            for e in range(8, 16, 4):
                a("v_pk_add_f32 %s, %s, %s", pk(T), pk(T), pk(x + e)); a("v_pk_add_f32 %s, %s, %s", pk(T + 4), pk(T + 4), pk(x + e + 2))
            a("v_pk_add_f32 %s, %s, %s", pk(T), pk(T), pk(T + 4)); a("v_pk_add_f32 %s, %s, %s", pk(T + 2), pk(T + 2), pk(T + 6))
            a("v_add_f32 v%d, v%d, v%d", S + mt, T, T + 1); a("v_add_f32 v%d, v%d, v%d", S + 4 + mt, T + 2, T + 3)
        a("s_nop 1")
        for base in (S, S + 4):
            a("v_permlane32_swap_b32 v%d, v%d", base, base + 2); a("v_permlane32_swap_b32 v%d, v%d", base + 1, base + 3)
        for base in (S, S + 4):
            a("v_add_f32 v%d, v%d, v%d", base, base, base + 2); a("v_add_f32 v%d, v%d, v%d", base + 1, base + 1, base + 3)
        a("s_nop 0")
        for base in (S, S + 4): a("v_permlane16_swap_b32 v%d, v%d", base, base + 1)
        a("v_add_f32 v%d, v%d, v%d", S, S, S + 1); a("v_add_f32 v%d, v%d, v%d", S + 1, S + 4, S + 5)
        a("ds_write_b64 v%d, %s", VSW, pk(S))
        a("s_waitcnt lgkmcnt(0)")
    def store_z(n):
        R = ZK + 4 * n; mp, nt = n // 4, n % 4
        a("v_permlane16_swap_b32 v%d, v%d", R, R + 2); a("v_permlane16_swap_b32 v%d, v%d", R + 1, R + 3)
        a("buffer_store_dwordx4 %s, v%d, %s, %s offen offset:%d sc1", v(R, 4), VZ, srdr(R_Z2), "s54" if mp else "0", 1024 * nt)
    def burst_norm():
        for mt in range(4): a("ds_read_b64 %s, v%d offset:%d", pk(T + 2 * mt), VSF, 128 * mt)
        a("s_waitcnt lgkmcnt(0)")
        n = 0
        for mp in range(2):
            for nt in range(4):
                R = ZK + 4 * n; n += 1
                for q in range(2):
                    mt = 2 * mp + q; x = HO + 4 * (mt * 4 + nt)
                    for e in (0, 2): a("v_pk_fma_f32 %s, %s, %s, %s op_sel:[0,0,1] op_sel_hi:[1,0,1]", pk(x + e), pk(x + e), pk(T + 2 * mt), pk(T + 2 * mt))
                for q in range(2):
                    mt = 2 * mp + q; x = HO + 4 * (mt * 4 + nt)
                    for e in (0, 2): a("v_cvt_pk_bf16_f32 v%d, v%d, v%d", R + 2 * q + e // 2, x + e, x + e + 1)
                if n > 1: store_z(n - 2)
        a("s_nop 1")
        store_z(7)
    def burst_p():
        a("s_waitcnt vmcnt(0) lgkmcnt(0)")
        for mt in range(4): a("v_lshlrev_b32 v%d, 16, v%d", T + 2 * mt, BS + mt)
        a("s_nop 3")
        for pr in range(2):
            for mt in range(4):
                R = F[0] + 4 * (pr * 4 + mt)
                os_ = [4 * (mt * 4 + 2 * pr + q) + e for q in range(2) for e in (0, 2)]
                for o in os_: a("v_pk_add_f32 %s, %s, %s op_sel_hi:[1,0]", pk(AC + o), pk(AC + o), pk(T + 2 * mt))
                for o in os_: a("v_pk_mul_f32 %s, %s, %s", pk(AC + o), pk(AC + o), pk(HO + o))
                for n, o in enumerate(os_): a("v_cvt_pk_bf16_f32 v%d, v%d, v%d", R + n, AC + o, AC + o + 1)
                a("buffer_store_dwordx4 %s, v%d, %s, %s offen offset:%d sc1", v(R, 4), VP, srdr(R_P), "s54" if pr else "0", 1024 * mt)
    l_first, l_top, l_mid, l_norm, l_normr, l_sw, l_swr, l_fin, l_z1 = [a.label(n) for n in ("kfirst", "ktop", "kmid", "knorm", "knormr", "ksw", "kswr", "kfin", "kz1")]
    assert ev["norm"] % 4 == 2 and ev["drain"] % 4 == 0
    a("s_waitcnt vmcnt(0)")
    a("s_barrier")
    a.st()
    for l in frag_loads(0, 0, 0): a(l)
    a.put(l_first)
    phase(0, True, frag_loads(0, 1, 1), True)
    a("s_branch %s", l_mid)
    a.put(l_top)
    for slot in range(4):
        extra = []
        if slot == 3: extra = ["s_cmp_eq_u32 s50, 7"]
        phase(0, False, frag_loads(slot, 1, 1) + extra, True)
        if slot == 0: a.put(l_mid)
        a("s_waitcnt vmcnt(0) lgkmcnt(0)" if slot == 0 else "s_waitcnt lgkmcnt(0)")
        a("s_barrier")
        if slot == 3:
            a("s_cbranch_scc1 %s", l_sw); a.put(l_swr)
        if slot in opt.get("stslots", (1, 3)): a.st()
        extra = []
        if slot == 2: extra = ["s_cmp_eq_u32 s50, %d" % (ev["norm"] // 4)]
        if slot == 3: extra = ["s_add_u32 s50, s50, 1", "s_bitcmp1_b32 s51, s50"]
        phase(1, False, frag_loads((slot + 1) & 3, 0, 0) + extra, False)
        if slot == 2:
            a("s_cbranch_scc1 %s", l_norm); a.put(l_normr)
    a("s_cbranch_scc0 %s", l_top)
    a("s_cmp_eq_u32 s50, 16"); a("s_cbranch_scc1 %s", l_fin)
    a("s_cmp_lg_u32 s50, 8"); a("s_cbranch_scc1 %s", l_z1)
    for mt in range(4): a("buffer_load_ushort v%d, v%d, %s, 0 offen offset:%d", BS + mt, VBS, srdr(R_BSP), 32 * mt)
    a.put(l_z1)
    a("s_nop 3")
    gelu()
    a("s_cmp_eq_u32 s50, 8"); a("s_cbranch_scc1 %s", l_first)
    stats_z2()
    a("s_branch %s", l_first)
    a.put(l_sw)
    for nt in range(4):
        for hh in range(2): a("v_add_u32 v%d, %d, v%d", YB + 2 * nt + hh, 1024 * nt, YG + hh)
    a("s_branch %s", l_swr)
    a.put(l_norm)
    burst_norm()
    a("s_branch %s", l_normr)
    a.put(l_fin)
    burst_p()
    if DIAG[0]: a("v_mov_b32 v250, v31"); a.diag = (0, 250)
    a("s_waitcnt vmcnt(0)")
    a("s_barrier")
    a.st()
    a("s_branch %s", c_g3)

    def spare_stream():
        a.srd(20, P_WIN, 1024 * 7168); a.srd(24, P_WSP, 8 * MB); a.srd(28, P_WOUT, 1792 * 2048)
        a("s_sub_u32 s3, s%d, 28", SIDX); a("s_lshl_b32 s19, s%d, 2", SX_); a("s_add_u32 s3, s3, s19"); a("s_lshl_b32 s3, s3, 3"); a("s_add_u32 s48, s3, s%d", SW)
        a("s_lshl_b32 s3, s48, 6"); a("v_add_u32 v2, s3, v1")
        a("s_mov_b32 s49, 9363")
        for it in range(2):
            a("v_add_u32 v3, %d, v2", 16384 * it)
            a("v_lshrrev_b32 v4, 2, v3"); a("v_mul_u32_u24 v4, s49, v4"); a("v_lshrrev_b32 v4, 16, v4")
            a("v_mul_u32_u24 v5, 28, v4"); a("v_sub_u32 v5, v3, v5")
            a("v_mul_u32_u24 v4, 7168, v4"); a("v_lshl_add_u32 v5, v5, 7, v4")
            a("buffer_load_dword v10, v5, s[20:23], 0 offen")
        a("v_and_b32 v3, 2047, v2"); a("v_lshrrev_b32 v4, 11, v2"); a("v_lshlrev_b32 v3, 12, v3"); a("v_lshl_add_u32 v3, v4, 7, v3")
        for it in range(4): a("buffer_load_dword v10, v3, s[24:27], 0 offen offset:%d", 1024 * it)
        a("v_lshlrev_b32 v3, 7, v2"); a("s_mov_b32 s50, %d", 16384 * 128)
        a("buffer_load_dword v10, v3, s[28:31], 0 offen"); a("buffer_load_dword v10, v3, s[28:31], s50 offen")
        a("s_waitcnt vmcnt(0)")
    a.put(c_spare)
    spare_stream()

    a.put(c_g3)
    S3 = 4; NK = 28
    VO, VG, VSR, X1R, GBR = 120, 121, 122, 124, 132
    R_W, R_O, R_P3, R_X1, R_M = 20, 24, 28, 32, 36
    def g3_final_setup():
        a.srd(R_O, P_OUT, 4 * MB); a.srd(R_X1, P_WS, 4 * MB, WS_X1); a.srd(R_M, P_WS, 12288, WS_MOD)
        a("v_lshrrev_b32 v110, 3, v0"); a("v_and_b32 v111, 7, v0")
        a("s_lshl_b32 s3, s%d, 18", SI); a("s_lshl_b32 s19, s%d, 7", SJD); a("s_add_u32 s3, s3, s19")
        a("v_lshlrev_b32 v112, 4, v111"); a("v_lshl_add_u32 v113, v110, 11, v112"); a("v_add_u32 v%d, s3, v113", VO)
        a("s_add_u32 s19, s19, %d", 5 * 2048); a("v_add_u32 v%d, s19, v112", VG)
        a("v_and_b32 v112, 7, v110"); a("v_xor_b32 v112, v112, v111"); a("v_lshlrev_b32 v112, 4, v112"); a("v_lshl_add_u32 v%d, v110, 7, v112", VSR)
        a("s_mov_b32 s9, %d", 64 * 2048)
    def final_loads():
        a("buffer_load_dwordx4 %s, v%d, %s, 0 offen sc1", v(X1R, 4), VO, srdr(R_X1))
        a("buffer_load_dwordx4 %s, v%d, %s, s9 offen sc1", v(X1R + 4, 4), VO, srdr(R_X1))
        a("buffer_load_dwordx4 %s, v%d, %s, 0 offen sc1", v(GBR, 4), VG, srdr(R_M))
    g3_final_setup()
    XA3, YA3, VSW3 = 2, 4, 8
    ACC3 = 16; F3 = [48, 72]
    c, g, r_, cq = 10, 11, 12, 13
    a("v_and_b32 v%d, 15, v1", c); a("v_lshrrev_b32 v%d, 4, v1", g); a("v_bfe_u32 v%d, v1, 2, 2", r_); a("v_and_b32 v%d, 3, v1", cq)
    a("s_lshl_b32 s3, s%d, 11", SW); a("v_lshl_add_u32 v%d, v1, 4, s3", XA3)
    a("v_lshl_add_u32 v14, v%d, 2, v%d", g, r_); a("v_bfe_u32 v15, v14, 1, 2")
    a("v_lshlrev_b32 v14, 7, v14"); a("v_lshl_add_u32 v14, v%d, 3, v14", cq); a("v_add_u32 v14, %d, v14", L_Y3)
    for dt in range(4):
        a("v_xor_b32 v9, %d, v15", dt); a("v_lshl_add_u32 v%d, v9, 5, v14", YA3 + dt)
    a("v_lshrrev_b32 v14, 1, v%d", g); a("v_and_b32 v15, 7, v%d", c); a("v_xor_b32 v14, v14, v15"); a("v_lshlrev_b32 v14, 4, v14")
    a("v_and_b32 v15, 1, v%d", g); a("v_lshl_add_u32 v14, v15, 3, v14"); a("v_lshl_add_u32 v14, v%d, 7, v14", c)
    a("s_lshl_b32 s3, s%d, 12", SW); a("s_add_u32 s3, s3, 65536"); a("v_add_u32 v%d, s3, v14", VSW3)
    def frag3(slot, ks, fs):
        out = []
        def X(tt): out.append("ds_read_b128 %s, v%d offset:%d" % (v(F3[fs] + 4 * tt, 4), XA3, slot * 16384 + ks * 8192 + tt * 1024))
        def Y(dt):
            for hh in range(2):
                out.append("ds_read_b64_tr_b16 %s, v%d offset:%d" % (v(F3[fs] + 8 + 4 * dt + 2 * hh, 2), YA3 + dt, slot * 8192 + (32 * ks + 16 * hh) * 128))
        X(0); Y(0); X(1); Y(1); Y(2); Y(3)
        return out
    def phase3(fs, nxt, waits):
        need = {("x", 0): 0, ("y", 0): 2, ("x", 1): 3, ("y", 1): 5, ("y", 2): 7, ("y", 3): 9}
        done = -1; li = 0; n = 0
        for dt in range(4):
            for tt in ((0, 1) if dt % 2 == 0 else (1, 0)):
                if waits:
                    p = max(need[("x", tt)], need[("y", dt)])
                    if p > done:
                        a("s_waitcnt lgkmcnt(%d)", min(15, 9 - p + li)); done = p
                d = ACC3 + 4 * (tt * 4 + dt)
                a("v_mfma_f32_16x16x32_bf16 %s, %s, %s, %s", v(d, 4), v(F3[fs] + 8 + 4 * dt, 4), v(F3[fs] + 4 * tt, 4), v(d, 4))
                n += 1
                for _ in range(2 if n <= 2 else 1):
                    if li < len(nxt): a(nxt[li]); li += 1
        assert li == len(nxt)
    for r in range(32): a("v_mov_b32 v%d, 0", ACC3 + r)
    a("s_mov_b32 s50, 7")
    a("s_barrier")
    a.st()
    final_loads()
    for l in frag3(0, 0, 0): a(l)
    lab = a.newlabel("cl")
    a.put(lab)
    for slot in range(4):
        phase3(0, frag3(slot, 1, 1), True)
        a("s_waitcnt lgkmcnt(0)")
        a("s_barrier")
        if slot == 3: a.st()
        phase3(1, frag3((slot + 1) & 3, 0, 0), False)
    a("s_sub_u32 s50, s50, 1"); a("s_cmp_lg_u32 s50, 0"); a("s_cbranch_scc1 %s", lab)
    a("s_waitcnt lgkmcnt(0)")
    a("s_nop 7")
    for tt in range(2):
        for dt in range(4):
            d = ACC3 + 4 * (tt * 4 + dt); R = F3[0] + 2 * (tt * 4 + dt)
            a("v_cvt_pk_bf16_f32 v%d, v%d, v%d", R, d, d + 1); a("v_cvt_pk_bf16_f32 v%d, v%d, v%d", R + 1, d + 2, d + 3)
    for dt in range(4):
        if dt: a("v_xor_b32 v9, %d, v%d", 32 * dt, VSW3)
        for tt in range(2):
            a("ds_write_b64 v%d, %s offset:%d", 9 if dt else VSW3, pk(F3[0] + 2 * (tt * 4 + dt)), 2048 * tt)
    fin = a.label("fin")
    a("s_branch %s", fin)

    a.put(prod)
    PV = 48
    a("s_sub_u32 s%d, s%d, 4", PV, SW)
    a.srd(20, P_SSMK, 4 * MB); a.srd(24, P_Q, 4 * MB); a.srd(28, P_C, 2048); a.srd(32, P_WMOD, 12 * MB)
    a.srd(36, P_WS, 16 * 24576, WS_MODP); a.srd(40, P_WS, 12288, WS_MOD)
    RKr, ZR, SH = 64, 88, 92
    a("s_mul_i32 s49, s%d, %d", PV, CV_W)
    a("s_lshl_b32 s50, s%d, 7", SX_); a("s_lshl_b32 s3, s%d, 2", SIDX); a("s_add_u32 s50, s50, s3"); a("s_add_u32 s50, s50, s%d", PV); a("s_lshl_b32 s50, s50, 12")
    a("v_lshlrev_b32 v3, 4, v1")
    a("v_add_u32 v6, s49, v3")
    for r in range(4): a("v_mov_b32 v%d, 0", ZR + r)
    a("s_mov_b32 exec_hi, 0")
    a("ds_write_b128 v6, v[%d:%d] offset:%d", ZR, ZR + 3, CV_UR + 4096)
    a("s_mov_b64 exec, 3")
    a("ds_write_b128 v6, v[%d:%d] offset:%d", ZR, ZR + 3, CV_C0)
    a("s_mov_b64 exec, 1")
    a("ds_write_b128 v6, v[%d:%d] offset:%d", ZR, ZR + 3, CV_C1)
    a("v_mov_b32 v7, %d", L_CNT)
    a("ds_write_b128 v7, v[%d:%d]", ZR, ZR + 3)
    a("ds_write_b128 v7, v[%d:%d] offset:16", ZR, ZR + 3)
    a("v_mov_b32 v7, %d", L_CD)
    a("ds_write_b32 v7, v%d", ZR)
    a("s_mov_b64 exec, -1")
    SG_R, SG_C = 51, 52
    a("s_lshr_b32 s%d, s%d, 1", SG_R, SIDX); a("s_lshl_b32 s%d, s%d, 1", SG_C, SX_); a("s_and_b32 s3, s%d, 1", SIDX); a("s_add_u32 s%d, s%d, s3", SG_C, SG_C)
    a("s_lshl_b32 s4, s%d, 6", SG_R); a("s_lshl_b32 s3, s%d, 4", PV); a("s_add_u32 s4, s4, s3")
    a("v_lshrrev_b32 v4, 4, v1"); a("v_lshlrev_b32 v4, 4, v4"); a("s_lshl_b32 s3, s%d, 7", SG_R); a("v_add_u32 v4, s3, v4")
    a("s_mul_i32 s5, s4, 12288"); a("s_mul_i32 s3, s%d, 768", SG_C); a("s_add_u32 s5, s5, s3")
    a("s_waitcnt lgkmcnt(0)")
    a("s_barrier")
    CR, SLT, SPK, AM, WMV, WMR, YF, GAC = 108, 116, 148, 156, 204, 210, 64, 112
    a("s_and_b32 s3, s2, 14"); a("s_cmp_eq_u32 s3, 14"); a("s_cselect_b32 s3, 0, -1")
    a("v_mov_b32 v60, s3"); a("s_lshl_b32 s3, s2, 10"); a("s_sub_u32 s3, s3, 1024"); a("v_lshl_add_u32 v61, v0, 2, s3")
    a("buffer_store_dword v60, v61, %s, 0 offen sc1", srdr(R_SY))
    a("v_mov_b32 v62, -1"); a("v_mov_b32 v63, -1")
    a("s_mul_i32 s3, s%d, 24576", SG_R); a("s_mul_i32 s19, s%d, 1536", SG_C); a("s_add_u32 s60, s3, s19")
    ns = a.newlabel("ns"); ns2 = a.newlabel("ns")
    a("s_cmp_eq_u32 s%d, 3", PV); a("s_cbranch_scc1 %s", ns)
    a("s_lshl_b32 s3, s%d, 9", PV); a("v_lshl_add_u32 v5, v1, 3, s3")
    a("buffer_store_dwordx2 v[62:63], v5, s[36:39], s60 offen sc1")
    a("s_branch %s", ns2)
    a.put(ns)
    a("s_mul_i32 s3, s%d, 1536", SX_); a("s_lshl_b32 s19, s%d, 6", SIDX); a("s_add_u32 s3, s3, s19")
    a("s_cmp_ge_u32 s%d, 24", SIDX); a("s_cselect_b32 s3, 0x10000, s3")
    a("v_lshlrev_b32 v5, 2, v1")
    a("s_mov_b64 exec, 0xffff")
    a("buffer_store_dword v62, v5, s[40:43], s3 offen sc1")
    a("s_mov_b64 exec, -1")
    a.put(ns2)
    for m in range(4):
        a("s_add_u32 s3, s50, %d", 1024 * m)
        a("buffer_load_dwordx4 v[%d:%d], v3, s[20:23], s3 offen", RKr + 6 * m, RKr + 6 * m + 3)
        a("buffer_load_dword v%d, v3, s[20:23], s3 offen offset:16", RKr + 6 * m + 4)
    for ks in range(2): a("buffer_load_dwordx4 %s, v4, s[28:31], 0 offen offset:%d", v(CR + 4 * ks, 4), 64 * ks)
    if opt.get("codepf", 1):
        ncp = a.newlabel("ncp")
        a("s_cmp_lg_u32 s%d, 7", SW); a("s_cbranch_scc1 %s", ncp)
        a("s_cmp_ge_u32 s%d, 4", SIDX); a("s_cbranch_scc1 %s", ncp)
        a("s_lshl_b32 s3, s%d, 13", SIDX); a("v_lshl_add_u32 v60, v1, 7, s3")
        a("v_min_u32 v60, %s-%s-4, v60", end, a.label("pc0"))
        a("v_mov_b32 v61, s97"); a("v_add_co_u32 v60, vcc, s96, v60"); a("s_nop 1"); a("v_addc_co_u32 v61, vcc, 0, v61, vcc")
        a("global_load_dword v216, v[60:61], off")
        a("s_nop 0")
        a.put(ncp)
    a("s_waitcnt vmcnt(%d)", 12)
    get_tag()
    a("s_mov_b32 s3, 1366")
    for mm in range(3):
        a("v_add_u32 v60, %d, v1", 64 * mm); a("v_mul_u32_u24 v61, s3, v60"); a("v_lshrrev_b32 v61, 16, v61")
        a("v_mul_u32_u24 v62, 48, v61"); a("v_sub_u32 v60, v60, v62")
        a("v_lshlrev_b32 v62, 1, v61"); a("v_xor_b32 v60, v60, v62"); a("v_lshlrev_b32 v60, 4, v60")
        a("v_mul_u32_u24 v61, 12288, v61"); a("v_add_u32 v%d, v60, v61", WMV + mm)
        a("v_xor_b32 v60, 128, v60"); a("v_add_u32 v%d, v60, v61", WMV + 3 + mm)
    a("v_lshrrev_b32 v60, 4, v1"); a("v_bfe_u32 v61, v1, 2, 2"); a("v_lshl_add_u32 v62, v60, 3, v61"); a("v_mul_u32_u24 v62, 768, v62")
    a("v_and_b32 v63, 3, v1"); a("v_lshl_add_u32 v62, v63, 3, v62"); a("v_add_u32 v62, %d, v62", L_WM)
    a("v_and_b32 v60, 1, v60"); a("v_lshl_add_u32 v61, v60, 2, v61")
    a("s_mul_i32 s3, s%d, 6", PV)
    for nt in range(6):
        a("v_xor_b32 v60, s3, v61"); a("v_lshl_add_u32 v%d, v60, 5, v62", WMR + nt)
        if nt < 5: a("s_add_u32 s3, s3, 1")
    XZ, XG, YZp, YGp, VPUB, VLD, VPOLL, VFIN, VFP, VTG, VZR = 8, 12, 16, 20, 24, 25, 26, 27, 28, 29, 30
    VYD, XP, YP, VF16, VFD = 50, 52, 56, 58, 59
    SLX, SLY, SXo, SYo = 49, 50, 53, 54
    a("s_lshl_b32 s%d, s%d, 10", SLX, PV)
    a("s_lshl_b32 s%d, s%d, 12", SLY, PV); a("s_add_u32 s%d, s%d, %d", SLY, SLY, L_Y)
    a("v_lshrrev_b32 v60, 4, v1"); a("s_and_b32 s3, s%d, 1", PV); a("s_lshl_b32 s3, s3, 2"); a("v_add_u32 v60, s3, v60")
    a("v_and_b32 v61, 7, v1"); a("v_xor_b32 v60, v60, v61"); a("v_lshlrev_b32 v60, 4, v60")
    a("v_lshrrev_b32 v61, 3, v1"); a("s_lshl_b32 s3, s%d, 7", SI); a("s_lshl_b32 s19, s%d, 3", PV); a("s_add_u32 s3, s3, s19"); a("v_add_u32 v61, s3, v61")
    a("v_lshl_add_u32 v%d, v61, 11, v60", XZ); a("v_lshl_add_u32 v%d, v61, 12, v60", XG)
    for u in range(1, 4):
        a("v_add_u32 v%d, %d, v%d", XZ + u, u * 32 * 2048, XZ); a("v_add_u32 v%d, %d, v%d", XG + u, u * 32 * 4096, XG)
    a("v_lshrrev_b32 v60, 4, v1"); a("v_bfe_u32 v61, v1, 1, 3"); a("v_xor_b32 v61, v61, v60"); a("v_lshlrev_b32 v61, 5, v61")
    a("v_and_b32 v62, 1, v1"); a("v_lshl_add_u32 v61, v62, 4, v61")
    a("s_lshl_b32 s3, s%d, 4", PV); a("v_add_u32 v60, s3, v60"); a("v_mul_u32_u24 v60, 7168, v60")
    a("s_lshl_b32 s3, s%d, 8", SJ); a("v_add_u32 v60, s3, v60")
    for u in range(4):
        if u == 2: a("v_xor_b32 v61, 128, v61")
        if u: a("v_add_u32 v62, %d, v60", u * 4 * 7168)
        a("v_add_u32 v%d, v61, v%d", YZp + u, 62 if u else 60)
    a("s_lshl_b32 s3, s%d, 19", SJ); a("s_lshl_b32 s19, s%d, 12", PV); a("s_add_u32 s3, s3, s19")
    a("v_lshl_add_u32 v%d, v1, 4, s3", YGp)
    for u in range(1, 4): a("v_add_u32 v%d, %d, v%d", YGp + u, 1024 * u, YGp)
    a("s_lshl_b32 s3, s%d, 4", SI); a("s_add_u32 s3, s3, s%d", SJ); a("s_lshl_b32 s3, s3, 10"); a("v_lshl_add_u32 v%d, v1, 4, s3", VPUB)
    a("v_add_u32 v%d, %d, v3", VLD, L_ST)
    a("v_lshrrev_b32 v60, 4, v1"); a("v_and_b32 v61, 15, v1"); a("v_lshlrev_b32 v60, 10, v60"); a("v_lshl_add_u32 v60, v61, 4, v60")
    a("s_lshl_b32 s3, s%d, 14", SI); a("s_lshl_b32 s19, s%d, 8", PV); a("s_add_u32 s3, s3, s19"); a("v_add_u32 v%d, s3, v60", VPOLL)
    a("v_lshrrev_b32 v60, 5, v1"); a("v_lshl_add_u32 v60, v61, 1, v60"); a("s_add_u32 s3, s19, %d", L_FIN); a("v_lshl_add_u32 v%d, v60, 3, s3", VFIN)
    a("s_lshl_b32 s3, s%d, 7", SJ); a("s_add_u32 s3, s3, %d", FZ); a("v_lshl_add_u32 v%d, v61, 2, s3", VFP)
    a("s_lshl_b32 s19, s%d, 2", SI); a("s_add_u32 s55, s3, s19")
    a("s_lshl_b32 s3, s%d, 12", SI); a("s_lshl_b32 s19, s%d, 7", SJ); a("s_add_u32 s56, s3, s19"); a("s_add_u32 s56, s56, %d", FD1)
    a("s_and_b32 s19, s%d, 1", SX_); a("s_lshl_b32 s19, s19, 11"); a("s_add_u32 s8, s3, s19")
    a("v_lshlrev_b32 v%d, 7, v61", VF16)
    a("v_mov_b32 v%d, s%d", VTG, TAG); a("v_mov_b32 v%d, 0", VZR)
    for u in range(1, 4): a("s_mov_b32 s%d, %d", 56 + u, 4096 * u)
    a("v_lshrrev_b32 v60, 4, v1"); a("v_and_b32 v61, 7, v1"); a("v_xor_b32 v60, v60, v61"); a("v_and_b32 v61, 56, v1"); a("v_or_b32 v60, v60, v61")
    a("v_lshlrev_b32 v%d, 4, v60", VYD); a("v_xor_b32 v%d, 64, v%d", VYD + 1, VYD)
    a("s_mul_i32 s3, s%d, 458752", SI); a("s_lshl_b32 s19, s%d, 12", PV); a("s_add_u32 s3, s3, s19"); a("v_lshl_add_u32 v%d, v1, 4, s3", XP)
    for u in range(1, 4): a("v_add_u32 v%d, %d, v%d", XP + u, 1024 * u, XP)
    a("v_lshrrev_b32 v60, 4, v1"); a("v_lshlrev_b32 v60, 1, v60"); a("v_and_b32 v61, 7, v1"); a("v_xor_b32 v60, v60, v61"); a("v_lshlrev_b32 v60, 4, v60")
    a("v_lshrrev_b32 v61, 3, v1"); a("v_lshl_add_u32 v60, v61, 11, v60")
    a("s_lshl_b32 s3, s%d, 15", PV); a("s_lshl_b32 s19, s%d, 7", SJD); a("s_add_u32 s3, s3, s19"); a("v_add_u32 v%d, s3, v60", YP)
    a("v_add_u32 v%d, %d, v%d", YP + 1, 8 * 2048, YP)
    a("s_barrier")
    a("s_waitcnt vmcnt(10)")
    a("s_barrier")
    for m in range(4):
        a("s_waitcnt vmcnt(%d)", 2 + 2 * (3 - m))
        r = RKr + 6 * m
        a("ds_write_b128 v6, v[%d:%d] offset:%d", r, r + 3, CV_C0 + 32 + 1024 * m)
        for j in range(4): a("v_alignbit_b32 v%d, v%d, v%d, 16", SH + 4 * m + j, r + j + 1, r + j)
        a("ds_write_b128 v6, v[%d:%d] offset:%d", SH + 4 * m, SH + 4 * m + 3, CV_C1 + 32 + 1024 * m)
        if m == 0:
            a("v_lshlrev_b32 v%d, 16, v%d", ZR + 3, r)
            a("s_mov_b64 exec, 1")
            a("ds_write_b128 v6, v[%d:%d] offset:%d", ZR, ZR + 3, CV_C1 + 16)
            a("s_mov_b64 exec, -1")
    a("s_waitcnt lgkmcnt(0)")
    lds_inc(a, 6, 62, 63)
    a("s_waitcnt vmcnt(0)")
    for d in range(8): unpack(a, SLT + 2 * d, SLT + 2 * d + 1, CR + d)
    a("s_mov_b32 s4, %s", fhex(-LOG2E))
    for e in range(16): a("v_mul_f32 v%d, s4, v%d", SLT + 16 + e, SLT + e)
    for e in range(16): a("v_exp_f32 v%d, v%d", SLT + 16 + e, SLT + 16 + e)
    for e in range(16): a("v_add_f32 v%d, 1.0, v%d", SLT + 16 + e, SLT + 16 + e)
    for e in range(16): a("v_rcp_f32 v%d, v%d", SLT + 16 + e, SLT + 16 + e)
    for e in range(16): a("v_mul_f32 v%d, v%d, v%d", SLT + e, SLT + e, SLT + 16 + e)
    for d in range(8): a("v_cvt_pk_bf16_f32 v%d, v%d, v%d", SPK + d, SLT + 2 * d, SLT + 2 * d + 1)
    a("v_and_b32 v60, 15, v1")
    for nt in range(6):
        a("v_cmp_eq_u32 vcc, %d, v60", 4 * (nt & 3) + (nt >> 2)); a("s_nop 1")
        for d in range(8): a("v_cndmask_b32 v%d, 0, v%d, vcc", AM + 8 * nt + d, SPK + d)
    a("s_mul_i32 s4, s%d, %d", PV, 16 * 768); a("s_add_u32 s4, s4, %d", L_WM)
    lds_wait(a, 7, 4, 62, 63, 2)
    for m in range(12):
        a("s_add_u32 m0, s4, %d", 1024 * m)
        if m and m % 3 == 0: a("s_add_u32 s5, s5, %d", 4 * 12288)
        else: a("s_nop 0")
        a("buffer_load_dwordx4 v%d, s[32:35], s5 offen lds", WMV + 3 * (m // 6) + m % 3)
    a("s_lshl_b32 s6, s2, 14"); a("s_lshl_b32 s3, s%d, 12", PV); a("s_add_u32 s6, s6, s3")
    a("s_mul_i32 s7, s%d, %d", PV, 2 * QROW); a("s_add_u32 s7, s7, %d", L_QT)
    for u in range(4):
        a("s_add_u32 m0, s7, %d", (u >> 1) * QROW + (u & 1) * 1024)
        a("s_add_u32 s3, s6, %d", 1024 * u)
        a("buffer_load_dwordx4 v3, s[24:27], s3 offen lds")
    a.srd(28, P_WIN, 1024 * 7168)
    a("s_lshl_b32 s3, s2, 2"); a("s_add_u32 s3, s3, s%d", PV); a("s_mul_i32 s3, s3, 7168"); a("s_add_u32 s3, s3, 3584")
    a("v_lshlrev_b32 v60, 7, v1")
    a("s_mov_b32 exec_lo, 0x%x", 0xfffffff if opt.get("winpf", 1) == 1 else 1); a("s_mov_b32 exec_hi, 0")
    a("buffer_load_dword v216, v60, s[28:31], s3 offen")
    a("s_mov_b64 exec, -1")
    a.st()
    a("s_waitcnt vmcnt(5)")
    lds_sync(a, 0, 62, 2)
    for nt in range(6):
        for ks in range(2):
            for hh in range(2): a("ds_read_b64_tr_b16 %s, v%d offset:%d", v(YF + 8 * nt + 4 * ks + 2 * hh, 2), WMR + nt, (32 * ks + 4 * hh) * 768)
    a("s_mul_i32 s3, s%d, 384", PV); a("s_add_u32 s3, s3, s60")
    a("v_lshlrev_b32 v60, 2, v1")
    for n in range(12):
        if n % 2 == 0: a("s_waitcnt lgkmcnt(%d)", min(15, 20 - 2 * n))
        a("v_mfma_f32_16x16x32_bf16 %s, %s, %s, %s", v(GAC, 4), v(AM + 4 * n, 4), v(YF + 4 * n, 4), v(GAC, 4) if n else "0")
    a("s_nop 7")
    a("buffer_store_dword v%d, v60, s[36:39], s3 offen sc1", GAC)
    a("s_mov_b32 exec_hi, 0")
    a("buffer_store_dword v%d, v60, s[36:39], s3 offen offset:256 sc1", GAC + 1)
    a("s_mov_b64 exec, -1")
    a.st()
    finz = a.label("finz"); pb5 = a.label("pb5")
    a("s_cmp_lg_u32 s%d, 3", PV); a("s_cbranch_scc1 %s", pb5)
    a("s_cmp_ge_u32 s%d, 24", SIDX); a("s_cbranch_scc1 %s", pb5)
    a("v_lshlrev_b32 v60, 2, v1")
    a("s_mul_i32 s4, s%d, 768", SX_); a("s_lshl_b32 s3, s%d, 5", SIDX); a("s_add_u32 s4, s4, s3")
    a("s_lshr_b32 s3, s4, 10"); a("s_cmp_eq_u32 s3, 1"); a("s_cselect_b32 s61, 1.0, 0"); a("s_cmp_eq_u32 s3, 4"); a("s_cselect_b32 s61, 1.0, s61")
    a("s_lshl_b32 s5, s4, 2"); a("s_lshl_b32 s4, s4, 1")
    a("v_lshlrev_b32 v63, 3, v1")
    a("s_mov_b64 exec, 0xffff")
    gl = a.newlabel("gl"); go = a.newlabel("go")
    a("s_mov_b32 s11, 0")
    a.put(gl)
    a("s_mov_b32 s6, s5")
    for p in range(16):
        a("buffer_load_dwordx2 %s, v63, s[36:39], s6 offen sc1", pk(64 + 2 * p))
        if p < 15: a("s_add_u32 s6, s6, 24576")
    a("s_add_u32 s11, s11, 1")
    a("s_cmp_gt_u32 s11, %d", SPIN_MAX); a("s_cbranch_scc1 %s", go)
    a("s_waitcnt vmcnt(0)")
    a("v_max3_u32 v61, v64, v66, v68")
    for p in range(3, 15, 2): a("v_max3_u32 v61, v61, v%d, v%d", 64 + 2 * p, 66 + 2 * p)
    a("v_max_u32 v61, v61, v94")
    a("v_cmp_eq_u32 vcc, -1, v61"); a("s_sleep 2"); a("s_cbranch_vccnz %s", gl)
    a.put(go)
    for w in (8, 4, 2, 1):
        for p in range(w): a("v_pk_add_f32 %s, %s, %s", pk(64 + 2 * p), pk(64 + 2 * p), pk(64 + 2 * (p + w)))
    a("v_cvt_pk_bf16_f32 v66, v64, v65"); unpack(a, 64, 65, 66)
    a("v_add_f32 v64, s61, v64"); a("v_add_f32 v65, s61, v65"); a("v_cvt_pk_bf16_f32 v64, v64, v65")
    a("buffer_store_dword v64, v60, s[40:43], s4 offen sc1")
    a("s_mov_b64 exec, -1")
    a.put(pb5)
    a("s_waitcnt vmcnt(3)")
    a("v_add_u32 v7, s7, v3")
    for u in range(4): a("ds_read_b128 v[%d:%d], v7 offset:%d", 144 + 4 * u, 147 + 4 * u, (u >> 1) * QROW + (u & 1) * 1024)
    a("s_waitcnt lgkmcnt(0)")
    for rr in range(2):
        X = 160 + 16 * rr
        for d in range(8): unpack(a, X + 2 * d, X + 2 * d + 1, 144 + 8 * rr + d)
        a("v_pk_add_f32 v[192:193], %s, %s", pk(X), pk(X + 2)); a("v_pk_mul_f32 v[194:195], %s, %s", pk(X), pk(X))
        for e in range(2, 16, 2): a("v_pk_fma_f32 v[194:195], %s, %s, v[194:195]", pk(X + e), pk(X + e))
        for e in range(4, 16, 2): a("v_pk_add_f32 v[192:193], v[192:193], %s", pk(X + e))
        a("v_add_f32 v%d, v192, v193", 196 + rr); a("v_add_f32 v%d, v194, v195", 198 + rr)
    a("s_nop 1")
    a("v_permlane32_swap_b32 v196, v197"); a("v_permlane32_swap_b32 v198, v199")
    a("v_add_f32 v196, v196, v197"); a("v_add_f32 v198, v198, v199")
    a("v_mov_b32 v197, v196"); a("v_mov_b32 v199, v198")
    a("s_nop 1")
    a("v_permlane16_swap_b32 v197, v196"); a("v_permlane16_swap_b32 v199, v198")
    a("v_add_f32 v196, v196, v197"); a("v_add_f32 v198, v198, v199")
    for dpp in ("row_ror:8", "row_ror:4", "quad_perm:[1,0,3,2]", "quad_perm:[2,3,0,1]"):
        a("s_nop 0")
        a("v_add_f32_dpp v196, v196, v196 %s row_mask:0xf bank_mask:0xf", dpp); a("v_add_f32_dpp v198, v198, v198 %s row_mask:0xf bank_mask:0xf", dpp)
    rstd_calc(a, 196, 198, 197, 192, 1.0 / 1024)
    a("v_lshrrev_b32 v7, 5, v1"); a("v_lshlrev_b32 v7, 3, v7"); a("s_lshl_b32 s3, s%d, 4", PV); a("s_add_u32 s3, s3, %d", L_L1S); a("v_add_u32 v7, s3, v7")
    a("ds_write_b64 v7, v[192:193]")
    a("s_waitcnt lgkmcnt(0)")
    lds_inc(a, 1, 62, 63)
    R_X, R_Y, R_WSP, R_Z2p, R_YB = 20, 24, 28, 32, 36
    a.srd(R_X, P_WS, 4 * MB, WS_H2); a.srd(R_Y, P_WIN, 1024 * 7168); a.srd(R_WSP, P_WSP, 8 * MB); a.srd(R_Z2p, P_WS, 14 * 524288, WS_Z2)
    a.srd(R_YB, P_WS, 4 * MB, WS_YB)
    a("s_lshl_b32 s4, s%d, 12", PV); a("s_lshl_b32 s5, s2, 14"); a("s_add_u32 s5, s5, s4")
    SYS, SK = 6, 63
    a("s_mov_b32 s%d, 0", SXo); a("s_mov_b32 s%d, 3584", SYo); a("s_mov_b32 s%d, %d", SYS, 64 * 7168)
    a.st()
    a("s_barrier")
    for u in range(4):
        a("s_add_u32 m0, s4, %d", 1024 * u); a("s_add_u32 s3, s5, %d", 1024 * u)
        a("buffer_load_dwordx4 v%d, %s, s3 offen sc1 lds", VYD + (u & 1), srdr(R_YB))
    def issue(slot, which="xy"):
        for u in range(4):
            if "x" in which:
                a("s_add_u32 m0, s%d, %d", SLX, slot * 16384 + u * 4096); a("s_nop 0")
                a("buffer_load_dwordx4 v%d, %s, s%d offen sc1 lds", XZ + u, srdr(R_X), SXo)
            if "y" in which:
                a("s_add_u32 m0, s%d, %d", SLY, slot * 16384 + u * 1024); a("s_nop 0")
                a("buffer_load_dwordx4 v%d, %s, s%d offen sc1 lds", YZp + u, srdr(R_Y), SYo)
        if "x" in which: a("s_add_u32 s%d, s%d, 128", SXo, SXo)
        if "y" in which: a("s_add_u32 s%d, s%d, s%d", SYo, SYo, SYS)
    p_spare = a.label("pspare"); p_g3 = a.label("pg3"); ny = a.label("ny")
    a("v_mov_b32 v62, %d", L_CD)
    a("ds_write_b32 v62, v%d", VZR)
    a("s_waitcnt vmcnt(0) lgkmcnt(0)")
    a("s_barrier")
    if opt.get("winpf", 1) == 2:
        a("s_lshl_b32 s3, s2, 2"); a("s_add_u32 s3, s3, s%d", PV); a("s_mul_i32 s3, s3, 7168"); a("s_add_u32 s3, s3, 3584")
        a("v_lshlrev_b32 v60, 7, v1")
        a("s_mov_b32 exec_lo, 0xfffffff"); a("s_mov_b32 exec_hi, 0")
        a("buffer_load_dword v216, v60, %s, s3 offen", srdr(R_Y))
        a("s_mov_b64 exec, -1")
    a("s_barrier")
    a("s_barrier")
    a("s_cmp_ge_u32 s%d, 28", SIDX); a("s_cbranch_scc1 %s", p_spare)
    for s in range(2): issue(s, "y")
    a("s_add_u32 s4, s8, %d", FC1)
    lead_poll(a, PV, 4, 62, lambda: poll(a, VF16, 60, TAG, "s4", n=16))
    a.st()
    issue(0, "x"); issue(1, "x"); issue(2); issue(3)
    PS = 32
    def poll_loads():
        for u in range(4): a("buffer_load_dwordx4 %s, v%d, %s, %s offen sc1", v(PS + 4 * u, 4), VPOLL, srdr(R_SY), "s%d" % (56 + u) if u else "0")
    def poll_check(out):
        a("v_max3_u32 v60, v%d, v%d, v%d", PS + 1, PS + 3, PS + 5); a("v_max3_u32 v60, v60, v%d, v%d", PS + 7, PS + 9)
        a("v_max3_u32 v60, v60, v%d, v%d", PS + 11, PS + 13); a("v_max_u32 v60, v60, v%d", PS + 15)
        a("v_cmp_eq_u32 vcc, -1, v60"); a("s_nop 4")
        a("s_cbranch_vccz %s", out)
    def spin(loads, check):
        ok = a.newlabel("ok"); again = a.newlabel("sp")
        check(ok)
        a("s_mov_b32 s62, 0")
        a.put(again)
        loads()
        a("s_add_u32 s62, s62, 1")
        a("s_cmp_gt_u32 s62, %d", SPIN_MAX); a("s_cbranch_scc1 %s", ok)
        a("s_waitcnt vmcnt(0)")
        check(ok)
        a("s_branch %s", again)
        a.put(ok)
    def fpoll_load(): a("buffer_load_dword v48, v%d, %s, 0 offen sc1", VFP, srdr(R_SY))
    def fpoll_check(out):
        a("v_cmp_ne_u32 vcc, s%d, v48", TAG); a("s_nop 4"); a("s_cbranch_vccz %s", out)
    SLX3, SLY3, SX3, SY3 = 49, 50, 53, 54
    def issue3(slot, which="xy"):
        for u in range(4):
            if "x" in which:
                a("s_add_u32 m0, s%d, %d", SLX3, slot * 16384 + u * 1024); a("s_nop 0")
                a("buffer_load_dwordx4 v%d, %s, s%d offen sc1 lds", XP + u, srdr(R_P3), SX3)
            if u < 2 and "y" in which:
                a("s_add_u32 m0, s%d, %d", SLY3, slot * 8192 + u * 1024); a("s_nop 0")
                a("buffer_load_dwordx4 v%d, %s, s%d offen lds", YP + u, srdr(R_W), SY3)
        if "x" in which:
            a("s_add_u32 s%d, s%d, 16384", SX3, SX3); a("s_cmp_eq_u32 s%d, %d", SX3, 28 * 16384); a("s_cselect_b32 s%d, 0, s%d", SX3, SX3)
        if "y" in which:
            a("s_add_u32 s%d, s%d, %d", SY3, SY3, 64 * 2048); a("s_cmp_eq_u32 s%d, %d", SY3, 28 * 64 * 2048); a("s_cselect_b32 s%d, 0, s%d", SY3, SY3)
    def g3_pre():
        a.srd(R_W, P_WOUT, 1792 * 2048); a.srd(R_P3, P_WS, 16 * 458752, WS_P)
        a("s_lshl_b32 s%d, s%d, 12", SLX3, PV)
        a("s_lshl_b32 s%d, s%d, 11", SLY3, PV); a("s_add_u32 s%d, s%d, %d", SLY3, SLY3, L_Y3)
        a("s_add_u32 s3, s%d, s%d", SI, SJD); a("s_and_b32 s3, s3, %d", opt.get("rot3", 1) - 1); a("s_mul_i32 s3, s3, %d", 28 // opt.get("rot3", 1))
        a("s_lshl_b32 s%d, s3, 14", SX3); a("s_lshl_b32 s%d, s3, 17", SY3)
        for s in range(2): issue3(s, "y")
    def ev_pub():
        sk = a.newlabel("np")
        a("s_cmp_lg_u32 s%d, 0", PV); a("s_cbranch_scc1 %s", sk)
        a("ds_read_b128 v[32:35], v%d", VLD); a("ds_read_b128 v[36:39], v%d offset:1024", VLD)
        a("s_waitcnt lgkmcnt(0)")
        a("v_pk_add_f32 v[32:33], v[32:33], v[36:37]"); a("v_pk_add_f32 v[34:35], v[34:35], v[38:39]")
        a("buffer_store_dwordx4 v[32:35], v%d, %s, 0 offen sc1", VPUB, srdr(R_SY))
        a.put(sk)
    def ev_chk():
        a("s_waitcnt vmcnt(%d)", 8 * (ev["chk"] - ev["poll"]))
        spin(poll_loads, poll_check)
        for (d, s) in ((0, 4), (8, 12), (0, 8)):
            for e in (0, 2): a("v_pk_add_f32 %s, %s, %s", pk(PS + d + e), pk(PS + d + e), pk(PS + s + e))
        a("s_nop 1")
        a("v_permlane32_swap_b32 v%d, v%d", PS, PS + 2); a("v_permlane32_swap_b32 v%d, v%d", PS + 1, PS + 3)
        a("v_add_f32 v%d, v%d, v%d", PS, PS, PS + 2); a("v_add_f32 v%d, v%d, v%d", PS + 1, PS + 1, PS + 3)
        a("v_mov_b32 v%d, v%d", PS + 2, PS); a("v_mov_b32 v%d, v%d", PS + 3, PS + 1)
        a("s_nop 1")
        a("v_permlane16_swap_b32 v%d, v%d", PS + 2, PS); a("v_permlane16_swap_b32 v%d, v%d", PS + 3, PS + 1)
        a("v_add_f32 v%d, v%d, v%d", PS, PS, PS + 2); a("v_add_f32 v%d, v%d, v%d", PS + 1, PS + 1, PS + 3)
        rstd_calc(a, PS, PS + 1, PS + 2, PS + 2, 1.0 / 1792)
        a("ds_write_b64 v%d, %s", VFIN, pk(PS + 2))
        a("s_waitcnt lgkmcnt(0)")
    def ev_flag():
        sk = a.newlabel("nf")
        a("s_cmp_lg_u32 s%d, 0", PV); a("s_cbranch_scc1 %s", sk)
        flag_store(a, VTG, VZR, "s55")
        a.put(sk)
    def ev_z1():
        a("s_mov_b32 s%d, 0", SXo); a("s_mov_b32 s%d, 0", SYo)
    def ev_g():
        a("s_waitcnt vmcnt(%d)", 8 * (ev["fchk"] - ev["fpoll"]))
        spin(fpoll_load, fpoll_check)
        a("s_mov_b32 s%d, 0", SXo); a("s_mov_b32 s%d, 0", SYo); a("s_mov_b32 s%d, 16384", SYS)
        a.srd(R_X, P_WSP, 8 * MB); a.srd(R_Y, P_WS, 14 * 524288, WS_Z2)
        for u in range(4):
            a("v_mov_b32 v%d, v%d", XZ + u, XG + u); a("v_mov_b32 v%d, v%d", YZp + u, YGp + u)
    assert ev["fchk"] == 28
    events = {12: ev_z1, ev["pub"]: ev_pub, ev["poll"]: poll_loads, ev["chk"]: ev_chk, ev["drain"]: ev_flag, ev["fpoll"]: fpoll_load, 28: ev_g}
    a("s_mov_b32 s%d, 0", SK); a("s_mov_b32 s7, %d", sum(1 << k for k in events))
    a("s_waitcnt vmcnt(20)")
    a("s_barrier")
    ptop = a.label("ptop"); ptail = a.label("ptail")
    evl = [a.label("pe%d" % n) for n in range(4)]; evr = [a.label("pr%d" % n) for n in range(4)]
    a.put(ptop)
    for slot in range(4):
        a("s_lshr_b32 s3, s7, s%d", SK) if False else None
        a("s_bitcmp1_b32 s7, 0")
        a("s_waitcnt vmcnt(16)")
        a("s_barrier")
        a("s_cbranch_scc1 %s", evl[slot]); a.put(evr[slot])
        a("s_lshr_b32 s7, s7, 1"); a("s_add_u32 s%d, s%d, 1", SK, SK)
        issue(slot)
    a("s_cmp_lt_u32 s%d, 60", SK); a("s_cbranch_scc1 %s", ptop)
    a("s_branch %s", ptail)
    for slot in range(4):
        a.put(evl[slot])
        ks = sorted(k for k in events if k % 4 == slot)
        for n, k in enumerate(ks):
            nx = a.newlabel("en")
            if n + 1 < len(ks):
                a("s_cmp_lg_u32 s%d, %d", SK, k); a("s_cbranch_scc1 %s", nx)
            events[k]()
            a("s_branch %s", evr[slot])
            a.put(nx)
        if not ks: a("s_branch %s", evr[slot])
    a.put(ptail)
    a("s_waitcnt vmcnt(16)"); a("s_barrier")
    g3_pre()
    a("s_waitcnt vmcnt(12)"); a("s_barrier")
    a("s_waitcnt vmcnt(4)"); a("s_barrier")
    a("v_mov_b32 v62, %d", L_CD)
    a("ds_write_b32 v62, v%d", VZR)
    a("s_waitcnt lgkmcnt(0)"); a("s_barrier")
    a("s_barrier")
    sk = a.newlabel("nf")
    a("s_cmp_lg_u32 s%d, 0", PV); a("s_cbranch_scc1 %s", sk)
    a("v_lshlrev_b32 v62, 11, v1")
    a("s_mov_b64 exec, 3")
    a("buffer_store_dword v%d, v62, %s, s56 offen sc1", VTG, srdr(R_SY))
    a("s_mov_b64 exec, -1")
    a.put(sk)
    a("s_branch %s", p_g3)
    a.put(p_spare)
    spare_stream()
    a("s_sub_u32 s%d, s%d, 4", PV, SW)
    g3_pre()
    a.put(p_g3)
    g3_final_setup()
    a("s_add_u32 s4, s8, %d", FD1)
    lead_poll(a, PV, L_CD, 62, lambda: poll(a, VF16, 60, TAG, "s4", n=14))
    a.st()
    issue3(0, "x"); issue3(1, "x"); issue3(2); issue3(3)
    a("s_mov_b32 s63, 6")
    a("s_waitcnt vmcnt(16)")
    a("s_barrier")
    lab = a.newlabel("pl")
    a.put(lab)
    for slot in range(4):
        a("s_waitcnt vmcnt(12)"); a("s_barrier")
        issue3(slot)
    a("s_sub_u32 s63, s63, 1"); a("s_cmp_lg_u32 s63, 0"); a("s_cbranch_scc1 %s", lab)
    a("s_waitcnt vmcnt(12)"); a("s_barrier")
    final_loads()
    a("s_waitcnt vmcnt(9)"); a("s_barrier")
    a("s_waitcnt vmcnt(3)"); a("s_barrier")
    a("s_barrier")
    a.put(fin)
    a("s_waitcnt vmcnt(0) lgkmcnt(0)")
    a("s_barrier")
    B = 48; U = 64; G = 96
    a("v_add_u32 v%d, 65536, v%d", VSR, VSR)
    for rr in range(2): a("ds_read_b128 %s, v%d offset:%d", v(B + 4 * rr, 4), VSR, 8192 * rr)
    for d in range(4): unpack(a, G + 2 * d, G + 2 * d + 1, GBR + d)
    for rr in range(2):
        for d in range(4): unpack(a, U + 16 * rr + 8 + 2 * d, U + 16 * rr + 8 + 2 * d + 1, X1R + 4 * rr + d)
    for rr in range(2):
        a("s_waitcnt lgkmcnt(%d)", 1 - rr)
        for d in range(4): unpack(a, U + 16 * rr + 2 * d, U + 16 * rr + 2 * d + 1, B + 4 * rr + d)
        for d in range(4):
            x = U + 16 * rr + 2 * d
            a("v_pk_fma_f32 %s, %s, %s, %s", pk(x), pk(x), pk(G + 2 * d), pk(x + 8))
        for d in range(4):
            x = U + 16 * rr + 2 * d
            a("v_cvt_pk_bf16_f32 v%d, v%d, v%d", B + 8 + 4 * rr + d, x, x + 1)
        a("buffer_store_dwordx4 %s, v%d, %s, %s offen %s", v(B + 8 + 4 * rr, 4), VO, srdr(R_O), "s9" if rr else "0", opt.get("outflag", ""))
    a.st_flush(16, 17)
    a.put(end)
    return a.text(), 256, LDS_TOTAL
```

```python
from asmlib import *
MB = 1 << 20
import os
WS0 = int(os.environ.get("WS0", "0")) * MB
WS_UR = WS0
WS_MODP = WS0 + 4 * MB
WS_MOD = WS0 + 4 * MB + 512 * 1024
WS_STATS = WS0 + 4 * MB + 768 * 1024
WS_FLAGS = WS0 + 5 * MB
WS_YB = WS0 + 8 * MB
WS_X1 = WS0 + 12 * MB
WS_H2 = WS0 + 16 * MB
WS_Z2 = WS0 + 20 * MB
WS_P = WS0 + 28 * MB
A_Q, A_K, A_V, A_SK, A_SSMK, A_SSMD, A_BX, A_WIN, A_WSP, A_BSP, A_WOUT, A_C, A_WMOD, A_OUT, A_DBG, A_WS = [8 * i for i in range(16)]
LOG2E = 1.4426950408889634
EPS = 1e-5

def unpack(a, lo, hi, src):
    a("v_lshlrev_b32 v%d, 16, v%d", lo, src)
    a("v_and_b32 v%d, 0xffff0000, v%d", hi, src)

def gen_k1():
    a = Asm("k1")
    end = a.label("end")
    a("s_cmp_ge_u32 s2, 256")
    a("s_cbranch_scc1 %s", end)
    a.st_init(0, 240)
    a("s_load_dwordx2 s[4:5], s[0:1], %d", A_K)
    a("s_load_dwordx2 s[6:7], s[0:1], %d", A_V)
    a("s_load_dwordx2 s[8:9], s[0:1], %d", A_SK)
    a("s_load_dwordx2 s[10:11], s[0:1], %d", A_C)
    a("s_load_dwordx2 s[12:13], s[0:1], %d", A_WMOD)
    a("s_load_dwordx2 s[14:15], s[0:1], %d", A_WS)
    VT, VCG, VRG, VL = 0, 1, 2, 3
    VOFF = 4
    VSK, VWM, VC = 15, 16, 17
    RK = 18
    RV = 40
    RW = 56
    RM = 64
    UK = 128
    UW = 172
    RES = 188
    ACC = 220
    TMP = 226
    a("v_and_b32 v%d, 31, v0", VCG)
    a("v_lshrrev_b32 v%d, 5, v0", VRG)
    a("v_and_b32 v%d, 63, v0", VL)
    a("v_lshrrev_b32 v%d, 6, v0", TMP)
    a("s_lshr_b32 s16, s2, 3")
    a("s_and_b32 s17, s2, 7")
    a("v_readfirstlane_b32 s18, v%d", TMP)
    a("s_lshl_b32 s19, s16, 17")
    a("s_lshl_b32 s3, s17, 8")
    a("s_add_u32 s19, s19, s3")
    a("s_sub_u32 s19, s19, %d", 3 * 2048)
    a("v_lshlrev_b32 v%d, 14, v%d", VOFF, VRG)
    a("v_lshl_add_u32 v%d, v%d, 3, v%d", VOFF, VCG, VOFF)
    a("v_add_u32 v%d, s19, v%d", VOFF, VOFF)
    for j in range(1, 11): a("v_add_u32 v%d, %d, v%d", VOFF + j, 2048 * j, VOFF)
    a("s_lshl_b32 s3, s17, 10")
    a("v_lshl_add_u32 v%d, v%d, 5, s3", VSK, VCG)
    a("s_lshr_b32 s52, s2, 4"); a("s_and_b32 s53, s2, 15")
    a("s_lshl_b32 s54, s52, 6"); a("s_lshl_b32 s3, s18, 4"); a("s_add_u32 s54, s54, s3")
    a("s_mul_i32 s55, s54, 12288"); a("s_mul_i32 s3, s53, 768"); a("s_add_u32 s55, s55, s3")
    a("v_mul_u32_u24 v%d, 12, v%d", VWM, VL)
    a("v_and_b32 v%d, 15, v%d", VC, VL)
    a("v_add_u32 v%d, s54, v%d", VC, VC)
    a("v_lshlrev_b32 v%d, 1, v%d", VC, VC)
    a("s_waitcnt lgkmcnt(0)")
    a.srd(20, 4, 4 * MB); a.srd(24, 6, 4 * MB); a.srd(28, 8, 8192); a.srd(32, 10, 2048); a.srd(36, 12, 12 * MB)
    a.srd(40, 14, 4 * MB, WS_UR); a.srd(44, 14, 16 * 24576, WS_MODP); a.srd(48, 14, 256 * 1024 + 4096, WS_STATS)
    a("buffer_load_ushort v%d, v%d, s[32:35], 0 offen", TMP + 1, VC)
    a("buffer_load_dwordx4 v[%d:%d], v%d, s[28:31], 0 offen", RW, RW + 3, VSK)
    a("buffer_load_dwordx4 v[%d:%d], v%d, s[28:31], 0 offen offset:16", RW + 4, RW + 7, VSK)
    for j in range(11): a("buffer_load_dwordx2 v[%d:%d], v%d, s[20:23], 0 offen", RK + 2 * j, RK + 2 * j + 1, VOFF + j)
    for j in range(8): a("buffer_load_dwordx2 v[%d:%d], v%d, s[24:27], 0 offen", RV + 2 * j, RV + 2 * j + 1, VOFF + 3 + j)
    for j in range(16):
        a("buffer_load_dwordx3 v[%d:%d], v%d, s[36:39], s55 offen", RM + 4 * j, RM + 4 * j + 2, VWM)
        if j < 15: a("s_add_u32 s55, s55, 12288")
    a("s_and_b32 s3, s2, 14"); a("s_cmp_eq_u32 s3, 14"); a("s_cselect_b32 s3, 0, -1")
    a("v_mov_b32 v%d, s3", TMP + 2)
    a("s_lshl_b32 s3, s2, 10")
    a("v_lshl_add_u32 v%d, v0, 2, s3", TMP + 3)
    a("buffer_store_dword v%d, v%d, s[48:51], 0 offen", TMP + 2, TMP + 3)
    nf = a.label("nf")
    a("s_cmp_ge_u32 s2, 4"); a("s_cbranch_scc1 %s", nf)
    a("v_mov_b32 v%d, 0", TMP + 4)
    a("v_add_u32 v%d, %d, v%d", TMP + 5, 256 * 1024, TMP + 3)
    a("buffer_store_dword v%d, v%d, s[48:51], 0 offen", TMP + 4, TMP + 5)
    a.put(nf)
    a("s_waitcnt vmcnt(%d)", 11 + 8 + 16 + 1)
    X, E = TMP + 1, TMP + 6
    a("v_lshlrev_b32 v%d, 16, v%d", X, X)
    a("v_mul_f32 v%d, %s, v%d", E, fhex(-LOG2E), X)
    a("v_exp_f32 v%d, v%d", E, E)
    for c in range(4):
        for t in range(4):
            dst = UW + (t * 2 + (c >> 1)) * 2 + (c & 1)
            src = RW + 2 * c + (t >> 1)
            if t & 1: a("v_and_b32 v%d, 0xffff0000, v%d", dst, src)
            else: a("v_lshlrev_b32 v%d, 16, v%d", dst, src)
    a("v_add_f32 v%d, 1.0, v%d", E, E)
    a("v_rcp_f32 v%d, v%d", E, E)
    a("s_nop 0")
    a("v_mul_f32 v%d, v%d, v%d", X, X, E)
    a("v_cvt_pk_bf16_f32 v%d, v%d, v%d", X, X, X)
    a("v_lshlrev_b32 v%d, 16, v%d", X, X)
    a("s_nop 0")
    for j in range(16): a("v_readlane_b32 s%d, v%d, %d", 60 + 2 * j, X, j)
    a("s_waitcnt vmcnt(%d)", 8 + 16 + 1)
    a.st()
    for j in range(11):
        for d in range(2): unpack(a, UK + 4 * j + 2 * d, UK + 4 * j + 2 * d + 1, RK + 2 * j + d)
    for j in range(8):
        for p in range(2):
            dst = RES + 4 * j + 2 * p
            a("v_pk_mul_f32 v[%d:%d], v[%d:%d], v[%d:%d]", dst, dst + 1, UK + 4 * j + 2 * p, UK + 4 * j + 2 * p + 1, UW + (3 * 2 + p) * 2, UW + (3 * 2 + p) * 2 + 1)
            for t in (2, 1, 0):
                kk = UK + 4 * (j + 3 - t) + 2 * p
                w = UW + (t * 2 + p) * 2
                a("v_pk_fma_f32 v[%d:%d], v[%d:%d], v[%d:%d], v[%d:%d]", dst, dst + 1, kk, kk + 1, w, w + 1, dst, dst + 1)
    a("s_waitcnt vmcnt(%d)", 16 + 1)
    for j in range(8):
        for p in range(2):
            t0 = UK + 4 * j + 2 * p
            unpack(a, t0, t0 + 1, RV + 2 * j + p)
    for j in range(8):
        for p in range(2):
            dst = RES + 4 * j + 2 * p; t0 = UK + 4 * j + 2 * p
            a("v_pk_mul_f32 v[%d:%d], v[%d:%d], v[%d:%d]", dst, dst + 1, dst, dst + 1, t0, t0 + 1)
    PK = RK
    for c in range(4):
        for m in range(4):
            a("v_cvt_pk_bf16_f32 v%d, v%d, v%d", PK + 4 * c + m, RES + 4 * (7 - 2 * m) + c, RES + 4 * (6 - 2 * m) + c)
    a("v_sub_u32 v%d, 7, v%d", TMP + 2, VRG)
    a("v_and_b32 v%d, 7, v%d", TMP + 3, VCG)
    a("v_xor_b32 v%d, v%d, v%d", TMP + 2, TMP + 2, TMP + 3)
    a("v_lshlrev_b32 v%d, 4, v%d", TMP + 2, TMP + 2)
    a("v_lshl_add_u32 v%d, v%d, 9, v%d", TMP + 2, VCG, TMP + 2)
    for c in range(4): a("ds_write_b128 v%d, v[%d:%d] offset:%d", TMP + 2, PK + 4 * c, PK + 4 * c + 3, 128 * c)
    a.st()
    for j in range(16):
        a("s_waitcnt vmcnt(%d)", 15 - j + 1)
        for d in range(3): unpack(a, UK + 2 * d, UK + 2 * d + 1, RM + 4 * j + d)
        for d in range(3):
            if j == 0:
                a("v_pk_mul_f32 v[%d:%d], v[%d:%d], s[%d:%d] op_sel_hi:[1,0]", ACC + 2 * d, ACC + 2 * d + 1, UK + 2 * d, UK + 2 * d + 1, 60, 61)
            else:
                a("v_pk_fma_f32 v[%d:%d], v[%d:%d], s[%d:%d], v[%d:%d] op_sel_hi:[1,0,1]", ACC + 2 * d, ACC + 2 * d + 1, UK + 2 * d, UK + 2 * d + 1, 60 + 2 * j, 61 + 2 * j, ACC + 2 * d, ACC + 2 * d + 1)
    a("s_mul_i32 s3, s18, 1536"); a("s_add_u32 s3, s3, 16384")
    a("v_mul_u32_u24 v%d, 24, v%d", TMP + 3, VL)
    a("v_add_u32 v%d, s3, v%d", TMP + 3, TMP + 3)
    for d in range(3): a("ds_write_b64 v%d, v[%d:%d] offset:%d", TMP + 3, ACC + 2 * d, ACC + 2 * d + 1, 8 * d)
    a("v_lshrrev_b32 v%d, 3, v0", TMP + 4)
    a("v_and_b32 v%d, 7, v0", TMP + 5)
    a("v_lshrrev_b32 v%d, 2, v%d", TMP + 6, TMP + 4)
    a("v_xor_b32 v%d, v%d, v%d", TMP + 6, TMP + 6, TMP + 5)
    a("v_lshlrev_b32 v%d, 4, v%d", TMP + 6, TMP + 6)
    a("v_lshl_add_u32 v%d, v%d, 7, v%d", TMP + 6, TMP + 4, TMP + 6)
    a("s_lshl_b32 s3, s17, 19"); a("s_lshl_b32 s19, s16, 7"); a("s_sub_u32 s3, s3, s19"); a("s_add_u32 s3, s3, %d", (2047 - 63) * 2)
    a("v_lshlrev_b32 v%d, 4, v%d", TMP + 5, TMP + 5)
    a("v_lshl_add_u32 v%d, v%d, 12, v%d", TMP + 5, TMP + 4, TMP + 5)
    a("v_add_u32 v%d, s3, v%d", TMP + 5, TMP + 5)
    a("v_lshlrev_b32 v%d, 3, v0", TMP + 7)
    a("s_waitcnt lgkmcnt(0)")
    a.st()
    a("s_barrier")
    for m in range(4): a("ds_read_b128 v[%d:%d], v%d offset:%d", RV + 4 * m, RV + 4 * m + 3, TMP + 6, 4096 * m)
    for w in range(4): a("ds_read_b64 v[%d:%d], v%d offset:%d", UK + 2 * w, UK + 2 * w + 1, TMP + 7, 16384 + 1536 * w)
    for m in range(4):
        a("s_mov_b32 s3, %d", m * 32 * 4096)
        a("s_waitcnt lgkmcnt(%d)", 7 - m)
        a("buffer_store_dwordx4 v[%d:%d], v%d, s[40:43], s3 offen", RV + 4 * m, RV + 4 * m + 3, TMP + 5)
    a.st_flush(241, 242)
    a("s_cmp_ge_u32 s18, 3"); a("s_cbranch_scc1 %s", end)
    a("s_waitcnt lgkmcnt(0)")
    a("v_pk_add_f32 v[%d:%d], v[%d:%d], v[%d:%d]", UK, UK + 1, UK, UK + 1, UK + 2, UK + 3)
    a("v_pk_add_f32 v[%d:%d], v[%d:%d], v[%d:%d]", UK + 4, UK + 5, UK + 4, UK + 5, UK + 6, UK + 7)
    a("v_pk_add_f32 v[%d:%d], v[%d:%d], v[%d:%d]", UK, UK + 1, UK, UK + 1, UK + 4, UK + 5)
    a("s_mul_i32 s3, s52, 24576"); a("s_mul_i32 s19, s53, 1536"); a("s_add_u32 s3, s3, s19")
    a("buffer_store_dwordx2 v[%d:%d], v%d, s[44:47], s3 offen", UK, UK + 1, TMP + 7)
    a.put(end)
    return a.text(), 244 if DIAG[0] else 236, 16384 + 6144 + 2048

CV_UR = 0; CV_C0 = 4608; CV_C1 = 4608 + 4160; CV_W = 12928
def gen_k2():
    a = Asm("k2")
    end = a.label("end"); fin = a.label("fin")
    a("s_cmp_ge_u32 s2, 256")
    a("s_cbranch_scc1 %s", end)
    a.st_init(1, 230)
    a("s_load_dwordx2 s[4:5], s[0:1], %d", A_SSMK)
    a("s_load_dwordx2 s[6:7], s[0:1], %d", A_SSMD)
    a("s_load_dwordx2 s[14:15], s[0:1], %d", A_WS)
    a("v_lshrrev_b32 v1, 6, v0")
    a("v_and_b32 v2, 63, v0")
    a("s_and_b32 s16, s2, 7"); a("s_lshr_b32 s17, s2, 3")
    a("v_readfirstlane_b32 s18, v1")
    a("s_lshl_b32 s16, s16, 7"); a("s_lshl_b32 s17, s17, 2"); a("s_add_u32 s16, s16, s17")
    a("s_add_u32 s16, s16, s18")
    a("s_waitcnt lgkmcnt(0)")
    a.srd(20, 4, 4 * MB); a.srd(24, 6, 2048); a.srd(28, 14, 4 * MB, WS_UR); a.srd(32, 14, 4 * MB, WS_YB)
    a.srd(36, 14, 16 * 24576, WS_MODP); a.srd(40, 14, 12288, WS_MOD)
    a("s_cmp_eq_u32 s18, 4"); a("s_cbranch_scc1 %s", fin)
    VL = 2
    RKr = 8
    ZR = 32
    SH = 36
    a("s_mul_i32 s19, s18, %d", CV_W)
    a("s_lshl_b32 s44, s16, 12")
    a("v_lshlrev_b32 v3, 4, v%d", VL)
    a("s_lshl_b32 s45, s16, 1")
    a("v_mov_b32 v4, s45")
    for m in range(4):
        a("s_add_u32 s46, s44, %d", 1024 * m)
        a("buffer_load_dwordx4 v[%d:%d], v3, s[20:23], s46 offen", RKr + 6 * m, RKr + 6 * m + 3)
        a("buffer_load_dword v%d, v3, s[20:23], s46 offen offset:16", RKr + 6 * m + 4)
    for m in range(4):
        a("s_add_u32 m0, s19, %d", CV_UR + 1024 * m)
        a("s_add_u32 s46, s44, %d", 1024 * m)
        a("buffer_load_dwordx4 v3, s[28:31], s46 offen lds")
    a("buffer_load_ushort v5, v4, s[24:27], 0 offen")
    for r in range(4): a("v_mov_b32 v%d, 0", ZR + r)
    a("v_add_u32 v6, s19, v3")
    a("s_mov_b64 s[48:49], exec")
    a("s_mov_b32 exec_hi, 0")
    a("ds_write_b128 v6, v[%d:%d] offset:%d", ZR, ZR + 3, CV_UR + 4096)
    a("s_mov_b64 exec, 3")
    a("ds_write_b128 v6, v[%d:%d] offset:%d", ZR, ZR + 3, CV_C0)
    a("s_mov_b64 exec, 1")
    a("ds_write_b128 v6, v[%d:%d] offset:%d", ZR, ZR + 3, CV_C1)
    a("s_mov_b64 exec, s[48:49]")
    VA, VB, VE = 56, 60, 61
    a("v_and_b32 v52, 15, v%d", VL)
    a("v_lshrrev_b32 v53, 4, v%d", VL)
    a("v_and_b32 v54, 4, v52"); a("v_lshlrev_b32 v54, 1, v54")
    a("v_lshrrev_b32 v55, 3, v52"); a("v_lshl_add_u32 v54, v55, 2, v54")
    a("v_and_b32 v55, 3, v52"); a("v_add3_u32 v54, v54, v55, 1")
    a("v_and_b32 v55, 1, v54"); a("v_mul_u32_u24 v55, 4160, v55")
    a("v_and_b32 v54, 30, v54"); a("v_lshl_add_u32 v55, v54, 1, v55")
    a("v_lshl_add_u32 v55, v53, 4, v55")
    a("s_add_u32 s46, s19, %d", CV_C0)
    a("v_add_u32 v%d, s46, v55", VA)
    for j in range(1, 4): a("v_add_u32 v%d, %d, v%d", VA + j, 1024 * j, VA)
    a("v_lshlrev_b32 v55, 5, v52"); a("v_sub_u32 v55, 480, v55"); a("v_lshl_add_u32 v55, v53, 4, v55")
    a("v_add_u32 v%d, s19, v55", VB)
    a("v_and_b32 v54, 1, v53"); a("v_lshlrev_b32 v54, 4, v54"); a("v_lshrrev_b32 v55, 1, v53"); a("v_lshl_add_u32 v54, v55, 3, v54")
    a("v_lshl_add_u32 v54, v52, 5, v54"); a("v_sub_u32 v54, 504, v54")
    a("v_add_u32 v%d, s19, v54", VE)
    VS = 62
    a("v_and_b32 v54, 1, v53"); a("v_lshl_add_u32 v54, v52, 1, v54"); a("v_lshl_add_u32 v54, v55, 5, v54")
    a("v_lshlrev_b32 v54, 14, v54"); a("s_lshl_b32 s46, s16, 4"); a("v_add_u32 v%d, s46, v54", VS)
    for m in range(4):
        a("s_waitcnt vmcnt(%d)", 5 + 2 * (3 - m))
        r = RKr + 6 * m
        a("ds_write_b128 v6, v[%d:%d] offset:%d", r, r + 3, CV_C0 + 32 + 1024 * m)
        for j in range(4): a("v_alignbit_b32 v%d, v%d, v%d, 16", SH + 4 * m + j, r + j + 1, r + j)
        a("ds_write_b128 v6, v[%d:%d] offset:%d", SH + 4 * m, SH + 4 * m + 3, CV_C1 + 32 + 1024 * m)
        if m == 0:
            a("v_lshlrev_b32 v%d, 16, v%d", ZR + 3, r)
            a("s_mov_b64 exec, 1")
            a("ds_write_b128 v6, v[%d:%d] offset:%d", ZR, ZR + 3, CV_C1 + 16)
            a("s_mov_b64 exec, s[48:49]")
    ACC = 64; FA = [96, 128]; FB = [160, 192]
    def loads(r, st):
        out = []
        def la(q):
            e = 8 * q + r
            base = VA + (e >> 4); o = (e & 15) * 16
            d = FA[st] + 4 * q
            out.append("ds_read2_b32 v[%d:%d], v%d offset0:%d offset1:%d" % (d, d + 1, base, o, o + 1))
            out.append("ds_read2_b32 v[%d:%d], v%d offset0:%d offset1:%d" % (d + 2, d + 3, base, o + 2, o + 3))
        def lb(t):
            c = 8 * t - r
            d = FB[st] + 4 * t
            out.append("ds_read_b128 v[%d:%d], v%d offset:%d" % (d, d + 3, VB, CV_UR + 64 * (56 - c)))
        la(0)
        for t in range(8): lb(t)
        for q in range(1, 8): la(q)
        return out
    a("s_waitcnt vmcnt(0) lgkmcnt(0)")
    a.st()
    a("v_lshlrev_b32 v5, 16, v5")
    for l in loads(0, 0): a(l)
    for r in range(8):
        st = r & 1
        nxt = loads(r + 1, st ^ 1) if r < 7 else []
        if r == 7:
            nxt = ["ds_read_b64 v[%d:%d], v%d offset:%d" % (FA[0] + 2 * t, FA[0] + 2 * t + 1, VE, CV_UR + 512 * (7 - t)) for t in range(8)]
        a("s_waitcnt lgkmcnt(0)")
        pairs = [(q, t) for q in range(8) for t in range(q, 8)]
        li = 0
        for n, (q, t) in enumerate(pairs):
            acc = ACC + 4 * t
            c = "0" if (r == 0 and q == 0) else v(acc, 4)
            a("v_mfma_f32_16x16x32_bf16 %s, %s, %s, %s", v(acc, 4), v(FA[st] + 4 * q, 4), v(FB[st] + 4 * (t - q), 4), c)
            if li < len(nxt):
                a(nxt[li]); li += 1
        assert li == len(nxt)
    a("s_waitcnt lgkmcnt(0)")
    a("s_nop 7")
    a.st()
    U = FA[0]; T = FA[1]; PKo = FB[0]
    for t in range(8):
        acc = ACC + 4 * t
        unpack(a, T + 3, T + 2, U + 2 * t)
        unpack(a, T + 1, T + 0, U + 2 * t + 1)
        for r in range(4): a("v_fmac_f32 v%d, v5, v%d", acc + r, T + r)
        a("v_cvt_pk_bf16_f32 v%d, v%d, v%d", PKo + 2 * t, acc, acc + 1)
        a("v_cvt_pk_bf16_f32 v%d, v%d, v%d", PKo + 2 * t + 1, acc + 2, acc + 3)
    a("s_nop 1")
    for t in range(0, 8, 2):
        R = PKo + 2 * t
        a("v_permlane32_swap_b32 v%d, v%d", R, R + 2)
        a("v_permlane32_swap_b32 v%d, v%d", R + 1, R + 3)
        a("s_mov_b32 s46, %d", t * 32 * 16384)
        a("buffer_store_dwordx4 v[%d:%d], v%d, s[32:35], s46 offen", R, R + 3, VS)
    a.st_flush(231, 232)
    a("s_branch %s", end)
    a.put(fin)
    a("s_mul_i32 s44, s2, 24")
    a("v_add_u32 v3, s44, v2")
    a("v_lshlrev_b32 v4, 2, v3")
    a("s_mov_b32 exec_lo, 0xffffff")
    a("s_mov_b32 exec_hi, 0")
    a("s_mov_b32 s45, 0")
    for p in range(16):
        a("buffer_load_dword v%d, v4, s[36:39], s45 offen", 8 + p)
        if p < 15: a("s_add_u32 s45, s45, 24576")
    a("v_lshrrev_b32 v5, 10, v3")
    a("v_cmp_eq_u32 s[46:47], 1, v5")
    a("v_cmp_eq_u32 vcc, 4, v5")
    a("s_nop 3")
    a("s_or_b64 vcc, vcc, s[46:47]")
    a("v_mov_b32 v6, 0")
    a("v_lshlrev_b32 v4, 1, v3")
    a("v_cndmask_b32_e64 v6, 0, 1.0, vcc")
    a("s_waitcnt vmcnt(0)")
    for w in (8, 4, 2, 1):
        for p in range(w): a("v_add_f32 v%d, v%d, v%d", 8 + p, 8 + p, 8 + p + w)
    a("v_cvt_pk_bf16_f32 v8, v8, v8")
    a("v_lshlrev_b32 v8, 16, v8")
    a("v_add_f32 v8, v8, v6")
    a("v_cvt_pk_bf16_f32 v8, v8, v8")
    a("buffer_store_short v8, v4, s[40:43], 0 offen")
    a.put(end)
    return a.text(), 236 if DIAG[0] else 224, 4 * CV_W

def wave_reduce8(a, S, T):
    a("s_nop 1")
    for base in (S, S + 4):
        a("v_permlane32_swap_b32 v%d, v%d", base, base + 2)
        a("v_permlane32_swap_b32 v%d, v%d", base + 1, base + 3)
    for base in (S, S + 4):
        a("v_add_f32 v%d, v%d, v%d", base, base, base + 2)
        a("v_add_f32 v%d, v%d, v%d", base + 1, base + 1, base + 3)
    a("s_nop 0")
    for base in (S, S + 4): a("v_permlane16_swap_b32 v%d, v%d", base, base + 1)
    for base in (S, S + 4): a("v_add_f32 v%d, v%d, v%d", base, base, base + 1)
    for dpp in ("quad_perm:[1,0,3,2]", "quad_perm:[2,3,0,1]", "row_ror:8"):
        a("s_nop 0")
        for base in (S, S + 4): a("v_add_f32_dpp v%d, v%d, v%d %s row_mask:0xf bank_mask:0xf", base, base, base, dpp)

def gen_k3():
    a = Asm("k3")
    end = a.label("end")
    a("s_cmp_ge_u32 s2, 256")
    a("s_cbranch_scc1 %s", end)
    a.st_init(2, 244)
    a("s_load_dwordx2 s[4:5], s[0:1], %d", A_Q)
    a("s_load_dwordx2 s[14:15], s[0:1], %d", A_WS)
    VL, VHF, VKK, VQ, VM, VY, VD, VRW, VRR = 1, 2, 3, 4, 5, 6, 7, 8, 9
    a("v_and_b32 v%d, 63, v0", VL)
    a("v_lshrrev_b32 v10, 6, v0")
    a("v_bfe_u32 v%d, v0, 2, 1", VHF)
    a("v_readfirstlane_b32 s18, v10")
    a("v_lshrrev_b32 v11, 3, v0"); a("v_and_b32 v12, 3, v0"); a("v_lshl_add_u32 v%d, v11, 2, v12", VKK)
    a("s_lshl_b32 s16, s2, 14")
    a("v_lshlrev_b32 v11, 13, v%d", VHF); a("v_lshl_add_u32 v11, v%d, 4, v11", VKK); a("v_add_u32 v%d, s16, v11", VQ)
    a("v_add_u32 v13, 4096, v%d", VQ)
    a("v_lshlrev_b32 v%d, 4, v%d", VM, VKK)
    a("v_lshrrev_b32 v11, 4, v%d", VL); a("v_and_b32 v12, 7, v%d", VL); a("v_xor_b32 v11, v11, v12")
    a("v_and_b32 v12, 56, v%d", VL); a("v_or_b32 v11, v11, v12"); a("v_lshlrev_b32 v%d, 4, v11", VD)
    a("v_xor_b32 v14, 64, v%d", VD)
    a("v_bfe_u32 v11, v%d, 1, 3", VKK); a("v_lshlrev_b32 v11, 4, v11")
    a("v_lshlrev_b32 v12, 7, v%d", VKK); a("v_lshl_add_u32 v12, v%d, 3, v12", VHF)
    YA = 16
    for i in range(8):
        a("v_xor_b32 v%d, %d, v11", YA + i, 16 * i); a("v_add_u32 v%d, v12, v%d", YA + i, YA + i)
    a("v_lshrrev_b32 v11, 4, v%d", VL); a("v_lshlrev_b32 v11, 2, v11"); a("v_lshl_add_u32 v11, v%d, 7, v11", VHF)
    a("s_lshl_b32 s17, s18, 5"); a("s_add_u32 s17, s17, 16384"); a("v_add_u32 v%d, s17, v11", VRW)
    a("v_lshlrev_b32 v%d, 7, v%d", VRR, VHF)
    a("v_and_b32 v11, 11, v%d", VL); a("v_cmp_eq_u32 s[50:51], 0, v11")
    a("s_waitcnt lgkmcnt(0)")
    a.srd(20, 4, 4 * MB); a.srd(24, 14, 4 * MB, WS_YB); a.srd(28, 14, 12288, WS_MOD); a.srd(32, 14, 4 * MB, WS_X1); a.srd(36, 14, 4 * MB, WS_H2)
    RQ = 24
    RP = 40
    Q = 64
    PR = 96
    RY = 136
    S = 152
    RS = 160
    MU = 192
    H = 200
    YU = 208
    for j in range(4): a("buffer_load_dwordx4 v[%d:%d], v%d, s[20:23], 0 offen offset:%d", RQ + 4 * j, RQ + 4 * j + 3, VQ if j < 2 else 13, 2048 * (j & 1))
    for u in range(4):
        a("s_lshl_b32 s19, s18, 12"); a("s_add_u32 m0, s19, %d", 1024 * u)
        a("s_add_u32 s19, s19, s16"); a("s_add_u32 s19, s19, %d", 1024 * u)
        a("buffer_load_dwordx4 v%d, s[24:27], s19 offen lds", VD if (u & 1) == 0 else 14)
    for p in range(5):
        a("s_mov_b32 s19, %d", 2048 * p)
        a("buffer_load_dwordx4 v[%d:%d], v%d, s[28:31], s19 offen", RP + 4 * p, RP + 4 * p + 3, VM)
    def stats(X):
        for j in range(4):
            x = X + 8 * j
            a("v_pk_add_f32 v[%d:%d], v[%d:%d], v[%d:%d]", H, H + 1, x, x + 1, x + 2, x + 3)
            a("v_pk_mul_f32 v[%d:%d], v[%d:%d], v[%d:%d]", H + 2, H + 3, x, x + 1, x, x + 1)
            a("v_pk_add_f32 v[%d:%d], v[%d:%d], v[%d:%d]", H + 4, H + 5, x + 4, x + 5, x + 6, x + 7)
            for e in (2, 4, 6): a("v_pk_fma_f32 v[%d:%d], v[%d:%d], v[%d:%d], v[%d:%d]", H + 2, H + 3, x + e, x + e + 1, x + e, x + e + 1, H + 2, H + 3)
            a("v_pk_add_f32 v[%d:%d], v[%d:%d], v[%d:%d]", H, H + 1, H, H + 1, H + 4, H + 5)
            a("v_add_f32 v%d, v%d, v%d", S + 4 + j, H + 2, H + 3)
            a("v_add_f32 v%d, v%d, v%d", S + j, H, H + 1)
        wave_reduce8(a, S, H)
    def cross(off):
        a("s_mov_b64 s[48:49], exec"); a("s_mov_b64 exec, s[50:51]")
        a("ds_write_b32 v%d, v%d offset:%d", VRW, S, off)
        a("ds_write_b32 v%d, v%d offset:%d", VRW, S + 4, off + 16)
        a("s_mov_b64 exec, s[48:49]")
    def cross2(off):
        for w in range(4):
            a("ds_read_b128 v[%d:%d], v%d offset:%d", RS + 8 * w, RS + 8 * w + 3, VRR, 16384 + off + 32 * w)
            a("ds_read_b128 v[%d:%d], v%d offset:%d", RS + 8 * w + 4, RS + 8 * w + 7, VRR, 16384 + off + 32 * w + 16)
    def cross3():
        for (d, s) in ((0, 8), (16, 24), (0, 16)):
            for e in range(0, 8, 2): a("v_pk_add_f32 v[%d:%d], v[%d:%d], v[%d:%d]", RS + d + e, RS + d + e + 1, RS + d + e, RS + d + e + 1, RS + s + e, RS + s + e + 1)
        for j in range(4):
            a("v_mul_f32 v%d, %s, v%d", RS + j, fhex(1.0 / 1024), RS + j)
        for j in range(4):
            a("v_mul_f32 v%d, v%d, v%d", RS + 8 + j, RS + j, RS + j)
        a("s_mov_b32 s19, %s", fhex(1.0 / 1024))
        for j in range(4):
            a("v_fma_f32 v%d, v%d, s19, -v%d", RS + 4 + j, RS + 4 + j, RS + 8 + j)
        for j in range(4):
            a("v_max_f32 v%d, 0, v%d", RS + 4 + j, RS + 4 + j)
        for j in range(4):
            a("v_add_f32 v%d, %s, v%d", RS + 4 + j, fhex(EPS), RS + 4 + j)
        for j in range(4):
            a("v_rsq_f32 v%d, v%d", MU + 2 * j, RS + 4 + j)
        a("s_nop 0")
        for j in range(4):
            a("v_mul_f32_e64 v%d, -v%d, v%d", MU + 2 * j + 1, RS + j, MU + 2 * j)
    a("s_waitcnt vmcnt(9)")
    a.st()
    for j in range(4):
        for d in range(4): unpack(a, Q + 8 * j + 2 * d, Q + 8 * j + 2 * d + 1, RQ + 4 * j + d)
    stats(Q)
    cross(0)
    a("s_waitcnt vmcnt(0) lgkmcnt(0)")
    a.st()
    a("s_barrier")
    cross2(0)
    for i in range(8): a("ds_read_b64 v[%d:%d], v%d", RY + 2 * i, RY + 2 * i + 1, YA + i)
    for p in range(5):
        for d in range(4): unpack(a, PR + 8 * p + 2 * d, PR + 8 * p + 2 * d + 1, RP + 4 * p + d)
    a("s_waitcnt lgkmcnt(8)")
    cross3()
    a("s_waitcnt lgkmcnt(0)")
    for i in range(8):
        unpack(a, YU + i, YU + 8 + i, RY + 2 * i)
        unpack(a, YU + 16 + i, YU + 24 + i, RY + 2 * i + 1)
    SA, CA, GA, SB, CB = PR, PR + 8, PR + 16, PR + 24, PR + 32
    def pk(r): return "v[%d:%d]" % (r, r + 1)
    for j in range(4):
        for e in range(0, 8, 2):
            q = Q + 8 * j + e; y = YU + 8 * j + e
            a("v_pk_fma_f32 %s, %s, %s, %s op_sel:[0,0,1] op_sel_hi:[1,0,1]", pk(H + e), pk(q), pk(MU + 2 * j), pk(MU + 2 * j))
        for e in range(0, 8, 2): a("v_pk_fma_f32 %s, %s, %s, %s", pk(H + e), pk(H + e), pk(CA + e), pk(SA + e))
        for e in range(0, 8, 2): a("v_pk_mul_f32 %s, %s, %s", pk(H + e), pk(H + e), pk(YU + 8 * j + e))
        for e in range(0, 8, 2): a("v_pk_fma_f32 %s, %s, %s, %s", pk(H + e), pk(H + e), pk(GA + e), pk(Q + 8 * j + e))
        for e in range(0, 8, 2): a("v_cvt_pk_bf16_f32 v%d, v%d, v%d", RQ + 4 * j + e // 2, H + e, H + e + 1)
        a("buffer_store_dwordx4 v[%d:%d], v%d, s[32:35], 0 offen offset:%d", RQ + 4 * j, RQ + 4 * j + 3, VQ if j < 2 else 13, 2048 * (j & 1))
        for d in range(4): unpack(a, Q + 8 * j + 2 * d, Q + 8 * j + 2 * d + 1, RQ + 4 * j + d)
    stats(Q)
    cross(256)
    a("s_waitcnt lgkmcnt(0)")
    a.st()
    a("s_barrier")
    cross2(256)
    a("s_waitcnt lgkmcnt(0)")
    cross3()
    for j in range(4):
        for e in range(0, 8, 2):
            a("v_pk_fma_f32 %s, %s, %s, %s op_sel:[0,0,1] op_sel_hi:[1,0,1]", pk(H + e), pk(Q + 8 * j + e), pk(MU + 2 * j), pk(MU + 2 * j))
        for e in range(0, 8, 2): a("v_pk_fma_f32 %s, %s, %s, %s", pk(H + e), pk(H + e), pk(CB + e), pk(SB + e))
        for e in range(0, 8, 2): a("v_cvt_pk_bf16_f32 v%d, v%d, v%d", RY + 4 * j + e // 2, H + e, H + e + 1)
        a("buffer_store_dwordx4 v[%d:%d], v%d, s[36:39], 0 offen offset:%d", RY + 4 * j, RY + 4 * j + 3, VQ if j < 2 else 13, 2048 * (j & 1))
    a.st_flush(245, 246)
    a.put(end)
    return a.text(), 248 if DIAG[0] else 240, 16384 + 512
```

```python
from asmlib import *
from gen_front import *
from gen_gemm import VmTrack, gelu_block, pk, GC0, GC1
P_Q, P_K, P_V, P_SK, P_SSMK, P_SSMD, P_BX, P_WIN, P_WSP, P_BSP, P_WOUT, P_C, P_WMOD, P_OUT, P_DBG, P_WS = [64 + 2 * n for n in range(16)]
SI, SJ, SJD, TAG, SX_, SIDX, SW = 12, 13, 14, 15, 16, 17, 18
R_SY = 44
SY0 = 256 * 1024
FA_OLD, FG, FC, FZ, FD, CB, WT = SY0, SY0 + 1024, SY0 + 2048, SY0 + 4096, SY0 + 6144, SY0 + 8192, SY0 + 12288
FB2, FX = SY0 + 16384, SY0 + 20480
CN, GOG, GOC, GOD = SY0 + 32768, SY0 + 49152, SY0 + 53248, SY0 + 57344
FAS = 128
L_T1 = 65536; L_WM = 81920; L_Y = 65536; L_ST = 131072; L_FIN = L_ST + 2048
L_QT = 135168; QROW = 2080; L_L1S = 151808; L_CNT = 151872
L_Y3 = 131072; L_CD = 98304
LDS_TOTAL = 163840
NZ, NG = 16, 32
NST = 2 * NZ + NG
EV = dict(pub=16, poll=19, chk=21, norm=22, drain=24, fpoll=26, fchk=28)
SPIN_MAX = 0x20000

FA = SY0 + 65536
FC1, FD1 = SY0 + 98304, SY0 + 163840
SY_END = SY0 + 229376
def srdr(r): return "s[%d:%d]" % (r, r + 3)

def poll(a, vaddr, vt, target, soff="0", n=16, sleep=0):
    lp = a.newlabel("pl"); ok = a.newlabel("pk")
    a("s_mov_b32 s11, 0")
    a("s_mov_b32 exec_lo, 0x%x", (1 << n) - 1); a("s_mov_b32 exec_hi, 0")
    a.put(lp)
    a("buffer_load_dword v%d, v%d, %s, %s offen sc1", vt, vaddr, srdr(R_SY), soff)
    a("s_add_u32 s11, s11, 1")
    a("s_cmp_gt_u32 s11, %d", SPIN_MAX); a("s_cbranch_scc1 %s", ok)
    a("s_waitcnt vmcnt(0)")
    a("v_cmp_ne_u32 vcc, s%d, v%d", target, vt)
    if sleep: a("s_sleep %d", sleep)
    else: a("s_nop 4")
    a("s_cbranch_vccnz %s", lp)
    a.put(ok)
    a("s_mov_b64 exec, -1")

def lead_poll(a, pv, cnt, t0, fn):
    oth = a.newlabel("ot"); done = a.newlabel("dn"); lp = a.newlabel("lw")
    a("v_mov_b32 v%d, %d", t0, L_CNT + 4 * cnt if cnt < 8 else cnt)
    a("s_cmp_lg_u32 s%d, 0", pv); a("s_cbranch_scc1 %s", oth)
    fn()
    a("v_mov_b32 v%d, 1", t0 + 1)
    a("ds_write_b32 v%d, v%d", t0, t0 + 1)
    a("s_branch %s", done)
    a.put(oth)
    a("s_mov_b32 s11, 0")
    a.put(lp)
    a("ds_read_b32 v%d, v%d", t0 + 1, t0)
    a("s_add_u32 s11, s11, 1")
    a("s_cmp_gt_u32 s11, %d", SPIN_MAX * 16); a("s_cbranch_scc1 %s", done)
    a("s_waitcnt lgkmcnt(0)")
    a("v_readfirstlane_b32 s10, v%d", t0 + 1)
    a("s_sleep 1")
    a("s_cmp_eq_u32 s10, 0"); a("s_cbranch_scc1 %s", lp)
    a.put(done)
    a("s_waitcnt vmcnt(0)")

def flag_store(a, vtag, vzero, soff):
    a("s_mov_b64 s[10:11], exec"); a("s_mov_b64 exec, 1")
    a("buffer_store_dword v%d, v%d, %s, %s offen sc1", vtag, vzero, srdr(R_SY), soff)
    a("s_mov_b64 exec, s[10:11]")

def arrive(a, scnt, n, sgo, nrep, vtag, vzero, vrep, t0):
    nl = a.newlabel("ar")
    a("s_mov_b64 exec, 1")
    a("v_mov_b32 v%d, 1", t0)
    a("buffer_atomic_add v%d, v%d, %s, s%d offen sc0 sc1", t0, vzero, srdr(R_SY), scnt)
    a("s_add_u32 s10, s%d, %d", TAG, n - 1)
    a("s_waitcnt vmcnt(0)")
    a("v_readfirstlane_b32 s11, v%d", t0)
    a("s_mov_b64 exec, %d", (1 << nrep) - 1)
    a("s_cmp_lg_u32 s11, s10"); a("s_cbranch_scc1 %s", nl)
    a("buffer_store_dword v%d, v%d, %s, s%d offen sc1", vtag, vrep, srdr(R_SY), sgo)
    a.put(nl)
    a("s_mov_b64 exec, -1")

def lds_inc(a, cnt, t0, t1):
    a("v_mov_b32 v%d, %d", t0, L_CNT + 4 * cnt); a("v_mov_b32 v%d, 1", t1)
    a("s_mov_b64 exec, 1")
    a("ds_add_u32 v%d, v%d", t0, t1)
    a("s_mov_b64 exec, -1")

def lds_wait(a, cnt, n, t0, t1, sleep=1):
    lp = a.newlabel("lw"); ok = a.newlabel("lo")
    a("v_mov_b32 v%d, %d", t0, L_CNT + 4 * cnt)
    a("s_mov_b32 s11, 0")
    a.put(lp)
    a("ds_read_b32 v%d, v%d", t1, t0)
    a("s_add_u32 s11, s11, 1")
    a("s_cmp_gt_u32 s11, %d", SPIN_MAX * 16); a("s_cbranch_scc1 %s", ok)
    a("s_waitcnt lgkmcnt(0)")
    a("v_readfirstlane_b32 s10, v%d", t1)
    a("s_nop 0")
    a("s_cmp_ge_u32 s10, %d", n); a("s_cbranch_scc1 %s", ok)
    a("s_sleep %d", sleep)
    a("s_branch %s", lp)
    a.put(ok)

def lds_sync(a, cnt, t0, sleep=1):
    lp = a.newlabel("ls"); ok = a.newlabel("lk")
    a("v_mov_b32 v%d, %d", t0, L_CNT + 4 * cnt); a("v_mov_b32 v%d, 1", t0 + 1)
    a("s_waitcnt lgkmcnt(0)")
    a("s_mov_b64 s[10:11], exec"); a("s_mov_b64 exec, 1")
    a("ds_add_u32 v%d, v%d", t0, t0 + 1)
    a("s_mov_b64 exec, s[10:11]")
    a("s_mov_b32 s11, 0")
    a.put(lp)
    a("ds_read_b32 v%d, v%d", t0 + 1, t0)
    a("s_add_u32 s11, s11, 1")
    a("s_cmp_gt_u32 s11, %d", SPIN_MAX * 8); a("s_cbranch_scc1 %s", ok)
    a("s_waitcnt lgkmcnt(0)")
    a("v_readfirstlane_b32 s10, v%d", t0 + 1)
    a("s_sleep %d", sleep)
    a("s_cmp_lt_u32 s10, 4"); a("s_cbranch_scc1 %s", lp)
    a.put(ok)

def rstd_calc(a, sm, sq, tmp, out, inv_n):
    a("s_mov_b32 s10, %s", fhex(inv_n))
    a("v_mul_f32 v%d, s10, v%d", sm, sm)
    a("v_mul_f32 v%d, v%d, v%d", tmp, sm, sm)
    a("v_fma_f32 v%d, v%d, s10, -v%d", sq, sq, tmp)
    a("v_max_f32 v%d, 0, v%d", sq, sq)
    a("v_add_f32 v%d, %s, v%d", sq, fhex(EPS), sq)
    a("v_rsq_f32 v%d, v%d", out, sq)
    a("s_nop 0")
    a("v_mul_f32_e64 v%d, -v%d, v%d", out + 1, sm, out)

def gen_mega(ev=EV, opt=None):
    opt = opt or {}
    a = Asm("m")
    end = a.label("end"); prod = a.label("prod")
    a("s_cmp_ge_u32 s2, 256"); a("s_cbranch_scc1 %s", end)
    a.st_init(0, 250)
    a("s_getpc_b64 s[96:97]")
    a.put(a.label("pc0"))
    a("s_load_dwordx16 s[64:79], s[0:1], 0")
    a("s_load_dwordx16 s[80:95], s[0:1], 64")
    a("v_lshrrev_b32 v2, 6, v0")
    a("v_and_b32 v1, 63, v0")
    a("s_and_b32 s%d, s2, 7", SX_); a("s_lshr_b32 s%d, s2, 3", SIDX)
    a("v_readfirstlane_b32 s%d, v2", SW)
    a("s_lshr_b32 s%d, s%d, 1", SI, SX_); a("s_lshl_b32 s%d, s%d, 2", SI, SI); a("s_and_b32 s3, s%d, 3", SIDX); a("s_add_u32 s%d, s%d, s3", SI, SI)
    a("s_and_b32 s19, s%d, 1", SX_); a("s_lshr_b32 s3, s%d, 2", SIDX)
    a("s_mul_i32 s%d, s19, 7", SJ); a("s_add_u32 s%d, s%d, s3", SJ, SJ)
    a("s_lshl_b32 s%d, s19, 3", SJD); a("s_add_u32 s%d, s%d, s3", SJD, SJD)
    a("v_mov_b32 v3, %d", WT)
    a("s_waitcnt lgkmcnt(0)")
    a.srd(R_SY, P_WS, SY_END, WS_STATS)
    a("buffer_load_dword v2, v3, %s, 0 offen sc1", srdr(R_SY))
    def get_tag():
        a("v_readfirstlane_b32 s%d, v2", TAG)
        a("s_nop 0")
        a("s_mul_i32 s%d, s%d, 0x9E3779B1", TAG, TAG); a("s_add_u32 s%d, s%d, 0x7F4A7C15", TAG, TAG)
    a("s_cmp_ge_u32 s%d, 4", SW); a("s_cbranch_scc1 %s", prod)

    VCG, VRG = 3, 17
    VOFF, VSK = 4, 15
    RK, RV, RW, UK, UW, RES, TMP = 18, 40, 56, 128, 172, 188, 226
    VD_ = 240
    a.srd(20, P_K, 4 * MB); a.srd(24, P_V, 4 * MB); a.srd(28, P_SK, 8192); a.srd(32, P_WS, 4 * MB, WS_UR); a.srd(36, P_SSMD, 2048)
    a.srd(40, P_WS, 4 * MB, WS_YB)
    a("v_and_b32 v%d, 31, v0", VCG); a("v_lshrrev_b32 v%d, 5, v0", VRG)
    a("s_lshl_b32 s19, s%d, 17", SIDX); a("s_lshl_b32 s3, s%d, 8", SX_); a("s_add_u32 s19, s19, s3"); a("s_sub_u32 s19, s19, %d", 3 * 2048)
    a("v_lshlrev_b32 v%d, 14, v%d", VOFF, VRG); a("v_lshl_add_u32 v%d, v%d, 3, v%d", VOFF, VCG, VOFF); a("v_add_u32 v%d, s19, v%d", VOFF, VOFF)
    a("s_lshl_b32 s3, s%d, 10", SX_); a("v_lshl_add_u32 v%d, v%d, 5, s3", VSK, VCG)
    a("buffer_load_dwordx4 v[%d:%d], v%d, s[28:31], 0 offen", RW, RW + 3, VSK)
    a("buffer_load_dwordx4 v[%d:%d], v%d, s[28:31], 0 offen offset:16", RW + 4, RW + 7, VSK)
    for j in range(11):
        if j: a("v_add_u32 v%d, %d, v%d", VOFF + j, 2048 * j, VOFF)
        a("buffer_load_dwordx2 v[%d:%d], v%d, s[20:23], 0 offen", RK + 2 * j, RK + 2 * j + 1, VOFF + j)
    for j in range(8): a("buffer_load_dwordx2 v[%d:%d], v%d, s[24:27], 0 offen", RV + 2 * j, RV + 2 * j + 1, VOFF + 3 + j)
    SD = 48
    a("s_lshl_b32 s%d, s%d, 7", SD, SX_); a("s_lshl_b32 s3, s%d, 2", SIDX); a("s_add_u32 s%d, s%d, s3", SD, SD)
    a("s_add_u32 s49, s%d, s%d", SD, SW)
    a("s_lshl_b32 s3, s49, 1"); a("v_mov_b32 v%d, s3", TMP)
    a("buffer_load_ushort v%d, v%d, s[36:39], 0 offen", VD_, TMP)
    a("s_barrier")
    PK = 96
    VTAG, VZERO = 241, 242
    VW1, VR1, VG1 = TMP + 4, TMP + 6, TMP + 5
    a("v_sub_u32 v%d, 7, v%d", TMP + 4, VRG); a("v_and_b32 v%d, 7, v%d", TMP + 5, VCG); a("v_xor_b32 v%d, v%d, v%d", TMP + 4, TMP + 4, TMP + 5)
    a("v_lshlrev_b32 v%d, 4, v%d", TMP + 4, TMP + 4); a("v_lshl_add_u32 v%d, v%d, 9, v%d", TMP + 4, VCG, TMP + 4); a("v_add_u32 v%d, %d, v%d", VW1, L_T1, TMP + 4)
    a("v_lshrrev_b32 v%d, 3, v0", TMP + 7); a("v_and_b32 v%d, 7, v0", TMP + 5); a("v_lshrrev_b32 v%d, 2, v%d", TMP + 6, TMP + 7)
    a("v_xor_b32 v%d, v%d, v%d", TMP + 6, TMP + 6, TMP + 5); a("v_lshlrev_b32 v%d, 4, v%d", TMP + 6, TMP + 6)
    a("v_lshl_add_u32 v%d, v%d, 7, v%d", TMP + 6, TMP + 7, TMP + 6); a("v_add_u32 v%d, %d, v%d", VR1, L_T1, TMP + 6)
    a("s_lshl_b32 s3, s%d, 19", SX_); a("s_lshl_b32 s19, s%d, 7", SIDX); a("s_sub_u32 s3, s3, s19"); a("s_add_u32 s3, s3, %d", (2047 - 63) * 2)
    a("v_lshlrev_b32 v%d, 4, v%d", TMP + 5, TMP + 5); a("v_lshl_add_u32 v%d, v%d, 12, v%d", TMP + 5, TMP + 7, TMP + 5); a("v_add_u32 v%d, s3, v%d", VG1, TMP + 5)
    a("v_mov_b32 v%d, 0", VZERO)
    p1 = a.newlabel("p1"); p1e = a.newlabel("p1e")
    a("s_mov_b32 s53, %d", 0 if opt.get("dry1", 0) else 1)
    a.put(p1)
    a("s_cmp_eq_u32 s53, 0")
    def cwait(n, extra=None):
        sk = a.newlabel("w")
        a("s_cbranch_scc1 %s", sk)
        a("s_waitcnt vmcnt(%d)", n)
        if extra:
            extra(); a("s_cmp_eq_u32 s53, 0")
        a.put(sk)
    def tag_and_counter():
        get_tag()
        a("v_mov_b32 v%d, s%d", VTAG, TAG)
    cwait(20, tag_and_counter)
    for c in range(4):
        for t in range(4):
            dst = UW + (t * 2 + (c >> 1)) * 2 + (c & 1); src = RW + 2 * c + (t >> 1)
            if t & 1: a("v_and_b32 v%d, 0xffff0000, v%d", dst, src)
            else: a("v_lshlrev_b32 v%d, 16, v%d", dst, src)
    cwait(9, a.st if DIAG[0] else None)
    for j in range(11):
        for d in range(2): unpack(a, UK + 4 * j + 2 * d, UK + 4 * j + 2 * d + 1, RK + 2 * j + d)
    for j in range(8):
        for p in range(2):
            dst = RES + 4 * j + 2 * p
            a("v_pk_mul_f32 %s, %s, %s", pk(dst), pk(UK + 4 * j + 2 * p), pk(UW + (3 * 2 + p) * 2))
            for t in (2, 1, 0):
                a("v_pk_fma_f32 %s, %s, %s, %s", pk(dst), pk(UK + 4 * (j + 3 - t) + 2 * p), pk(UW + (t * 2 + p) * 2), pk(dst))
    cwait(1)
    for j in range(8):
        for p in range(2): unpack(a, UK + 4 * j + 2 * p, UK + 4 * j + 2 * p + 1, RV + 2 * j + p)
    for j in range(8):
        for p in range(2): a("v_pk_mul_f32 %s, %s, %s", pk(RES + 4 * j + 2 * p), pk(RES + 4 * j + 2 * p), pk(UK + 4 * j + 2 * p))
    for c in range(4):
        for m in range(4): a("v_cvt_pk_bf16_f32 v%d, v%d, v%d", PK + 4 * c + m, RES + 4 * (7 - 2 * m) + c, RES + 4 * (6 - 2 * m) + c)
    a("s_cbranch_scc0 %s", p1e)
    a("s_mov_b32 s53, 1")
    a("s_branch %s", p1)
    a.put(p1e)
    for c in range(4): a("ds_write_b128 v%d, v[%d:%d] offset:%d", VW1, PK + 4 * c, PK + 4 * c + 3, 128 * c)
    nc = a.newlabel("nc")
    a("s_cmp_ge_u32 s2, 16"); a("s_cbranch_scc1 %s", nc)
    a("s_cmp_lg_u32 s%d, 0", SW); a("s_cbranch_scc1 %s", nc)
    a("s_lshl_b32 s3, s2, 7"); a("s_add_u32 s3, s3, %d", CN)
    flag_store(a, VTAG, VZERO, "s3")
    a.put(nc)
    a("s_waitcnt lgkmcnt(0)")
    a.st()
    a("s_barrier")
    for m in range(4): a("ds_read_b128 v[%d:%d], v%d offset:%d", RV + 4 * m, RV + 4 * m + 3, VR1, 4096 * m)
    for m in range(4):
        a("s_mov_b32 s3, %d", m * 32 * 4096)
        a("s_waitcnt lgkmcnt(%d)", 3 - m)
        a("buffer_store_dwordx4 v[%d:%d], v%d, s[32:35], s3 offen sc1", RV + 4 * m, RV + 4 * m + 3, VG1)
    SLB = 50
    a("s_mul_i32 s%d, s%d, %d", SLB, SW, CV_W)
    VA, VB, VE, VS, VSG, VSR_, VPA, VL16 = 112, 116, 117, 118, 119, 120, 121, 122
    a("v_and_b32 v244, 15, v1"); a("v_lshrrev_b32 v245, 4, v1")
    a("v_and_b32 v246, 4, v244"); a("v_lshlrev_b32 v246, 1, v246"); a("v_lshrrev_b32 v247, 3, v244"); a("v_lshl_add_u32 v246, v247, 2, v246")
    a("v_and_b32 v247, 3, v244"); a("v_add3_u32 v246, v246, v247, 1")
    a("v_and_b32 v247, 1, v246"); a("v_mul_u32_u24 v247, 4160, v247"); a("v_and_b32 v246, 30, v246"); a("v_lshl_add_u32 v247, v246, 1, v247")
    a("v_lshl_add_u32 v247, v245, 4, v247"); a("s_add_u32 s3, s%d, %d", SLB, CV_C0); a("v_add_u32 v%d, s3, v247", VA)
    for j in range(1, 4): a("v_add_u32 v%d, %d, v%d", VA + j, 1024 * j, VA)
    a("v_lshlrev_b32 v247, 5, v244"); a("v_sub_u32 v247, 480, v247"); a("v_lshl_add_u32 v247, v245, 4, v247"); a("v_add_u32 v%d, s%d, v247", VB, SLB)
    a("v_and_b32 v246, 1, v245"); a("v_lshlrev_b32 v246, 4, v246"); a("v_lshrrev_b32 v247, 1, v245"); a("v_lshl_add_u32 v246, v247, 3, v246")
    a("v_lshl_add_u32 v246, v244, 5, v246"); a("v_sub_u32 v246, 504, v246"); a("v_add_u32 v%d, s%d, v246", VE, SLB)
    a("v_and_b32 v246, 1, v245"); a("v_lshl_add_u32 v246, v244, 1, v246"); a("v_lshl_add_u32 v246, v247, 5, v246")
    a("v_lshlrev_b32 v246, 2, v246"); a("v_add_u32 v246, s%d, v246", SW); a("v_and_b32 v247, 7, v244"); a("v_xor_b32 v246, v246, v247")
    a("v_lshlrev_b32 v246, 4, v246"); a("v_add_u32 v%d, %d, v246", VS, L_T1)
    a("v_bfe_u32 v246, v0, 3, 3"); a("v_xor_b32 v246, v246, v0"); a("v_lshlrev_b32 v246, 4, v246"); a("v_add_u32 v%d, %d, v246", VSR_, L_T1)
    a("v_lshrrev_b32 v246, 2, v0"); a("v_lshlrev_b32 v246, 14, v246"); a("v_and_b32 v247, 3, v0"); a("v_lshl_add_u32 v246, v247, 4, v246")
    a("s_lshl_b32 s3, s%d, 4", SD); a("v_add_u32 v%d, s3, v246", VSG)
    a("v_and_b32 v246, 31, v1"); a("v_mul_u32_u24 v%d, %d, v246", VPA, FAS)
    a("v_lshlrev_b32 v%d, 4, v1", VL16)
    ACC = 64; FA_ = [128, 160]; FB_ = [192, 4]
    for r in range(32): a("v_mov_b32 v%d, 0", ACC + r)
    a("s_waitcnt vmcnt(0)")
    a.st()
    a("s_barrier")
    nf = a.newlabel("nf")
    a("s_mul_i32 s51, s%d, %d", SX_, max(128, 32 * FAS)); a("s_add_u32 s51, s51, %d", FA)
    a("s_cmp_lg_u32 s%d, 0", SW); a("s_cbranch_scc1 %s", nf)
    a("s_mul_i32 s3, s%d, %d", SIDX, FAS); a("s_add_u32 s3, s3, s51")
    flag_store(a, VTAG, VZERO, "s3")
    a.put(nf)
    lead_poll(a, SW, 3, 244, lambda: poll(a, VPA, 246, TAG, "s51", n=32))
    a.st()
    a("s_lshl_b32 s52, s49, 12")
    for m in range(4):
        a("s_add_u32 m0, s%d, %d", SLB, CV_UR + 1024 * m)
        a("s_add_u32 s3, s52, %d", 1024 * m)
        a("buffer_load_dwordx4 v%d, s[32:35], s3 offen sc1 lds", VL16)
    lds_inc(a, 7, 244, 245)
    a("v_lshlrev_b32 v%d, 16, v%d", VD_, VD_)
    lds_wait(a, 6, 4, 244, 245)
    a("s_waitcnt vmcnt(0)")
    a.st()
    def cloads(rr, st):
        out = []
        def la(q):
            base = VA + (q >> 1); o = ((q & 1) * 8 + rr) * 16; d = FA_[st] + 4 * q
            out.append("ds_read2_b32 v[%d:%d], v%d offset0:%d offset1:%d" % (d, d + 1, base, o, o + 1))
            out.append("ds_read2_b32 v[%d:%d], v%d offset0:%d offset1:%d" % (d + 2, d + 3, base, o + 2, o + 3))
        def lb(t):
            d = FB_[st] + 4 * t
            out.append("ds_read_b128 v[%d:%d], v%d offset:%d" % (d, d + 3, VB, CV_UR + 64 * (56 - 8 * t + rr)))
        la(0)
        for t in range(8): lb(t)
        for q in range(1, 8): la(q)
        return out
    for l in cloads(0, 0): a(l)
    a("s_mov_b32 s53, 4")
    cvl = a.newlabel("cv")
    a.put(cvl)
    for st in range(2):
        nxt = cloads(st + 1, st ^ 1)
        if st == 1: nxt += ["v_add_u32 v%d, 128, v%d" % (r, r) for r in (VA, VA + 1, VA + 2, VA + 3, VB)] + ["s_sub_u32 s53, s53, 1", "s_cmp_lg_u32 s53, 0"]
        a("s_waitcnt lgkmcnt(0)")
        li = 0
        for q in range(8):
            ts = list(range(q, 8))
            if q & 1: ts.reverse()
            for t in ts:
                acc = ACC + 4 * t
                a("v_mfma_f32_16x16x32_bf16 %s, %s, %s, %s", v(acc, 4), v(FA_[st] + 4 * q, 4), v(FB_[st] + 4 * (t - q), 4), v(acc, 4))
                if li < len(nxt): a(nxt[li]); li += 1
        assert li == len(nxt)
    a("s_cbranch_scc1 %s", cvl)
    a("s_waitcnt lgkmcnt(0)")
    for t in range(8): a("ds_read_b64 v[%d:%d], v%d offset:%d", FA_[0] + 2 * t, FA_[0] + 2 * t + 1, VE, CV_UR + 512 * (7 - t))
    a.st()
    a("s_waitcnt lgkmcnt(0)")
    U = FA_[0]; T = FA_[1]; PKo = FB_[0]
    for t in range(8):
        acc = ACC + 4 * t
        unpack(a, T + 3, T + 2, U + 2 * t); unpack(a, T + 1, T + 0, U + 2 * t + 1)
        for r in range(4): a("v_fmac_f32 v%d, v%d, v%d", acc + r, VD_, T + r)
        a("v_cvt_pk_bf16_f32 v%d, v%d, v%d", PKo + 2 * t, acc, acc + 1); a("v_cvt_pk_bf16_f32 v%d, v%d, v%d", PKo + 2 * t + 1, acc + 2, acc + 3)
    a("s_nop 1")
    for t in range(0, 8, 2):
        R = PKo + 2 * t
        a("v_permlane32_swap_b32 v%d, v%d", R, R + 2); a("v_permlane32_swap_b32 v%d, v%d", R + 1, R + 3)
        a("ds_write_b128 v%d, v[%d:%d] offset:%d", VS, R, R + 3, t * 32 * 64)
    lds_sync(a, 2, 244)
    for m in range(4): a("ds_read_b128 v[%d:%d], v%d offset:%d", 96 + 4 * m, 99 + 4 * m, VSR_, 4096 * m)
    for m in range(4):
        a("s_mov_b32 s3, %d", m * 64 * 16384)
        a("s_waitcnt lgkmcnt(%d)", 3 - m)
        a("buffer_store_dwordx4 v[%d:%d], v%d, s[40:43], s3 offen sc1", 96 + 4 * m, 99 + 4 * m, VSG)
    VHF, VKK, VQ, VM, VRW, VRR, VQ2, VQL, VLS = 2, 3, 4, 5, 8, 9, 13, 6, 7
    YA = 16
    RQ, RP, Q, PR, RY, S, RS, MU, H, YU = 24, 40, 64, 96, 136, 152, 160, 192, 200, 208
    HG = 160
    a.srd(20, P_WS, 12288, WS_MOD); a.srd(24, P_WS, 4 * MB, WS_X1); a.srd(28, P_WS, 4 * MB, WS_H2)
    a("v_bfe_u32 v%d, v0, 2, 1", VHF)
    a("v_lshrrev_b32 v11, 3, v0"); a("v_and_b32 v12, 3, v0"); a("v_lshl_add_u32 v%d, v11, 2, v12", VKK)
    a("s_lshl_b32 s3, s2, 14")
    a("v_lshlrev_b32 v11, 13, v%d", VHF); a("v_lshl_add_u32 v11, v%d, 4, v11", VKK); a("v_add_u32 v%d, s3, v11", VQ); a("v_add_u32 v%d, 4096, v%d", VQ2, VQ)
    a("v_lshlrev_b32 v%d, 4, v%d", VM, VKK)
    a("v_mul_u32_u24 v11, %d, v%d", 4 * QROW, VHF); a("v_add3_u32 v%d, v11, v%d, 0", VQL, VM); a("v_add_u32 v%d, %d, v%d", VQL, L_QT, VQL)
    a("v_lshlrev_b32 v11, 5, v%d", VHF); a("v_add_u32 v%d, %d, v11", VLS, L_L1S)
    a("v_bfe_u32 v11, v%d, 1, 3", VKK); a("v_lshlrev_b32 v11, 4, v11"); a("v_lshlrev_b32 v12, 7, v%d", VKK); a("v_lshl_add_u32 v12, v%d, 3, v12", VHF)
    for i in range(8):
        a("v_xor_b32 v%d, %d, v11", YA + i, 16 * i); a("v_add_u32 v%d, v12, v%d", YA + i, YA + i)
    a("v_lshrrev_b32 v11, 4, v1"); a("v_lshlrev_b32 v11, 2, v11"); a("v_lshl_add_u32 v11, v%d, 7, v11", VHF)
    a("s_lshl_b32 s3, s%d, 5", SW); a("s_add_u32 s3, s3, 16384"); a("v_add_u32 v%d, s3, v11", VRW)
    a("v_lshlrev_b32 v%d, 7, v%d", VRR, VHF)
    a("v_and_b32 v11, 11, v1"); a("v_cmp_eq_u32 s[52:53], 0, v11")
    a("v_lshlrev_b32 v10, 8, v1"); a("v_lshlrev_b32 v14, 2, v1"); a("v_mov_b32 v12, 1")
    a("v_mov_b32 v11, %d", L_CNT + 20); a("v_mov_b32 v15, 1")
    a("s_waitcnt vmcnt(0)")
    a.st()
    a("s_mov_b64 exec, 1")
    a("ds_add_rtn_u32 v15, v11, v15")
    a("s_waitcnt lgkmcnt(0)")
    a("v_readfirstlane_b32 s56, v15")
    nb = a.newlabel("nb"); na = a.newlabel("na")
    a("s_and_b32 s55, s2, 15"); a("s_lshl_b32 s3, s55, 7"); a("s_add_u32 s3, s3, %d", CN)
    a("s_cmp_lg_u32 s56, 3"); a("s_cbranch_scc1 %s", na)
    a("buffer_atomic_add v12, v%d, %s, s3 offen sc0 sc1", VZERO, srdr(R_SY))
    a.put(na)
    a("s_mov_b64 exec, -1")
    lds_wait(a, 1, 4, 11, 15)
    for j in range(4): a("ds_read_b128 v[%d:%d], v%d offset:%d", RQ + 4 * j, RQ + 4 * j + 3, VQL, QROW * j)
    for j in range(2): a("ds_read_b128 v[%d:%d], v%d offset:%d", MU + 4 * j, MU + 4 * j + 3, VLS, 16 * j)
    a("s_add_u32 s54, s%d, 15", TAG); a("s_lshl_b32 s3, s55, 2"); a("s_add_u32 s3, s3, %d", FB2)
    a("s_lshl_b32 s55, s%d, 8", SX_); a("s_add_u32 s55, s55, %d", FB2)
    a("s_waitcnt lgkmcnt(0)")
    for j in range(4):
        for d in range(4): unpack(a, Q + 8 * j + 2 * d, Q + 8 * j + 2 * d + 1, RQ + 4 * j + d)
    for j in range(4):
        for e in range(0, 8, 2):
            a("v_pk_fma_f32 %s, %s, %s, %s op_sel:[0,0,1] op_sel_hi:[1,0,1]", pk(HG + 8 * j + e), pk(Q + 8 * j + e), pk(MU + 2 * j), pk(MU + 2 * j))
    a("s_cmp_lg_u32 s56, 3"); a("s_cbranch_scc1 %s", nb)
    a("s_waitcnt vmcnt(0)")
    a("v_readfirstlane_b32 s19, v12")
    nl = a.newlabel("nl")
    a("s_mov_b64 exec, 0xff")
    a("s_cmp_lg_u32 s19, s54"); a("s_cbranch_scc1 %s", nl)
    a("buffer_store_dword v%d, v10, %s, s3 offen sc1", VTAG, srdr(R_SY))
    a.put(nl)
    poll(a, 14, 11, TAG, "s55", n=16)
    a("s_cmp_lg_u32 s2, 0"); a("s_cbranch_scc1 %s", nb)
    a("s_mov_b32 s3, %d", WT)
    flag_store(a, VTAG, VZERO, "s3")
    a.put(nb)
    a("s_barrier")
    a.st()
    SA, CA, GA, SB, CBp = PR, PR + 8, PR + 16, PR + 24, PR + 32
    def unp_param(p):
        for d in range(4): unpack(a, PR + 8 * p + 2 * d, PR + 8 * p + 2 * d + 1, RP + 4 * p + d)
    ml = a.newlabel("ml"); mo = a.newlabel("mo")
    a("s_mov_b32 s11, 0")
    a.put(ml)
    for p in range(5):
        a("s_mov_b32 s3, %d", 2048 * p)
        a("buffer_load_dwordx4 v[%d:%d], v%d, s[20:23], s3 offen sc1", RP + 4 * p, RP + 4 * p + 3, VM)
    a("s_add_u32 s11, s11, 1")
    a("s_cmp_gt_u32 s11, %d", SPIN_MAX); a("s_cbranch_scc1 %s", mo)
    a("s_waitcnt vmcnt(0)")
    a("v_max3_u32 v11, v%d, v%d, v%d", RP, RP + 4, RP + 8); a("v_max3_u32 v11, v11, v%d, v%d", RP + 12, RP + 16)
    a("v_cmp_eq_u32 vcc, -1, v11"); a("s_nop 4"); a("s_cbranch_vccnz %s", ml)
    a.put(mo)
    unp_param(1); unp_param(0)
    for j in range(4):
        for e in range(0, 8, 2): a("v_pk_fma_f32 %s, %s, %s, %s", pk(HG + 8 * j + e), pk(HG + 8 * j + e), pk(CA + e), pk(SA + e))
    unp_param(2)
    for j in range(4):
        for e in range(0, 8, 2): a("v_pk_mul_f32 %s, %s, %s", pk(HG + 8 * j + e), pk(HG + 8 * j + e), pk(GA + e))
    a.st()
    a("s_barrier")
    a.st()
    for i in range(8): a("ds_read_b64 v[%d:%d], v%d", RY + 2 * i, RY + 2 * i + 1, YA + i)
    unp_param(4); unp_param(3)
    for i in range(8):
        a("s_waitcnt lgkmcnt(%d)", 7 - i)
        unpack(a, YU + i, YU + 8 + i, RY + 2 * i); unpack(a, YU + 16 + i, YU + 24 + i, RY + 2 * i + 1)
    for j in range(4):
        for e in range(0, 8, 2): a("v_pk_fma_f32 %s, %s, %s, %s", pk(H + e), pk(HG + 8 * j + e), pk(YU + 8 * j + e), pk(Q + 8 * j + e))
        for e in range(0, 8, 2): a("v_cvt_pk_bf16_f32 v%d, v%d, v%d", RQ + 4 * j + e // 2, H + e, H + e + 1)
        a("buffer_store_dwordx4 v[%d:%d], v%d, s[24:27], 0 offen offset:%d sc1", RQ + 4 * j, RQ + 4 * j + 3, VQ if j < 2 else VQ2, 2048 * (j & 1))
        for d in range(4): unpack(a, Q + 8 * j + 2 * d, Q + 8 * j + 2 * d + 1, RQ + 4 * j + d)
    for j in range(4):
        x = Q + 8 * j
        a("v_pk_add_f32 %s, %s, %s", pk(H), pk(x), pk(x + 2)); a("v_pk_mul_f32 %s, %s, %s", pk(H + 2), pk(x), pk(x))
        a("v_pk_add_f32 %s, %s, %s", pk(H + 4), pk(x + 4), pk(x + 6))
        for e in (2, 4, 6): a("v_pk_fma_f32 %s, %s, %s, %s", pk(H + 2), pk(x + e), pk(x + e), pk(H + 2))
        a("v_pk_add_f32 %s, %s, %s", pk(H), pk(H), pk(H + 4))
        a("v_add_f32 v%d, v%d, v%d", S + 4 + j, H + 2, H + 3); a("v_add_f32 v%d, v%d, v%d", S + j, H, H + 1)
    wave_reduce8(a, S, H)
    a("s_mov_b64 exec, s[52:53]")
    a("ds_write_b32 v%d, v%d", VRW, S); a("ds_write_b32 v%d, v%d offset:16", VRW, S + 4)
    a("s_mov_b64 exec, -1")
    a("s_waitcnt lgkmcnt(0)")
    a("s_barrier")
    a.st()
    for w in range(4):
        a("ds_read_b128 v[%d:%d], v%d offset:%d", RS + 8 * w, RS + 8 * w + 3, VRR, 16384 + 32 * w)
        a("ds_read_b128 v[%d:%d], v%d offset:%d", RS + 8 * w + 4, RS + 8 * w + 7, VRR, 16384 + 32 * w + 16)
    a("s_waitcnt lgkmcnt(0)")
    for (d, s) in ((0, 8), (16, 24), (0, 16)):
        for e in range(0, 8, 2): a("v_pk_add_f32 %s, %s, %s", pk(RS + d + e), pk(RS + d + e), pk(RS + s + e))
    a("s_mov_b32 s10, %s", fhex(1.0 / 1024))
    for j in range(4): a("v_mul_f32 v%d, s10, v%d", RS + j, RS + j)
    for j in range(4): a("v_mul_f32 v%d, v%d, v%d", RS + 8 + j, RS + j, RS + j)
    for j in range(4): a("v_fma_f32 v%d, v%d, s10, -v%d", RS + 4 + j, RS + 4 + j, RS + 8 + j)
    for j in range(4): a("v_max_f32 v%d, 0, v%d", RS + 4 + j, RS + 4 + j)
    for j in range(4): a("v_add_f32 v%d, %s, v%d", RS + 4 + j, fhex(EPS), RS + 4 + j)
    for j in range(4): a("v_rsq_f32 v%d, v%d", MU + 2 * j, RS + 4 + j)
    a("s_nop 0")
    for j in range(4): a("v_mul_f32_e64 v%d, -v%d, v%d", MU + 2 * j + 1, RS + j, MU + 2 * j)
    for j in range(4):
        for e in range(0, 8, 2):
            a("v_pk_fma_f32 %s, %s, %s, %s op_sel:[0,0,1] op_sel_hi:[1,0,1]", pk(H + e), pk(Q + 8 * j + e), pk(MU + 2 * j), pk(MU + 2 * j))
        for e in range(0, 8, 2): a("v_pk_fma_f32 %s, %s, %s, %s", pk(H + e), pk(H + e), pk(CBp + e), pk(SB + e))
        for e in range(0, 8, 2): a("v_cvt_pk_bf16_f32 v%d, v%d, v%d", RY + 4 * j + e // 2, H + e, H + e + 1)
        a("buffer_store_dwordx4 v[%d:%d], v%d, s[28:31], 0 offen offset:%d sc1", RY + 4 * j, RY + 4 * j + 3, VQ if j < 2 else VQ2, 2048 * (j & 1))
    a.st()
    a("s_waitcnt vmcnt(0)")
    a.st()
    a("s_barrier")
    nf = a.newlabel("nf")
    a("s_cmp_lg_u32 s%d, 0", SW); a("s_cbranch_scc1 %s", nf)
    a("s_lshr_b32 s3, s2, 4"); a("s_lshl_b32 s3, s3, 12"); a("s_and_b32 s19, s2, 15"); a("s_lshl_b32 s19, s19, 7"); a("s_add_u32 s3, s3, s19"); a("s_add_u32 s3, s3, %d", FC1)
    a("v_lshlrev_b32 v10, 11, v1")
    a("s_mov_b64 exec, 3")
    a("buffer_store_dword v%d, v10, %s, s3 offen sc1", VTAG, srdr(R_SY))
    a("s_mov_b64 exec, -1")
    a.put(nf)
    c_spare = a.label("cspare"); c_g3 = a.label("cg3")
    a("s_cmp_ge_u32 s%d, 28", SIDX); a("s_cbranch_scc1 %s", c_spare)

    if DIAG[0]: a("v_mov_b32 v31, v250"); a.diag = (0, 31)
    R_Z2, R_P, R_BSP = 32, 40, 36
    a.srd(R_Z2, P_WS, 14 * 524288, WS_Z2); a.srd(R_P, P_WS, 16 * 458752, WS_P); a.srd(R_BSP, P_BSP, 4096)
    XA, YB, YG, VSW, VSF, KC, T, VZ, VP, VBS = 2, 4, 12, 14, 15, 16, 20, 28, 29, 30
    AC = 32; HO = 96; F = [160, 192]; ZK = 224; S = 240; BS = 240
    SWM, SWN = 48, 49
    a("s_and_b32 s%d, s%d, 1", SWM, SW); a("s_lshr_b32 s%d, s%d, 1", SWN, SW)
    c, h, g, r_, cq = 20, 21, 21, 22, 23
    a("v_and_b32 v%d, 15, v1", c); a("v_lshrrev_b32 v%d, 4, v1", h); a("v_bfe_u32 v%d, v1, 2, 2", r_); a("v_and_b32 v%d, 3, v1", cq)
    a("s_lshl_b32 s3, s%d, 7", SI); a("s_lshl_b32 s19, s%d, 6", SWM); a("s_add_u32 s3, s3, s19"); a("s_lshl_b32 s3, s3, 1")
    a("v_lshl_add_u32 v%d, v%d, 1, s3", VBS, c)
    a("v_lshrrev_b32 v24, 1, v%d", c); a("v_xor_b32 v24, v24, v%d", h); a("v_lshlrev_b32 v24, 4, v24")
    a("v_lshl_add_u32 v24, v%d, 7, v24", c); a("s_lshl_b32 s3, s%d, 13", SWM); a("v_add_u32 v%d, s3, v24", XA); a("v_xor_b32 v%d, 64, v%d", XA + 1, XA)
    a("v_lshl_add_u32 v24, v%d, 3, v%d", g, r_); a("v_lshlrev_b32 v24, 8, v24"); a("v_lshl_add_u32 v24, v%d, 3, v24", cq)
    a("v_and_b32 v25, 1, v%d", g); a("v_xor_b32 v25, s%d, v25", SWN); a("v_lshl_add_u32 v24, v25, 7, v24"); a("v_add_u32 v24, %d, v24", L_Y)
    for nt in range(4):
        a("v_xor_b32 v25, %d, v%d", nt, r_); a("v_lshl_add_u32 v%d, v25, 5, v24", YB + 2 * nt); a("v_add_u32 v%d, 1024, v%d", YB + 2 * nt + 1, YB + 2 * nt)
    a("v_and_b32 v24, 1, v%d", g); a("v_lshl_add_u32 v24, v24, 3, v%d", r_)
    a("v_lshrrev_b32 v25, 1, v%d", cq); a("v_lshl_add_u32 v24, v25, 2, v24"); a("v_lshl_add_u32 v24, v25, 5, v24")
    a("v_lshrrev_b32 v25, 1, v%d", g); a("v_lshl_add_u32 v24, v25, 4, v24"); a("v_lshlrev_b32 v24, 4, v24")
    a("v_and_b32 v25, 1, v%d", cq); a("v_lshl_add_u32 v24, v25, 3, v24")
    a("s_lshl_b32 s3, s%d, 12", SWN); a("s_add_u32 s3, s3, %d", L_Y); a("v_add_u32 v%d, s3, v24", YG); a("v_xor_b32 v%d, 64, v%d", YG + 1, YG)
    a("s_lshl_b32 s3, s%d, 10", SWN); a("s_lshl_b32 s19, s%d, 9", SWM); a("s_add_u32 s3, s3, s19"); a("s_add_u32 s3, s3, %d", L_ST)
    a("v_lshl_add_u32 v%d, v1, 3, s3", VSW)
    a("s_add_u32 s3, s19, %d", L_FIN); a("v_lshl_add_u32 v%d, v%d, 3, s3", VSF, c)
    a("v_lshrrev_b32 v24, 1, v%d", h); a("v_lshlrev_b32 v24, 2, v24"); a("v_xor_b32 v24, v24, v%d", c); a("v_lshl_add_u32 v24, v%d, 4, v24", h)
    a("s_lshl_b32 s3, s%d, 19", SJ); a("s_lshl_b32 s19, s%d, 15", SI); a("s_add_u32 s3, s3, s19")
    a("s_lshl_b32 s19, s%d, 14", SWM); a("s_add_u32 s3, s3, s19"); a("s_lshl_b32 s19, s%d, 12", SWN); a("s_add_u32 s3, s3, s19")
    a("v_lshl_add_u32 v%d, v24, 4, s3", VZ)
    a("s_mul_i32 s3, s%d, 458752", SI); a("s_lshl_b32 s19, s%d, 15", SJ); a("s_add_u32 s3, s3, s19")
    a("s_lshl_b32 s19, s%d, 14", SWN); a("s_add_u32 s3, s3, s19"); a("s_lshl_b32 s19, s%d, 12", SWM); a("s_add_u32 s3, s3, s19")
    a("v_lshl_add_u32 v%d, v1, 4, s3", VP)
    SC = 52
    a("s_mov_b32 s%d, %s", SC, fhex(GC1)); a("s_mov_b32 s%d, %s", SC + 1, fhex(GC1)); a("s_mov_b32 s54, 8192")
    a("v_mov_b32 v%d, %s", KC, fhex(GC0)); a("v_mov_b32 v%d, %s", KC + 1, fhex(GC0)); a("v_mov_b32 v%d, 1.0", KC + 2); a("v_mov_b32 v%d, 1.0", KC + 3)
    a("s_mov_b32 s50, 0"); a("s_mov_b32 s51, %d", (1 << 4) | (1 << 8) | (1 << 16))
    def frag_loads(slot, ks, fs):
        out = []
        def X(mt): out.append("ds_read_b128 %s, v%d offset:%d" % (v(F[fs] + 4 * mt, 4), XA + ks, slot * 16384 + mt * 2048))
        def Y(nt):
            for hh in range(2): out.append("ds_read_b64_tr_b16 %s, v%d offset:%d" % (v(F[fs] + 16 + 4 * nt + 2 * hh, 2), YB + 2 * nt + hh, slot * 16384 + ks * 8192))
        X(0); Y(0); X(1); X(2); X(3); Y(1); Y(2); Y(3)
        return out
    def phase(fs, first, nxt, waits):
        need = {("x", 0): 0, ("y", 0): 2, ("x", 1): 3, ("x", 2): 4, ("x", 3): 5, ("y", 1): 7, ("y", 2): 9, ("y", 3): 11}
        done = -1; li = 0; nds = 0
        for nt in range(4):
            for mt in (range(4) if nt % 2 == 0 else range(3, -1, -1)):
                if waits:
                    p = max(need[("x", mt)], need[("y", nt)])
                    if p > done:
                        a("s_waitcnt lgkmcnt(%d)", min(15, 11 - p + nds)); done = p
                d = AC + 4 * (mt * 4 + nt)
                a("v_mfma_f32_16x16x32_bf16 %s, %s, %s, %s", v(d, 4), v(F[fs] + 16 + 4 * nt, 4), v(F[fs] + 4 * mt, 4), "0" if first else v(d, 4))
                if li < len(nxt):
                    a(nxt[li]); nds += nxt[li].startswith("ds_"); li += 1
        assert li == len(nxt)
    def gelu():
        G = 2; NGp = 32 // G
        def tm(gi): return [ZK + 4 * (gi % 4) + 2 * n for n in range(G)]
        def pre(gi):
            t = tm(gi); x = [AC + 2 * (G * gi + n) for n in range(G)]
            return ([("v_pk_mul_f32 %s, %s, %s" % (pk(t[n]), pk(x[n]), pk(x[n]))) for n in range(G)] +
                    [("v_pk_fma_f32 %s, %s, s[%d:%d], %s" % (pk(t[n]), pk(t[n]), SC, SC + 1, pk(KC))) for n in range(G)] +
                    [("v_pk_mul_f32 %s, %s, %s" % (pk(t[n]), pk(t[n]), pk(x[n]))) for n in range(G)])
        def ex(gi): return ["v_exp_f32 v%d, v%d" % (r, r) for t in tm(gi) for r in (t, t + 1)]
        def ad(gi): return ["v_pk_add_f32 %s, %s, %s" % (pk(t), pk(t), pk(KC + 2)) for t in tm(gi)]
        def rc(gi): return ["v_rcp_f32 v%d, v%d" % (r, r) for t in tm(gi) for r in (t, t + 1)]
        def fin_(gi): return ["v_pk_mul_f32 %s, %s, %s" % (pk(HO + 2 * (G * gi + n)), pk(AC + 2 * (G * gi + n)), pk(tm(gi)[n])) for n in range(G)]
        for step in range(NGp + 3):
            tr = (ex(step - 1) if 0 <= step - 1 < NGp else []) + (rc(step - 2) if 0 <= step - 2 < NGp else [])
            al = (ad(step - 2) if 0 <= step - 2 < NGp else []) + (fin_(step - 3) if 0 <= step - 3 < NGp else []) + (pre(step) if step < NGp else [])
            out = []
            while tr or al:
                if al: out.append(al.pop(0))
                if tr: out.append(tr.pop(0))
            if not (0 <= step - 1 < NGp) and 0 <= step - 2 < NGp:
                out = ad(step - 2) + [o for o in out if o not in ad(step - 2)]
            for o in out: a(o)
            if step >= NGp: a("s_nop 0")
    def stats_z2():
        for mt in range(4):
            x = HO + 16 * mt
            a("v_pk_add_f32 %s, %s, %s", pk(T), pk(x), pk(x + 2)); a("v_pk_mul_f32 %s, %s, %s", pk(T + 2), pk(x), pk(x))
            a("v_pk_add_f32 %s, %s, %s", pk(T + 4), pk(x + 4), pk(x + 6)); a("v_pk_mul_f32 %s, %s, %s", pk(T + 6), pk(x + 2), pk(x + 2))
            for e in range(4, 16, 4):
                a("v_pk_fma_f32 %s, %s, %s, %s", pk(T + 2), pk(x + e), pk(x + e), pk(T + 2))
                a("v_pk_fma_f32 %s, %s, %s, %s", pk(T + 6), pk(x + e + 2), pk(x + e + 2), pk(T + 6))
            for e in range(8, 16, 4):
                a("v_pk_add_f32 %s, %s, %s", pk(T), pk(T), pk(x + e)); a("v_pk_add_f32 %s, %s, %s", pk(T + 4), pk(T + 4), pk(x + e + 2))
            a("v_pk_add_f32 %s, %s, %s", pk(T), pk(T), pk(T + 4)); a("v_pk_add_f32 %s, %s, %s", pk(T + 2), pk(T + 2), pk(T + 6))
            a("v_add_f32 v%d, v%d, v%d", S + mt, T, T + 1); a("v_add_f32 v%d, v%d, v%d", S + 4 + mt, T + 2, T + 3)
        a("s_nop 1")
        for base in (S, S + 4):
            a("v_permlane32_swap_b32 v%d, v%d", base, base + 2); a("v_permlane32_swap_b32 v%d, v%d", base + 1, base + 3)
        for base in (S, S + 4):
            a("v_add_f32 v%d, v%d, v%d", base, base, base + 2); a("v_add_f32 v%d, v%d, v%d", base + 1, base + 1, base + 3)
        a("s_nop 0")
        for base in (S, S + 4): a("v_permlane16_swap_b32 v%d, v%d", base, base + 1)
        a("v_add_f32 v%d, v%d, v%d", S, S, S + 1); a("v_add_f32 v%d, v%d, v%d", S + 1, S + 4, S + 5)
        a("ds_write_b64 v%d, %s", VSW, pk(S))
        a("s_waitcnt lgkmcnt(0)")
    def store_z(n):
        R = ZK + 4 * n; mp, nt = n // 4, n % 4
        a("v_permlane16_swap_b32 v%d, v%d", R, R + 2); a("v_permlane16_swap_b32 v%d, v%d", R + 1, R + 3)
        a("buffer_store_dwordx4 %s, v%d, %s, %s offen offset:%d sc1", v(R, 4), VZ, srdr(R_Z2), "s54" if mp else "0", 1024 * nt)
    def burst_norm():
        for mt in range(4): a("ds_read_b64 %s, v%d offset:%d", pk(T + 2 * mt), VSF, 128 * mt)
        a("s_waitcnt lgkmcnt(0)")
        n = 0
        for mp in range(2):
            for nt in range(4):
                R = ZK + 4 * n; n += 1
                for q in range(2):
                    mt = 2 * mp + q; x = HO + 4 * (mt * 4 + nt)
                    for e in (0, 2): a("v_pk_fma_f32 %s, %s, %s, %s op_sel:[0,0,1] op_sel_hi:[1,0,1]", pk(x + e), pk(x + e), pk(T + 2 * mt), pk(T + 2 * mt))
                for q in range(2):
                    mt = 2 * mp + q; x = HO + 4 * (mt * 4 + nt)
                    for e in (0, 2): a("v_cvt_pk_bf16_f32 v%d, v%d, v%d", R + 2 * q + e // 2, x + e, x + e + 1)
                if n > 1: store_z(n - 2)
        a("s_nop 1")
        store_z(7)
    def burst_p():
        a("s_waitcnt vmcnt(0) lgkmcnt(0)")
        for mt in range(4): a("v_lshlrev_b32 v%d, 16, v%d", T + 2 * mt, BS + mt)
        a("s_nop 3")
        for pr in range(2):
            for mt in range(4):
                R = F[0] + 4 * (pr * 4 + mt)
                os_ = [4 * (mt * 4 + 2 * pr + q) + e for q in range(2) for e in (0, 2)]
                for o in os_: a("v_pk_add_f32 %s, %s, %s op_sel_hi:[1,0]", pk(AC + o), pk(AC + o), pk(T + 2 * mt))
                for o in os_: a("v_pk_mul_f32 %s, %s, %s", pk(AC + o), pk(AC + o), pk(HO + o))
                for n, o in enumerate(os_): a("v_cvt_pk_bf16_f32 v%d, v%d, v%d", R + n, AC + o, AC + o + 1)
                a("buffer_store_dwordx4 %s, v%d, %s, %s offen offset:%d sc1", v(R, 4), VP, srdr(R_P), "s54" if pr else "0", 1024 * mt)
    l_first, l_top, l_mid, l_norm, l_normr, l_sw, l_swr, l_fin, l_z1 = [a.label(n) for n in ("kfirst", "ktop", "kmid", "knorm", "knormr", "ksw", "kswr", "kfin", "kz1")]
    assert ev["norm"] % 4 == 2 and ev["drain"] % 4 == 0
    a("s_waitcnt vmcnt(0)")
    a("s_barrier")
    a.st()
    for l in frag_loads(0, 0, 0): a(l)
    a.put(l_first)
    phase(0, True, frag_loads(0, 1, 1), True)
    a("s_branch %s", l_mid)
    a.put(l_top)
    for slot in range(4):
        extra = []
        if slot == 3: extra = ["s_cmp_eq_u32 s50, 7"]
        phase(0, False, frag_loads(slot, 1, 1) + extra, True)
        if slot == 0: a.put(l_mid)
        a("s_waitcnt vmcnt(0) lgkmcnt(0)" if slot == 0 else "s_waitcnt lgkmcnt(0)")
        a("s_barrier")
        if slot == 3:
            a("s_cbranch_scc1 %s", l_sw); a.put(l_swr)
        if slot in opt.get("stslots", (1, 3)): a.st()
        extra = []
        if slot == 2: extra = ["s_cmp_eq_u32 s50, %d" % (ev["norm"] // 4)]
        if slot == 3: extra = ["s_add_u32 s50, s50, 1", "s_bitcmp1_b32 s51, s50"]
        phase(1, False, frag_loads((slot + 1) & 3, 0, 0) + extra, False)
        if slot == 2:
            a("s_cbranch_scc1 %s", l_norm); a.put(l_normr)
    a("s_cbranch_scc0 %s", l_top)
    a("s_cmp_eq_u32 s50, 16"); a("s_cbranch_scc1 %s", l_fin)
    a("s_cmp_lg_u32 s50, 8"); a("s_cbranch_scc1 %s", l_z1)
    for mt in range(4): a("buffer_load_ushort v%d, v%d, %s, 0 offen offset:%d", BS + mt, VBS, srdr(R_BSP), 32 * mt)
    a.put(l_z1)
    a("s_nop 3")
    gelu()
    a("s_cmp_eq_u32 s50, 8"); a("s_cbranch_scc1 %s", l_first)
    stats_z2()
    a("s_branch %s", l_first)
    a.put(l_sw)
    for nt in range(4):
        for hh in range(2): a("v_add_u32 v%d, %d, v%d", YB + 2 * nt + hh, 1024 * nt, YG + hh)
    a("s_branch %s", l_swr)
    a.put(l_norm)
    burst_norm()
    a("s_branch %s", l_normr)
    a.put(l_fin)
    burst_p()
    if DIAG[0]: a("v_mov_b32 v250, v31"); a.diag = (0, 250)
    a("s_waitcnt vmcnt(0)")
    a("s_barrier")
    a.st()
    a("s_branch %s", c_g3)

    def spare_stream():
        mode = opt.get("spare", 2)
        if mode == 0: return
        nw = {1: 8, 2: 2, 3: 4}[mode]
        sk = a.newlabel("ss")
        a.srd(20, P_WIN, 1024 * 7168); a.srd(24, P_WSP, 8 * MB); a.srd(28, P_WOUT, 1792 * 2048)
        a("s_cmp_ge_u32 s%d, %d", SW, nw); a("s_cbranch_scc1 %s", sk)
        a("s_sub_u32 s3, s%d, 28", SIDX); a("s_lshl_b32 s19, s%d, 2", SX_); a("s_add_u32 s3, s3, s19"); a("s_mul_i32 s3, s3, %d", nw); a("s_add_u32 s48, s3, s%d", SW)
        a("s_lshl_b32 s3, s48, 6"); a("v_add_u32 v2, s3, v1")
        step = 32 * nw * 64
        a("s_mov_b32 s49, 9363")
        def loop(n, body):
            lp = a.newlabel("sl")
            a("v_mov_b32 v3, v2"); a("s_mov_b32 s50, %d", -(-n // step))
            a.put(lp)
            body()
            a("v_add_u32 v3, %d, v3", step)
            if nw < 8: a("s_waitcnt vmcnt(0)")
            a("s_sub_u32 s50, s50, 1"); a("s_cmp_lg_u32 s50, 0"); a("s_cbranch_scc1 %s", lp)
        def b_in():
            a("v_lshrrev_b32 v4, 2, v3"); a("v_mul_u32_u24 v4, s49, v4"); a("v_lshrrev_b32 v4, 16, v4")
            a("v_mul_u32_u24 v5, 28, v4"); a("v_sub_u32 v5, v3, v5")
            a("v_mul_u32_u24 v4, 7168, v4"); a("v_lshl_add_u32 v5, v5, 7, v4")
            a("buffer_load_dword v10, v5, s[20:23], 0 offen")
        def b_sp():
            a("v_and_b32 v4, 2047, v3"); a("v_lshrrev_b32 v5, 11, v3"); a("v_lshlrev_b32 v4, 12, v4"); a("v_lshl_add_u32 v5, v5, 7, v4")
            a("buffer_load_dword v10, v5, s[24:27], 0 offen")
        def b_out():
            a("v_lshlrev_b32 v5, 7, v3")
            a("buffer_load_dword v10, v5, s[28:31], 0 offen")
        loop(28672, b_in); loop(65536, b_sp); loop(28672, b_out)
        a("s_waitcnt vmcnt(0)")
        a.put(sk)
    a.put(c_spare)
    spare_stream()

    a.put(c_g3)
    S3 = 4; NK = 28
    VO, VG, VSR, X1R, GBR = 120, 121, 122, 124, 132
    R_W, R_O, R_P3, R_X1, R_M = 20, 24, 28, 32, 36
    def g3_final_setup():
        a.srd(R_O, P_OUT, 4 * MB); a.srd(R_X1, P_WS, 4 * MB, WS_X1); a.srd(R_M, P_WS, 12288, WS_MOD)
        a("v_lshrrev_b32 v110, 3, v0"); a("v_and_b32 v111, 7, v0")
        a("s_lshl_b32 s3, s%d, 18", SI); a("s_lshl_b32 s19, s%d, 7", SJD); a("s_add_u32 s3, s3, s19")
        a("v_lshlrev_b32 v112, 4, v111"); a("v_lshl_add_u32 v113, v110, 11, v112"); a("v_add_u32 v%d, s3, v113", VO)
        a("s_add_u32 s19, s19, %d", 5 * 2048); a("v_add_u32 v%d, s19, v112", VG)
        a("v_and_b32 v112, 7, v110"); a("v_xor_b32 v112, v112, v111"); a("v_lshlrev_b32 v112, 4, v112"); a("v_lshl_add_u32 v%d, v110, 7, v112", VSR)
        a("s_mov_b32 s9, %d", 64 * 2048)
    def final_loads():
        a("buffer_load_dwordx4 %s, v%d, %s, 0 offen sc1", v(X1R, 4), VO, srdr(R_X1))
        a("buffer_load_dwordx4 %s, v%d, %s, s9 offen sc1", v(X1R + 4, 4), VO, srdr(R_X1))
        a("buffer_load_dwordx4 %s, v%d, %s, 0 offen sc1", v(GBR, 4), VG, srdr(R_M))
    g3_final_setup()
    XA3, YA3, VSW3 = 2, 4, 8
    ACC3 = 16; F3 = [48, 72]
    c, g, r_, cq = 10, 11, 12, 13
    a("v_and_b32 v%d, 15, v1", c); a("v_lshrrev_b32 v%d, 4, v1", g); a("v_bfe_u32 v%d, v1, 2, 2", r_); a("v_and_b32 v%d, 3, v1", cq)
    a("s_lshl_b32 s3, s%d, 11", SW); a("v_lshl_add_u32 v%d, v1, 4, s3", XA3)
    a("v_lshl_add_u32 v14, v%d, 2, v%d", g, r_); a("v_bfe_u32 v15, v14, 1, 2")
    a("v_lshlrev_b32 v14, 7, v14"); a("v_lshl_add_u32 v14, v%d, 3, v14", cq); a("v_add_u32 v14, %d, v14", L_Y3)
    for dt in range(4):
        a("v_xor_b32 v9, %d, v15", dt); a("v_lshl_add_u32 v%d, v9, 5, v14", YA3 + dt)
    a("v_lshrrev_b32 v14, 1, v%d", g); a("v_and_b32 v15, 7, v%d", c); a("v_xor_b32 v14, v14, v15"); a("v_lshlrev_b32 v14, 4, v14")
    a("v_and_b32 v15, 1, v%d", g); a("v_lshl_add_u32 v14, v15, 3, v14"); a("v_lshl_add_u32 v14, v%d, 7, v14", c)
    a("s_lshl_b32 s3, s%d, 12", SW); a("s_add_u32 s3, s3, 65536"); a("v_add_u32 v%d, s3, v14", VSW3)
    def frag3(slot, ks, fs):
        out = []
        def X(tt): out.append("ds_read_b128 %s, v%d offset:%d" % (v(F3[fs] + 4 * tt, 4), XA3, slot * 16384 + ks * 8192 + tt * 1024))
        def Y(dt):
            for hh in range(2):
                out.append("ds_read_b64_tr_b16 %s, v%d offset:%d" % (v(F3[fs] + 8 + 4 * dt + 2 * hh, 2), YA3 + dt, slot * 8192 + (32 * ks + 16 * hh) * 128))
        X(0); Y(0); X(1); Y(1); Y(2); Y(3)
        return out
    def phase3(fs, nxt, waits):
        need = {("x", 0): 0, ("y", 0): 2, ("x", 1): 3, ("y", 1): 5, ("y", 2): 7, ("y", 3): 9}
        done = -1; li = 0; n = 0
        for dt in range(4):
            for tt in ((0, 1) if dt % 2 == 0 else (1, 0)):
                if waits:
                    p = max(need[("x", tt)], need[("y", dt)])
                    if p > done:
                        a("s_waitcnt lgkmcnt(%d)", min(15, 9 - p + li)); done = p
                d = ACC3 + 4 * (tt * 4 + dt)
                a("v_mfma_f32_16x16x32_bf16 %s, %s, %s, %s", v(d, 4), v(F3[fs] + 8 + 4 * dt, 4), v(F3[fs] + 4 * tt, 4), v(d, 4))
                n += 1
                for _ in range(2 if n <= 2 else 1):
                    if li < len(nxt): a(nxt[li]); li += 1
        assert li == len(nxt)
    for r in range(32): a("v_mov_b32 v%d, 0", ACC3 + r)
    a("s_mov_b32 s50, 7")
    a("s_barrier")
    a.st()
    final_loads()
    for l in frag3(0, 0, 0): a(l)
    lab = a.newlabel("cl")
    a.put(lab)
    for slot in range(4):
        phase3(0, frag3(slot, 1, 1), True)
        a("s_waitcnt lgkmcnt(0)")
        a("s_barrier")
        if slot == 3: a.st()
        phase3(1, frag3((slot + 1) & 3, 0, 0), False)
    a("s_sub_u32 s50, s50, 1"); a("s_cmp_lg_u32 s50, 0"); a("s_cbranch_scc1 %s", lab)
    a("s_waitcnt lgkmcnt(0)")
    a("s_nop 7")
    for tt in range(2):
        for dt in range(4):
            d = ACC3 + 4 * (tt * 4 + dt); R = F3[0] + 2 * (tt * 4 + dt)
            a("v_cvt_pk_bf16_f32 v%d, v%d, v%d", R, d, d + 1); a("v_cvt_pk_bf16_f32 v%d, v%d, v%d", R + 1, d + 2, d + 3)
    for dt in range(4):
        if dt: a("v_xor_b32 v9, %d, v%d", 32 * dt, VSW3)
        for tt in range(2):
            a("ds_write_b64 v%d, %s offset:%d", 9 if dt else VSW3, pk(F3[0] + 2 * (tt * 4 + dt)), 2048 * tt)
    fin = a.label("fin")
    a("s_branch %s", fin)

    a.put(prod)
    PV = 48
    a("s_sub_u32 s%d, s%d, 4", PV, SW)
    a.srd(20, P_SSMK, 4 * MB); a.srd(24, P_Q, 4 * MB); a.srd(28, P_C, 2048); a.srd(32, P_WMOD, 12 * MB)
    a.srd(36, P_WS, 16 * 24576, WS_MODP); a.srd(40, P_WS, 12288, WS_MOD)
    RKr, ZR, SH = 64, 88, 92
    a("s_mul_i32 s49, s%d, %d", PV, CV_W)
    a("s_lshl_b32 s50, s%d, 7", SX_); a("s_lshl_b32 s3, s%d, 2", SIDX); a("s_add_u32 s50, s50, s3"); a("s_add_u32 s50, s50, s%d", PV); a("s_lshl_b32 s50, s50, 12")
    a("v_lshlrev_b32 v3, 4, v1")
    a("v_add_u32 v6, s49, v3")
    for r in range(4): a("v_mov_b32 v%d, 0", ZR + r)
    a("s_mov_b32 exec_hi, 0")
    a("ds_write_b128 v6, v[%d:%d] offset:%d", ZR, ZR + 3, CV_UR + 4096)
    a("s_mov_b64 exec, 3")
    a("ds_write_b128 v6, v[%d:%d] offset:%d", ZR, ZR + 3, CV_C0)
    a("s_mov_b64 exec, 1")
    a("ds_write_b128 v6, v[%d:%d] offset:%d", ZR, ZR + 3, CV_C1)
    a("v_mov_b32 v7, %d", L_CNT)
    a("ds_write_b128 v7, v[%d:%d]", ZR, ZR + 3)
    a("ds_write_b128 v7, v[%d:%d] offset:16", ZR, ZR + 3)
    a("v_mov_b32 v7, %d", L_CD)
    a("ds_write_b32 v7, v%d", ZR)
    a("s_mov_b64 exec, -1")
    SG_R, SG_C = 51, 52
    a("s_lshr_b32 s%d, s%d, 1", SG_R, SIDX); a("s_lshl_b32 s%d, s%d, 1", SG_C, SX_); a("s_and_b32 s3, s%d, 1", SIDX); a("s_add_u32 s%d, s%d, s3", SG_C, SG_C)
    a("s_lshl_b32 s4, s%d, 6", SG_R); a("s_lshl_b32 s3, s%d, 4", PV); a("s_add_u32 s4, s4, s3")
    a("v_lshrrev_b32 v4, 4, v1"); a("v_lshlrev_b32 v4, 4, v4"); a("s_lshl_b32 s3, s%d, 7", SG_R); a("v_add_u32 v4, s3, v4")
    a("s_mul_i32 s5, s4, 12288"); a("s_mul_i32 s3, s%d, 768", SG_C); a("s_add_u32 s5, s5, s3")
    a("s_waitcnt lgkmcnt(0)")
    a("s_barrier")
    CR, SLT, SPK, AM, WMV, WMR, YF, GAC = 108, 116, 148, 156, 204, 210, 64, 112
    a("s_and_b32 s3, s2, 14"); a("s_cmp_eq_u32 s3, 14"); a("s_cselect_b32 s3, 0, -1")
    a("v_mov_b32 v60, s3"); a("s_lshl_b32 s3, s2, 10"); a("s_sub_u32 s3, s3, 1024"); a("v_lshl_add_u32 v61, v0, 2, s3")
    a("buffer_store_dword v60, v61, %s, 0 offen sc1", srdr(R_SY))
    a("v_mov_b32 v62, -1"); a("v_mov_b32 v63, -1")
    a("s_mul_i32 s3, s%d, 24576", SG_R); a("s_mul_i32 s19, s%d, 1536", SG_C); a("s_add_u32 s60, s3, s19")
    ns = a.newlabel("ns"); ns2 = a.newlabel("ns")
    a("s_cmp_eq_u32 s%d, 3", PV); a("s_cbranch_scc1 %s", ns)
    a("s_lshl_b32 s3, s%d, 9", PV); a("v_lshl_add_u32 v5, v1, 3, s3")
    a("buffer_store_dwordx2 v[62:63], v5, s[36:39], s60 offen sc1")
    a("s_branch %s", ns2)
    a.put(ns)
    a("s_mul_i32 s3, s%d, 1536", SX_); a("s_lshl_b32 s19, s%d, 6", SIDX); a("s_add_u32 s3, s3, s19")
    a("s_cmp_ge_u32 s%d, 24", SIDX); a("s_cselect_b32 s3, 0x10000, s3")
    a("v_lshlrev_b32 v5, 2, v1")
    a("s_mov_b64 exec, 0xffff")
    a("buffer_store_dword v62, v5, s[40:43], s3 offen sc1")
    a("s_mov_b64 exec, -1")
    a.put(ns2)
    for m in range(4):
        a("s_add_u32 s3, s50, %d", 1024 * m)
        a("buffer_load_dwordx4 v[%d:%d], v3, s[20:23], s3 offen", RKr + 6 * m, RKr + 6 * m + 3)
        a("buffer_load_dword v%d, v3, s[20:23], s3 offen offset:16", RKr + 6 * m + 4)
    for ks in range(2): a("buffer_load_dwordx4 %s, v4, s[28:31], 0 offen offset:%d", v(CR + 4 * ks, 4), 64 * ks)
    if opt.get("codepf", 1):
        ncp = a.newlabel("ncp")
        a("s_cmp_lg_u32 s%d, 7", SW); a("s_cbranch_scc1 %s", ncp)
        a("s_cmp_ge_u32 s%d, 4", SIDX); a("s_cbranch_scc1 %s", ncp)
        a("s_lshl_b32 s3, s%d, 13", SIDX); a("v_lshl_add_u32 v60, v1, 7, s3")
        a("v_min_u32 v60, %s-%s-4, v60", end, a.label("pc0"))
        a("v_mov_b32 v61, s97"); a("v_add_co_u32 v60, vcc, s96, v60"); a("s_nop 1"); a("v_addc_co_u32 v61, vcc, 0, v61, vcc")
        a("global_load_dword v216, v[60:61], off")
        a("s_nop 0")
        a.put(ncp)
    if opt.get("tlb", 0):
        ntl = a.newlabel("ntl")
        a("s_cmp_lg_u32 s%d, 5", SW); a("s_cbranch_scc1 %s", ntl)
        a("v_lshlrev_b32 v60, %d, v1", opt["tlb"]); a("v_add_u32 v60, 0x3f80, v60")
        for ptr, nb, off in ((P_WS, 36 * MB, WS_UR), (P_WIN, 7 * MB, 0), (P_WSP, 8 * MB, 0), (P_WOUT, 1792 * 2048, 0), (P_OUT, 4 * MB, 0), (P_Q, 4 * MB, 0), (P_WMOD, 12 * MB, 0), (P_BSP, 4096, 0)):
            a("s_mov_b32 s61, s5") if False else None
            a.srd(56, ptr, nb, off)
            for r in range(max(1, (nb >> opt["tlb"]) // 64)):
                a("s_mov_b32 s3, %d", r << (opt["tlb"] + 6))
                a("buffer_load_dword v217, v60, s[56:59], s3 offen")
        a.put(ntl)
    a("s_waitcnt vmcnt(%d)", 12)
    get_tag()
    a("s_mov_b32 s3, 1366")
    for mm in range(3):
        a("v_add_u32 v60, %d, v1", 64 * mm); a("v_mul_u32_u24 v61, s3, v60"); a("v_lshrrev_b32 v61, 16, v61")
        a("v_mul_u32_u24 v62, 48, v61"); a("v_sub_u32 v60, v60, v62")
        a("v_lshlrev_b32 v62, 1, v61"); a("v_xor_b32 v60, v60, v62"); a("v_lshlrev_b32 v60, 4, v60")
        a("v_mul_u32_u24 v61, 12288, v61"); a("v_add_u32 v%d, v60, v61", WMV + mm)
        a("v_xor_b32 v60, 128, v60"); a("v_add_u32 v%d, v60, v61", WMV + 3 + mm)
    a("v_lshrrev_b32 v60, 4, v1"); a("v_bfe_u32 v61, v1, 2, 2"); a("v_lshl_add_u32 v62, v60, 3, v61"); a("v_mul_u32_u24 v62, 768, v62")
    a("v_and_b32 v63, 3, v1"); a("v_lshl_add_u32 v62, v63, 3, v62"); a("v_add_u32 v62, %d, v62", L_WM)
    a("v_and_b32 v60, 1, v60"); a("v_lshl_add_u32 v61, v60, 2, v61")
    a("s_mul_i32 s3, s%d, 6", PV)
    for nt in range(6):
        a("v_xor_b32 v60, s3, v61"); a("v_lshl_add_u32 v%d, v60, 5, v62", WMR + nt)
        if nt < 5: a("s_add_u32 s3, s3, 1")
    WPOS, QPOS, TPOS = opt.get("wmpos", "ur"), opt.get("qpos", "ur"), opt.get("tpos", "ur")
    vq = []
    def place(pos):
        if WPOS == pos: do_wm(); vq.extend(["w"] * 12)
        if QPOS == pos: do_q(); vq.extend(["q"] * 4)
        if TPOS == pos: do_t(); vq.append("t")
    def younger(kind): return len(vq) - 1 - max(n for n, k in enumerate(vq) if k == kind)
    def do_wm():
        a("s_mul_i32 s4, s%d, %d", PV, 16 * 768); a("s_add_u32 s4, s4, %d", L_WM)
        for m in range(12):
            a("s_add_u32 m0, s4, %d", 1024 * m)
            if m and m % 3 == 0: a("s_add_u32 s5, s5, %d", 4 * 12288)
            else: a("s_nop 0")
            a("buffer_load_dwordx4 v%d, s[32:35], s5 offen lds", WMV + 3 * (m // 6) + m % 3)
    def do_q():
        a("s_lshl_b32 s6, s2, 14"); a("s_lshl_b32 s3, s%d, 12", PV); a("s_add_u32 s6, s6, s3")
        a("s_mul_i32 s7, s%d, %d", PV, 2 * QROW); a("s_add_u32 s7, s7, %d", L_QT)
        for u in range(4):
            a("s_add_u32 m0, s7, %d", (u >> 1) * QROW + (u & 1) * 1024)
            a("s_add_u32 s3, s6, %d", 1024 * u)
            a("buffer_load_dwordx4 v3, s[24:27], s3 offen lds")
    def do_t():
        a.srd(20, P_WIN, 1024 * 7168)
        a("s_lshl_b32 s3, s2, 2"); a("s_add_u32 s3, s3, s%d", PV); a("s_mul_i32 s3, s3, 7168"); a("s_add_u32 s3, s3, 3584")
        a("v_lshlrev_b32 v60, 7, v1")
        a("s_mov_b32 exec_lo, 0x%x", 0xfffffff if opt.get("winpf", 1) == 1 else 1); a("s_mov_b32 exec_hi, 0")
        a("buffer_load_dword v216, v60, s[20:23], s3 offen")
        a("s_mov_b64 exec, -1")
    place("b0")
    nb0 = len(vq)
    XZ, XG, YZp, YGp, VPUB, VLD, VPOLL, VFIN, VFP, VTG, VZR = 8, 12, 16, 20, 24, 25, 26, 27, 28, 29, 30
    VYD, XP, YP, VF16, VFD = 50, 52, 56, 58, 59
    SLX, SLY, SXo, SYo = 49, 50, 53, 54
    a("s_lshl_b32 s%d, s%d, 10", SLX, PV)
    a("s_lshl_b32 s%d, s%d, 12", SLY, PV); a("s_add_u32 s%d, s%d, %d", SLY, SLY, L_Y)
    a("v_lshrrev_b32 v60, 4, v1"); a("s_and_b32 s3, s%d, 1", PV); a("s_lshl_b32 s3, s3, 2"); a("v_add_u32 v60, s3, v60")
    a("v_and_b32 v61, 7, v1"); a("v_xor_b32 v60, v60, v61"); a("v_lshlrev_b32 v60, 4, v60")
    a("v_lshrrev_b32 v61, 3, v1"); a("s_lshl_b32 s3, s%d, 7", SI); a("s_lshl_b32 s19, s%d, 3", PV); a("s_add_u32 s3, s3, s19"); a("v_add_u32 v61, s3, v61")
    a("v_lshl_add_u32 v%d, v61, 11, v60", XZ); a("v_lshl_add_u32 v%d, v61, 12, v60", XG)
    for u in range(1, 4):
        a("v_add_u32 v%d, %d, v%d", XZ + u, u * 32 * 2048, XZ); a("v_add_u32 v%d, %d, v%d", XG + u, u * 32 * 4096, XG)
    a("v_lshrrev_b32 v60, 4, v1"); a("v_bfe_u32 v61, v1, 1, 3"); a("v_xor_b32 v61, v61, v60"); a("v_lshlrev_b32 v61, 5, v61")
    a("v_and_b32 v62, 1, v1"); a("v_lshl_add_u32 v61, v62, 4, v61")
    a("s_lshl_b32 s3, s%d, 4", PV); a("v_add_u32 v60, s3, v60"); a("v_mul_u32_u24 v60, 7168, v60")
    a("s_lshl_b32 s3, s%d, 8", SJ); a("v_add_u32 v60, s3, v60")
    for u in range(4):
        if u == 2: a("v_xor_b32 v61, 128, v61")
        if u: a("v_add_u32 v62, %d, v60", u * 4 * 7168)
        a("v_add_u32 v%d, v61, v%d", YZp + u, 62 if u else 60)
    a("s_lshl_b32 s3, s%d, 19", SJ); a("s_lshl_b32 s19, s%d, 12", PV); a("s_add_u32 s3, s3, s19")
    a("v_lshl_add_u32 v%d, v1, 4, s3", YGp)
    for u in range(1, 4): a("v_add_u32 v%d, %d, v%d", YGp + u, 1024 * u, YGp)
    a("s_lshl_b32 s3, s%d, 4", SI); a("s_add_u32 s3, s3, s%d", SJ); a("s_lshl_b32 s3, s3, 10"); a("v_lshl_add_u32 v%d, v1, 4, s3", VPUB)
    a("v_add_u32 v%d, %d, v3", VLD, L_ST)
    a("v_lshrrev_b32 v60, 4, v1"); a("v_and_b32 v61, 15, v1"); a("v_lshlrev_b32 v60, 10, v60"); a("v_lshl_add_u32 v60, v61, 4, v60")
    a("s_lshl_b32 s3, s%d, 14", SI); a("s_lshl_b32 s19, s%d, 8", PV); a("s_add_u32 s3, s3, s19"); a("v_add_u32 v%d, s3, v60", VPOLL)
    a("v_lshrrev_b32 v60, 5, v1"); a("v_lshl_add_u32 v60, v61, 1, v60"); a("s_add_u32 s3, s19, %d", L_FIN); a("v_lshl_add_u32 v%d, v60, 3, s3", VFIN)
    a("s_lshl_b32 s3, s%d, 7", SJ); a("s_add_u32 s3, s3, %d", FZ); a("v_lshl_add_u32 v%d, v61, 2, s3", VFP)
    a("s_lshl_b32 s19, s%d, 2", SI); a("s_add_u32 s55, s3, s19")
    a("s_lshl_b32 s3, s%d, 12", SI); a("s_lshl_b32 s19, s%d, 7", SJ); a("s_add_u32 s56, s3, s19"); a("s_add_u32 s56, s56, %d", FD1)
    a("s_and_b32 s19, s%d, 1", SX_); a("s_lshl_b32 s19, s19, 11"); a("s_add_u32 s8, s3, s19")
    a("v_lshlrev_b32 v%d, 7, v61", VF16)
    a("v_mov_b32 v%d, s%d", VTG, TAG); a("v_mov_b32 v%d, 0", VZR)
    for u in range(1, 4): a("s_mov_b32 s%d, %d", 56 + u, 4096 * u)
    a("v_lshrrev_b32 v60, 4, v1"); a("v_and_b32 v61, 7, v1"); a("v_xor_b32 v60, v60, v61"); a("v_and_b32 v61, 56, v1"); a("v_or_b32 v60, v60, v61")
    a("v_lshlrev_b32 v%d, 4, v60", VYD); a("v_xor_b32 v%d, 64, v%d", VYD + 1, VYD)
    a("s_mul_i32 s3, s%d, 458752", SI); a("s_lshl_b32 s19, s%d, 12", PV); a("s_add_u32 s3, s3, s19"); a("v_lshl_add_u32 v%d, v1, 4, s3", XP)
    for u in range(1, 4): a("v_add_u32 v%d, %d, v%d", XP + u, 1024 * u, XP)
    a("v_lshrrev_b32 v60, 4, v1"); a("v_lshlrev_b32 v60, 1, v60"); a("v_and_b32 v61, 7, v1"); a("v_xor_b32 v60, v60, v61"); a("v_lshlrev_b32 v60, 4, v60")
    a("v_lshrrev_b32 v61, 3, v1"); a("v_lshl_add_u32 v60, v61, 11, v60")
    a("s_lshl_b32 s3, s%d, 15", PV); a("s_lshl_b32 s19, s%d, 7", SJD); a("s_add_u32 s3, s3, s19"); a("v_add_u32 v%d, s3, v60", YP)
    a("v_add_u32 v%d, %d, v%d", YP + 1, 8 * 2048, YP)
    a("s_barrier")
    place("b1")
    a("s_waitcnt vmcnt(%d)", 10 + len(vq))
    a("s_barrier")
    place("b2")
    for m in range(4):
        a("s_waitcnt vmcnt(%d)", 2 + 2 * (3 - m) + len(vq))
        r = RKr + 6 * m
        a("ds_write_b128 v6, v[%d:%d] offset:%d", r, r + 3, CV_C0 + 32 + 1024 * m)
        for j in range(4): a("v_alignbit_b32 v%d, v%d, v%d, 16", SH + 4 * m + j, r + j + 1, r + j)
        a("ds_write_b128 v6, v[%d:%d] offset:%d", SH + 4 * m, SH + 4 * m + 3, CV_C1 + 32 + 1024 * m)
        if m == 0:
            a("v_lshlrev_b32 v%d, 16, v%d", ZR + 3, r)
            a("s_mov_b64 exec, 1")
            a("ds_write_b128 v6, v[%d:%d] offset:%d", ZR, ZR + 3, CV_C1 + 16)
            a("s_mov_b64 exec, -1")
    a("s_waitcnt lgkmcnt(0)")
    lds_inc(a, 6, 62, 63)
    a("s_waitcnt vmcnt(%d)", len(vq))
    for d in range(8): unpack(a, SLT + 2 * d, SLT + 2 * d + 1, CR + d)
    a("s_mov_b32 s4, %s", fhex(-LOG2E))
    for e in range(16): a("v_mul_f32 v%d, s4, v%d", SLT + 16 + e, SLT + e)
    for e in range(16): a("v_exp_f32 v%d, v%d", SLT + 16 + e, SLT + 16 + e)
    for e in range(16): a("v_add_f32 v%d, 1.0, v%d", SLT + 16 + e, SLT + 16 + e)
    for e in range(16): a("v_rcp_f32 v%d, v%d", SLT + 16 + e, SLT + 16 + e)
    for e in range(16): a("v_mul_f32 v%d, v%d, v%d", SLT + e, SLT + e, SLT + 16 + e)
    for d in range(8): a("v_cvt_pk_bf16_f32 v%d, v%d, v%d", SPK + d, SLT + 2 * d, SLT + 2 * d + 1)
    a("v_and_b32 v60, 15, v1")
    for nt in range(6):
        a("v_cmp_eq_u32 vcc, %d, v60", 4 * (nt & 3) + (nt >> 2)); a("s_nop 1")
        for d in range(8): a("v_cndmask_b32 v%d, 0, v%d, vcc", AM + 8 * nt + d, SPK + d)
    lds_wait(a, 7, 4, 62, 63, 2)
    for pos in ("ur",): place(pos)
    a.st()
    a("s_waitcnt vmcnt(%d)", younger("w"))
    if opt.get("gprio", 1): a("s_setprio 3")
    lds_sync(a, 0, 62, 2)
    for nt in range(6):
        for ks in range(2):
            for hh in range(2): a("ds_read_b64_tr_b16 %s, v%d offset:%d", v(YF + 8 * nt + 4 * ks + 2 * hh, 2), WMR + nt, (32 * ks + 4 * hh) * 768)
    a("s_mul_i32 s3, s%d, 384", PV); a("s_add_u32 s3, s3, s60")
    a("v_lshlrev_b32 v60, 2, v1")
    for n in range(12):
        if n % 2 == 0: a("s_waitcnt lgkmcnt(%d)", min(15, 20 - 2 * n))
        a("v_mfma_f32_16x16x32_bf16 %s, %s, %s, %s", v(GAC, 4), v(AM + 4 * n, 4), v(YF + 4 * n, 4), v(GAC, 4) if n else "0")
    a("s_nop 7")
    a("buffer_store_dword v%d, v60, s[36:39], s3 offen sc1", GAC)
    a("s_mov_b32 exec_hi, 0")
    a("buffer_store_dword v%d, v60, s[36:39], s3 offen offset:256 sc1", GAC + 1)
    a("s_mov_b64 exec, -1")
    a.st()
    finz = a.label("finz"); pb5 = a.label("pb5")
    a("s_cmp_lg_u32 s%d, 3", PV); a("s_cbranch_scc1 %s", pb5)
    a("s_cmp_ge_u32 s%d, 24", SIDX); a("s_cbranch_scc1 %s", pb5)
    a("v_lshlrev_b32 v60, 2, v1")
    a("s_mul_i32 s4, s%d, 768", SX_); a("s_lshl_b32 s3, s%d, 5", SIDX); a("s_add_u32 s4, s4, s3")
    a("s_lshr_b32 s3, s4, 10"); a("s_cmp_eq_u32 s3, 1"); a("s_cselect_b32 s61, 1.0, 0"); a("s_cmp_eq_u32 s3, 4"); a("s_cselect_b32 s61, 1.0, s61")
    a("s_lshl_b32 s5, s4, 2"); a("s_lshl_b32 s4, s4, 1")
    a("v_lshlrev_b32 v63, 3, v1")
    a("s_mov_b64 exec, 0xffff")
    gl = a.newlabel("gl"); go = a.newlabel("go")
    a("s_mov_b32 s11, 0")
    a.put(gl)
    a("s_mov_b32 s6, s5")
    for p in range(16):
        a("buffer_load_dwordx2 %s, v63, s[36:39], s6 offen sc1", pk(64 + 2 * p))
        if p < 15: a("s_add_u32 s6, s6, 24576")
    a("s_add_u32 s11, s11, 1")
    a("s_cmp_gt_u32 s11, %d", SPIN_MAX); a("s_cbranch_scc1 %s", go)
    a("s_waitcnt vmcnt(0)")
    a("v_max3_u32 v61, v64, v66, v68")
    for p in range(3, 15, 2): a("v_max3_u32 v61, v61, v%d, v%d", 64 + 2 * p, 66 + 2 * p)
    a("v_max_u32 v61, v61, v94")
    a("v_cmp_eq_u32 vcc, -1, v61"); a("s_sleep 2"); a("s_cbranch_vccnz %s", gl)
    a.put(go)
    for w in (8, 4, 2, 1):
        for p in range(w): a("v_pk_add_f32 %s, %s, %s", pk(64 + 2 * p), pk(64 + 2 * p), pk(64 + 2 * (p + w)))
    a("v_cvt_pk_bf16_f32 v66, v64, v65"); unpack(a, 64, 65, 66)
    a("v_add_f32 v64, s61, v64"); a("v_add_f32 v65, s61, v65"); a("v_cvt_pk_bf16_f32 v64, v64, v65")
    a("buffer_store_dword v64, v60, s[40:43], s4 offen sc1")
    a("s_mov_b64 exec, -1")
    a.put(pb5)
    if opt.get("gprio", 1) == 1: a("s_setprio 0")
    a("s_waitcnt vmcnt(%d)", younger("q") + 2)
    a("v_add_u32 v7, s7, v3")
    for u in range(4): a("ds_read_b128 v[%d:%d], v7 offset:%d", 144 + 4 * u, 147 + 4 * u, (u >> 1) * QROW + (u & 1) * 1024)
    a("s_waitcnt lgkmcnt(0)")
    for rr in range(2):
        X = 160 + 16 * rr
        for d in range(8): unpack(a, X + 2 * d, X + 2 * d + 1, 144 + 8 * rr + d)
        a("v_pk_add_f32 v[192:193], %s, %s", pk(X), pk(X + 2)); a("v_pk_mul_f32 v[194:195], %s, %s", pk(X), pk(X))
        for e in range(2, 16, 2): a("v_pk_fma_f32 v[194:195], %s, %s, v[194:195]", pk(X + e), pk(X + e))
        for e in range(4, 16, 2): a("v_pk_add_f32 v[192:193], v[192:193], %s", pk(X + e))
        a("v_add_f32 v%d, v192, v193", 196 + rr); a("v_add_f32 v%d, v194, v195", 198 + rr)
    a("s_nop 1")
    a("v_permlane32_swap_b32 v196, v197"); a("v_permlane32_swap_b32 v198, v199")
    a("v_add_f32 v196, v196, v197"); a("v_add_f32 v198, v198, v199")
    a("v_mov_b32 v197, v196"); a("v_mov_b32 v199, v198")
    a("s_nop 1")
    a("v_permlane16_swap_b32 v197, v196"); a("v_permlane16_swap_b32 v199, v198")
    a("v_add_f32 v196, v196, v197"); a("v_add_f32 v198, v198, v199")
    for dpp in ("row_ror:8", "row_ror:4", "quad_perm:[1,0,3,2]", "quad_perm:[2,3,0,1]"):
        a("s_nop 0")
        a("v_add_f32_dpp v196, v196, v196 %s row_mask:0xf bank_mask:0xf", dpp); a("v_add_f32_dpp v198, v198, v198 %s row_mask:0xf bank_mask:0xf", dpp)
    rstd_calc(a, 196, 198, 197, 192, 1.0 / 1024)
    a("v_lshrrev_b32 v7, 5, v1"); a("v_lshlrev_b32 v7, 3, v7"); a("s_lshl_b32 s3, s%d, 4", PV); a("s_add_u32 s3, s3, %d", L_L1S); a("v_add_u32 v7, s3, v7")
    a("ds_write_b64 v7, v[192:193]")
    a("s_waitcnt lgkmcnt(0)")
    lds_inc(a, 1, 62, 63)
    a("s_setprio 0")
    R_X, R_Y, R_WSP, R_Z2p, R_YB = 20, 24, 28, 32, 36
    a.srd(R_X, P_WS, 4 * MB, WS_H2); a.srd(R_Y, P_WIN, 1024 * 7168); a.srd(R_WSP, P_WSP, 8 * MB); a.srd(R_Z2p, P_WS, 14 * 524288, WS_Z2)
    a.srd(R_YB, P_WS, 4 * MB, WS_YB)
    a("s_lshl_b32 s4, s%d, 12", PV); a("s_lshl_b32 s5, s2, 14"); a("s_add_u32 s5, s5, s4")
    SYS, SK = 6, 63
    a("s_mov_b32 s%d, 0", SXo); a("s_mov_b32 s%d, 3584", SYo); a("s_mov_b32 s%d, %d", SYS, 64 * 7168)
    a.st()
    a("s_barrier")
    for u in range(4):
        a("s_add_u32 m0, s4, %d", 1024 * u); a("s_add_u32 s3, s5, %d", 1024 * u)
        a("buffer_load_dwordx4 v%d, %s, s3 offen sc1 lds", VYD + (u & 1), srdr(R_YB))
    def issue(slot, which="xy"):
        for u in range(4):
            if "x" in which:
                a("s_add_u32 m0, s%d, %d", SLX, slot * 16384 + u * 4096); a("s_nop 0")
                a("buffer_load_dwordx4 v%d, %s, s%d offen sc1 lds", XZ + u, srdr(R_X), SXo)
            if "y" in which:
                a("s_add_u32 m0, s%d, %d", SLY, slot * 16384 + u * 1024); a("s_nop 0")
                a("buffer_load_dwordx4 v%d, %s, s%d offen sc1 lds", YZp + u, srdr(R_Y), SYo)
        if "x" in which: a("s_add_u32 s%d, s%d, 128", SXo, SXo)
        if "y" in which: a("s_add_u32 s%d, s%d, s%d", SYo, SYo, SYS)
    p_spare = a.label("pspare"); p_g3 = a.label("pg3"); ny = a.label("ny")
    a("v_mov_b32 v62, %d", L_CD)
    a("ds_write_b32 v62, v%d", VZR)
    a("s_waitcnt vmcnt(0) lgkmcnt(0)")
    a("s_barrier")
    if opt.get("winpf", 1) == 2:
        a("s_lshl_b32 s3, s2, 2"); a("s_add_u32 s3, s3, s%d", PV); a("s_mul_i32 s3, s3, 7168"); a("s_add_u32 s3, s3, 3584")
        a("v_lshlrev_b32 v60, 7, v1")
        a("s_mov_b32 exec_lo, 0xfffffff"); a("s_mov_b32 exec_hi, 0")
        a("buffer_load_dword v216, v60, %s, s3 offen", srdr(R_Y))
        a("s_mov_b64 exec, -1")
    a("s_barrier")
    a("s_barrier")
    a("s_cmp_ge_u32 s%d, 28", SIDX); a("s_cbranch_scc1 %s", p_spare)
    for s in range(2): issue(s, "y")
    a("s_add_u32 s4, s8, %d", FC1)
    lead_poll(a, PV, 4, 62, lambda: poll(a, VF16, 60, TAG, "s4", n=16))
    a.st()
    issue(0, "x"); issue(1, "x"); issue(2); issue(3)
    PS = 32
    def poll_loads():
        for u in range(4): a("buffer_load_dwordx4 %s, v%d, %s, %s offen sc1", v(PS + 4 * u, 4), VPOLL, srdr(R_SY), "s%d" % (56 + u) if u else "0")
    def poll_check(out):
        a("v_max3_u32 v60, v%d, v%d, v%d", PS + 1, PS + 3, PS + 5); a("v_max3_u32 v60, v60, v%d, v%d", PS + 7, PS + 9)
        a("v_max3_u32 v60, v60, v%d, v%d", PS + 11, PS + 13); a("v_max_u32 v60, v60, v%d", PS + 15)
        a("v_cmp_eq_u32 vcc, -1, v60"); a("s_nop 4")
        a("s_cbranch_vccz %s", out)
    def spin(loads, check):
        ok = a.newlabel("ok"); again = a.newlabel("sp")
        check(ok)
        a("s_mov_b32 s62, 0")
        a.put(again)
        loads()
        a("s_add_u32 s62, s62, 1")
        a("s_cmp_gt_u32 s62, %d", SPIN_MAX); a("s_cbranch_scc1 %s", ok)
        a("s_waitcnt vmcnt(0)")
        check(ok)
        a("s_branch %s", again)
        a.put(ok)
    def fpoll_load(): a("buffer_load_dword v48, v%d, %s, 0 offen sc1", VFP, srdr(R_SY))
    def fpoll_check(out):
        a("v_cmp_ne_u32 vcc, s%d, v48", TAG); a("s_nop 4"); a("s_cbranch_vccz %s", out)
    SLX3, SLY3, SX3, SY3 = 49, 50, 53, 54
    def issue3(slot, which="xy"):
        for u in range(4):
            if "x" in which:
                a("s_add_u32 m0, s%d, %d", SLX3, slot * 16384 + u * 1024); a("s_nop 0")
                a("buffer_load_dwordx4 v%d, %s, s%d offen sc1 lds", XP + u, srdr(R_P3), SX3)
            if u < 2 and "y" in which:
                a("s_add_u32 m0, s%d, %d", SLY3, slot * 8192 + u * 1024); a("s_nop 0")
                a("buffer_load_dwordx4 v%d, %s, s%d offen lds", YP + u, srdr(R_W), SY3)
        if "x" in which:
            a("s_add_u32 s%d, s%d, 16384", SX3, SX3); a("s_cmp_eq_u32 s%d, %d", SX3, 28 * 16384); a("s_cselect_b32 s%d, 0, s%d", SX3, SX3)
        if "y" in which:
            a("s_add_u32 s%d, s%d, %d", SY3, SY3, 64 * 2048); a("s_cmp_eq_u32 s%d, %d", SY3, 28 * 64 * 2048); a("s_cselect_b32 s%d, 0, s%d", SY3, SY3)
    def g3_pre():
        a.srd(R_W, P_WOUT, 1792 * 2048); a.srd(R_P3, P_WS, 16 * 458752, WS_P)
        a("s_lshl_b32 s%d, s%d, 12", SLX3, PV)
        a("s_lshl_b32 s%d, s%d, 11", SLY3, PV); a("s_add_u32 s%d, s%d, %d", SLY3, SLY3, L_Y3)
        a("s_add_u32 s3, s%d, s%d", SI, SJD); a("s_and_b32 s3, s3, %d", opt.get("rot3", 1) - 1); a("s_mul_i32 s3, s3, %d", 28 // opt.get("rot3", 1))
        a("s_lshl_b32 s%d, s3, 14", SX3); a("s_lshl_b32 s%d, s3, 17", SY3)
        for s in range(2): issue3(s, "y")
    def ev_pub():
        sk = a.newlabel("np")
        a("s_cmp_lg_u32 s%d, 0", PV); a("s_cbranch_scc1 %s", sk)
        a("ds_read_b128 v[32:35], v%d", VLD); a("ds_read_b128 v[36:39], v%d offset:1024", VLD)
        a("s_waitcnt lgkmcnt(0)")
        a("v_pk_add_f32 v[32:33], v[32:33], v[36:37]"); a("v_pk_add_f32 v[34:35], v[34:35], v[38:39]")
        a("buffer_store_dwordx4 v[32:35], v%d, %s, 0 offen sc1", VPUB, srdr(R_SY))
        a.put(sk)
    def ev_chk():
        a("s_waitcnt vmcnt(%d)", 8 * (ev["chk"] - ev["poll"]))
        spin(poll_loads, poll_check)
        for (d, s) in ((0, 4), (8, 12), (0, 8)):
            for e in (0, 2): a("v_pk_add_f32 %s, %s, %s", pk(PS + d + e), pk(PS + d + e), pk(PS + s + e))
        a("s_nop 1")
        a("v_permlane32_swap_b32 v%d, v%d", PS, PS + 2); a("v_permlane32_swap_b32 v%d, v%d", PS + 1, PS + 3)
        a("v_add_f32 v%d, v%d, v%d", PS, PS, PS + 2); a("v_add_f32 v%d, v%d, v%d", PS + 1, PS + 1, PS + 3)
        a("v_mov_b32 v%d, v%d", PS + 2, PS); a("v_mov_b32 v%d, v%d", PS + 3, PS + 1)
        a("s_nop 1")
        a("v_permlane16_swap_b32 v%d, v%d", PS + 2, PS); a("v_permlane16_swap_b32 v%d, v%d", PS + 3, PS + 1)
        a("v_add_f32 v%d, v%d, v%d", PS, PS, PS + 2); a("v_add_f32 v%d, v%d, v%d", PS + 1, PS + 1, PS + 3)
        rstd_calc(a, PS, PS + 1, PS + 2, PS + 2, 1.0 / 1792)
        a("ds_write_b64 v%d, %s", VFIN, pk(PS + 2))
        a("s_waitcnt lgkmcnt(0)")
    def ev_flag():
        sk = a.newlabel("nf")
        a("s_cmp_lg_u32 s%d, 0", PV); a("s_cbranch_scc1 %s", sk)
        flag_store(a, VTG, VZR, "s55")
        a.put(sk)
    def ev_z1():
        a("s_mov_b32 s%d, 0", SXo); a("s_mov_b32 s%d, 0", SYo)
    def ev_g():
        a("s_waitcnt vmcnt(%d)", 8 * (ev["fchk"] - ev["fpoll"]))
        spin(fpoll_load, fpoll_check)
        a("s_mov_b32 s%d, 0", SXo); a("s_mov_b32 s%d, 0", SYo); a("s_mov_b32 s%d, 16384", SYS)
        a.srd(R_X, P_WSP, 8 * MB); a.srd(R_Y, P_WS, 14 * 524288, WS_Z2)
        for u in range(4):
            a("v_mov_b32 v%d, v%d", XZ + u, XG + u); a("v_mov_b32 v%d, v%d", YZp + u, YGp + u)
    assert ev["fchk"] == 28
    events = {12: ev_z1, ev["pub"]: ev_pub, ev["poll"]: poll_loads, ev["chk"]: ev_chk, ev["drain"]: ev_flag, ev["fpoll"]: fpoll_load, 28: ev_g}
    a("s_mov_b32 s%d, 0", SK); a("s_mov_b32 s7, %d", sum(1 << k for k in events))
    a("s_waitcnt vmcnt(20)")
    a("s_barrier")
    ptop = a.label("ptop"); ptail = a.label("ptail")
    evl = [a.label("pe%d" % n) for n in range(4)]; evr = [a.label("pr%d" % n) for n in range(4)]
    a.put(ptop)
    for slot in range(4):
        a("s_lshr_b32 s3, s7, s%d", SK) if False else None
        a("s_bitcmp1_b32 s7, 0")
        a("s_waitcnt vmcnt(16)")
        a("s_barrier")
        a("s_cbranch_scc1 %s", evl[slot]); a.put(evr[slot])
        a("s_lshr_b32 s7, s7, 1"); a("s_add_u32 s%d, s%d, 1", SK, SK)
        issue(slot)
    a("s_cmp_lt_u32 s%d, 60", SK); a("s_cbranch_scc1 %s", ptop)
    a("s_branch %s", ptail)
    for slot in range(4):
        a.put(evl[slot])
        ks = sorted(k for k in events if k % 4 == slot)
        for n, k in enumerate(ks):
            nx = a.newlabel("en")
            if n + 1 < len(ks):
                a("s_cmp_lg_u32 s%d, %d", SK, k); a("s_cbranch_scc1 %s", nx)
            events[k]()
            a("s_branch %s", evr[slot])
            a.put(nx)
        if not ks: a("s_branch %s", evr[slot])
    a.put(ptail)
    a("s_waitcnt vmcnt(16)"); a("s_barrier")
    g3_pre()
    a("s_waitcnt vmcnt(12)"); a("s_barrier")
    a("s_waitcnt vmcnt(4)"); a("s_barrier")
    a("v_mov_b32 v62, %d", L_CD)
    a("ds_write_b32 v62, v%d", VZR)
    a("s_waitcnt lgkmcnt(0)"); a("s_barrier")
    a("s_barrier")
    sk = a.newlabel("nf")
    a("s_cmp_lg_u32 s%d, 0", PV); a("s_cbranch_scc1 %s", sk)
    a("v_lshlrev_b32 v62, 11, v1")
    a("s_mov_b64 exec, 3")
    a("buffer_store_dword v%d, v62, %s, s56 offen sc1", VTG, srdr(R_SY))
    a("s_mov_b64 exec, -1")
    a.put(sk)
    a("s_branch %s", p_g3)
    a.put(p_spare)
    spare_stream()
    a("s_sub_u32 s%d, s%d, 4", PV, SW)
    g3_pre()
    a.put(p_g3)
    g3_final_setup()
    a("s_add_u32 s4, s8, %d", FD1)
    lead_poll(a, PV, L_CD, 62, lambda: poll(a, VF16, 60, TAG, "s4", n=14))
    a.st()
    issue3(0, "x"); issue3(1, "x"); issue3(2); issue3(3)
    a("s_mov_b32 s63, 6")
    a("s_waitcnt vmcnt(16)")
    a("s_barrier")
    lab = a.newlabel("pl")
    a.put(lab)
    for slot in range(4):
        a("s_waitcnt vmcnt(12)"); a("s_barrier")
        issue3(slot)
    a("s_sub_u32 s63, s63, 1"); a("s_cmp_lg_u32 s63, 0"); a("s_cbranch_scc1 %s", lab)
    a("s_waitcnt vmcnt(12)"); a("s_barrier")
    final_loads()
    a("s_waitcnt vmcnt(9)"); a("s_barrier")
    a("s_waitcnt vmcnt(3)"); a("s_barrier")
    a("s_barrier")
    a.put(fin)
    a("s_waitcnt vmcnt(0) lgkmcnt(0)")
    a("s_barrier")
    B = 48; U = 64; G = 96
    a("v_add_u32 v%d, 65536, v%d", VSR, VSR)
    for rr in range(2): a("ds_read_b128 %s, v%d offset:%d", v(B + 4 * rr, 4), VSR, 8192 * rr)
    for d in range(4): unpack(a, G + 2 * d, G + 2 * d + 1, GBR + d)
    for rr in range(2):
        for d in range(4): unpack(a, U + 16 * rr + 8 + 2 * d, U + 16 * rr + 8 + 2 * d + 1, X1R + 4 * rr + d)
    for rr in range(2):
        a("s_waitcnt lgkmcnt(%d)", 1 - rr)
        for d in range(4): unpack(a, U + 16 * rr + 2 * d, U + 16 * rr + 2 * d + 1, B + 4 * rr + d)
        for d in range(4):
            x = U + 16 * rr + 2 * d
            a("v_pk_fma_f32 %s, %s, %s, %s", pk(x), pk(x), pk(G + 2 * d), pk(x + 8))
        for d in range(4):
            x = U + 16 * rr + 2 * d
            a("v_cvt_pk_bf16_f32 v%d, v%d, v%d", B + 8 + 4 * rr + d, x, x + 1)
        a("buffer_store_dwordx4 %s, v%d, %s, %s offen %s", v(B + 8 + 4 * rr, 4), VO, srdr(R_O), "s9" if rr else "0", opt.get("outflag", ""))
    a.st_flush(16, 17)
    a.put(end)
    return a.text(), 256, LDS_TOTAL
```

```python
from asmlib import *
MB = 1 << 20
import os
WS0 = int(os.environ.get("WS0", "0")) * MB
ALIAS = int(os.environ.get("ALIAS", "2"))
WS_UR = WS0
WS_MODP = WS0 + 8 * MB
WS_MOD = WS_MODP + 512 * 1024
WS_STATS = WS_MODP + 768 * 1024
WS_FLAGS = WS_MODP + MB
WS_YB = WS0 + 12 * MB
WS_P = WS0 + 16 * MB
WS_X1 = WS0 + 24 * MB
H2LIN = int(os.environ.get("H2LIN", "0"))
WS_H2 = WS_YB if (ALIAS and not H2LIN) else WS0 + 28 * MB
WS_WO = WS0 + 40 * MB
WS_AW = WS0 + 44 * MB
WS_Z2 = WS_UR if ALIAS in (1, 2) else WS0 + 32 * MB
A_Q, A_K, A_V, A_SK, A_SSMK, A_SSMD, A_BX, A_WIN, A_WSP, A_BSP, A_WOUT, A_C, A_WMOD, A_OUT, A_DBG, A_WS = [8 * i for i in range(16)]
LOG2E = 1.4426950408889634
EPS = 1e-5

def unpack(a, lo, hi, src):
    a("v_lshlrev_b32 v%d, 16, v%d", lo, src)
    a("v_and_b32 v%d, 0xffff0000, v%d", hi, src)

def gen_k1():
    a = Asm("k1")
    end = a.label("end")
    a("s_cmp_ge_u32 s2, 256")
    a("s_cbranch_scc1 %s", end)
    a.st_init(0, 240)
    a("s_load_dwordx2 s[4:5], s[0:1], %d", A_K)
    a("s_load_dwordx2 s[6:7], s[0:1], %d", A_V)
    a("s_load_dwordx2 s[8:9], s[0:1], %d", A_SK)
    a("s_load_dwordx2 s[10:11], s[0:1], %d", A_C)
    a("s_load_dwordx2 s[12:13], s[0:1], %d", A_WMOD)
    a("s_load_dwordx2 s[14:15], s[0:1], %d", A_WS)
    VT, VCG, VRG, VL = 0, 1, 2, 3
    VOFF = 4
    VSK, VWM, VC = 15, 16, 17
    RK = 18
    RV = 40
    RW = 56
    RM = 64
    UK = 128
    UW = 172
    RES = 188
    ACC = 220
    TMP = 226
    a("v_and_b32 v%d, 31, v0", VCG)
    a("v_lshrrev_b32 v%d, 5, v0", VRG)
    a("v_and_b32 v%d, 63, v0", VL)
    a("v_lshrrev_b32 v%d, 6, v0", TMP)
    a("s_lshr_b32 s16, s2, 3")
    a("s_and_b32 s17, s2, 7")
    a("v_readfirstlane_b32 s18, v%d", TMP)
    a("s_lshl_b32 s19, s16, 17")
    a("s_lshl_b32 s3, s17, 8")
    a("s_add_u32 s19, s19, s3")
    a("s_sub_u32 s19, s19, %d", 3 * 2048)
    a("v_lshlrev_b32 v%d, 14, v%d", VOFF, VRG)
    a("v_lshl_add_u32 v%d, v%d, 3, v%d", VOFF, VCG, VOFF)
    a("v_add_u32 v%d, s19, v%d", VOFF, VOFF)
    for j in range(1, 11): a("v_add_u32 v%d, %d, v%d", VOFF + j, 2048 * j, VOFF)
    a("s_lshl_b32 s3, s17, 10")
    a("v_lshl_add_u32 v%d, v%d, 5, s3", VSK, VCG)
    a("s_lshr_b32 s52, s2, 4"); a("s_and_b32 s53, s2, 15")
    a("s_lshl_b32 s54, s52, 6"); a("s_lshl_b32 s3, s18, 4"); a("s_add_u32 s54, s54, s3")
    a("s_mul_i32 s55, s54, 12288"); a("s_mul_i32 s3, s53, 768"); a("s_add_u32 s55, s55, s3")
    a("v_mul_u32_u24 v%d, 12, v%d", VWM, VL)
    a("v_and_b32 v%d, 15, v%d", VC, VL)
    a("v_add_u32 v%d, s54, v%d", VC, VC)
    a("v_lshlrev_b32 v%d, 1, v%d", VC, VC)
    a("s_waitcnt lgkmcnt(0)")
    a.srd(20, 4, 4 * MB); a.srd(24, 6, 4 * MB); a.srd(28, 8, 8192); a.srd(32, 10, 2048); a.srd(36, 12, 12 * MB)
    a.srd(40, 14, 4 * MB, WS_UR); a.srd(44, 14, 16 * 24576, WS_MODP); a.srd(48, 14, 256 * 1024 + 4096, WS_STATS)
    a("buffer_load_ushort v%d, v%d, s[32:35], 0 offen", TMP + 1, VC)
    a("buffer_load_dwordx4 v[%d:%d], v%d, s[28:31], 0 offen", RW, RW + 3, VSK)
    a("buffer_load_dwordx4 v[%d:%d], v%d, s[28:31], 0 offen offset:16", RW + 4, RW + 7, VSK)
    for j in range(11): a("buffer_load_dwordx2 v[%d:%d], v%d, s[20:23], 0 offen", RK + 2 * j, RK + 2 * j + 1, VOFF + j)
    for j in range(8): a("buffer_load_dwordx2 v[%d:%d], v%d, s[24:27], 0 offen", RV + 2 * j, RV + 2 * j + 1, VOFF + 3 + j)
    for j in range(16):
        a("buffer_load_dwordx3 v[%d:%d], v%d, s[36:39], s55 offen", RM + 4 * j, RM + 4 * j + 2, VWM)
        if j < 15: a("s_add_u32 s55, s55, 12288")
    a("s_and_b32 s3, s2, 14"); a("s_cmp_eq_u32 s3, 14"); a("s_cselect_b32 s3, 0, -1")
    a("v_mov_b32 v%d, s3", TMP + 2)
    a("s_lshl_b32 s3, s2, 10")
    a("v_lshl_add_u32 v%d, v0, 2, s3", TMP + 3)
    a("buffer_store_dword v%d, v%d, s[48:51], 0 offen", TMP + 2, TMP + 3)
    nf = a.label("nf")
    a("s_cmp_ge_u32 s2, 4"); a("s_cbranch_scc1 %s", nf)
    a("v_mov_b32 v%d, 0", TMP + 4)
    a("v_add_u32 v%d, %d, v%d", TMP + 5, 256 * 1024, TMP + 3)
    a("buffer_store_dword v%d, v%d, s[48:51], 0 offen", TMP + 4, TMP + 5)
    a.put(nf)
    a("s_waitcnt vmcnt(%d)", 11 + 8 + 16 + 1)
    X, E = TMP + 1, TMP + 6
    a("v_lshlrev_b32 v%d, 16, v%d", X, X)
    a("v_mul_f32 v%d, %s, v%d", E, fhex(-LOG2E), X)
    a("v_exp_f32 v%d, v%d", E, E)
    for c in range(4):
        for t in range(4):
            dst = UW + (t * 2 + (c >> 1)) * 2 + (c & 1)
            src = RW + 2 * c + (t >> 1)
            if t & 1: a("v_and_b32 v%d, 0xffff0000, v%d", dst, src)
            else: a("v_lshlrev_b32 v%d, 16, v%d", dst, src)
    a("v_add_f32 v%d, 1.0, v%d", E, E)
    a("v_rcp_f32 v%d, v%d", E, E)
    a("s_nop 0")
    a("v_mul_f32 v%d, v%d, v%d", X, X, E)
    a("v_cvt_pk_bf16_f32 v%d, v%d, v%d", X, X, X)
    a("v_lshlrev_b32 v%d, 16, v%d", X, X)
    a("s_nop 0")
    for j in range(16): a("v_readlane_b32 s%d, v%d, %d", 60 + 2 * j, X, j)
    a("s_waitcnt vmcnt(%d)", 8 + 16 + 1)
    a.st()
    for j in range(11):
        for d in range(2): unpack(a, UK + 4 * j + 2 * d, UK + 4 * j + 2 * d + 1, RK + 2 * j + d)
    for j in range(8):
        for p in range(2):
            dst = RES + 4 * j + 2 * p
            a("v_pk_mul_f32 v[%d:%d], v[%d:%d], v[%d:%d]", dst, dst + 1, UK + 4 * j + 2 * p, UK + 4 * j + 2 * p + 1, UW + (3 * 2 + p) * 2, UW + (3 * 2 + p) * 2 + 1)
            for t in (2, 1, 0):
                kk = UK + 4 * (j + 3 - t) + 2 * p
                w = UW + (t * 2 + p) * 2
                a("v_pk_fma_f32 v[%d:%d], v[%d:%d], v[%d:%d], v[%d:%d]", dst, dst + 1, kk, kk + 1, w, w + 1, dst, dst + 1)
    a("s_waitcnt vmcnt(%d)", 16 + 1)
    for j in range(8):
        for p in range(2):
            t0 = UK + 4 * j + 2 * p
            unpack(a, t0, t0 + 1, RV + 2 * j + p)
    for j in range(8):
        for p in range(2):
            dst = RES + 4 * j + 2 * p; t0 = UK + 4 * j + 2 * p
            a("v_pk_mul_f32 v[%d:%d], v[%d:%d], v[%d:%d]", dst, dst + 1, dst, dst + 1, t0, t0 + 1)
    PK = RK
    for c in range(4):
        for m in range(4):
            a("v_cvt_pk_bf16_f32 v%d, v%d, v%d", PK + 4 * c + m, RES + 4 * (7 - 2 * m) + c, RES + 4 * (6 - 2 * m) + c)
    a("v_sub_u32 v%d, 7, v%d", TMP + 2, VRG)
    a("v_and_b32 v%d, 7, v%d", TMP + 3, VCG)
    a("v_xor_b32 v%d, v%d, v%d", TMP + 2, TMP + 2, TMP + 3)
    a("v_lshlrev_b32 v%d, 4, v%d", TMP + 2, TMP + 2)
    a("v_lshl_add_u32 v%d, v%d, 9, v%d", TMP + 2, VCG, TMP + 2)
    for c in range(4): a("ds_write_b128 v%d, v[%d:%d] offset:%d", TMP + 2, PK + 4 * c, PK + 4 * c + 3, 128 * c)
    a.st()
    for j in range(16):
        a("s_waitcnt vmcnt(%d)", 15 - j + 1)
        for d in range(3): unpack(a, UK + 2 * d, UK + 2 * d + 1, RM + 4 * j + d)
        for d in range(3):
            if j == 0:
                a("v_pk_mul_f32 v[%d:%d], v[%d:%d], s[%d:%d] op_sel_hi:[1,0]", ACC + 2 * d, ACC + 2 * d + 1, UK + 2 * d, UK + 2 * d + 1, 60, 61)
            else:
                a("v_pk_fma_f32 v[%d:%d], v[%d:%d], s[%d:%d], v[%d:%d] op_sel_hi:[1,0,1]", ACC + 2 * d, ACC + 2 * d + 1, UK + 2 * d, UK + 2 * d + 1, 60 + 2 * j, 61 + 2 * j, ACC + 2 * d, ACC + 2 * d + 1)
    a("s_mul_i32 s3, s18, 1536"); a("s_add_u32 s3, s3, 16384")
    a("v_mul_u32_u24 v%d, 24, v%d", TMP + 3, VL)
    a("v_add_u32 v%d, s3, v%d", TMP + 3, TMP + 3)
    for d in range(3): a("ds_write_b64 v%d, v[%d:%d] offset:%d", TMP + 3, ACC + 2 * d, ACC + 2 * d + 1, 8 * d)
    a("v_lshrrev_b32 v%d, 3, v0", TMP + 4)
    a("v_and_b32 v%d, 7, v0", TMP + 5)
    a("v_lshrrev_b32 v%d, 2, v%d", TMP + 6, TMP + 4)
    a("v_xor_b32 v%d, v%d, v%d", TMP + 6, TMP + 6, TMP + 5)
    a("v_lshlrev_b32 v%d, 4, v%d", TMP + 6, TMP + 6)
    a("v_lshl_add_u32 v%d, v%d, 7, v%d", TMP + 6, TMP + 4, TMP + 6)
    a("s_lshl_b32 s3, s17, 19"); a("s_lshl_b32 s19, s16, 7"); a("s_sub_u32 s3, s3, s19"); a("s_add_u32 s3, s3, %d", (2047 - 63) * 2)
    a("v_lshlrev_b32 v%d, 4, v%d", TMP + 5, TMP + 5)
    a("v_lshl_add_u32 v%d, v%d, 12, v%d", TMP + 5, TMP + 4, TMP + 5)
    a("v_add_u32 v%d, s3, v%d", TMP + 5, TMP + 5)
    a("v_lshlrev_b32 v%d, 3, v0", TMP + 7)
    a("s_waitcnt lgkmcnt(0)")
    a.st()
    a("s_barrier")
    for m in range(4): a("ds_read_b128 v[%d:%d], v%d offset:%d", RV + 4 * m, RV + 4 * m + 3, TMP + 6, 4096 * m)
    for w in range(4): a("ds_read_b64 v[%d:%d], v%d offset:%d", UK + 2 * w, UK + 2 * w + 1, TMP + 7, 16384 + 1536 * w)
    for m in range(4):
        a("s_mov_b32 s3, %d", m * 32 * 4096)
        a("s_waitcnt lgkmcnt(%d)", 7 - m)
        a("buffer_store_dwordx4 v[%d:%d], v%d, s[40:43], s3 offen", RV + 4 * m, RV + 4 * m + 3, TMP + 5)
    a.st_flush(241, 242)
    a("s_cmp_ge_u32 s18, 3"); a("s_cbranch_scc1 %s", end)
    a("s_waitcnt lgkmcnt(0)")
    a("v_pk_add_f32 v[%d:%d], v[%d:%d], v[%d:%d]", UK, UK + 1, UK, UK + 1, UK + 2, UK + 3)
    a("v_pk_add_f32 v[%d:%d], v[%d:%d], v[%d:%d]", UK + 4, UK + 5, UK + 4, UK + 5, UK + 6, UK + 7)
    a("v_pk_add_f32 v[%d:%d], v[%d:%d], v[%d:%d]", UK, UK + 1, UK, UK + 1, UK + 4, UK + 5)
    a("s_mul_i32 s3, s52, 24576"); a("s_mul_i32 s19, s53, 1536"); a("s_add_u32 s3, s3, s19")
    a("buffer_store_dwordx2 v[%d:%d], v%d, s[44:47], s3 offen", UK, UK + 1, TMP + 7)
    a.put(end)
    return a.text(), 244 if DIAG[0] else 236, 16384 + 6144 + 2048

CV_UR = 0; CV_C0 = 4608; CV_C1 = 4608 + 4160; CV_W = 12928
def gen_k2():
    a = Asm("k2")
    end = a.label("end"); fin = a.label("fin")
    a("s_cmp_ge_u32 s2, 256")
    a("s_cbranch_scc1 %s", end)
    a.st_init(1, 230)
    a("s_load_dwordx2 s[4:5], s[0:1], %d", A_SSMK)
    a("s_load_dwordx2 s[6:7], s[0:1], %d", A_SSMD)
    a("s_load_dwordx2 s[14:15], s[0:1], %d", A_WS)
    a("v_lshrrev_b32 v1, 6, v0")
    a("v_and_b32 v2, 63, v0")
    a("s_and_b32 s16, s2, 7"); a("s_lshr_b32 s17, s2, 3")
    a("v_readfirstlane_b32 s18, v1")
    a("s_lshl_b32 s16, s16, 7"); a("s_lshl_b32 s17, s17, 2"); a("s_add_u32 s16, s16, s17")
    a("s_add_u32 s16, s16, s18")
    a("s_waitcnt lgkmcnt(0)")
    a.srd(20, 4, 4 * MB); a.srd(24, 6, 2048); a.srd(28, 14, 4 * MB, WS_UR); a.srd(32, 14, 4 * MB, WS_YB)
    a.srd(36, 14, 16 * 24576, WS_MODP); a.srd(40, 14, 12288, WS_MOD)
    a("s_cmp_eq_u32 s18, 4"); a("s_cbranch_scc1 %s", fin)
    VL = 2
    RKr = 8
    ZR = 32
    SH = 36
    a("s_mul_i32 s19, s18, %d", CV_W)
    a("s_lshl_b32 s44, s16, 12")
    a("v_lshlrev_b32 v3, 4, v%d", VL)
    a("s_lshl_b32 s45, s16, 1")
    a("v_mov_b32 v4, s45")
    for m in range(4):
        a("s_add_u32 s46, s44, %d", 1024 * m)
        a("buffer_load_dwordx4 v[%d:%d], v3, s[20:23], s46 offen", RKr + 6 * m, RKr + 6 * m + 3)
        a("buffer_load_dword v%d, v3, s[20:23], s46 offen offset:16", RKr + 6 * m + 4)
    for m in range(4):
        a("s_add_u32 m0, s19, %d", CV_UR + 1024 * m)
        a("s_add_u32 s46, s44, %d", 1024 * m)
        a("buffer_load_dwordx4 v3, s[28:31], s46 offen lds")
    a("buffer_load_ushort v5, v4, s[24:27], 0 offen")
    for r in range(4): a("v_mov_b32 v%d, 0", ZR + r)
    a("v_add_u32 v6, s19, v3")
    a("s_mov_b64 s[48:49], exec")
    a("s_mov_b32 exec_hi, 0")
    a("ds_write_b128 v6, v[%d:%d] offset:%d", ZR, ZR + 3, CV_UR + 4096)
    a("s_mov_b64 exec, 3")
    a("ds_write_b128 v6, v[%d:%d] offset:%d", ZR, ZR + 3, CV_C0)
    a("s_mov_b64 exec, 1")
    a("ds_write_b128 v6, v[%d:%d] offset:%d", ZR, ZR + 3, CV_C1)
    a("s_mov_b64 exec, s[48:49]")
    VA, VB, VE = 56, 60, 61
    a("v_and_b32 v52, 15, v%d", VL)
    a("v_lshrrev_b32 v53, 4, v%d", VL)
    a("v_and_b32 v54, 4, v52"); a("v_lshlrev_b32 v54, 1, v54")
    a("v_lshrrev_b32 v55, 3, v52"); a("v_lshl_add_u32 v54, v55, 2, v54")
    a("v_and_b32 v55, 3, v52"); a("v_add3_u32 v54, v54, v55, 1")
    a("v_and_b32 v55, 1, v54"); a("v_mul_u32_u24 v55, 4160, v55")
    a("v_and_b32 v54, 30, v54"); a("v_lshl_add_u32 v55, v54, 1, v55")
    a("v_lshl_add_u32 v55, v53, 4, v55")
    a("s_add_u32 s46, s19, %d", CV_C0)
    a("v_add_u32 v%d, s46, v55", VA)
    for j in range(1, 4): a("v_add_u32 v%d, %d, v%d", VA + j, 1024 * j, VA)
    a("v_lshlrev_b32 v55, 5, v52"); a("v_sub_u32 v55, 480, v55"); a("v_lshl_add_u32 v55, v53, 4, v55")
    a("v_add_u32 v%d, s19, v55", VB)
    a("v_and_b32 v54, 1, v53"); a("v_lshlrev_b32 v54, 4, v54"); a("v_lshrrev_b32 v55, 1, v53"); a("v_lshl_add_u32 v54, v55, 3, v54")
    a("v_lshl_add_u32 v54, v52, 5, v54"); a("v_sub_u32 v54, 504, v54")
    a("v_add_u32 v%d, s19, v54", VE)
    VS = 62
    a("v_and_b32 v54, 1, v53"); a("v_lshl_add_u32 v54, v52, 1, v54"); a("v_lshl_add_u32 v54, v55, 5, v54")
    a("v_lshlrev_b32 v54, 14, v54"); a("s_lshl_b32 s46, s16, 4"); a("v_add_u32 v%d, s46, v54", VS)
    for m in range(4):
        a("s_waitcnt vmcnt(%d)", 5 + 2 * (3 - m))
        r = RKr + 6 * m
        a("ds_write_b128 v6, v[%d:%d] offset:%d", r, r + 3, CV_C0 + 32 + 1024 * m)
        for j in range(4): a("v_alignbit_b32 v%d, v%d, v%d, 16", SH + 4 * m + j, r + j + 1, r + j)
        a("ds_write_b128 v6, v[%d:%d] offset:%d", SH + 4 * m, SH + 4 * m + 3, CV_C1 + 32 + 1024 * m)
        if m == 0:
            a("v_lshlrev_b32 v%d, 16, v%d", ZR + 3, r)
            a("s_mov_b64 exec, 1")
            a("ds_write_b128 v6, v[%d:%d] offset:%d", ZR, ZR + 3, CV_C1 + 16)
            a("s_mov_b64 exec, s[48:49]")
    ACC = 64; FA = [96, 128]; FB = [160, 192]
    def loads(r, st):
        out = []
        def la(q):
            e = 8 * q + r
            base = VA + (e >> 4); o = (e & 15) * 16
            d = FA[st] + 4 * q
            out.append("ds_read2_b32 v[%d:%d], v%d offset0:%d offset1:%d" % (d, d + 1, base, o, o + 1))
            out.append("ds_read2_b32 v[%d:%d], v%d offset0:%d offset1:%d" % (d + 2, d + 3, base, o + 2, o + 3))
        def lb(t):
            c = 8 * t - r
            d = FB[st] + 4 * t
            out.append("ds_read_b128 v[%d:%d], v%d offset:%d" % (d, d + 3, VB, CV_UR + 64 * (56 - c)))
        la(0)
        for t in range(8): lb(t)
        for q in range(1, 8): la(q)
        return out
    a("s_waitcnt vmcnt(0) lgkmcnt(0)")
    a.st()
    a("v_lshlrev_b32 v5, 16, v5")
    for l in loads(0, 0): a(l)
    for r in range(8):
        st = r & 1
        nxt = loads(r + 1, st ^ 1) if r < 7 else []
        if r == 7:
            nxt = ["ds_read_b64 v[%d:%d], v%d offset:%d" % (FA[0] + 2 * t, FA[0] + 2 * t + 1, VE, CV_UR + 512 * (7 - t)) for t in range(8)]
        a("s_waitcnt lgkmcnt(0)")
        pairs = [(q, t) for q in range(8) for t in range(q, 8)]
        li = 0
        for n, (q, t) in enumerate(pairs):
            acc = ACC + 4 * t
            c = "0" if (r == 0 and q == 0) else v(acc, 4)
            a("v_mfma_f32_16x16x32_bf16 %s, %s, %s, %s", v(acc, 4), v(FA[st] + 4 * q, 4), v(FB[st] + 4 * (t - q), 4), c)
            if li < len(nxt):
                a(nxt[li]); li += 1
        assert li == len(nxt)
    a("s_waitcnt lgkmcnt(0)")
    a("s_nop 7")
    a.st()
    U = FA[0]; T = FA[1]; PKo = FB[0]
    for t in range(8):
        acc = ACC + 4 * t
        unpack(a, T + 3, T + 2, U + 2 * t)
        unpack(a, T + 1, T + 0, U + 2 * t + 1)
        for r in range(4): a("v_fmac_f32 v%d, v5, v%d", acc + r, T + r)
        a("v_cvt_pk_bf16_f32 v%d, v%d, v%d", PKo + 2 * t, acc, acc + 1)
        a("v_cvt_pk_bf16_f32 v%d, v%d, v%d", PKo + 2 * t + 1, acc + 2, acc + 3)
    a("s_nop 1")
    for t in range(0, 8, 2):
        R = PKo + 2 * t
        a("v_permlane32_swap_b32 v%d, v%d", R, R + 2)
        a("v_permlane32_swap_b32 v%d, v%d", R + 1, R + 3)
        a("s_mov_b32 s46, %d", t * 32 * 16384)
        a("buffer_store_dwordx4 v[%d:%d], v%d, s[32:35], s46 offen", R, R + 3, VS)
    a.st_flush(231, 232)
    a("s_branch %s", end)
    a.put(fin)
    a("s_mul_i32 s44, s2, 24")
    a("v_add_u32 v3, s44, v2")
    a("v_lshlrev_b32 v4, 2, v3")
    a("s_mov_b32 exec_lo, 0xffffff")
    a("s_mov_b32 exec_hi, 0")
    a("s_mov_b32 s45, 0")
    for p in range(16):
        a("buffer_load_dword v%d, v4, s[36:39], s45 offen", 8 + p)
        if p < 15: a("s_add_u32 s45, s45, 24576")
    a("v_lshrrev_b32 v5, 10, v3")
    a("v_cmp_eq_u32 s[46:47], 1, v5")
    a("v_cmp_eq_u32 vcc, 4, v5")
    a("s_nop 3")
    a("s_or_b64 vcc, vcc, s[46:47]")
    a("v_mov_b32 v6, 0")
    a("v_lshlrev_b32 v4, 1, v3")
    a("v_cndmask_b32_e64 v6, 0, 1.0, vcc")
    a("s_waitcnt vmcnt(0)")
    for w in (8, 4, 2, 1):
        for p in range(w): a("v_add_f32 v%d, v%d, v%d", 8 + p, 8 + p, 8 + p + w)
    a("v_cvt_pk_bf16_f32 v8, v8, v8")
    a("v_lshlrev_b32 v8, 16, v8")
    a("v_add_f32 v8, v8, v6")
    a("v_cvt_pk_bf16_f32 v8, v8, v8")
    a("buffer_store_short v8, v4, s[40:43], 0 offen")
    a.put(end)
    return a.text(), 236 if DIAG[0] else 224, 4 * CV_W

def wave_reduce8(a, S, T):
    a("s_nop 1")
    for base in (S, S + 4):
        a("v_permlane32_swap_b32 v%d, v%d", base, base + 2)
        a("v_permlane32_swap_b32 v%d, v%d", base + 1, base + 3)
    for base in (S, S + 4):
        a("v_add_f32 v%d, v%d, v%d", base, base, base + 2)
        a("v_add_f32 v%d, v%d, v%d", base + 1, base + 1, base + 3)
    a("s_nop 0")
    for base in (S, S + 4): a("v_permlane16_swap_b32 v%d, v%d", base, base + 1)
    for base in (S, S + 4): a("v_add_f32 v%d, v%d, v%d", base, base, base + 1)
    for dpp in ("quad_perm:[1,0,3,2]", "quad_perm:[2,3,0,1]", "row_ror:8"):
        a("s_nop 0")
        for base in (S, S + 4): a("v_add_f32_dpp v%d, v%d, v%d %s row_mask:0xf bank_mask:0xf", base, base, base, dpp)

def gen_k3():
    a = Asm("k3")
    end = a.label("end")
    a("s_cmp_ge_u32 s2, 256")
    a("s_cbranch_scc1 %s", end)
    a.st_init(2, 244)
    a("s_load_dwordx2 s[4:5], s[0:1], %d", A_Q)
    a("s_load_dwordx2 s[14:15], s[0:1], %d", A_WS)
    VL, VHF, VKK, VQ, VM, VY, VD, VRW, VRR = 1, 2, 3, 4, 5, 6, 7, 8, 9
    a("v_and_b32 v%d, 63, v0", VL)
    a("v_lshrrev_b32 v10, 6, v0")
    a("v_bfe_u32 v%d, v0, 2, 1", VHF)
    a("v_readfirstlane_b32 s18, v10")
    a("v_lshrrev_b32 v11, 3, v0"); a("v_and_b32 v12, 3, v0"); a("v_lshl_add_u32 v%d, v11, 2, v12", VKK)
    a("s_lshl_b32 s16, s2, 14")
    a("v_lshlrev_b32 v11, 13, v%d", VHF); a("v_lshl_add_u32 v11, v%d, 4, v11", VKK); a("v_add_u32 v%d, s16, v11", VQ)
    a("v_add_u32 v13, 4096, v%d", VQ)
    a("v_lshlrev_b32 v%d, 4, v%d", VM, VKK)
    a("v_lshrrev_b32 v11, 4, v%d", VL); a("v_and_b32 v12, 7, v%d", VL); a("v_xor_b32 v11, v11, v12")
    a("v_and_b32 v12, 56, v%d", VL); a("v_or_b32 v11, v11, v12"); a("v_lshlrev_b32 v%d, 4, v11", VD)
    a("v_xor_b32 v14, 64, v%d", VD)
    a("v_bfe_u32 v11, v%d, 1, 3", VKK); a("v_lshlrev_b32 v11, 4, v11")
    a("v_lshlrev_b32 v12, 7, v%d", VKK); a("v_lshl_add_u32 v12, v%d, 3, v12", VHF)
    YA = 16
    for i in range(8):
        a("v_xor_b32 v%d, %d, v11", YA + i, 16 * i); a("v_add_u32 v%d, v12, v%d", YA + i, YA + i)
    a("v_lshrrev_b32 v11, 4, v%d", VL); a("v_lshlrev_b32 v11, 2, v11"); a("v_lshl_add_u32 v11, v%d, 7, v11", VHF)
    a("s_lshl_b32 s17, s18, 5"); a("s_add_u32 s17, s17, 16384"); a("v_add_u32 v%d, s17, v11", VRW)
    a("v_lshlrev_b32 v%d, 7, v%d", VRR, VHF)
    a("v_and_b32 v11, 11, v%d", VL); a("v_cmp_eq_u32 s[50:51], 0, v11")
    a("s_waitcnt lgkmcnt(0)")
    a.srd(20, 4, 4 * MB); a.srd(24, 14, 4 * MB, WS_YB); a.srd(28, 14, 12288, WS_MOD); a.srd(32, 14, 4 * MB, WS_X1); a.srd(36, 14, 4 * MB, WS_H2)
    RQ = 24
    RP = 40
    Q = 64
    PR = 96
    RY = 136
    S = 152
    RS = 160
    MU = 192
    H = 200
    YU = 208
    for j in range(4): a("buffer_load_dwordx4 v[%d:%d], v%d, s[20:23], 0 offen offset:%d", RQ + 4 * j, RQ + 4 * j + 3, VQ if j < 2 else 13, 2048 * (j & 1))
    for u in range(4):
        a("s_lshl_b32 s19, s18, 12"); a("s_add_u32 m0, s19, %d", 1024 * u)
        a("s_add_u32 s19, s19, s16"); a("s_add_u32 s19, s19, %d", 1024 * u)
        a("buffer_load_dwordx4 v%d, s[24:27], s19 offen lds", VD if (u & 1) == 0 else 14)
    for p in range(5):
        a("s_mov_b32 s19, %d", 2048 * p)
        a("buffer_load_dwordx4 v[%d:%d], v%d, s[28:31], s19 offen", RP + 4 * p, RP + 4 * p + 3, VM)
    def stats(X):
        for j in range(4):
            x = X + 8 * j
            a("v_pk_add_f32 v[%d:%d], v[%d:%d], v[%d:%d]", H, H + 1, x, x + 1, x + 2, x + 3)
            a("v_pk_mul_f32 v[%d:%d], v[%d:%d], v[%d:%d]", H + 2, H + 3, x, x + 1, x, x + 1)
            a("v_pk_add_f32 v[%d:%d], v[%d:%d], v[%d:%d]", H + 4, H + 5, x + 4, x + 5, x + 6, x + 7)
            for e in (2, 4, 6): a("v_pk_fma_f32 v[%d:%d], v[%d:%d], v[%d:%d], v[%d:%d]", H + 2, H + 3, x + e, x + e + 1, x + e, x + e + 1, H + 2, H + 3)
            a("v_pk_add_f32 v[%d:%d], v[%d:%d], v[%d:%d]", H, H + 1, H, H + 1, H + 4, H + 5)
            a("v_add_f32 v%d, v%d, v%d", S + 4 + j, H + 2, H + 3)
            a("v_add_f32 v%d, v%d, v%d", S + j, H, H + 1)
        wave_reduce8(a, S, H)
    def cross(off):
        a("s_mov_b64 s[48:49], exec"); a("s_mov_b64 exec, s[50:51]")
        a("ds_write_b32 v%d, v%d offset:%d", VRW, S, off)
        a("ds_write_b32 v%d, v%d offset:%d", VRW, S + 4, off + 16)
        a("s_mov_b64 exec, s[48:49]")
    def cross2(off):
        for w in range(4):
            a("ds_read_b128 v[%d:%d], v%d offset:%d", RS + 8 * w, RS + 8 * w + 3, VRR, 16384 + off + 32 * w)
            a("ds_read_b128 v[%d:%d], v%d offset:%d", RS + 8 * w + 4, RS + 8 * w + 7, VRR, 16384 + off + 32 * w + 16)
    def cross3():
        for (d, s) in ((0, 8), (16, 24), (0, 16)):
            for e in range(0, 8, 2): a("v_pk_add_f32 v[%d:%d], v[%d:%d], v[%d:%d]", RS + d + e, RS + d + e + 1, RS + d + e, RS + d + e + 1, RS + s + e, RS + s + e + 1)
        for j in range(4):
            a("v_mul_f32 v%d, %s, v%d", RS + j, fhex(1.0 / 1024), RS + j)
        for j in range(4):
            a("v_mul_f32 v%d, v%d, v%d", RS + 8 + j, RS + j, RS + j)
        a("s_mov_b32 s19, %s", fhex(1.0 / 1024))
        for j in range(4):
            a("v_fma_f32 v%d, v%d, s19, -v%d", RS + 4 + j, RS + 4 + j, RS + 8 + j)
        for j in range(4):
            a("v_max_f32 v%d, 0, v%d", RS + 4 + j, RS + 4 + j)
        for j in range(4):
            a("v_add_f32 v%d, %s, v%d", RS + 4 + j, fhex(EPS), RS + 4 + j)
        for j in range(4):
            a("v_rsq_f32 v%d, v%d", MU + 2 * j, RS + 4 + j)
        a("s_nop 0")
        for j in range(4):
            a("v_mul_f32_e64 v%d, -v%d, v%d", MU + 2 * j + 1, RS + j, MU + 2 * j)
    a("s_waitcnt vmcnt(9)")
    a.st()
    for j in range(4):
        for d in range(4): unpack(a, Q + 8 * j + 2 * d, Q + 8 * j + 2 * d + 1, RQ + 4 * j + d)
    stats(Q)
    cross(0)
    a("s_waitcnt vmcnt(0) lgkmcnt(0)")
    a.st()
    a("s_barrier")
    cross2(0)
    for i in range(8): a("ds_read_b64 v[%d:%d], v%d", RY + 2 * i, RY + 2 * i + 1, YA + i)
    for p in range(5):
        for d in range(4): unpack(a, PR + 8 * p + 2 * d, PR + 8 * p + 2 * d + 1, RP + 4 * p + d)
    a("s_waitcnt lgkmcnt(8)")
    cross3()
    a("s_waitcnt lgkmcnt(0)")
    for i in range(8):
        unpack(a, YU + i, YU + 8 + i, RY + 2 * i)
        unpack(a, YU + 16 + i, YU + 24 + i, RY + 2 * i + 1)
    SA, CA, GA, SB, CB = PR, PR + 8, PR + 16, PR + 24, PR + 32
    def pk(r): return "v[%d:%d]" % (r, r + 1)
    for j in range(4):
        for e in range(0, 8, 2):
            q = Q + 8 * j + e; y = YU + 8 * j + e
            a("v_pk_fma_f32 %s, %s, %s, %s op_sel:[0,0,1] op_sel_hi:[1,0,1]", pk(H + e), pk(q), pk(MU + 2 * j), pk(MU + 2 * j))
        for e in range(0, 8, 2): a("v_pk_fma_f32 %s, %s, %s, %s", pk(H + e), pk(H + e), pk(CA + e), pk(SA + e))
        for e in range(0, 8, 2): a("v_pk_mul_f32 %s, %s, %s", pk(H + e), pk(H + e), pk(YU + 8 * j + e))
        for e in range(0, 8, 2): a("v_pk_fma_f32 %s, %s, %s, %s", pk(H + e), pk(H + e), pk(GA + e), pk(Q + 8 * j + e))
        for e in range(0, 8, 2): a("v_cvt_pk_bf16_f32 v%d, v%d, v%d", RQ + 4 * j + e // 2, H + e, H + e + 1)
        a("buffer_store_dwordx4 v[%d:%d], v%d, s[32:35], 0 offen offset:%d", RQ + 4 * j, RQ + 4 * j + 3, VQ if j < 2 else 13, 2048 * (j & 1))
        for d in range(4): unpack(a, Q + 8 * j + 2 * d, Q + 8 * j + 2 * d + 1, RQ + 4 * j + d)
    stats(Q)
    cross(256)
    a("s_waitcnt lgkmcnt(0)")
    a.st()
    a("s_barrier")
    cross2(256)
    a("s_waitcnt lgkmcnt(0)")
    cross3()
    for j in range(4):
        for e in range(0, 8, 2):
            a("v_pk_fma_f32 %s, %s, %s, %s op_sel:[0,0,1] op_sel_hi:[1,0,1]", pk(H + e), pk(Q + 8 * j + e), pk(MU + 2 * j), pk(MU + 2 * j))
        for e in range(0, 8, 2): a("v_pk_fma_f32 %s, %s, %s, %s", pk(H + e), pk(H + e), pk(CB + e), pk(SB + e))
        for e in range(0, 8, 2): a("v_cvt_pk_bf16_f32 v%d, v%d, v%d", RY + 4 * j + e // 2, H + e, H + e + 1)
        a("buffer_store_dwordx4 v[%d:%d], v%d, s[36:39], 0 offen offset:%d", RY + 4 * j, RY + 4 * j + 3, VQ if j < 2 else 13, 2048 * (j & 1))
    a.st_flush(245, 246)
    a.put(end)
    return a.text(), 248 if DIAG[0] else 240, 16384 + 512
```

```python
from asmlib import *
from gen_front import *
from gen_gemm import VmTrack, gelu_block, pk, GC0, GC1
P_Q, P_K, P_V, P_SK, P_SSMK, P_SSMD, P_BX, P_WIN, P_WSP, P_BSP, P_WOUT, P_C, P_WMOD, P_OUT, P_DBG, P_WS = [64 + 2 * n for n in range(16)]
SI, SJ, SJD, TAG, SX_, SIDX, SW = 12, 13, 14, 15, 16, 17, 18
R_SY = 44
SY0 = 256 * 1024
FA_OLD, FG, FC, FZ, FD, CB, WT = SY0, SY0 + 1024, SY0 + 2048, SY0 + 4096, SY0 + 6144, SY0 + 8192, SY0 + 12288
FB2, FX = SY0 + 16384, SY0 + 20480
CN, GOG, GOC, GOD = SY0 + 32768, SY0 + 49152, SY0 + 53248, SY0 + 57344
FAS = 128
L_T1 = 65536; L_WM = 81920; L_Y = 65536; L_ST = 131072; L_FIN = L_ST + 2048
L_QT = 135168; QROW = 2080; L_L1S = 151808; L_CNT = 151872
L_Y3 = 131072; L_CD = 98304
LDS_TOTAL = 163840
NZ, NG = 16, 32
NST = 2 * NZ + NG
EV = dict(pub=16, poll=19, chk=21, norm=22, drain=24, fpoll=26, fchk=28)
SPIN_MAX = 0x20000

FA = SY0 + 65536
FC1, FD1 = SY0 + 98304, SY0 + 163840
SY_END = SY0 + 229376
def srdr(r): return "s[%d:%d]" % (r, r + 3)

def poll(a, vaddr, vt, target, soff="0", n=16, sleep=0):
    lp = a.newlabel("pl"); ok = a.newlabel("pk")
    a("s_mov_b32 s11, 0")
    a("s_mov_b32 exec_lo, 0x%x", (1 << n) - 1); a("s_mov_b32 exec_hi, 0")
    a.put(lp)
    a("buffer_load_dword v%d, v%d, %s, %s offen sc1", vt, vaddr, srdr(R_SY), soff)
    a("s_add_u32 s11, s11, 1")
    a("s_cmp_gt_u32 s11, %d", SPIN_MAX); a("s_cbranch_scc1 %s", ok)
    a("s_waitcnt vmcnt(0)")
    a("v_cmp_ne_u32 vcc, s%d, v%d", target, vt)
    if sleep: a("s_sleep %d", sleep)
    else: a("s_nop 4")
    a("s_cbranch_vccnz %s", lp)
    a.put(ok)
    a("s_mov_b64 exec, -1")

def lead_poll(a, pv, cnt, t0, fn):
    oth = a.newlabel("ot"); done = a.newlabel("dn"); lp = a.newlabel("lw")
    a("v_mov_b32 v%d, %d", t0, L_CNT + 4 * cnt if cnt < 8 else cnt)
    a("s_cmp_lg_u32 s%d, 0", pv); a("s_cbranch_scc1 %s", oth)
    fn()
    a("v_mov_b32 v%d, 1", t0 + 1)
    a("ds_write_b32 v%d, v%d", t0, t0 + 1)
    a("s_branch %s", done)
    a.put(oth)
    a("s_mov_b32 s11, 0")
    a.put(lp)
    a("ds_read_b32 v%d, v%d", t0 + 1, t0)
    a("s_add_u32 s11, s11, 1")
    a("s_cmp_gt_u32 s11, %d", SPIN_MAX * 16); a("s_cbranch_scc1 %s", done)
    a("s_waitcnt lgkmcnt(0)")
    a("v_readfirstlane_b32 s10, v%d", t0 + 1)
    a("s_sleep 1")
    a("s_cmp_eq_u32 s10, 0"); a("s_cbranch_scc1 %s", lp)
    a.put(done)
    a("s_waitcnt vmcnt(0)")

def flag_store(a, vtag, vzero, soff):
    a("s_mov_b64 s[10:11], exec"); a("s_mov_b64 exec, 1")
    a("buffer_store_dword v%d, v%d, %s, %s offen sc1", vtag, vzero, srdr(R_SY), soff)
    a("s_mov_b64 exec, s[10:11]")

def arrive(a, scnt, n, sgo, nrep, vtag, vzero, vrep, t0):
    nl = a.newlabel("ar")
    a("s_mov_b64 exec, 1")
    a("v_mov_b32 v%d, 1", t0)
    a("buffer_atomic_add v%d, v%d, %s, s%d offen sc0 sc1", t0, vzero, srdr(R_SY), scnt)
    a("s_add_u32 s10, s%d, %d", TAG, n - 1)
    a("s_waitcnt vmcnt(0)")
    a("v_readfirstlane_b32 s11, v%d", t0)
    a("s_mov_b64 exec, %d", (1 << nrep) - 1)
    a("s_cmp_lg_u32 s11, s10"); a("s_cbranch_scc1 %s", nl)
    a("buffer_store_dword v%d, v%d, %s, s%d offen sc1", vtag, vrep, srdr(R_SY), sgo)
    a.put(nl)
    a("s_mov_b64 exec, -1")

def lds_inc(a, cnt, t0, t1):
    a("v_mov_b32 v%d, %d", t0, L_CNT + 4 * cnt); a("v_mov_b32 v%d, 1", t1)
    a("s_mov_b64 exec, 1")
    a("ds_add_u32 v%d, v%d", t0, t1)
    a("s_mov_b64 exec, -1")

def lds_wait(a, cnt, n, t0, t1, sleep=1):
    lp = a.newlabel("lw"); ok = a.newlabel("lo")
    a("v_mov_b32 v%d, %d", t0, L_CNT + 4 * cnt)
    a("s_mov_b32 s11, 0")
    a.put(lp)
    a("ds_read_b32 v%d, v%d", t1, t0)
    a("s_add_u32 s11, s11, 1")
    a("s_cmp_gt_u32 s11, %d", SPIN_MAX * 16); a("s_cbranch_scc1 %s", ok)
    a("s_waitcnt lgkmcnt(0)")
    a("v_readfirstlane_b32 s10, v%d", t1)
    a("s_nop 0")
    a("s_cmp_ge_u32 s10, %d", n); a("s_cbranch_scc1 %s", ok)
    a("s_sleep %d", sleep)
    a("s_branch %s", lp)
    a.put(ok)

def lds_sync(a, cnt, t0, sleep=1):
    lp = a.newlabel("ls"); ok = a.newlabel("lk")
    a("v_mov_b32 v%d, %d", t0, L_CNT + 4 * cnt); a("v_mov_b32 v%d, 1", t0 + 1)
    a("s_waitcnt lgkmcnt(0)")
    a("s_mov_b64 s[10:11], exec"); a("s_mov_b64 exec, 1")
    a("ds_add_u32 v%d, v%d", t0, t0 + 1)
    a("s_mov_b64 exec, s[10:11]")
    a("s_mov_b32 s11, 0")
    a.put(lp)
    a("ds_read_b32 v%d, v%d", t0 + 1, t0)
    a("s_add_u32 s11, s11, 1")
    a("s_cmp_gt_u32 s11, %d", SPIN_MAX * 8); a("s_cbranch_scc1 %s", ok)
    a("s_waitcnt lgkmcnt(0)")
    a("v_readfirstlane_b32 s10, v%d", t0 + 1)
    a("s_sleep %d", sleep)
    a("s_cmp_lt_u32 s10, 4"); a("s_cbranch_scc1 %s", lp)
    a.put(ok)

def rstd_calc(a, sm, sq, tmp, out, inv_n):
    a("s_mov_b32 s10, %s", fhex(inv_n))
    a("v_mul_f32 v%d, s10, v%d", sm, sm)
    a("v_mul_f32 v%d, v%d, v%d", tmp, sm, sm)
    a("v_fma_f32 v%d, v%d, s10, -v%d", sq, sq, tmp)
    a("v_max_f32 v%d, 0, v%d", sq, sq)
    a("v_add_f32 v%d, %s, v%d", sq, fhex(EPS), sq)
    a("v_rsq_f32 v%d, v%d", out, sq)
    a("s_nop 0")
    a("v_mul_f32_e64 v%d, -v%d, v%d", out + 1, sm, out)

def gen_mega(ev=EV, opt=None):
    opt = opt or {}
    a = Asm("m")
    NTK, NTS, NTQ, NTW = [("nt" if c in str(opt.get("nt", "ksqw")) else "") for c in "ksqw"]
    def x1srd(r):
        if ALIAS: a.srd(r, P_OUT, 4 * MB)
        else: a.srd(r, P_WS, 4 * MB, WS_X1)
    end = a.label("end"); prod = a.label("prod")
    a("s_cmp_ge_u32 s2, 256"); a("s_cbranch_scc1 %s", end)
    a.st_init(0, 250)
    a("s_getpc_b64 s[96:97]")
    a.put(a.label("pc0"))
    a("s_load_dwordx16 s[64:79], s[0:1], 0")
    a("s_load_dwordx16 s[80:95], s[0:1], 64")
    a("v_lshrrev_b32 v2, 6, v0")
    a("v_and_b32 v1, 63, v0")
    a("s_and_b32 s%d, s2, 7", SX_); a("s_lshr_b32 s%d, s2, 3", SIDX)
    a("v_readfirstlane_b32 s%d, v2", SW)
    a("s_lshr_b32 s%d, s%d, 1", SI, SX_); a("s_lshl_b32 s%d, s%d, 2", SI, SI); a("s_and_b32 s3, s%d, 3", SIDX); a("s_add_u32 s%d, s%d, s3", SI, SI)
    a("s_and_b32 s19, s%d, 1", SX_); a("s_lshr_b32 s3, s%d, 2", SIDX)
    a("s_mul_i32 s%d, s19, 7", SJ); a("s_add_u32 s%d, s%d, s3", SJ, SJ)
    a("s_lshl_b32 s%d, s19, 3", SJD); a("s_add_u32 s%d, s%d, s3", SJD, SJD)
    a("v_mov_b32 v3, %d", WT)
    a("s_waitcnt lgkmcnt(0)")
    a.srd(R_SY, P_WS, SY_END, WS_STATS)
    a("buffer_load_dword v2, v3, %s, 0 offen sc1", srdr(R_SY))
    def get_tag():
        a("v_readfirstlane_b32 s%d, v2", TAG)
        a("s_nop 0")
        a("s_mul_i32 s%d, s%d, 0x9E3779B1", TAG, TAG); a("s_add_u32 s%d, s%d, 0x7F4A7C15", TAG, TAG)
    a("s_cmp_ge_u32 s%d, 4", SW); a("s_cbranch_scc1 %s", prod)

    VCG, VRG = 3, 17
    VOFF, VSK = 4, 15
    RK, RV, RW, UK, UW, RES, TMP = 18, 40, 56, 128, 172, 188, 226
    VD_ = 240
    a.srd(20, P_K, 4 * MB); a.srd(24, P_V, 4 * MB); a.srd(28, P_SK, 8192); a.srd(32, P_WS, 4 * MB, WS_UR); a.srd(36, P_SSMD, 2048)
    a.srd(40, P_WS, 4 * MB, WS_YB)
    a("v_and_b32 v%d, 31, v0", VCG); a("v_lshrrev_b32 v%d, 5, v0", VRG)
    a("s_lshl_b32 s19, s%d, 17", SIDX); a("s_lshl_b32 s3, s%d, 8", SX_); a("s_add_u32 s19, s19, s3"); a("s_sub_u32 s19, s19, %d", 3 * 2048)
    a("v_lshlrev_b32 v%d, 14, v%d", VOFF, VRG); a("v_lshl_add_u32 v%d, v%d, 3, v%d", VOFF, VCG, VOFF); a("v_add_u32 v%d, s19, v%d", VOFF, VOFF)
    a("s_lshl_b32 s3, s%d, 10", SX_); a("v_lshl_add_u32 v%d, v%d, 5, s3", VSK, VCG)
    a("buffer_load_dwordx4 v[%d:%d], v%d, s[28:31], 0 offen", RW, RW + 3, VSK)
    a("buffer_load_dwordx4 v[%d:%d], v%d, s[28:31], 0 offen offset:16", RW + 4, RW + 7, VSK)
    for j in range(11):
        if j: a("v_add_u32 v%d, %d, v%d", VOFF + j, 2048 * j, VOFF)
        a("buffer_load_dwordx2 v[%d:%d], v%d, s[20:23], 0 offen %s", RK + 2 * j, RK + 2 * j + 1, VOFF + j, NTK)
    for j in range(8): a("buffer_load_dwordx2 v[%d:%d], v%d, s[24:27], 0 offen %s", RV + 2 * j, RV + 2 * j + 1, VOFF + 3 + j, NTK)
    SD = 48
    a("s_lshl_b32 s%d, s%d, 7", SD, SX_); a("s_lshl_b32 s3, s%d, 2", SIDX); a("s_add_u32 s%d, s%d, s3", SD, SD)
    a("s_add_u32 s49, s%d, s%d", SD, SW)
    a("s_lshl_b32 s3, s49, 1"); a("v_mov_b32 v%d, s3", TMP)
    a("buffer_load_ushort v%d, v%d, s[36:39], 0 offen", VD_, TMP)
    a("s_barrier")
    PK = 96
    VTAG, VZERO = 241, 242
    VW1, VR1, VG1 = TMP + 4, TMP + 6, TMP + 5
    a("v_sub_u32 v%d, 7, v%d", TMP + 4, VRG); a("v_and_b32 v%d, 7, v%d", TMP + 5, VCG); a("v_xor_b32 v%d, v%d, v%d", TMP + 4, TMP + 4, TMP + 5)
    a("v_lshlrev_b32 v%d, 4, v%d", TMP + 4, TMP + 4); a("v_lshl_add_u32 v%d, v%d, 9, v%d", TMP + 4, VCG, TMP + 4); a("v_add_u32 v%d, %d, v%d", VW1, L_T1, TMP + 4)
    a("v_lshrrev_b32 v%d, 3, v0", TMP + 7); a("v_and_b32 v%d, 7, v0", TMP + 5); a("v_lshrrev_b32 v%d, 2, v%d", TMP + 6, TMP + 7)
    a("v_xor_b32 v%d, v%d, v%d", TMP + 6, TMP + 6, TMP + 5); a("v_lshlrev_b32 v%d, 4, v%d", TMP + 6, TMP + 6)
    a("v_lshl_add_u32 v%d, v%d, 7, v%d", TMP + 6, TMP + 7, TMP + 6); a("v_add_u32 v%d, %d, v%d", VR1, L_T1, TMP + 6)
    a("s_lshl_b32 s3, s%d, 19", SX_); a("s_lshl_b32 s19, s%d, 7", SIDX); a("s_sub_u32 s3, s3, s19"); a("s_add_u32 s3, s3, %d", (2047 - 63) * 2)
    a("v_lshlrev_b32 v%d, 4, v%d", TMP + 5, TMP + 5); a("v_lshl_add_u32 v%d, v%d, 12, v%d", TMP + 5, TMP + 7, TMP + 5); a("v_add_u32 v%d, s3, v%d", VG1, TMP + 5)
    a("v_mov_b32 v%d, 0", VZERO)
    p1 = a.newlabel("p1"); p1e = a.newlabel("p1e")
    a("s_mov_b32 s53, %d", 0 if opt.get("dry1", 0) else 1)
    a.put(p1)
    a("s_cmp_eq_u32 s53, 0")
    def cwait(n, extra=None):
        sk = a.newlabel("w")
        a("s_cbranch_scc1 %s", sk)
        a("s_waitcnt vmcnt(%d)", n)
        if extra:
            extra(); a("s_cmp_eq_u32 s53, 0")
        a.put(sk)
    def tag_and_counter():
        get_tag()
        a("v_mov_b32 v%d, s%d", VTAG, TAG)
    cwait(20, tag_and_counter)
    for c in range(4):
        for t in range(4):
            dst = UW + (t * 2 + (c >> 1)) * 2 + (c & 1); src = RW + 2 * c + (t >> 1)
            if t & 1: a("v_and_b32 v%d, 0xffff0000, v%d", dst, src)
            else: a("v_lshlrev_b32 v%d, 16, v%d", dst, src)
    cwait(9, a.st if DIAG[0] else None)
    for j in range(11):
        for d in range(2): unpack(a, UK + 4 * j + 2 * d, UK + 4 * j + 2 * d + 1, RK + 2 * j + d)
    for j in range(8):
        for p in range(2):
            dst = RES + 4 * j + 2 * p
            a("v_pk_mul_f32 %s, %s, %s", pk(dst), pk(UK + 4 * j + 2 * p), pk(UW + (3 * 2 + p) * 2))
            for t in (2, 1, 0):
                a("v_pk_fma_f32 %s, %s, %s, %s", pk(dst), pk(UK + 4 * (j + 3 - t) + 2 * p), pk(UW + (t * 2 + p) * 2), pk(dst))
    cwait(1)
    for j in range(8):
        for p in range(2): unpack(a, UK + 4 * j + 2 * p, UK + 4 * j + 2 * p + 1, RV + 2 * j + p)
    for j in range(8):
        for p in range(2): a("v_pk_mul_f32 %s, %s, %s", pk(RES + 4 * j + 2 * p), pk(RES + 4 * j + 2 * p), pk(UK + 4 * j + 2 * p))
    for c in range(4):
        for m in range(4): a("v_cvt_pk_bf16_f32 v%d, v%d, v%d", PK + 4 * c + m, RES + 4 * (7 - 2 * m) + c, RES + 4 * (6 - 2 * m) + c)
    a("s_cbranch_scc0 %s", p1e)
    a("s_mov_b32 s53, 1")
    a("s_branch %s", p1)
    a.put(p1e)
    for c in range(4): a("ds_write_b128 v%d, v[%d:%d] offset:%d", VW1, PK + 4 * c, PK + 4 * c + 3, 128 * c)
    nc = a.newlabel("nc")
    a("s_cmp_ge_u32 s2, 16"); a("s_cbranch_scc1 %s", nc)
    a("s_cmp_lg_u32 s%d, 0", SW); a("s_cbranch_scc1 %s", nc)
    a("s_lshl_b32 s3, s2, 7"); a("s_add_u32 s3, s3, %d", CN)
    flag_store(a, VTAG, VZERO, "s3")
    a.put(nc)
    a("s_waitcnt lgkmcnt(0)")
    a.st()
    a("s_barrier")
    for m in range(4): a("ds_read_b128 v[%d:%d], v%d offset:%d", RV + 4 * m, RV + 4 * m + 3, VR1, 4096 * m)
    for m in range(4):
        a("s_mov_b32 s3, %d", m * 32 * 4096)
        a("s_waitcnt lgkmcnt(%d)", 3 - m)
        a("buffer_store_dwordx4 v[%d:%d], v%d, s[32:35], s3 offen sc1", RV + 4 * m, RV + 4 * m + 3, VG1)
    SLB = 50
    a("s_mul_i32 s%d, s%d, %d", SLB, SW, CV_W)
    VA, VB, VE, VS, VSG, VSR_, VPA, VL16 = 112, 116, 117, 118, 119, 120, 121, 122
    a("v_and_b32 v244, 15, v1"); a("v_lshrrev_b32 v245, 4, v1")
    a("v_and_b32 v246, 4, v244"); a("v_lshlrev_b32 v246, 1, v246"); a("v_lshrrev_b32 v247, 3, v244"); a("v_lshl_add_u32 v246, v247, 2, v246")
    a("v_and_b32 v247, 3, v244"); a("v_add3_u32 v246, v246, v247, 1")
    a("v_and_b32 v247, 1, v246"); a("v_mul_u32_u24 v247, 4160, v247"); a("v_and_b32 v246, 30, v246"); a("v_lshl_add_u32 v247, v246, 1, v247")
    a("v_lshl_add_u32 v247, v245, 4, v247"); a("s_add_u32 s3, s%d, %d", SLB, CV_C0); a("v_add_u32 v%d, s3, v247", VA)
    for j in range(1, 4): a("v_add_u32 v%d, %d, v%d", VA + j, 1024 * j, VA)
    a("v_lshlrev_b32 v247, 5, v244"); a("v_sub_u32 v247, 480, v247"); a("v_lshl_add_u32 v247, v245, 4, v247"); a("v_add_u32 v%d, s%d, v247", VB, SLB)
    a("v_and_b32 v246, 1, v245"); a("v_lshlrev_b32 v246, 4, v246"); a("v_lshrrev_b32 v247, 1, v245"); a("v_lshl_add_u32 v246, v247, 3, v246")
    a("v_lshl_add_u32 v246, v244, 5, v246"); a("v_sub_u32 v246, 504, v246"); a("v_add_u32 v%d, s%d, v246", VE, SLB)
    a("v_and_b32 v246, 1, v245"); a("v_lshl_add_u32 v246, v244, 1, v246"); a("v_lshl_add_u32 v246, v247, 5, v246")
    a("v_lshlrev_b32 v246, 2, v246"); a("v_add_u32 v246, s%d, v246", SW); a("v_and_b32 v247, 7, v244"); a("v_xor_b32 v246, v246, v247")
    a("v_lshlrev_b32 v246, 4, v246"); a("v_add_u32 v%d, %d, v246", VS, L_T1)
    a("v_bfe_u32 v246, v0, 3, 3"); a("v_xor_b32 v246, v246, v0"); a("v_lshlrev_b32 v246, 4, v246"); a("v_add_u32 v%d, %d, v246", VSR_, L_T1)
    a("v_lshrrev_b32 v246, 2, v0"); a("v_lshlrev_b32 v246, 14, v246"); a("v_and_b32 v247, 3, v0"); a("v_lshl_add_u32 v246, v247, 4, v246")
    a("s_lshl_b32 s3, s%d, 4", SD); a("v_add_u32 v%d, s3, v246", VSG)
    a("v_and_b32 v246, 31, v1"); a("v_mul_u32_u24 v%d, %d, v246", VPA, FAS)
    a("v_lshlrev_b32 v%d, 4, v1", VL16)
    ACC = 64; FA_ = [128, 160]; FB_ = [192, 4]
    for r in range(32): a("v_mov_b32 v%d, 0", ACC + r)
    a("s_waitcnt vmcnt(0)")
    a.st()
    a("s_barrier")
    nf = a.newlabel("nf")
    a("s_mul_i32 s51, s%d, %d", SX_, max(128, 32 * FAS)); a("s_add_u32 s51, s51, %d", FA)
    a("s_cmp_lg_u32 s%d, 0", SW); a("s_cbranch_scc1 %s", nf)
    a("s_mul_i32 s3, s%d, %d", SIDX, FAS); a("s_add_u32 s3, s3, s51")
    flag_store(a, VTAG, VZERO, "s3")
    a.put(nf)
    lead_poll(a, SW, 3, 244, lambda: poll(a, VPA, 246, TAG, "s51", n=32))
    a.st()
    a("s_lshl_b32 s52, s49, 12")
    for m in range(4):
        a("s_add_u32 m0, s%d, %d", SLB, CV_UR + 1024 * m)
        a("s_add_u32 s3, s52, %d", 1024 * m)
        a("buffer_load_dwordx4 v%d, s[32:35], s3 offen sc1 lds", VL16)
    lds_inc(a, 7, 244, 245)
    a("v_lshlrev_b32 v%d, 16, v%d", VD_, VD_)
    lds_wait(a, 6, 4, 244, 245)
    a("s_waitcnt vmcnt(0)")
    a.st()
    def cloads(rr, st):
        out = []
        def la(q):
            base = VA + (q >> 1); o = ((q & 1) * 8 + rr) * 16; d = FA_[st] + 4 * q
            out.append("ds_read2_b32 v[%d:%d], v%d offset0:%d offset1:%d" % (d, d + 1, base, o, o + 1))
            out.append("ds_read2_b32 v[%d:%d], v%d offset0:%d offset1:%d" % (d + 2, d + 3, base, o + 2, o + 3))
        def lb(t):
            d = FB_[st] + 4 * t
            out.append("ds_read_b128 v[%d:%d], v%d offset:%d" % (d, d + 3, VB, CV_UR + 64 * (56 - 8 * t + rr)))
        la(0)
        for t in range(8): lb(t)
        for q in range(1, 8): la(q)
        return out
    for l in cloads(0, 0): a(l)
    a("s_mov_b32 s53, 4")
    cvl = a.newlabel("cv")
    a.put(cvl)
    for st in range(2):
        nxt = cloads(st + 1, st ^ 1)
        if st == 1: nxt += ["v_add_u32 v%d, 128, v%d" % (r, r) for r in (VA, VA + 1, VA + 2, VA + 3, VB)] + ["s_sub_u32 s53, s53, 1", "s_cmp_lg_u32 s53, 0"]
        a("s_waitcnt lgkmcnt(0)")
        li = 0
        for q in range(8):
            ts = list(range(q, 8))
            if q & 1: ts.reverse()
            for t in ts:
                acc = ACC + 4 * t
                a("v_mfma_f32_16x16x32_bf16 %s, %s, %s, %s", v(acc, 4), v(FA_[st] + 4 * q, 4), v(FB_[st] + 4 * (t - q), 4), v(acc, 4))
                if li < len(nxt): a(nxt[li]); li += 1
        assert li == len(nxt)
    a("s_cbranch_scc1 %s", cvl)
    a("s_waitcnt lgkmcnt(0)")
    for t in range(8): a("ds_read_b64 v[%d:%d], v%d offset:%d", FA_[0] + 2 * t, FA_[0] + 2 * t + 1, VE, CV_UR + 512 * (7 - t))
    a.st()
    a("s_waitcnt lgkmcnt(0)")
    U = FA_[0]; T = FA_[1]; PKo = FB_[0]
    for t in range(8):
        acc = ACC + 4 * t
        unpack(a, T + 3, T + 2, U + 2 * t); unpack(a, T + 1, T + 0, U + 2 * t + 1)
        for r in range(4): a("v_fmac_f32 v%d, v%d, v%d", acc + r, VD_, T + r)
        a("v_cvt_pk_bf16_f32 v%d, v%d, v%d", PKo + 2 * t, acc, acc + 1); a("v_cvt_pk_bf16_f32 v%d, v%d, v%d", PKo + 2 * t + 1, acc + 2, acc + 3)
    a("s_nop 1")
    for t in range(0, 8, 2):
        R = PKo + 2 * t
        a("v_permlane32_swap_b32 v%d, v%d", R, R + 2); a("v_permlane32_swap_b32 v%d, v%d", R + 1, R + 3)
        a("ds_write_b128 v%d, v[%d:%d] offset:%d", VS, R, R + 3, t * 32 * 64)
    lds_sync(a, 2, 244)
    for m in range(4): a("ds_read_b128 v[%d:%d], v%d offset:%d", 96 + 4 * m, 99 + 4 * m, VSR_, 4096 * m)
    for m in range(4):
        a("s_mov_b32 s3, %d", m * 64 * 16384)
        a("s_waitcnt lgkmcnt(%d)", 3 - m)
        a("buffer_store_dwordx4 v[%d:%d], v%d, s[40:43], s3 offen sc1", 96 + 4 * m, 99 + 4 * m, VSG)
    VHF, VKK, VQ, VM, VRW, VRR, VQ2, VQL, VLS = 2, 3, 4, 5, 8, 9, 13, 6, 7
    YA = 16
    RQ, RP, Q, PR, RY, S, RS, MU, H, YU = 24, 40, 64, 96, 136, 152, 160, 192, 200, 208
    HG = 160
    a.srd(20, P_WS, 12288, WS_MOD); x1srd(24); a.srd(28, P_WS, 4 * MB, WS_H2)
    a("v_bfe_u32 v%d, v0, 2, 1", VHF)
    a("v_lshrrev_b32 v11, 3, v0"); a("v_and_b32 v12, 3, v0"); a("v_lshl_add_u32 v%d, v11, 2, v12", VKK)
    a("s_lshl_b32 s3, s2, 14")
    a("v_lshlrev_b32 v11, 13, v%d", VHF); a("v_lshl_add_u32 v11, v%d, 4, v11", VKK); a("v_add_u32 v%d, s3, v11", VQ); a("v_add_u32 v%d, 4096, v%d", VQ2, VQ)
    a("v_lshlrev_b32 v%d, 4, v%d", VM, VKK)
    a("v_mul_u32_u24 v11, %d, v%d", 4 * QROW, VHF); a("v_add3_u32 v%d, v11, v%d, 0", VQL, VM); a("v_add_u32 v%d, %d, v%d", VQL, L_QT, VQL)
    a("v_lshlrev_b32 v11, 5, v%d", VHF); a("v_add_u32 v%d, %d, v11", VLS, L_L1S)
    a("v_bfe_u32 v11, v%d, 1, 3", VKK); a("v_lshlrev_b32 v11, 4, v11"); a("v_lshlrev_b32 v12, 7, v%d", VKK); a("v_lshl_add_u32 v12, v%d, 3, v12", VHF)
    for i in range(8):
        a("v_xor_b32 v%d, %d, v11", YA + i, 16 * i); a("v_add_u32 v%d, v12, v%d", YA + i, YA + i)
    a("v_lshrrev_b32 v11, 4, v1"); a("v_lshlrev_b32 v11, 2, v11"); a("v_lshl_add_u32 v11, v%d, 7, v11", VHF)
    a("s_lshl_b32 s3, s%d, 5", SW); a("s_add_u32 s3, s3, 16384"); a("v_add_u32 v%d, s3, v11", VRW)
    a("v_lshlrev_b32 v%d, 7, v%d", VRR, VHF)
    a("v_and_b32 v11, 11, v1"); a("v_cmp_eq_u32 s[52:53], 0, v11")
    a("v_lshlrev_b32 v10, 8, v1"); a("v_lshlrev_b32 v14, 2, v1"); a("v_mov_b32 v12, 1")
    a("v_mov_b32 v11, %d", L_CNT + 20); a("v_mov_b32 v15, 1")
    a("s_waitcnt vmcnt(0)")
    a.st()
    a("s_mov_b64 exec, 1")
    a("ds_add_rtn_u32 v15, v11, v15")
    a("s_waitcnt lgkmcnt(0)")
    a("v_readfirstlane_b32 s56, v15")
    nb = a.newlabel("nb"); na = a.newlabel("na")
    a("s_and_b32 s55, s2, 15"); a("s_lshl_b32 s3, s55, 7"); a("s_add_u32 s3, s3, %d", CN)
    a("s_cmp_lg_u32 s56, 3"); a("s_cbranch_scc1 %s", na)
    a("buffer_atomic_add v12, v%d, %s, s3 offen sc0 sc1", VZERO, srdr(R_SY))
    a.put(na)
    a("s_mov_b64 exec, -1")
    lds_wait(a, 1, 4, 11, 15)
    for j in range(4): a("ds_read_b128 v[%d:%d], v%d offset:%d", RQ + 4 * j, RQ + 4 * j + 3, VQL, QROW * j)
    for j in range(2): a("ds_read_b128 v[%d:%d], v%d offset:%d", MU + 4 * j, MU + 4 * j + 3, VLS, 16 * j)
    a("s_add_u32 s54, s%d, 15", TAG); a("s_lshl_b32 s3, s55, 2"); a("s_add_u32 s3, s3, %d", FB2)
    a("s_lshl_b32 s55, s%d, 8", SX_); a("s_add_u32 s55, s55, %d", FB2)
    a("s_waitcnt lgkmcnt(0)")
    for j in range(4):
        for d in range(4): unpack(a, Q + 8 * j + 2 * d, Q + 8 * j + 2 * d + 1, RQ + 4 * j + d)
    for j in range(4):
        for e in range(0, 8, 2):
            a("v_pk_fma_f32 %s, %s, %s, %s op_sel:[0,0,1] op_sel_hi:[1,0,1]", pk(HG + 8 * j + e), pk(Q + 8 * j + e), pk(MU + 2 * j), pk(MU + 2 * j))
    a("s_cmp_lg_u32 s56, 3"); a("s_cbranch_scc1 %s", nb)
    a("s_waitcnt vmcnt(0)")
    a("v_readfirstlane_b32 s19, v12")
    nl = a.newlabel("nl")
    a("s_mov_b64 exec, 0xff")
    a("s_cmp_lg_u32 s19, s54"); a("s_cbranch_scc1 %s", nl)
    a("buffer_store_dword v%d, v10, %s, s3 offen sc1", VTAG, srdr(R_SY))
    a.put(nl)
    poll(a, 14, 11, TAG, "s55", n=16)
    a("s_cmp_lg_u32 s2, 0"); a("s_cbranch_scc1 %s", nb)
    a("s_mov_b32 s3, %d", WT)
    flag_store(a, VTAG, VZERO, "s3")
    a.put(nb)
    a("s_barrier")
    a.st()
    SA, CA, GA, SB, CBp = PR, PR + 8, PR + 16, PR + 24, PR + 32
    def unp_param(p):
        for d in range(4): unpack(a, PR + 8 * p + 2 * d, PR + 8 * p + 2 * d + 1, RP + 4 * p + d)
    ml = a.newlabel("ml"); mo = a.newlabel("mo")
    a("s_mov_b32 s11, 0")
    a.put(ml)
    for p in range(5):
        a("s_mov_b32 s3, %d", 2048 * p)
        a("buffer_load_dwordx4 v[%d:%d], v%d, s[20:23], s3 offen sc1", RP + 4 * p, RP + 4 * p + 3, VM)
    a("s_add_u32 s11, s11, 1")
    a("s_cmp_gt_u32 s11, %d", SPIN_MAX); a("s_cbranch_scc1 %s", mo)
    a("s_waitcnt vmcnt(0)")
    a("v_max3_u32 v11, v%d, v%d, v%d", RP, RP + 4, RP + 8); a("v_max3_u32 v11, v11, v%d, v%d", RP + 12, RP + 16)
    a("v_cmp_eq_u32 vcc, -1, v11"); a("s_nop 4"); a("s_cbranch_vccnz %s", ml)
    a.put(mo)
    unp_param(1); unp_param(0)
    for j in range(4):
        for e in range(0, 8, 2): a("v_pk_fma_f32 %s, %s, %s, %s", pk(HG + 8 * j + e), pk(HG + 8 * j + e), pk(CA + e), pk(SA + e))
    unp_param(2)
    for j in range(4):
        for e in range(0, 8, 2): a("v_pk_mul_f32 %s, %s, %s", pk(HG + 8 * j + e), pk(HG + 8 * j + e), pk(GA + e))
    a.st()
    a("s_barrier")
    a.st()
    for i in range(8): a("ds_read_b64 v[%d:%d], v%d", RY + 2 * i, RY + 2 * i + 1, YA + i)
    unp_param(4); unp_param(3)
    for i in range(8):
        a("s_waitcnt lgkmcnt(%d)", 7 - i)
        unpack(a, YU + i, YU + 8 + i, RY + 2 * i); unpack(a, YU + 16 + i, YU + 24 + i, RY + 2 * i + 1)
    for j in range(4):
        for e in range(0, 8, 2): a("v_pk_fma_f32 %s, %s, %s, %s", pk(H + e), pk(HG + 8 * j + e), pk(YU + 8 * j + e), pk(Q + 8 * j + e))
        for e in range(0, 8, 2): a("v_cvt_pk_bf16_f32 v%d, v%d, v%d", RQ + 4 * j + e // 2, H + e, H + e + 1)
        a("buffer_store_dwordx4 v[%d:%d], v%d, s[24:27], 0 offen offset:%d sc1", RQ + 4 * j, RQ + 4 * j + 3, VQ if j < 2 else VQ2, 2048 * (j & 1))
        for d in range(4): unpack(a, Q + 8 * j + 2 * d, Q + 8 * j + 2 * d + 1, RQ + 4 * j + d)
    for j in range(4):
        x = Q + 8 * j
        a("v_pk_add_f32 %s, %s, %s", pk(H), pk(x), pk(x + 2)); a("v_pk_mul_f32 %s, %s, %s", pk(H + 2), pk(x), pk(x))
        a("v_pk_add_f32 %s, %s, %s", pk(H + 4), pk(x + 4), pk(x + 6))
        for e in (2, 4, 6): a("v_pk_fma_f32 %s, %s, %s, %s", pk(H + 2), pk(x + e), pk(x + e), pk(H + 2))
        a("v_pk_add_f32 %s, %s, %s", pk(H), pk(H), pk(H + 4))
        a("v_add_f32 v%d, v%d, v%d", S + 4 + j, H + 2, H + 3); a("v_add_f32 v%d, v%d, v%d", S + j, H, H + 1)
    wave_reduce8(a, S, H)
    a("s_mov_b64 exec, s[52:53]")
    a("ds_write_b32 v%d, v%d", VRW, S); a("ds_write_b32 v%d, v%d offset:16", VRW, S + 4)
    a("s_mov_b64 exec, -1")
    a("s_waitcnt lgkmcnt(0)")
    a("s_barrier")
    a.st()
    for w in range(4):
        a("ds_read_b128 v[%d:%d], v%d offset:%d", RS + 8 * w, RS + 8 * w + 3, VRR, 16384 + 32 * w)
        a("ds_read_b128 v[%d:%d], v%d offset:%d", RS + 8 * w + 4, RS + 8 * w + 7, VRR, 16384 + 32 * w + 16)
    a("s_waitcnt lgkmcnt(0)")
    for (d, s) in ((0, 8), (16, 24), (0, 16)):
        for e in range(0, 8, 2): a("v_pk_add_f32 %s, %s, %s", pk(RS + d + e), pk(RS + d + e), pk(RS + s + e))
    a("s_mov_b32 s10, %s", fhex(1.0 / 1024))
    for j in range(4): a("v_mul_f32 v%d, s10, v%d", RS + j, RS + j)
    for j in range(4): a("v_mul_f32 v%d, v%d, v%d", RS + 8 + j, RS + j, RS + j)
    for j in range(4): a("v_fma_f32 v%d, v%d, s10, -v%d", RS + 4 + j, RS + 4 + j, RS + 8 + j)
    for j in range(4): a("v_max_f32 v%d, 0, v%d", RS + 4 + j, RS + 4 + j)
    for j in range(4): a("v_add_f32 v%d, %s, v%d", RS + 4 + j, fhex(EPS), RS + 4 + j)
    for j in range(4): a("v_rsq_f32 v%d, v%d", MU + 2 * j, RS + 4 + j)
    a("s_nop 0")
    for j in range(4): a("v_mul_f32_e64 v%d, -v%d, v%d", MU + 2 * j + 1, RS + j, MU + 2 * j)
    for j in range(4):
        for e in range(0, 8, 2):
            a("v_pk_fma_f32 %s, %s, %s, %s op_sel:[0,0,1] op_sel_hi:[1,0,1]", pk(H + e), pk(Q + 8 * j + e), pk(MU + 2 * j), pk(MU + 2 * j))
        for e in range(0, 8, 2): a("v_pk_fma_f32 %s, %s, %s, %s", pk(H + e), pk(H + e), pk(CBp + e), pk(SB + e))
        for e in range(0, 8, 2): a("v_cvt_pk_bf16_f32 v%d, v%d, v%d", RY + 4 * j + e // 2, H + e, H + e + 1)
        a("buffer_store_dwordx4 v[%d:%d], v%d, s[28:31], 0 offen offset:%d sc1", RY + 4 * j, RY + 4 * j + 3, VQ if j < 2 else VQ2, 2048 * (j & 1))
    a.st()
    a("s_waitcnt vmcnt(0)")
    a.st()
    a("s_barrier")
    nf = a.newlabel("nf")
    a("s_cmp_lg_u32 s%d, 0", SW); a("s_cbranch_scc1 %s", nf)
    a("s_lshr_b32 s3, s2, 4"); a("s_lshl_b32 s3, s3, 12"); a("s_and_b32 s19, s2, 15"); a("s_lshl_b32 s19, s19, 7"); a("s_add_u32 s3, s3, s19"); a("s_add_u32 s3, s3, %d", FC1)
    a("v_lshlrev_b32 v10, 11, v1")
    a("s_mov_b64 exec, 3")
    a("buffer_store_dword v%d, v10, %s, s3 offen sc1", VTAG, srdr(R_SY))
    a("s_mov_b64 exec, -1")
    a.put(nf)
    c_spare = a.label("cspare"); c_g3 = a.label("cg3")
    a("s_cmp_ge_u32 s%d, 28", SIDX); a("s_cbranch_scc1 %s", c_spare)

    if DIAG[0]: a("v_mov_b32 v31, v250"); a.diag = (0, 31)
    R_Z2, R_P, R_BSP = 32, 40, 36
    a.srd(R_Z2, P_WS, 14 * 524288, WS_Z2); a.srd(R_P, P_WS, 16 * 458752, WS_P); a.srd(R_BSP, P_BSP, 4096)
    XA, YB, YG, VSW, VSF, KC, T, VZ, VP, VBS = 2, 4, 12, 14, 15, 16, 20, 28, 29, 30
    AC = 32; HO = 96; F = [160, 192]; ZK = 224; S = 240; BS = 240
    SWM, SWN = 48, 49
    a("s_and_b32 s%d, s%d, 1", SWM, SW); a("s_lshr_b32 s%d, s%d, 1", SWN, SW)
    c, h, g, r_, cq = 20, 21, 21, 22, 23
    a("v_and_b32 v%d, 15, v1", c); a("v_lshrrev_b32 v%d, 4, v1", h); a("v_bfe_u32 v%d, v1, 2, 2", r_); a("v_and_b32 v%d, 3, v1", cq)
    a("s_lshl_b32 s3, s%d, 7", SI); a("s_lshl_b32 s19, s%d, 6", SWM); a("s_add_u32 s3, s3, s19"); a("s_lshl_b32 s3, s3, 1")
    a("v_lshl_add_u32 v%d, v%d, 1, s3", VBS, c)
    a("v_lshrrev_b32 v24, 1, v%d", c); a("v_xor_b32 v24, v24, v%d", h); a("v_lshlrev_b32 v24, 4, v24")
    a("v_lshl_add_u32 v24, v%d, 7, v24", c); a("s_lshl_b32 s3, s%d, 13", SWM); a("v_add_u32 v%d, s3, v24", XA); a("v_xor_b32 v%d, 64, v%d", XA + 1, XA)
    a("v_lshl_add_u32 v24, v%d, 3, v%d", g, r_); a("v_lshlrev_b32 v24, 8, v24"); a("v_lshl_add_u32 v24, v%d, 3, v24", cq)
    a("v_and_b32 v25, 1, v%d", g); a("v_xor_b32 v25, s%d, v25", SWN); a("v_lshl_add_u32 v24, v25, 7, v24"); a("v_add_u32 v24, %d, v24", L_Y)
    for nt in range(4):
        a("v_xor_b32 v25, %d, v%d", nt, r_); a("v_lshl_add_u32 v%d, v25, 5, v24", YB + 2 * nt); a("v_add_u32 v%d, 1024, v%d", YB + 2 * nt + 1, YB + 2 * nt)
    a("v_and_b32 v24, 1, v%d", g); a("v_lshl_add_u32 v24, v24, 3, v%d", r_)
    a("v_lshrrev_b32 v25, 1, v%d", cq); a("v_lshl_add_u32 v24, v25, 2, v24"); a("v_lshl_add_u32 v24, v25, 5, v24")
    a("v_lshrrev_b32 v25, 1, v%d", g); a("v_lshl_add_u32 v24, v25, 4, v24"); a("v_lshlrev_b32 v24, 4, v24")
    a("v_and_b32 v25, 1, v%d", cq); a("v_lshl_add_u32 v24, v25, 3, v24")
    a("s_lshl_b32 s3, s%d, 12", SWN); a("s_add_u32 s3, s3, %d", L_Y); a("v_add_u32 v%d, s3, v24", YG); a("v_xor_b32 v%d, 64, v%d", YG + 1, YG)
    a("s_lshl_b32 s3, s%d, 10", SWN); a("s_lshl_b32 s19, s%d, 9", SWM); a("s_add_u32 s3, s3, s19"); a("s_add_u32 s3, s3, %d", L_ST)
    a("v_lshl_add_u32 v%d, v1, 3, s3", VSW)
    a("s_add_u32 s3, s19, %d", L_FIN); a("v_lshl_add_u32 v%d, v%d, 3, s3", VSF, c)
    a("v_lshrrev_b32 v24, 1, v%d", h); a("v_lshlrev_b32 v24, 2, v24"); a("v_xor_b32 v24, v24, v%d", c); a("v_lshl_add_u32 v24, v%d, 4, v24", h)
    a("s_lshl_b32 s3, s%d, 19", SJ); a("s_lshl_b32 s19, s%d, 15", SI); a("s_add_u32 s3, s3, s19")
    a("s_lshl_b32 s19, s%d, 14", SWM); a("s_add_u32 s3, s3, s19"); a("s_lshl_b32 s19, s%d, 12", SWN); a("s_add_u32 s3, s3, s19")
    a("v_lshl_add_u32 v%d, v24, 4, s3", VZ)
    a("s_mul_i32 s3, s%d, 458752", SI); a("s_lshl_b32 s19, s%d, 15", SJ); a("s_add_u32 s3, s3, s19")
    a("s_lshl_b32 s19, s%d, 14", SWN); a("s_add_u32 s3, s3, s19"); a("s_lshl_b32 s19, s%d, 12", SWM); a("s_add_u32 s3, s3, s19")
    a("v_lshl_add_u32 v%d, v1, 4, s3", VP)
    SC = 52
    a("s_mov_b32 s%d, %s", SC, fhex(GC1)); a("s_mov_b32 s%d, %s", SC + 1, fhex(GC1)); a("s_mov_b32 s54, 8192")
    a("v_mov_b32 v%d, %s", KC, fhex(GC0)); a("v_mov_b32 v%d, %s", KC + 1, fhex(GC0)); a("v_mov_b32 v%d, 1.0", KC + 2); a("v_mov_b32 v%d, 1.0", KC + 3)
    a("s_mov_b32 s50, 0"); a("s_mov_b32 s51, %d", (1 << 4) | (1 << 8) | (1 << 16))
    def frag_loads(slot, ks, fs):
        out = []
        def X(mt): out.append("ds_read_b128 %s, v%d offset:%d" % (v(F[fs] + 4 * mt, 4), XA + ks, slot * 16384 + mt * 2048))
        def Y(nt):
            for hh in range(2): out.append("ds_read_b64_tr_b16 %s, v%d offset:%d" % (v(F[fs] + 16 + 4 * nt + 2 * hh, 2), YB + 2 * nt + hh, slot * 16384 + ks * 8192))
        X(0); Y(0); X(1); X(2); X(3); Y(1); Y(2); Y(3)
        return out
    def phase(fs, first, nxt, waits):
        need = {("x", 0): 0, ("y", 0): 2, ("x", 1): 3, ("x", 2): 4, ("x", 3): 5, ("y", 1): 7, ("y", 2): 9, ("y", 3): 11}
        done = -1; li = 0; nds = 0
        for nt in range(4):
            for mt in (range(4) if nt % 2 == 0 else range(3, -1, -1)):
                if waits:
                    p = max(need[("x", mt)], need[("y", nt)])
                    if p > done:
                        a("s_waitcnt lgkmcnt(%d)", min(15, 11 - p + nds)); done = p
                d = AC + 4 * (mt * 4 + nt)
                a("v_mfma_f32_16x16x32_bf16 %s, %s, %s, %s", v(d, 4), v(F[fs] + 16 + 4 * nt, 4), v(F[fs] + 4 * mt, 4), "0" if first else v(d, 4))
                if li < len(nxt):
                    a(nxt[li]); nds += nxt[li].startswith("ds_"); li += 1
        assert li == len(nxt)
    def gelu():
        G = 2; NGp = 32 // G
        def tm(gi): return [ZK + 4 * (gi % 4) + 2 * n for n in range(G)]
        def pre(gi):
            t = tm(gi); x = [AC + 2 * (G * gi + n) for n in range(G)]
            return ([("v_pk_mul_f32 %s, %s, %s" % (pk(t[n]), pk(x[n]), pk(x[n]))) for n in range(G)] +
                    [("v_pk_fma_f32 %s, %s, s[%d:%d], %s" % (pk(t[n]), pk(t[n]), SC, SC + 1, pk(KC))) for n in range(G)] +
                    [("v_pk_mul_f32 %s, %s, %s" % (pk(t[n]), pk(t[n]), pk(x[n]))) for n in range(G)])
        def ex(gi): return ["v_exp_f32 v%d, v%d" % (r, r) for t in tm(gi) for r in (t, t + 1)]
        def ad(gi): return ["v_pk_add_f32 %s, %s, %s" % (pk(t), pk(t), pk(KC + 2)) for t in tm(gi)]
        def rc(gi): return ["v_rcp_f32 v%d, v%d" % (r, r) for t in tm(gi) for r in (t, t + 1)]
        def fin_(gi): return ["v_pk_mul_f32 %s, %s, %s" % (pk(HO + 2 * (G * gi + n)), pk(AC + 2 * (G * gi + n)), pk(tm(gi)[n])) for n in range(G)]
        for step in range(NGp + 3):
            tr = (ex(step - 1) if 0 <= step - 1 < NGp else []) + (rc(step - 2) if 0 <= step - 2 < NGp else [])
            al = (ad(step - 2) if 0 <= step - 2 < NGp else []) + (fin_(step - 3) if 0 <= step - 3 < NGp else []) + (pre(step) if step < NGp else [])
            out = []
            while tr or al:
                if al: out.append(al.pop(0))
                if tr: out.append(tr.pop(0))
            if not (0 <= step - 1 < NGp) and 0 <= step - 2 < NGp:
                out = ad(step - 2) + [o for o in out if o not in ad(step - 2)]
            for o in out: a(o)
            if step >= NGp: a("s_nop 0")
    def stats_z2():
        for mt in range(4):
            x = HO + 16 * mt
            a("v_pk_add_f32 %s, %s, %s", pk(T), pk(x), pk(x + 2)); a("v_pk_mul_f32 %s, %s, %s", pk(T + 2), pk(x), pk(x))
            a("v_pk_add_f32 %s, %s, %s", pk(T + 4), pk(x + 4), pk(x + 6)); a("v_pk_mul_f32 %s, %s, %s", pk(T + 6), pk(x + 2), pk(x + 2))
            for e in range(4, 16, 4):
                a("v_pk_fma_f32 %s, %s, %s, %s", pk(T + 2), pk(x + e), pk(x + e), pk(T + 2))
                a("v_pk_fma_f32 %s, %s, %s, %s", pk(T + 6), pk(x + e + 2), pk(x + e + 2), pk(T + 6))
            for e in range(8, 16, 4):
                a("v_pk_add_f32 %s, %s, %s", pk(T), pk(T), pk(x + e)); a("v_pk_add_f32 %s, %s, %s", pk(T + 4), pk(T + 4), pk(x + e + 2))
            a("v_pk_add_f32 %s, %s, %s", pk(T), pk(T), pk(T + 4)); a("v_pk_add_f32 %s, %s, %s", pk(T + 2), pk(T + 2), pk(T + 6))
            a("v_add_f32 v%d, v%d, v%d", S + mt, T, T + 1); a("v_add_f32 v%d, v%d, v%d", S + 4 + mt, T + 2, T + 3)
        a("s_nop 1")
        for base in (S, S + 4):
            a("v_permlane32_swap_b32 v%d, v%d", base, base + 2); a("v_permlane32_swap_b32 v%d, v%d", base + 1, base + 3)
        for base in (S, S + 4):
            a("v_add_f32 v%d, v%d, v%d", base, base, base + 2); a("v_add_f32 v%d, v%d, v%d", base + 1, base + 1, base + 3)
        a("s_nop 0")
        for base in (S, S + 4): a("v_permlane16_swap_b32 v%d, v%d", base, base + 1)
        a("v_add_f32 v%d, v%d, v%d", S, S, S + 1); a("v_add_f32 v%d, v%d, v%d", S + 1, S + 4, S + 5)
        a("ds_write_b64 v%d, %s", VSW, pk(S))
        a("s_waitcnt lgkmcnt(0)")
    def store_z(n):
        R = ZK + 4 * n; mp, nt = n // 4, n % 4
        a("v_permlane16_swap_b32 v%d, v%d", R, R + 2); a("v_permlane16_swap_b32 v%d, v%d", R + 1, R + 3)
        a("buffer_store_dwordx4 %s, v%d, %s, %s offen offset:%d sc1", v(R, 4), VZ, srdr(R_Z2), "s54" if mp else "0", 1024 * nt)
    def burst_norm():
        for mt in range(4): a("ds_read_b64 %s, v%d offset:%d", pk(T + 2 * mt), VSF, 128 * mt)
        a("s_waitcnt lgkmcnt(0)")
        n = 0
        for mp in range(2):
            for nt in range(4):
                R = ZK + 4 * n; n += 1
                for q in range(2):
                    mt = 2 * mp + q; x = HO + 4 * (mt * 4 + nt)
                    for e in (0, 2): a("v_pk_fma_f32 %s, %s, %s, %s op_sel:[0,0,1] op_sel_hi:[1,0,1]", pk(x + e), pk(x + e), pk(T + 2 * mt), pk(T + 2 * mt))
                for q in range(2):
                    mt = 2 * mp + q; x = HO + 4 * (mt * 4 + nt)
                    for e in (0, 2): a("v_cvt_pk_bf16_f32 v%d, v%d, v%d", R + 2 * q + e // 2, x + e, x + e + 1)
                if n > 1: store_z(n - 2)
        a("s_nop 1")
        store_z(7)
    def burst_p():
        a("s_waitcnt vmcnt(0) lgkmcnt(0)")
        for mt in range(4): a("v_lshlrev_b32 v%d, 16, v%d", T + 2 * mt, BS + mt)
        a("s_nop 3")
        for pr in range(2):
            for mt in range(4):
                R = F[0] + 4 * (pr * 4 + mt)
                os_ = [4 * (mt * 4 + 2 * pr + q) + e for q in range(2) for e in (0, 2)]
                for o in os_: a("v_pk_add_f32 %s, %s, %s op_sel_hi:[1,0]", pk(AC + o), pk(AC + o), pk(T + 2 * mt))
                for o in os_: a("v_pk_mul_f32 %s, %s, %s", pk(AC + o), pk(AC + o), pk(HO + o))
                for n, o in enumerate(os_): a("v_cvt_pk_bf16_f32 v%d, v%d, v%d", R + n, AC + o, AC + o + 1)
                a("buffer_store_dwordx4 %s, v%d, %s, %s offen offset:%d sc1", v(R, 4), VP, srdr(R_P), "s54" if pr else "0", 1024 * mt)
    l_first, l_top, l_mid, l_norm, l_normr, l_sw, l_swr, l_fin, l_z1 = [a.label(n) for n in ("kfirst", "ktop", "kmid", "knorm", "knormr", "ksw", "kswr", "kfin", "kz1")]
    assert ev["norm"] % 4 == 2 and ev["drain"] % 4 == 0
    a("s_waitcnt vmcnt(0)")
    a("s_barrier")
    a.st()
    for l in frag_loads(0, 0, 0): a(l)
    a.put(l_first)
    phase(0, True, frag_loads(0, 1, 1), True)
    a("s_branch %s", l_mid)
    a.put(l_top)
    for slot in range(4):
        extra = []
        if slot == 3: extra = ["s_cmp_eq_u32 s50, 7"]
        phase(0, False, frag_loads(slot, 1, 1) + extra, True)
        if slot == 0: a.put(l_mid)
        a("s_waitcnt vmcnt(0) lgkmcnt(0)" if slot == 0 else "s_waitcnt lgkmcnt(0)")
        a("s_barrier")
        if slot == 3:
            a("s_cbranch_scc1 %s", l_sw); a.put(l_swr)
        if slot in opt.get("stslots", (1, 3)): a.st()
        extra = []
        if slot == 2: extra = ["s_cmp_eq_u32 s50, %d" % (ev["norm"] // 4)]
        if slot == 3: extra = ["s_add_u32 s50, s50, 1", "s_bitcmp1_b32 s51, s50"]
        phase(1, False, frag_loads((slot + 1) & 3, 0, 0) + extra, False)
        if slot == 2:
            a("s_cbranch_scc1 %s", l_norm); a.put(l_normr)
    a("s_cbranch_scc0 %s", l_top)
    a("s_cmp_eq_u32 s50, 16"); a("s_cbranch_scc1 %s", l_fin)
    a("s_cmp_lg_u32 s50, 8"); a("s_cbranch_scc1 %s", l_z1)
    for mt in range(4): a("buffer_load_ushort v%d, v%d, %s, 0 offen offset:%d", BS + mt, VBS, srdr(R_BSP), 32 * mt)
    a.put(l_z1)
    a("s_nop 3")
    gelu()
    a("s_cmp_eq_u32 s50, 8"); a("s_cbranch_scc1 %s", l_first)
    stats_z2()
    a("s_branch %s", l_first)
    a.put(l_sw)
    for nt in range(4):
        for hh in range(2): a("v_add_u32 v%d, %d, v%d", YB + 2 * nt + hh, 1024 * nt, YG + hh)
    a("s_branch %s", l_swr)
    a.put(l_norm)
    burst_norm()
    a("s_branch %s", l_normr)
    a.put(l_fin)
    burst_p()
    if DIAG[0]: a("v_mov_b32 v250, v31"); a.diag = (0, 250)
    a("s_waitcnt vmcnt(0)")
    a("s_barrier")
    a.st()
    a("s_branch %s", c_g3)

    def spare_stream():
        mode = opt.get("spare", 2)
        if mode == 0: return
        nw = {1: 8, 2: 2, 3: 4}[mode]
        sk = a.newlabel("ss")
        a.srd(20, P_WIN, 1024 * 7168); a.srd(24, P_WSP, 8 * MB); a.srd(28, P_WOUT, 1792 * 2048)
        a("s_cmp_ge_u32 s%d, %d", SW, nw); a("s_cbranch_scc1 %s", sk)
        a("s_sub_u32 s3, s%d, 28", SIDX); a("s_lshl_b32 s19, s%d, 2", SX_); a("s_add_u32 s3, s3, s19"); a("s_mul_i32 s3, s3, %d", nw); a("s_add_u32 s48, s3, s%d", SW)
        a("s_lshl_b32 s3, s48, 6"); a("v_add_u32 v2, s3, v1")
        step = 32 * nw * 64
        a("s_mov_b32 s49, 9363")
        def loop(n, body):
            lp = a.newlabel("sl")
            a("v_mov_b32 v3, v2"); a("s_mov_b32 s50, %d", -(-n // step))
            a.put(lp)
            body()
            a("v_add_u32 v3, %d, v3", step)
            if nw < 8: a("s_waitcnt vmcnt(0)")
            a("s_sub_u32 s50, s50, 1"); a("s_cmp_lg_u32 s50, 0"); a("s_cbranch_scc1 %s", lp)
        def b_in():
            a("v_lshrrev_b32 v4, 2, v3"); a("v_mul_u32_u24 v4, s49, v4"); a("v_lshrrev_b32 v4, 16, v4")
            a("v_mul_u32_u24 v5, 28, v4"); a("v_sub_u32 v5, v3, v5")
            a("v_mul_u32_u24 v4, 7168, v4"); a("v_lshl_add_u32 v5, v5, 7, v4")
            a("buffer_load_dword v10, v5, s[20:23], 0 offen")
        def b_sp():
            a("v_and_b32 v4, 2047, v3"); a("v_lshrrev_b32 v5, 11, v3"); a("v_lshlrev_b32 v4, 12, v4"); a("v_lshl_add_u32 v5, v5, 7, v4")
            a("buffer_load_dword v10, v5, s[24:27], 0 offen")
        def b_out():
            a("v_lshlrev_b32 v5, 7, v3")
            a("buffer_load_dword v10, v5, s[28:31], 0 offen")
        loop(28672, b_in); loop(65536, b_sp); loop(28672, b_out)
        a("s_waitcnt vmcnt(0)")
        a.put(sk)
    a.put(c_spare)
    spare_stream()

    a.put(c_g3)
    S3 = 4; NK = 28
    VO, VG, VSR, X1R, GBR = 120, 121, 122, 124, 132
    R_W, R_O, R_P3, R_X1, R_M = 20, 24, 28, 32, 36
    def g3_final_setup():
        a.srd(R_O, P_OUT, 4 * MB); x1srd(R_X1); a.srd(R_M, P_WS, 12288, WS_MOD)
        a("v_lshrrev_b32 v110, 3, v0"); a("v_and_b32 v111, 7, v0")
        a("s_lshl_b32 s3, s%d, 18", SI); a("s_lshl_b32 s19, s%d, 7", SJD); a("s_add_u32 s3, s3, s19")
        a("v_lshlrev_b32 v112, 4, v111"); a("v_lshl_add_u32 v113, v110, 11, v112"); a("v_add_u32 v%d, s3, v113", VO)
        a("s_add_u32 s19, s19, %d", 5 * 2048); a("v_add_u32 v%d, s19, v112", VG)
        a("v_and_b32 v112, 7, v110"); a("v_xor_b32 v112, v112, v111"); a("v_lshlrev_b32 v112, 4, v112"); a("v_lshl_add_u32 v%d, v110, 7, v112", VSR)
        a("s_mov_b32 s9, %d", 64 * 2048)
    def final_loads():
        a("buffer_load_dwordx4 %s, v%d, %s, 0 offen sc1", v(X1R, 4), VO, srdr(R_X1))
        a("buffer_load_dwordx4 %s, v%d, %s, s9 offen sc1", v(X1R + 4, 4), VO, srdr(R_X1))
        a("buffer_load_dwordx4 %s, v%d, %s, 0 offen sc1", v(GBR, 4), VG, srdr(R_M))
    g3_final_setup()
    XA3, YA3, VSW3 = 2, 4, 8
    ACC3 = 16; F3 = [48, 72]
    c, g, r_, cq = 10, 11, 12, 13
    a("v_and_b32 v%d, 15, v1", c); a("v_lshrrev_b32 v%d, 4, v1", g); a("v_bfe_u32 v%d, v1, 2, 2", r_); a("v_and_b32 v%d, 3, v1", cq)
    a("s_lshl_b32 s3, s%d, 11", SW); a("v_lshl_add_u32 v%d, v1, 4, s3", XA3)
    a("v_lshl_add_u32 v14, v%d, 2, v%d", g, r_); a("v_bfe_u32 v15, v14, 1, 2")
    a("v_lshlrev_b32 v14, 7, v14"); a("v_lshl_add_u32 v14, v%d, 3, v14", cq); a("v_add_u32 v14, %d, v14", L_Y3)
    for dt in range(4):
        a("v_xor_b32 v9, %d, v15", dt); a("v_lshl_add_u32 v%d, v9, 5, v14", YA3 + dt)
    a("v_lshrrev_b32 v14, 1, v%d", g); a("v_and_b32 v15, 7, v%d", c); a("v_xor_b32 v14, v14, v15"); a("v_lshlrev_b32 v14, 4, v14")
    a("v_and_b32 v15, 1, v%d", g); a("v_lshl_add_u32 v14, v15, 3, v14"); a("v_lshl_add_u32 v14, v%d, 7, v14", c)
    a("s_lshl_b32 s3, s%d, 12", SW); a("s_add_u32 s3, s3, 65536"); a("v_add_u32 v%d, s3, v14", VSW3)
    def frag3(slot, ks, fs):
        out = []
        def X(tt): out.append("ds_read_b128 %s, v%d offset:%d" % (v(F3[fs] + 4 * tt, 4), XA3, slot * 16384 + ks * 8192 + tt * 1024))
        def Y(dt):
            for hh in range(2):
                out.append("ds_read_b64_tr_b16 %s, v%d offset:%d" % (v(F3[fs] + 8 + 4 * dt + 2 * hh, 2), YA3 + dt, slot * 8192 + (32 * ks + 16 * hh) * 128))
        X(0); Y(0); X(1); Y(1); Y(2); Y(3)
        return out
    def phase3(fs, nxt, waits):
        need = {("x", 0): 0, ("y", 0): 2, ("x", 1): 3, ("y", 1): 5, ("y", 2): 7, ("y", 3): 9}
        done = -1; li = 0; n = 0
        for dt in range(4):
            for tt in ((0, 1) if dt % 2 == 0 else (1, 0)):
                if waits:
                    p = max(need[("x", tt)], need[("y", dt)])
                    if p > done:
                        a("s_waitcnt lgkmcnt(%d)", min(15, 9 - p + li)); done = p
                d = ACC3 + 4 * (tt * 4 + dt)
                a("v_mfma_f32_16x16x32_bf16 %s, %s, %s, %s", v(d, 4), v(F3[fs] + 8 + 4 * dt, 4), v(F3[fs] + 4 * tt, 4), v(d, 4))
                n += 1
                for _ in range(2 if n <= 2 else 1):
                    if li < len(nxt): a(nxt[li]); li += 1
        assert li == len(nxt)
    for r in range(32): a("v_mov_b32 v%d, 0", ACC3 + r)
    a("s_mov_b32 s50, 7")
    a("s_barrier")
    a.st()
    final_loads()
    for l in frag3(0, 0, 0): a(l)
    lab = a.newlabel("cl")
    a.put(lab)
    for slot in range(4):
        phase3(0, frag3(slot, 1, 1), True)
        a("s_waitcnt lgkmcnt(0)")
        a("s_barrier")
        if slot == 3: a.st()
        phase3(1, frag3((slot + 1) & 3, 0, 0), False)
    a("s_sub_u32 s50, s50, 1"); a("s_cmp_lg_u32 s50, 0"); a("s_cbranch_scc1 %s", lab)
    a("s_waitcnt lgkmcnt(0)")
    a("s_nop 7")
    for tt in range(2):
        for dt in range(4):
            d = ACC3 + 4 * (tt * 4 + dt); R = F3[0] + 2 * (tt * 4 + dt)
            a("v_cvt_pk_bf16_f32 v%d, v%d, v%d", R, d, d + 1); a("v_cvt_pk_bf16_f32 v%d, v%d, v%d", R + 1, d + 2, d + 3)
    for dt in range(4):
        if dt: a("v_xor_b32 v9, %d, v%d", 32 * dt, VSW3)
        for tt in range(2):
            a("ds_write_b64 v%d, %s offset:%d", 9 if dt else VSW3, pk(F3[0] + 2 * (tt * 4 + dt)), 2048 * tt)
    fin = a.label("fin")
    a("s_branch %s", fin)

    a.put(prod)
    PV = 48
    a("s_sub_u32 s%d, s%d, 4", PV, SW)
    a.srd(20, P_SSMK, 4 * MB); a.srd(24, P_Q, 4 * MB); a.srd(28, P_C, 2048); a.srd(32, P_WMOD, 12 * MB)
    a.srd(36, P_WS, 16 * 24576, WS_MODP); a.srd(40, P_WS, 12288, WS_MOD)
    RKr, ZR, SH = 64, 88, 92
    a("s_mul_i32 s49, s%d, %d", PV, CV_W)
    a("s_lshl_b32 s50, s%d, 7", SX_); a("s_lshl_b32 s3, s%d, 2", SIDX); a("s_add_u32 s50, s50, s3"); a("s_add_u32 s50, s50, s%d", PV); a("s_lshl_b32 s50, s50, 12")
    a("v_lshlrev_b32 v3, 4, v1")
    a("v_add_u32 v6, s49, v3")
    for r in range(4): a("v_mov_b32 v%d, 0", ZR + r)
    a("s_mov_b32 exec_hi, 0")
    a("ds_write_b128 v6, v[%d:%d] offset:%d", ZR, ZR + 3, CV_UR + 4096)
    a("s_mov_b64 exec, 3")
    a("ds_write_b128 v6, v[%d:%d] offset:%d", ZR, ZR + 3, CV_C0)
    a("s_mov_b64 exec, 1")
    a("ds_write_b128 v6, v[%d:%d] offset:%d", ZR, ZR + 3, CV_C1)
    a("v_mov_b32 v7, %d", L_CNT)
    a("ds_write_b128 v7, v[%d:%d]", ZR, ZR + 3)
    a("ds_write_b128 v7, v[%d:%d] offset:16", ZR, ZR + 3)
    a("v_mov_b32 v7, %d", L_CD)
    a("ds_write_b32 v7, v%d", ZR)
    a("s_mov_b64 exec, -1")
    SG_R, SG_C = 51, 52
    a("s_lshr_b32 s%d, s%d, 1", SG_R, SIDX); a("s_lshl_b32 s%d, s%d, 1", SG_C, SX_); a("s_and_b32 s3, s%d, 1", SIDX); a("s_add_u32 s%d, s%d, s3", SG_C, SG_C)
    a("s_lshl_b32 s4, s%d, 6", SG_R); a("s_lshl_b32 s3, s%d, 4", PV); a("s_add_u32 s4, s4, s3")
    a("v_lshrrev_b32 v4, 4, v1"); a("v_lshlrev_b32 v4, 4, v4"); a("s_lshl_b32 s3, s%d, 7", SG_R); a("v_add_u32 v4, s3, v4")
    a("s_mul_i32 s5, s4, 12288"); a("s_mul_i32 s3, s%d, 768", SG_C); a("s_add_u32 s5, s5, s3")
    a("s_waitcnt lgkmcnt(0)")
    a("s_barrier")
    CR, SLT, SPK, AM, WMV, WMR, YF, GAC = 108, 116, 148, 156, 204, 210, 64, 112
    a("s_and_b32 s3, s2, 14"); a("s_cmp_eq_u32 s3, 14"); a("s_cselect_b32 s3, 0, -1")
    a("v_mov_b32 v60, s3"); a("s_lshl_b32 s3, s2, 10"); a("s_sub_u32 s3, s3, 1024"); a("v_lshl_add_u32 v61, v0, 2, s3")
    a("buffer_store_dword v60, v61, %s, 0 offen sc1", srdr(R_SY))
    a("v_mov_b32 v62, -1"); a("v_mov_b32 v63, -1")
    a("s_mul_i32 s3, s%d, 24576", SG_R); a("s_mul_i32 s19, s%d, 1536", SG_C); a("s_add_u32 s60, s3, s19")
    ns = a.newlabel("ns"); ns2 = a.newlabel("ns")
    a("s_cmp_eq_u32 s%d, 3", PV); a("s_cbranch_scc1 %s", ns)
    a("s_lshl_b32 s3, s%d, 9", PV); a("v_lshl_add_u32 v5, v1, 3, s3")
    a("buffer_store_dwordx2 v[62:63], v5, s[36:39], s60 offen sc1")
    a("s_branch %s", ns2)
    a.put(ns)
    a("s_mul_i32 s3, s%d, 1536", SX_); a("s_lshl_b32 s19, s%d, 6", SIDX); a("s_add_u32 s3, s3, s19")
    a("s_cmp_ge_u32 s%d, 24", SIDX); a("s_cselect_b32 s3, 0x10000, s3")
    a("v_lshlrev_b32 v5, 2, v1")
    a("s_mov_b64 exec, 0xffff")
    a("buffer_store_dword v62, v5, s[40:43], s3 offen sc1")
    a("s_mov_b64 exec, -1")
    a.put(ns2)
    for m in range(4):
        a("s_add_u32 s3, s50, %d", 1024 * m)
        a("buffer_load_dwordx4 v[%d:%d], v3, s[20:23], s3 offen %s", RKr + 6 * m, RKr + 6 * m + 3, NTS)
        a("buffer_load_dword v%d, v3, s[20:23], s3 offen offset:16 %s", RKr + 6 * m + 4, NTS)
    for ks in range(2): a("buffer_load_dwordx4 %s, v4, s[28:31], 0 offen offset:%d", v(CR + 4 * ks, 4), 64 * ks)
    if opt.get("codepf", 1):
        ncp = a.newlabel("ncp")
        a("s_cmp_lg_u32 s%d, 7", SW); a("s_cbranch_scc1 %s", ncp)
        a("s_cmp_ge_u32 s%d, 4", SIDX); a("s_cbranch_scc1 %s", ncp)
        a("s_lshl_b32 s3, s%d, 13", SIDX); a("v_lshl_add_u32 v60, v1, 7, s3")
        a("v_min_u32 v60, %s-%s-4, v60", end, a.label("pc0"))
        a("v_mov_b32 v61, s97"); a("v_add_co_u32 v60, vcc, s96, v60"); a("s_nop 1"); a("v_addc_co_u32 v61, vcc, 0, v61, vcc")
        a("global_load_dword v216, v[60:61], off")
        a("s_nop 0")
        a.put(ncp)
    if opt.get("tlb", 0):
        ntl = a.newlabel("ntl")
        a("s_cmp_lg_u32 s%d, 5", SW); a("s_cbranch_scc1 %s", ntl)
        a("v_lshlrev_b32 v60, %d, v1", opt["tlb"]); a("v_add_u32 v60, 0x3f80, v60")
        for ptr, nb, off in ((P_WS, 36 * MB, WS_UR), (P_WIN, 7 * MB, 0), (P_WSP, 8 * MB, 0), (P_WOUT, 1792 * 2048, 0), (P_OUT, 4 * MB, 0), (P_Q, 4 * MB, 0), (P_WMOD, 12 * MB, 0), (P_BSP, 4096, 0)):
            a("s_mov_b32 s61, s5") if False else None
            a.srd(56, ptr, nb, off)
            for r in range(max(1, (nb >> opt["tlb"]) // 64)):
                a("s_mov_b32 s3, %d", r << (opt["tlb"] + 6))
                a("buffer_load_dword v217, v60, s[56:59], s3 offen")
        a.put(ntl)
    a("s_waitcnt vmcnt(%d)", 12)
    get_tag()
    a("s_mov_b32 s3, 1366")
    for mm in range(3):
        a("v_add_u32 v60, %d, v1", 64 * mm); a("v_mul_u32_u24 v61, s3, v60"); a("v_lshrrev_b32 v61, 16, v61")
        a("v_mul_u32_u24 v62, 48, v61"); a("v_sub_u32 v60, v60, v62")
        a("v_lshlrev_b32 v62, 1, v61"); a("v_xor_b32 v60, v60, v62"); a("v_lshlrev_b32 v60, 4, v60")
        a("v_mul_u32_u24 v61, 12288, v61"); a("v_add_u32 v%d, v60, v61", WMV + mm)
        a("v_xor_b32 v60, 128, v60"); a("v_add_u32 v%d, v60, v61", WMV + 3 + mm)
    a("v_lshrrev_b32 v60, 4, v1"); a("v_bfe_u32 v61, v1, 2, 2"); a("v_lshl_add_u32 v62, v60, 3, v61"); a("v_mul_u32_u24 v62, 768, v62")
    a("v_and_b32 v63, 3, v1"); a("v_lshl_add_u32 v62, v63, 3, v62"); a("v_add_u32 v62, %d, v62", L_WM)
    a("v_and_b32 v60, 1, v60"); a("v_lshl_add_u32 v61, v60, 2, v61")
    a("s_mul_i32 s3, s%d, 6", PV)
    for nt in range(6):
        a("v_xor_b32 v60, s3, v61"); a("v_lshl_add_u32 v%d, v60, 5, v62", WMR + nt)
        if nt < 5: a("s_add_u32 s3, s3, 1")
    WPOS, QPOS, TPOS = opt.get("wmpos", "ur"), opt.get("qpos", "b0"), opt.get("tpos", "ur")
    vq = []
    def place(pos):
        if WPOS == pos: do_wm(); vq.extend(["w"] * 12)
        if QPOS == pos: do_q(); vq.extend(["q"] * 4)
        if TPOS == pos: do_t(); vq.append("t")
    def younger(kind): return len(vq) - 1 - max(n for n, k in enumerate(vq) if k == kind)
    def do_wm():
        a("s_mul_i32 s4, s%d, %d", PV, 16 * 768); a("s_add_u32 s4, s4, %d", L_WM)
        for m in range(12):
            a("s_add_u32 m0, s4, %d", 1024 * m)
            if m and m % 3 == 0: a("s_add_u32 s5, s5, %d", 4 * 12288)
            else: a("s_nop 0")
            a("buffer_load_dwordx4 v%d, s[32:35], s5 offen %s lds", WMV + 3 * (m // 6) + m % 3, NTW)
    def do_q():
        a("s_lshl_b32 s6, s2, 14"); a("s_lshl_b32 s3, s%d, 12", PV); a("s_add_u32 s6, s6, s3")
        a("s_mul_i32 s7, s%d, %d", PV, 2 * QROW); a("s_add_u32 s7, s7, %d", L_QT)
        for u in range(4):
            a("s_add_u32 m0, s7, %d", (u >> 1) * QROW + (u & 1) * 1024)
            a("s_add_u32 s3, s6, %d", 1024 * u)
            a("buffer_load_dwordx4 v3, s[24:27], s3 offen %s lds", NTQ)
    def do_t():
        a.srd(20, P_WIN, 1024 * 7168)
        a("s_lshl_b32 s3, s2, 2"); a("s_add_u32 s3, s3, s%d", PV); a("s_mul_i32 s3, s3, 7168"); a("s_add_u32 s3, s3, 3584")
        a("v_lshlrev_b32 v60, 7, v1")
        a("s_mov_b32 exec_lo, 0x%x", 0xfffffff if opt.get("winpf", 1) == 1 else 1); a("s_mov_b32 exec_hi, 0")
        a("buffer_load_dword v216, v60, s[20:23], s3 offen")
        a("s_mov_b64 exec, -1")
    place("b0")
    nb0 = len(vq)
    XZ, XG, YZp, YGp, VPUB, VLD, VPOLL, VFIN, VFP, VTG, VZR = 8, 12, 16, 20, 24, 25, 26, 27, 28, 29, 30
    VYD, XP, YP, VF16, VFD = 50, 52, 56, 58, 59
    SLX, SLY, SXo, SYo = 49, 50, 53, 54
    a("s_lshl_b32 s%d, s%d, 10", SLX, PV)
    a("s_lshl_b32 s%d, s%d, 12", SLY, PV); a("s_add_u32 s%d, s%d, %d", SLY, SLY, L_Y)
    a("v_lshrrev_b32 v60, 4, v1"); a("s_and_b32 s3, s%d, 1", PV); a("s_lshl_b32 s3, s3, 2"); a("v_add_u32 v60, s3, v60")
    a("v_and_b32 v61, 7, v1"); a("v_xor_b32 v60, v60, v61"); a("v_lshlrev_b32 v60, 4, v60")
    a("v_lshrrev_b32 v61, 3, v1"); a("s_lshl_b32 s3, s%d, 7", SI); a("s_lshl_b32 s19, s%d, 3", PV); a("s_add_u32 s3, s3, s19"); a("v_add_u32 v61, s3, v61")
    a("v_lshl_add_u32 v%d, v61, 11, v60", XZ); a("v_lshl_add_u32 v%d, v61, 12, v60", XG)
    for u in range(1, 4):
        a("v_add_u32 v%d, %d, v%d", XZ + u, u * 32 * 2048, XZ); a("v_add_u32 v%d, %d, v%d", XG + u, u * 32 * 4096, XG)
    a("v_lshrrev_b32 v60, 4, v1"); a("v_bfe_u32 v61, v1, 1, 3"); a("v_xor_b32 v61, v61, v60"); a("v_lshlrev_b32 v61, 5, v61")
    a("v_and_b32 v62, 1, v1"); a("v_lshl_add_u32 v61, v62, 4, v61")
    a("s_lshl_b32 s3, s%d, 4", PV); a("v_add_u32 v60, s3, v60"); a("v_mul_u32_u24 v60, 7168, v60")
    a("s_lshl_b32 s3, s%d, 8", SJ); a("v_add_u32 v60, s3, v60")
    for u in range(4):
        if u == 2: a("v_xor_b32 v61, 128, v61")
        if u: a("v_add_u32 v62, %d, v60", u * 4 * 7168)
        a("v_add_u32 v%d, v61, v%d", YZp + u, 62 if u else 60)
    a("s_lshl_b32 s3, s%d, 19", SJ); a("s_lshl_b32 s19, s%d, 12", PV); a("s_add_u32 s3, s3, s19")
    a("v_lshl_add_u32 v%d, v1, 4, s3", YGp)
    for u in range(1, 4): a("v_add_u32 v%d, %d, v%d", YGp + u, 1024 * u, YGp)
    a("s_lshl_b32 s3, s%d, 4", SI); a("s_add_u32 s3, s3, s%d", SJ); a("s_lshl_b32 s3, s3, 10"); a("v_lshl_add_u32 v%d, v1, 4, s3", VPUB)
    a("v_add_u32 v%d, %d, v3", VLD, L_ST)
    a("v_lshrrev_b32 v60, 4, v1"); a("v_and_b32 v61, 15, v1"); a("v_lshlrev_b32 v60, 10, v60"); a("v_lshl_add_u32 v60, v61, 4, v60")
    a("s_lshl_b32 s3, s%d, 14", SI); a("s_lshl_b32 s19, s%d, 8", PV); a("s_add_u32 s3, s3, s19"); a("v_add_u32 v%d, s3, v60", VPOLL)
    a("v_lshrrev_b32 v60, 5, v1"); a("v_lshl_add_u32 v60, v61, 1, v60"); a("s_add_u32 s3, s19, %d", L_FIN); a("v_lshl_add_u32 v%d, v60, 3, s3", VFIN)
    a("s_lshl_b32 s3, s%d, 7", SJ); a("s_add_u32 s3, s3, %d", FZ); a("v_lshl_add_u32 v%d, v61, 2, s3", VFP)
    a("s_lshl_b32 s19, s%d, 2", SI); a("s_add_u32 s55, s3, s19")
    a("s_lshl_b32 s3, s%d, 12", SI); a("s_lshl_b32 s19, s%d, 7", SJ); a("s_add_u32 s56, s3, s19"); a("s_add_u32 s56, s56, %d", FD1)
    a("s_and_b32 s19, s%d, 1", SX_); a("s_lshl_b32 s19, s19, 11"); a("s_add_u32 s8, s3, s19")
    a("v_lshlrev_b32 v%d, 7, v61", VF16)
    a("v_mov_b32 v%d, s%d", VTG, TAG); a("v_mov_b32 v%d, 0", VZR)
    for u in range(1, 4): a("s_mov_b32 s%d, %d", 56 + u, 4096 * u)
    a("v_lshrrev_b32 v60, 4, v1"); a("v_and_b32 v61, 7, v1"); a("v_xor_b32 v60, v60, v61"); a("v_and_b32 v61, 56, v1"); a("v_or_b32 v60, v60, v61")
    a("v_lshlrev_b32 v%d, 4, v60", VYD); a("v_xor_b32 v%d, 64, v%d", VYD + 1, VYD)
    a("s_mul_i32 s3, s%d, 458752", SI); a("s_lshl_b32 s19, s%d, 12", PV); a("s_add_u32 s3, s3, s19"); a("v_lshl_add_u32 v%d, v1, 4, s3", XP)
    for u in range(1, 4): a("v_add_u32 v%d, %d, v%d", XP + u, 1024 * u, XP)
    a("v_lshrrev_b32 v60, 4, v1"); a("v_lshlrev_b32 v60, 1, v60"); a("v_and_b32 v61, 7, v1"); a("v_xor_b32 v60, v60, v61"); a("v_lshlrev_b32 v60, 4, v60")
    a("v_lshrrev_b32 v61, 3, v1"); a("v_lshl_add_u32 v60, v61, 11, v60")
    a("s_lshl_b32 s3, s%d, 15", PV); a("s_lshl_b32 s19, s%d, 7", SJD); a("s_add_u32 s3, s3, s19"); a("v_add_u32 v%d, s3, v60", YP)
    a("v_add_u32 v%d, %d, v%d", YP + 1, 8 * 2048, YP)
    a("s_barrier")
    place("b1")
    a("s_waitcnt vmcnt(%d)", 10 + len(vq))
    a("s_barrier")
    place("b2")
    for m in range(4):
        a("s_waitcnt vmcnt(%d)", 2 + 2 * (3 - m) + len(vq))
        r = RKr + 6 * m
        a("ds_write_b128 v6, v[%d:%d] offset:%d", r, r + 3, CV_C0 + 32 + 1024 * m)
        for j in range(4): a("v_alignbit_b32 v%d, v%d, v%d, 16", SH + 4 * m + j, r + j + 1, r + j)
        a("ds_write_b128 v6, v[%d:%d] offset:%d", SH + 4 * m, SH + 4 * m + 3, CV_C1 + 32 + 1024 * m)
        if m == 0:
            a("v_lshlrev_b32 v%d, 16, v%d", ZR + 3, r)
            a("s_mov_b64 exec, 1")
            a("ds_write_b128 v6, v[%d:%d] offset:%d", ZR, ZR + 3, CV_C1 + 16)
            a("s_mov_b64 exec, -1")
    a("s_waitcnt lgkmcnt(0)")
    lds_inc(a, 6, 62, 63)
    a("s_waitcnt vmcnt(%d)", len(vq))
    for d in range(8): unpack(a, SLT + 2 * d, SLT + 2 * d + 1, CR + d)
    a("s_mov_b32 s4, %s", fhex(-LOG2E))
    for e in range(16): a("v_mul_f32 v%d, s4, v%d", SLT + 16 + e, SLT + e)
    for e in range(16): a("v_exp_f32 v%d, v%d", SLT + 16 + e, SLT + 16 + e)
    for e in range(16): a("v_add_f32 v%d, 1.0, v%d", SLT + 16 + e, SLT + 16 + e)
    for e in range(16): a("v_rcp_f32 v%d, v%d", SLT + 16 + e, SLT + 16 + e)
    for e in range(16): a("v_mul_f32 v%d, v%d, v%d", SLT + e, SLT + e, SLT + 16 + e)
    for d in range(8): a("v_cvt_pk_bf16_f32 v%d, v%d, v%d", SPK + d, SLT + 2 * d, SLT + 2 * d + 1)
    a("v_and_b32 v60, 15, v1")
    for nt in range(6):
        a("v_cmp_eq_u32 vcc, %d, v60", 4 * (nt & 3) + (nt >> 2)); a("s_nop 1")
        for d in range(8): a("v_cndmask_b32 v%d, 0, v%d, vcc", AM + 8 * nt + d, SPK + d)
    lds_wait(a, 7, 4, 62, 63, 2)
    for pos in ("ur",): place(pos)
    a.st()
    a("s_waitcnt vmcnt(%d)", younger("w"))
    if opt.get("gprio", 1): a("s_setprio 3")
    lds_sync(a, 0, 62, 2)
    for nt in range(6):
        for ks in range(2):
            for hh in range(2): a("ds_read_b64_tr_b16 %s, v%d offset:%d", v(YF + 8 * nt + 4 * ks + 2 * hh, 2), WMR + nt, (32 * ks + 4 * hh) * 768)
    a("s_mul_i32 s3, s%d, 384", PV); a("s_add_u32 s3, s3, s60")
    a("v_lshlrev_b32 v60, 2, v1")
    for n in range(12):
        if n % 2 == 0: a("s_waitcnt lgkmcnt(%d)", min(15, 20 - 2 * n))
        a("v_mfma_f32_16x16x32_bf16 %s, %s, %s, %s", v(GAC, 4), v(AM + 4 * n, 4), v(YF + 4 * n, 4), v(GAC, 4) if n else "0")
    a("s_nop 7")
    a("buffer_store_dword v%d, v60, s[36:39], s3 offen sc1", GAC)
    a("s_mov_b32 exec_hi, 0")
    a("buffer_store_dword v%d, v60, s[36:39], s3 offen offset:256 sc1", GAC + 1)
    a("s_mov_b64 exec, -1")
    a.st()
    finz = a.label("finz"); pb5 = a.label("pb5")
    a("s_cmp_lg_u32 s%d, 3", PV); a("s_cbranch_scc1 %s", pb5)
    a("s_cmp_ge_u32 s%d, 24", SIDX); a("s_cbranch_scc1 %s", pb5)
    a("v_lshlrev_b32 v60, 2, v1")
    a("s_mul_i32 s4, s%d, 768", SX_); a("s_lshl_b32 s3, s%d, 5", SIDX); a("s_add_u32 s4, s4, s3")
    a("s_lshr_b32 s3, s4, 10"); a("s_cmp_eq_u32 s3, 1"); a("s_cselect_b32 s61, 1.0, 0"); a("s_cmp_eq_u32 s3, 4"); a("s_cselect_b32 s61, 1.0, s61")
    a("s_lshl_b32 s5, s4, 2"); a("s_lshl_b32 s4, s4, 1")
    a("v_lshlrev_b32 v63, 3, v1")
    a("s_mov_b64 exec, 0xffff")
    gl = a.newlabel("gl"); go = a.newlabel("go")
    a("s_mov_b32 s11, 0")
    a.put(gl)
    a("s_mov_b32 s6, s5")
    for p in range(16):
        a("buffer_load_dwordx2 %s, v63, s[36:39], s6 offen sc1", pk(64 + 2 * p))
        if p < 15: a("s_add_u32 s6, s6, 24576")
    a("s_add_u32 s11, s11, 1")
    a("s_cmp_gt_u32 s11, %d", SPIN_MAX); a("s_cbranch_scc1 %s", go)
    a("s_waitcnt vmcnt(0)")
    a("v_max3_u32 v61, v64, v66, v68")
    for p in range(3, 15, 2): a("v_max3_u32 v61, v61, v%d, v%d", 64 + 2 * p, 66 + 2 * p)
    a("v_max_u32 v61, v61, v94")
    a("v_cmp_eq_u32 vcc, -1, v61"); a("s_sleep 2"); a("s_cbranch_vccnz %s", gl)
    a.put(go)
    for w in (8, 4, 2, 1):
        for p in range(w): a("v_pk_add_f32 %s, %s, %s", pk(64 + 2 * p), pk(64 + 2 * p), pk(64 + 2 * (p + w)))
    a("v_cvt_pk_bf16_f32 v66, v64, v65"); unpack(a, 64, 65, 66)
    a("v_add_f32 v64, s61, v64"); a("v_add_f32 v65, s61, v65"); a("v_cvt_pk_bf16_f32 v64, v64, v65")
    a("buffer_store_dword v64, v60, s[40:43], s4 offen sc1")
    a("s_mov_b64 exec, -1")
    a.put(pb5)
    if opt.get("gprio", 1) == 1: a("s_setprio 0")
    a("s_waitcnt vmcnt(%d)", younger("q") + 2)
    a("v_add_u32 v7, s7, v3")
    for u in range(4): a("ds_read_b128 v[%d:%d], v7 offset:%d", 144 + 4 * u, 147 + 4 * u, (u >> 1) * QROW + (u & 1) * 1024)
    a("s_waitcnt lgkmcnt(0)")
    for rr in range(2):
        X = 160 + 16 * rr
        for d in range(8): unpack(a, X + 2 * d, X + 2 * d + 1, 144 + 8 * rr + d)
        a("v_pk_add_f32 v[192:193], %s, %s", pk(X), pk(X + 2)); a("v_pk_mul_f32 v[194:195], %s, %s", pk(X), pk(X))
        for e in range(2, 16, 2): a("v_pk_fma_f32 v[194:195], %s, %s, v[194:195]", pk(X + e), pk(X + e))
        for e in range(4, 16, 2): a("v_pk_add_f32 v[192:193], v[192:193], %s", pk(X + e))
        a("v_add_f32 v%d, v192, v193", 196 + rr); a("v_add_f32 v%d, v194, v195", 198 + rr)
    a("s_nop 1")
    a("v_permlane32_swap_b32 v196, v197"); a("v_permlane32_swap_b32 v198, v199")
    a("v_add_f32 v196, v196, v197"); a("v_add_f32 v198, v198, v199")
    a("v_mov_b32 v197, v196"); a("v_mov_b32 v199, v198")
    a("s_nop 1")
    a("v_permlane16_swap_b32 v197, v196"); a("v_permlane16_swap_b32 v199, v198")
    a("v_add_f32 v196, v196, v197"); a("v_add_f32 v198, v198, v199")
    for dpp in ("row_ror:8", "row_ror:4", "quad_perm:[1,0,3,2]", "quad_perm:[2,3,0,1]"):
        a("s_nop 0")
        a("v_add_f32_dpp v196, v196, v196 %s row_mask:0xf bank_mask:0xf", dpp); a("v_add_f32_dpp v198, v198, v198 %s row_mask:0xf bank_mask:0xf", dpp)
    rstd_calc(a, 196, 198, 197, 192, 1.0 / 1024)
    a("v_lshrrev_b32 v7, 5, v1"); a("v_lshlrev_b32 v7, 3, v7"); a("s_lshl_b32 s3, s%d, 4", PV); a("s_add_u32 s3, s3, %d", L_L1S); a("v_add_u32 v7, s3, v7")
    a("ds_write_b64 v7, v[192:193]")
    a("s_waitcnt lgkmcnt(0)")
    lds_inc(a, 1, 62, 63)
    a("s_setprio 0")
    R_X, R_Y, R_WSP, R_Z2p, R_YB = 20, 24, 28, 32, 36
    a.srd(R_X, P_WS, 4 * MB, WS_H2); a.srd(R_Y, P_WIN, 1024 * 7168); a.srd(R_WSP, P_WSP, 8 * MB); a.srd(R_Z2p, P_WS, 14 * 524288, WS_Z2)
    a.srd(R_YB, P_WS, 4 * MB, WS_YB)
    a("s_lshl_b32 s4, s%d, 12", PV); a("s_lshl_b32 s5, s2, 14"); a("s_add_u32 s5, s5, s4")
    SYS, SK = 6, 63
    a("s_mov_b32 s%d, 0", SXo); a("s_mov_b32 s%d, 3584", SYo); a("s_mov_b32 s%d, %d", SYS, 64 * 7168)
    a.st()
    a("s_barrier")
    for u in range(4):
        a("s_add_u32 m0, s4, %d", 1024 * u); a("s_add_u32 s3, s5, %d", 1024 * u)
        a("buffer_load_dwordx4 v%d, %s, s3 offen sc1 lds", VYD + (u & 1), srdr(R_YB))
    def issue(slot, which="xy"):
        for u in range(4):
            if "x" in which:
                a("s_add_u32 m0, s%d, %d", SLX, slot * 16384 + u * 4096); a("s_nop 0")
                a("buffer_load_dwordx4 v%d, %s, s%d offen sc1 lds", XZ + u, srdr(R_X), SXo)
            if "y" in which:
                a("s_add_u32 m0, s%d, %d", SLY, slot * 16384 + u * 1024); a("s_nop 0")
                a("buffer_load_dwordx4 v%d, %s, s%d offen sc1 lds", YZp + u, srdr(R_Y), SYo)
        if "x" in which: a("s_add_u32 s%d, s%d, 128", SXo, SXo)
        if "y" in which: a("s_add_u32 s%d, s%d, s%d", SYo, SYo, SYS)
    p_spare = a.label("pspare"); p_g3 = a.label("pg3"); ny = a.label("ny")
    a("v_mov_b32 v62, %d", L_CD)
    a("ds_write_b32 v62, v%d", VZR)
    a("s_waitcnt vmcnt(0) lgkmcnt(0)")
    a("s_barrier")
    if opt.get("winpf", 1) == 2:
        a("s_lshl_b32 s3, s2, 2"); a("s_add_u32 s3, s3, s%d", PV); a("s_mul_i32 s3, s3, 7168"); a("s_add_u32 s3, s3, 3584")
        a("v_lshlrev_b32 v60, 7, v1")
        a("s_mov_b32 exec_lo, 0xfffffff"); a("s_mov_b32 exec_hi, 0")
        a("buffer_load_dword v216, v60, %s, s3 offen", srdr(R_Y))
        a("s_mov_b64 exec, -1")
    a("s_barrier")
    a("s_barrier")
    a("s_cmp_ge_u32 s%d, 28", SIDX); a("s_cbranch_scc1 %s", p_spare)
    for s in range(2): issue(s, "y")
    a("s_add_u32 s4, s8, %d", FC1)
    lead_poll(a, PV, 4, 62, lambda: poll(a, VF16, 60, TAG, "s4", n=16))
    a.st()
    issue(0, "x"); issue(1, "x"); issue(2); issue(3)
    PS = 32
    def poll_loads():
        for u in range(4): a("buffer_load_dwordx4 %s, v%d, %s, %s offen sc1", v(PS + 4 * u, 4), VPOLL, srdr(R_SY), "s%d" % (56 + u) if u else "0")
    def poll_check(out):
        a("v_max3_u32 v60, v%d, v%d, v%d", PS + 1, PS + 3, PS + 5); a("v_max3_u32 v60, v60, v%d, v%d", PS + 7, PS + 9)
        a("v_max3_u32 v60, v60, v%d, v%d", PS + 11, PS + 13); a("v_max_u32 v60, v60, v%d", PS + 15)
        a("v_cmp_eq_u32 vcc, -1, v60"); a("s_nop 4")
        a("s_cbranch_vccz %s", out)
    def spin(loads, check):
        ok = a.newlabel("ok"); again = a.newlabel("sp")
        check(ok)
        a("s_mov_b32 s62, 0")
        a.put(again)
        loads()
        a("s_add_u32 s62, s62, 1")
        a("s_cmp_gt_u32 s62, %d", SPIN_MAX); a("s_cbranch_scc1 %s", ok)
        a("s_waitcnt vmcnt(0)")
        check(ok)
        a("s_branch %s", again)
        a.put(ok)
    def fpoll_load(): a("buffer_load_dword v48, v%d, %s, 0 offen sc1", VFP, srdr(R_SY))
    def fpoll_check(out):
        a("v_cmp_ne_u32 vcc, s%d, v48", TAG); a("s_nop 4"); a("s_cbranch_vccz %s", out)
    SLX3, SLY3, SX3, SY3 = 49, 50, 53, 54
    def issue3(slot, which="xy"):
        for u in range(4):
            if "x" in which:
                a("s_add_u32 m0, s%d, %d", SLX3, slot * 16384 + u * 1024); a("s_nop 0")
                a("buffer_load_dwordx4 v%d, %s, s%d offen sc1 lds", XP + u, srdr(R_P3), SX3)
            if u < 2 and "y" in which:
                a("s_add_u32 m0, s%d, %d", SLY3, slot * 8192 + u * 1024); a("s_nop 0")
                a("buffer_load_dwordx4 v%d, %s, s%d offen lds", YP + u, srdr(R_W), SY3)
        if "x" in which:
            a("s_add_u32 s%d, s%d, 16384", SX3, SX3); a("s_cmp_eq_u32 s%d, %d", SX3, 28 * 16384); a("s_cselect_b32 s%d, 0, s%d", SX3, SX3)
        if "y" in which:
            a("s_add_u32 s%d, s%d, %d", SY3, SY3, 64 * 2048); a("s_cmp_eq_u32 s%d, %d", SY3, 28 * 64 * 2048); a("s_cselect_b32 s%d, 0, s%d", SY3, SY3)
    def g3_pre():
        a.srd(R_W, P_WOUT, 1792 * 2048); a.srd(R_P3, P_WS, 16 * 458752, WS_P)
        a("s_lshl_b32 s%d, s%d, 12", SLX3, PV)
        a("s_lshl_b32 s%d, s%d, 11", SLY3, PV); a("s_add_u32 s%d, s%d, %d", SLY3, SLY3, L_Y3)
        a("s_add_u32 s3, s%d, s%d", SI, SJD); a("s_and_b32 s3, s3, %d", opt.get("rot3", 1) - 1); a("s_mul_i32 s3, s3, %d", 28 // opt.get("rot3", 1))
        a("s_lshl_b32 s%d, s3, 14", SX3); a("s_lshl_b32 s%d, s3, 17", SY3)
        for s in range(2): issue3(s, "y")
    def ev_pub():
        sk = a.newlabel("np")
        a("s_cmp_lg_u32 s%d, 0", PV); a("s_cbranch_scc1 %s", sk)
        a("ds_read_b128 v[32:35], v%d", VLD); a("ds_read_b128 v[36:39], v%d offset:1024", VLD)
        a("s_waitcnt lgkmcnt(0)")
        a("v_pk_add_f32 v[32:33], v[32:33], v[36:37]"); a("v_pk_add_f32 v[34:35], v[34:35], v[38:39]")
        a("buffer_store_dwordx4 v[32:35], v%d, %s, 0 offen sc1", VPUB, srdr(R_SY))
        a.put(sk)
    def ev_chk():
        a("s_waitcnt vmcnt(%d)", 8 * (ev["chk"] - ev["poll"]))
        spin(poll_loads, poll_check)
        for (d, s) in ((0, 4), (8, 12), (0, 8)):
            for e in (0, 2): a("v_pk_add_f32 %s, %s, %s", pk(PS + d + e), pk(PS + d + e), pk(PS + s + e))
        a("s_nop 1")
        a("v_permlane32_swap_b32 v%d, v%d", PS, PS + 2); a("v_permlane32_swap_b32 v%d, v%d", PS + 1, PS + 3)
        a("v_add_f32 v%d, v%d, v%d", PS, PS, PS + 2); a("v_add_f32 v%d, v%d, v%d", PS + 1, PS + 1, PS + 3)
        a("v_mov_b32 v%d, v%d", PS + 2, PS); a("v_mov_b32 v%d, v%d", PS + 3, PS + 1)
        a("s_nop 1")
        a("v_permlane16_swap_b32 v%d, v%d", PS + 2, PS); a("v_permlane16_swap_b32 v%d, v%d", PS + 3, PS + 1)
        a("v_add_f32 v%d, v%d, v%d", PS, PS, PS + 2); a("v_add_f32 v%d, v%d, v%d", PS + 1, PS + 1, PS + 3)
        rstd_calc(a, PS, PS + 1, PS + 2, PS + 2, 1.0 / 1792)
        a("ds_write_b64 v%d, %s", VFIN, pk(PS + 2))
        a("s_waitcnt lgkmcnt(0)")
    def ev_flag():
        sk = a.newlabel("nf")
        a("s_cmp_lg_u32 s%d, 0", PV); a("s_cbranch_scc1 %s", sk)
        flag_store(a, VTG, VZR, "s55")
        a.put(sk)
    def ev_z1():
        a("s_mov_b32 s%d, 0", SXo); a("s_mov_b32 s%d, 0", SYo)
    def ev_g():
        a("s_waitcnt vmcnt(%d)", 8 * (ev["fchk"] - ev["fpoll"]))
        spin(fpoll_load, fpoll_check)
        a("s_mov_b32 s%d, 0", SXo); a("s_mov_b32 s%d, 0", SYo); a("s_mov_b32 s%d, 16384", SYS)
        a.srd(R_X, P_WSP, 8 * MB); a.srd(R_Y, P_WS, 14 * 524288, WS_Z2)
        for u in range(4):
            a("v_mov_b32 v%d, v%d", XZ + u, XG + u); a("v_mov_b32 v%d, v%d", YZp + u, YGp + u)
    assert ev["fchk"] == 28
    events = {12: ev_z1, ev["pub"]: ev_pub, ev["poll"]: poll_loads, ev["chk"]: ev_chk, ev["drain"]: ev_flag, ev["fpoll"]: fpoll_load, 28: ev_g}
    a("s_mov_b32 s%d, 0", SK); a("s_mov_b32 s7, %d", sum(1 << k for k in events))
    a("s_waitcnt vmcnt(20)")
    a("s_barrier")
    ptop = a.label("ptop"); ptail = a.label("ptail")
    evl = [a.label("pe%d" % n) for n in range(4)]; evr = [a.label("pr%d" % n) for n in range(4)]
    a.put(ptop)
    for slot in range(4):
        a("s_lshr_b32 s3, s7, s%d", SK) if False else None
        a("s_bitcmp1_b32 s7, 0")
        a("s_waitcnt vmcnt(16)")
        a("s_barrier")
        a("s_cbranch_scc1 %s", evl[slot]); a.put(evr[slot])
        a("s_lshr_b32 s7, s7, 1"); a("s_add_u32 s%d, s%d, 1", SK, SK)
        issue(slot)
    a("s_cmp_lt_u32 s%d, 60", SK); a("s_cbranch_scc1 %s", ptop)
    a("s_branch %s", ptail)
    for slot in range(4):
        a.put(evl[slot])
        ks = sorted(k for k in events if k % 4 == slot)
        for n, k in enumerate(ks):
            nx = a.newlabel("en")
            if n + 1 < len(ks):
                a("s_cmp_lg_u32 s%d, %d", SK, k); a("s_cbranch_scc1 %s", nx)
            events[k]()
            a("s_branch %s", evr[slot])
            a.put(nx)
        if not ks: a("s_branch %s", evr[slot])
    a.put(ptail)
    a("s_waitcnt vmcnt(16)"); a("s_barrier")
    g3_pre()
    a("s_waitcnt vmcnt(12)"); a("s_barrier")
    a("s_waitcnt vmcnt(4)"); a("s_barrier")
    a("v_mov_b32 v62, %d", L_CD)
    a("ds_write_b32 v62, v%d", VZR)
    a("s_waitcnt lgkmcnt(0)"); a("s_barrier")
    a("s_barrier")
    sk = a.newlabel("nf")
    a("s_cmp_lg_u32 s%d, 0", PV); a("s_cbranch_scc1 %s", sk)
    a("v_lshlrev_b32 v62, 11, v1")
    a("s_mov_b64 exec, 3")
    a("buffer_store_dword v%d, v62, %s, s56 offen sc1", VTG, srdr(R_SY))
    a("s_mov_b64 exec, -1")
    a.put(sk)
    a("s_branch %s", p_g3)
    a.put(p_spare)
    spare_stream()
    a("s_sub_u32 s%d, s%d, 4", PV, SW)
    g3_pre()
    a.put(p_g3)
    g3_final_setup()
    a("s_add_u32 s4, s8, %d", FD1)
    lead_poll(a, PV, L_CD, 62, lambda: poll(a, VF16, 60, TAG, "s4", n=14))
    a.st()
    issue3(0, "x"); issue3(1, "x"); issue3(2); issue3(3)
    a("s_mov_b32 s63, 6")
    a("s_waitcnt vmcnt(16)")
    a("s_barrier")
    lab = a.newlabel("pl")
    a.put(lab)
    for slot in range(4):
        a("s_waitcnt vmcnt(12)"); a("s_barrier")
        issue3(slot)
    a("s_sub_u32 s63, s63, 1"); a("s_cmp_lg_u32 s63, 0"); a("s_cbranch_scc1 %s", lab)
    a("s_waitcnt vmcnt(12)"); a("s_barrier")
    final_loads()
    a("s_waitcnt vmcnt(9)"); a("s_barrier")
    a("s_waitcnt vmcnt(3)"); a("s_barrier")
    a("s_barrier")
    a.put(fin)
    a("s_waitcnt vmcnt(0) lgkmcnt(0)")
    a("s_barrier")
    B = 48; U = 64; G = 96
    a("v_add_u32 v%d, 65536, v%d", VSR, VSR)
    for rr in range(2): a("ds_read_b128 %s, v%d offset:%d", v(B + 4 * rr, 4), VSR, 8192 * rr)
    for d in range(4): unpack(a, G + 2 * d, G + 2 * d + 1, GBR + d)
    for rr in range(2):
        for d in range(4): unpack(a, U + 16 * rr + 8 + 2 * d, U + 16 * rr + 8 + 2 * d + 1, X1R + 4 * rr + d)
    for rr in range(2):
        a("s_waitcnt lgkmcnt(%d)", 1 - rr)
        for d in range(4): unpack(a, U + 16 * rr + 2 * d, U + 16 * rr + 2 * d + 1, B + 4 * rr + d)
        for d in range(4):
            x = U + 16 * rr + 2 * d
            a("v_pk_fma_f32 %s, %s, %s, %s", pk(x), pk(x), pk(G + 2 * d), pk(x + 8))
        for d in range(4):
            x = U + 16 * rr + 2 * d
            a("v_cvt_pk_bf16_f32 v%d, v%d, v%d", B + 8 + 4 * rr + d, x, x + 1)
        a("buffer_store_dwordx4 %s, v%d, %s, %s offen %s", v(B + 8 + 4 * rr, 4), VO, srdr(R_O), "s9" if rr else "0", opt.get("outflag", ""))
    a.st_flush(16, 17)
    a.put(end)
    return a.text(), 256, LDS_TOTAL
```

```python
DIAG = [False]
HATCH = [244]
class Asm:
    def __init__(self, prefix):
        self.l = []
        self.prefix = prefix
        self.nlab = 0
    def __call__(self, s, *args):
        if args: s = s % args
        for x in s.split("\n"):
            x = x.strip()
            if x: self.l.append("    " + x if not x.endswith(":") else x)
    def label(self, name):
        return "L_%s_%s" % (self.prefix, name)
    def newlabel(self, name="x"):
        self.nlab += 1
        return "L_%s_%s%d" % (self.prefix, name, self.nlab)
    def put(self, lab):
        self.l.append(lab + ":")
    def text(self):
        return "\n".join(self.hatched())
    def hatch_begin(self, name): self.l.append("@@HB " + name)
    def hatch_end(self, ret): self.l.append("@@HE " + ret)
    def hatched(self):
        import re
        out = []; cur = None; nb = 0; n = 0
        small = re.compile(r"^(s_nop|s_waitcnt|s_barrier|s_branch|s_cbranch|s_setprio|s_sleep|s_endpgm)")
        for x in self.l:
            t = x.strip()
            if t.startswith("@@HB "):
                cur = t[5:]; n = 0; nb = 0
                out.append("%s_0:" % cur); out.append("    s_cbranch_execz %s_1" % cur); n = 1
                continue
            if t.startswith("@@HE "):
                out.append("%s_%d:" % (cur, n)); out.append("    s_cbranch_execz %s" % t[5:]); cur = None
                continue
            out.append(x)
            if cur and not t.endswith(":"):
                nb += 4 if small.match(t) else 8
                if nb >= HATCH[0] and not t.startswith("s_branch"):
                    out.append("%s_%d:" % (cur, n)); out.append("    s_cbranch_execz %s_%d" % (cur, n + 1)); n += 1; nb = 0
        return out
    diag = None
    def st_init(self, kidx, vreg):
        if not DIAG[0]: return
        self.diag = (kidx, vreg)
        self("s_memrealtime s[98:99]")
        self("s_mov_b32 s100, 1")
        self("s_waitcnt lgkmcnt(0)")
        self("v_mov_b32 v%d, s98", vreg)
    def st(self):
        if not DIAG[0]: return
        self("s_memrealtime s[98:99]")
        self("s_mov_b32 s101, m0")
        self("s_mov_b32 m0, s100")
        self("s_add_u32 s100, s100, 1")
        self("s_waitcnt lgkmcnt(0)")
        self("v_writelane_b32 v%d, s98, m0", self.diag[1])
        self("s_mov_b32 m0, s101")
    def st_flush(self, t0, t1):
        if not DIAG[0]: return
        self.st()
        self("s_mov_b64 exec, -1")
        self("s_load_dwordx2 s[98:99], s[0:1], 120")
        self("s_waitcnt lgkmcnt(0)")
        self("s_add_u32 s4, s98, %d", 64 << 20); self("s_addc_u32 s5, s99, 0"); self("s_mov_b32 s6, %d", 16 << 20); self("s_mov_b32 s7, 0x20000")
        self("s_lshl_b32 s3, s2, 3"); self("s_add_u32 s3, s3, s18"); self("s_add_u32 s3, s3, %d", self.diag[0] * 2048); self("s_lshl_b32 s3, s3, 8")
        self("v_mbcnt_lo_u32_b32 v%d, -1, 0", t0); self("v_mbcnt_hi_u32_b32 v%d, -1, v%d", t0, t0)
        self("v_lshlrev_b32 v%d, 2, v%d", t0, t0)
        self("v_writelane_b32 v%d, s100, 63", self.diag[1])
        self("s_getreg_b32 s10, hwreg(HW_REG_XCC_ID, 0, 4)"); self("s_getreg_b32 s11, hwreg(HW_REG_HW_ID)")
        self("v_writelane_b32 v%d, s10, 62", self.diag[1]); self("v_writelane_b32 v%d, s11, 61", self.diag[1])
        self("buffer_store_dword v%d, v%d, s[4:7], s3 offen", self.diag[1], t0)
    def srd(self, s, plo, nbytes, off=0):
        if off:
            self("s_add_u32 s%d, s%d, %d", s, plo, off)
            self("s_addc_u32 s%d, s%d, 0", s + 1, plo + 1)
        else:
            self("s_mov_b32 s%d, s%d", s, plo)
            self("s_mov_b32 s%d, s%d", s + 1, plo + 1)
        self("s_mov_b32 s%d, %d", s + 2, nbytes)
        self("s_mov_b32 s%d, 0x20000", s + 3)

def v(a, n=1):
    return "v%d" % a if n == 1 else "v[%d:%d]" % (a, a + n - 1)
def sr(a, n=1):
    return "s%d" % a if n == 1 else "s[%d:%d]" % (a, a + n - 1)
def f2u(x):
    import struct
    return struct.unpack("<I", struct.pack("<f", x))[0]
def fhex(x):
    return "0x%08x" % f2u(x)

KD = """.section .rodata,"a"
.p2align 6
.amdhsa_kernel {name}
  .amdhsa_next_free_vgpr {vgpr}
  .amdhsa_next_free_sgpr {sgpr}
  .amdhsa_accum_offset {acc}
  .amdhsa_group_segment_fixed_size 0
  .amdhsa_kernarg_size 128
  .amdhsa_user_sgpr_count 2
  .amdhsa_user_sgpr_kernarg_segment_ptr 1
  .amdhsa_system_sgpr_workgroup_id_x 1
  .amdhsa_float_denorm_mode_32 3
.end_amdhsa_kernel
"""
def kernel_text(name, body, vgpr, sgpr=102):
    acc = (vgpr + 3) // 4 * 4
    return (".text\n.globl %s\n.p2align 8\n.type %s,@function\n%s:\n" % (name, name, name) + body +
            "\n    s_endpgm\n" + KD.format(name=name, vgpr=vgpr, sgpr=sgpr, acc=acc))
```

```python
from asmlib import *
from gen_front import *
from gen_gemm import VmTrack, gelu_block, pk, GC0, GC1
P_Q, P_K, P_V, P_SK, P_SSMK, P_SSMD, P_BX, P_WIN, P_WSP, P_BSP, P_WOUT, P_C, P_WMOD, P_OUT, P_DBG, P_WS = [64 + 2 * n for n in range(16)]
SI, SJ, SJD, TAG, SX_, SIDX, SW = 12, 13, 14, 15, 16, 17, 18
R_SY = 44
SY0 = 256 * 1024
FA_OLD, FG, FC, FZ, FD, CB, WT = SY0, SY0 + 1024, SY0 + 2048, SY0 + 4096, SY0 + 6144, SY0 + 8192, SY0 + 12288
FB2, FX = SY0 + 16384, SY0 + 20480
CN, GOG, GOC, GOD = SY0 + 32768, SY0 + 49152, SY0 + 53248, SY0 + 57344
FAS = 128
L_T1 = 65536; L_WM = 81920; L_Y = 65536; L_ST = 131072; L_FIN = L_ST + 2048
L_QT = 135168; QROW = 2080; L_L1S = 151808; L_CNT = 151872
L_Y3 = 131072; L_CD = 98304
LDS_TOTAL = 163840
NZ, NG = 16, 32
NST = 2 * NZ + NG
EV = dict(pub=16, poll=19, chk=21, norm=22, drain=24, fpoll=26, fchk=28)
SPIN_MAX = 0x20000

FA = SY0 + 65536
FC1, FD1 = SY0 + 98304, SY0 + 163840
SY_END = SY0 + 229376
def srdr(r): return "s[%d:%d]" % (r, r + 3)

def poll(a, vaddr, vt, target, soff="0", n=16, sleep=0):
    lp = a.newlabel("pl"); ok = a.newlabel("pk")
    a("s_mov_b32 s11, 0")
    a("s_mov_b32 exec_lo, 0x%x", (1 << n) - 1); a("s_mov_b32 exec_hi, 0")
    a.put(lp)
    a("buffer_load_dword v%d, v%d, %s, %s offen sc1", vt, vaddr, srdr(R_SY), soff)
    a("s_add_u32 s11, s11, 1")
    a("s_cmp_gt_u32 s11, %d", SPIN_MAX); a("s_cbranch_scc1 %s", ok)
    a("s_waitcnt vmcnt(0)")
    a("v_cmp_ne_u32 vcc, s%d, v%d", target, vt)
    if sleep: a("s_sleep %d", sleep)
    else: a("s_nop 4")
    a("s_cbranch_vccnz %s", lp)
    a.put(ok)
    a("s_mov_b64 exec, -1")

def lead_poll(a, pv, cnt, t0, fn):
    oth = a.newlabel("ot"); done = a.newlabel("dn"); lp = a.newlabel("lw")
    a("v_mov_b32 v%d, %d", t0, L_CNT + 4 * cnt if cnt < 8 else cnt)
    a("s_cmp_lg_u32 s%d, 0", pv); a("s_cbranch_scc1 %s", oth)
    fn()
    a("v_mov_b32 v%d, 1", t0 + 1)
    a("ds_write_b32 v%d, v%d", t0, t0 + 1)
    a("s_branch %s", done)
    a.put(oth)
    a("s_mov_b32 s11, 0")
    a.put(lp)
    a("ds_read_b32 v%d, v%d", t0 + 1, t0)
    a("s_add_u32 s11, s11, 1")
    a("s_cmp_gt_u32 s11, %d", SPIN_MAX * 16); a("s_cbranch_scc1 %s", done)
    a("s_waitcnt lgkmcnt(0)")
    a("v_readfirstlane_b32 s10, v%d", t0 + 1)
    a("s_sleep 1")
    a("s_cmp_eq_u32 s10, 0"); a("s_cbranch_scc1 %s", lp)
    a.put(done)
    a("s_waitcnt vmcnt(0)")

def flag_store(a, vtag, vzero, soff):
    a("s_mov_b64 s[10:11], exec"); a("s_mov_b64 exec, 1")
    a("buffer_store_dword v%d, v%d, %s, %s offen sc1", vtag, vzero, srdr(R_SY), soff)
    a("s_mov_b64 exec, s[10:11]")

def arrive(a, scnt, n, sgo, nrep, vtag, vzero, vrep, t0):
    nl = a.newlabel("ar")
    a("s_mov_b64 exec, 1")
    a("v_mov_b32 v%d, 1", t0)
    a("buffer_atomic_add v%d, v%d, %s, s%d offen sc0 sc1", t0, vzero, srdr(R_SY), scnt)
    a("s_add_u32 s10, s%d, %d", TAG, n - 1)
    a("s_waitcnt vmcnt(0)")
    a("v_readfirstlane_b32 s11, v%d", t0)
    a("s_mov_b64 exec, %d", (1 << nrep) - 1)
    a("s_cmp_lg_u32 s11, s10"); a("s_cbranch_scc1 %s", nl)
    a("buffer_store_dword v%d, v%d, %s, s%d offen sc1", vtag, vrep, srdr(R_SY), sgo)
    a.put(nl)
    a("s_mov_b64 exec, -1")

def lds_inc(a, cnt, t0, t1):
    a("v_mov_b32 v%d, %d", t0, L_CNT + 4 * cnt); a("v_mov_b32 v%d, 1", t1)
    a("s_mov_b64 exec, 1")
    a("ds_add_u32 v%d, v%d", t0, t1)
    a("s_mov_b64 exec, -1")

def lds_wait(a, cnt, n, t0, t1, sleep=1):
    lp = a.newlabel("lw"); ok = a.newlabel("lo")
    a("v_mov_b32 v%d, %d", t0, L_CNT + 4 * cnt)
    a("s_mov_b32 s11, 0")
    a.put(lp)
    a("ds_read_b32 v%d, v%d", t1, t0)
    a("s_add_u32 s11, s11, 1")
    a("s_cmp_gt_u32 s11, %d", SPIN_MAX * 16); a("s_cbranch_scc1 %s", ok)
    a("s_waitcnt lgkmcnt(0)")
    a("v_readfirstlane_b32 s10, v%d", t1)
    a("s_nop 0")
    a("s_cmp_ge_u32 s10, %d", n); a("s_cbranch_scc1 %s", ok)
    a("s_sleep %d", sleep)
    a("s_branch %s", lp)
    a.put(ok)

def lds_sync(a, cnt, t0, sleep=1):
    lp = a.newlabel("ls"); ok = a.newlabel("lk")
    a("v_mov_b32 v%d, %d", t0, L_CNT + 4 * cnt); a("v_mov_b32 v%d, 1", t0 + 1)
    a("s_waitcnt lgkmcnt(0)")
    a("s_mov_b64 s[10:11], exec"); a("s_mov_b64 exec, 1")
    a("ds_add_u32 v%d, v%d", t0, t0 + 1)
    a("s_mov_b64 exec, s[10:11]")
    a("s_mov_b32 s11, 0")
    a.put(lp)
    a("ds_read_b32 v%d, v%d", t0 + 1, t0)
    a("s_add_u32 s11, s11, 1")
    a("s_cmp_gt_u32 s11, %d", SPIN_MAX * 8); a("s_cbranch_scc1 %s", ok)
    a("s_waitcnt lgkmcnt(0)")
    a("v_readfirstlane_b32 s10, v%d", t0 + 1)
    a("s_sleep %d", sleep)
    a("s_cmp_lt_u32 s10, 4"); a("s_cbranch_scc1 %s", lp)
    a.put(ok)

def rstd_calc(a, sm, sq, tmp, out, inv_n):
    a("s_mov_b32 s10, %s", fhex(inv_n))
    a("v_mul_f32 v%d, s10, v%d", sm, sm)
    a("v_mul_f32 v%d, v%d, v%d", tmp, sm, sm)
    a("v_fma_f32 v%d, v%d, s10, -v%d", sq, sq, tmp)
    a("v_max_f32 v%d, 0, v%d", sq, sq)
    a("v_add_f32 v%d, %s, v%d", sq, fhex(EPS), sq)
    a("v_rsq_f32 v%d, v%d", out, sq)
    a("s_nop 0")
    a("v_mul_f32_e64 v%d, -v%d, v%d", out + 1, sm, out)

def gen_mega(ev=EV, opt=None):
    opt = opt or {}
    a = Asm("m")
    NTK, NTS, NTQ, NTW = [("nt" if c in str(opt.get("nt", "ksqw")) else "") for c in "ksqw"]
    def x1srd(r):
        if ALIAS == 1: a.srd(r, P_OUT, 4 * MB)
        else: a.srd(r, P_WS, 4 * MB, WS_X1)
    end = a.label("end"); prod = a.label("prod")
    a("s_cmp_ge_u32 s2, 256"); a("s_cbranch_scc1 %s", end)
    a.st_init(0, 250)
    a("s_getpc_b64 s[96:97]")
    a.put(a.label("pc0"))
    HOP = opt.get("hop", 0)
    def hb(n):
        if HOP: a.hatch_begin(a.label("h%s" % n))
    def he(site):
        if HOP: a.hatch_end(a.label("hret" + site))
    def hop(site):
        if not HOP: return
        a("s_mov_b64 exec, 0")
        for n in range(3):
            a("s_cmp_eq_u32 s48, %d", n); a("s_cbranch_scc1 %s_0", a.label("h%s%d" % (site, n)))
        a("s_branch %s_0", a.label("h%s3" % site))
        a.put(a.label("hret" + site))
        a("s_mov_b64 exec, -1")
    if opt.get("codepf", 1):
        ncp = a.newlabel("ncp")
        a("s_lshr_b32 s3, s2, 3"); a("s_lshl_b32 s3, s3, 10"); a("v_lshl_add_u32 v4, v0, 7, s3")
        a("v_min_u32 v4, %s-%s-4, v4", end, a.label("pc0"))
        a("v_mov_b32 v5, s97"); a("v_add_co_u32 v4, vcc, s96, v4"); a("s_nop 1"); a("v_addc_co_u32 v5, vcc, 0, v5, vcc")
        a("v_cmp_gt_u32 vcc, 8, v0"); a("s_and_saveexec_b64 s[4:5], vcc"); a("s_cbranch_execz %s", ncp)
        a("global_load_dword v249, v[4:5], off")
        a.put(ncp)
        a("s_mov_b64 exec, -1")
    a("s_load_dwordx16 s[64:79], s[0:1], 0")
    a("s_load_dwordx16 s[80:95], s[0:1], 64")
    a("v_lshrrev_b32 v2, 6, v0")
    a("v_and_b32 v1, 63, v0")
    a("s_and_b32 s%d, s2, 7", SX_); a("s_lshr_b32 s%d, s2, 3", SIDX)
    a("v_readfirstlane_b32 s%d, v2", SW)
    a("s_lshr_b32 s%d, s%d, 1", SI, SX_); a("s_lshl_b32 s%d, s%d, 2", SI, SI); a("s_and_b32 s3, s%d, 3", SIDX); a("s_add_u32 s%d, s%d, s3", SI, SI)
    a("s_and_b32 s19, s%d, 1", SX_); a("s_lshr_b32 s3, s%d, 2", SIDX)
    a("s_mul_i32 s%d, s19, 7", SJ); a("s_add_u32 s%d, s%d, s3", SJ, SJ)
    a("s_lshl_b32 s%d, s19, 3", SJD); a("s_add_u32 s%d, s%d, s3", SJD, SJD)
    a("v_mov_b32 v3, %d", WT)
    a("s_waitcnt lgkmcnt(0)")
    a.srd(R_SY, P_WS, SY_END, WS_STATS)
    a("buffer_load_dword v2, v3, %s, 0 offen sc1", srdr(R_SY))
    def get_tag():
        a("v_readfirstlane_b32 s%d, v2", TAG)
        a("s_nop 0")
        a("s_mul_i32 s%d, s%d, 0x9E3779B1", TAG, TAG); a("s_add_u32 s%d, s%d, 0x7F4A7C15", TAG, TAG)
    a("s_cmp_ge_u32 s%d, 4", SW); a("s_cbranch_scc1 %s", prod)

    VCG, VRG = 3, 17
    VOFF, VSK = 4, 15
    RK, RV, RW, UK, UW, RES, TMP = 18, 40, 56, 128, 172, 188, 226
    VD_ = 240
    a.srd(20, P_K, 4 * MB); a.srd(24, P_V, 4 * MB); a.srd(28, P_SK, 8192); a.srd(32, P_WS, 4 * MB, WS_UR); a.srd(36, P_SSMD, 2048)
    a.srd(40, P_WS, 4 * MB, WS_YB)
    a("v_and_b32 v%d, 31, v0", VCG); a("v_lshrrev_b32 v%d, 5, v0", VRG)
    a("s_lshl_b32 s19, s%d, 17", SIDX); a("s_lshl_b32 s3, s%d, 8", SX_); a("s_add_u32 s19, s19, s3"); a("s_sub_u32 s19, s19, %d", 3 * 2048)
    a("v_lshlrev_b32 v%d, 14, v%d", VOFF, VRG); a("v_lshl_add_u32 v%d, v%d, 3, v%d", VOFF, VCG, VOFF); a("v_add_u32 v%d, s19, v%d", VOFF, VOFF)
    a("s_lshl_b32 s3, s%d, 10", SX_); a("v_lshl_add_u32 v%d, v%d, 5, s3", VSK, VCG)
    a("buffer_load_dwordx4 v[%d:%d], v%d, s[28:31], 0 offen", RW, RW + 3, VSK)
    a("buffer_load_dwordx4 v[%d:%d], v%d, s[28:31], 0 offen offset:16", RW + 4, RW + 7, VSK)
    for j in range(11):
        if j: a("v_add_u32 v%d, %d, v%d", VOFF + j, 2048 * j, VOFF)
        a("buffer_load_dwordx2 v[%d:%d], v%d, s[20:23], 0 offen %s", RK + 2 * j, RK + 2 * j + 1, VOFF + j, NTK)
    for j in range(8): a("buffer_load_dwordx2 v[%d:%d], v%d, s[24:27], 0 offen %s", RV + 2 * j, RV + 2 * j + 1, VOFF + 3 + j, NTK)
    SD = 48
    a("s_lshl_b32 s%d, s%d, 7", SD, SX_); a("s_lshl_b32 s3, s%d, 2", SIDX); a("s_add_u32 s%d, s%d, s3", SD, SD)
    a("s_add_u32 s49, s%d, s%d", SD, SW)
    a("s_lshl_b32 s3, s49, 1"); a("v_mov_b32 v%d, s3", TMP)
    a("buffer_load_ushort v%d, v%d, s[36:39], 0 offen", VD_, TMP)
    a("s_barrier")
    PK = 96
    VTAG, VZERO = 241, 242
    VW1, VR1, VG1 = TMP + 4, TMP + 6, TMP + 5
    a("v_sub_u32 v%d, 7, v%d", TMP + 4, VRG); a("v_and_b32 v%d, 7, v%d", TMP + 5, VCG); a("v_xor_b32 v%d, v%d, v%d", TMP + 4, TMP + 4, TMP + 5)
    a("v_lshlrev_b32 v%d, 4, v%d", TMP + 4, TMP + 4); a("v_lshl_add_u32 v%d, v%d, 9, v%d", TMP + 4, VCG, TMP + 4); a("v_add_u32 v%d, %d, v%d", VW1, L_T1, TMP + 4)
    a("v_lshrrev_b32 v%d, 3, v0", TMP + 7); a("v_and_b32 v%d, 7, v0", TMP + 5); a("v_lshrrev_b32 v%d, 2, v%d", TMP + 6, TMP + 7)
    a("v_xor_b32 v%d, v%d, v%d", TMP + 6, TMP + 6, TMP + 5); a("v_lshlrev_b32 v%d, 4, v%d", TMP + 6, TMP + 6)
    a("v_lshl_add_u32 v%d, v%d, 7, v%d", TMP + 6, TMP + 7, TMP + 6); a("v_add_u32 v%d, %d, v%d", VR1, L_T1, TMP + 6)
    a("s_lshl_b32 s3, s%d, 19", SX_); a("s_lshl_b32 s19, s%d, 7", SIDX); a("s_sub_u32 s3, s3, s19"); a("s_add_u32 s3, s3, %d", (2047 - 63) * 2)
    a("v_lshlrev_b32 v%d, 4, v%d", TMP + 5, TMP + 5); a("v_lshl_add_u32 v%d, v%d, 12, v%d", TMP + 5, TMP + 7, TMP + 5); a("v_add_u32 v%d, s3, v%d", VG1, TMP + 5)
    a("v_mov_b32 v%d, 0", VZERO)
    p1 = a.newlabel("p1"); p1e = a.newlabel("p1e")
    a("s_mov_b32 s53, %d", 0 if opt.get("dry1", 0) else 1)
    a.put(p1)
    a("s_cmp_eq_u32 s53, 0")
    def cwait(n, extra=None):
        sk = a.newlabel("w")
        a("s_cbranch_scc1 %s", sk)
        a("s_waitcnt vmcnt(%d)", n)
        if extra:
            extra(); a("s_cmp_eq_u32 s53, 0")
        a.put(sk)
    def tag_and_counter():
        get_tag()
        a("v_mov_b32 v%d, s%d", VTAG, TAG)
    cwait(20, tag_and_counter)
    for c in range(4):
        for t in range(4):
            dst = UW + (t * 2 + (c >> 1)) * 2 + (c & 1); src = RW + 2 * c + (t >> 1)
            if t & 1: a("v_and_b32 v%d, 0xffff0000, v%d", dst, src)
            else: a("v_lshlrev_b32 v%d, 16, v%d", dst, src)
    cwait(9, a.st if DIAG[0] else None)
    for j in range(11):
        for d in range(2): unpack(a, UK + 4 * j + 2 * d, UK + 4 * j + 2 * d + 1, RK + 2 * j + d)
    for j in range(8):
        for p in range(2):
            dst = RES + 4 * j + 2 * p
            a("v_pk_mul_f32 %s, %s, %s", pk(dst), pk(UK + 4 * j + 2 * p), pk(UW + (3 * 2 + p) * 2))
            for t in (2, 1, 0):
                a("v_pk_fma_f32 %s, %s, %s, %s", pk(dst), pk(UK + 4 * (j + 3 - t) + 2 * p), pk(UW + (t * 2 + p) * 2), pk(dst))
    cwait(1)
    for j in range(8):
        for p in range(2): unpack(a, UK + 4 * j + 2 * p, UK + 4 * j + 2 * p + 1, RV + 2 * j + p)
    for j in range(8):
        for p in range(2): a("v_pk_mul_f32 %s, %s, %s", pk(RES + 4 * j + 2 * p), pk(RES + 4 * j + 2 * p), pk(UK + 4 * j + 2 * p))
    for c in range(4):
        for m in range(4): a("v_cvt_pk_bf16_f32 v%d, v%d, v%d", PK + 4 * c + m, RES + 4 * (7 - 2 * m) + c, RES + 4 * (6 - 2 * m) + c)
    a("s_cbranch_scc0 %s", p1e)
    a("s_mov_b32 s53, 1")
    a("s_branch %s", p1)
    a.put(p1e)
    for c in range(4): a("ds_write_b128 v%d, v[%d:%d] offset:%d", VW1, PK + 4 * c, PK + 4 * c + 3, 128 * c)
    nc = a.newlabel("nc")
    a("s_cmp_ge_u32 s2, 16"); a("s_cbranch_scc1 %s", nc)
    a("s_cmp_lg_u32 s%d, 0", SW); a("s_cbranch_scc1 %s", nc)
    a("s_lshl_b32 s3, s2, 7"); a("s_add_u32 s3, s3, %d", CN)
    flag_store(a, VTAG, VZERO, "s3")
    a.put(nc)
    a("s_waitcnt lgkmcnt(0)")
    a.st()
    a("s_barrier")
    for m in range(4): a("ds_read_b128 v[%d:%d], v%d offset:%d", RV + 4 * m, RV + 4 * m + 3, VR1, 4096 * m)
    for m in range(4):
        a("s_mov_b32 s3, %d", m * 32 * 4096)
        a("s_waitcnt lgkmcnt(%d)", 3 - m)
        a("buffer_store_dwordx4 v[%d:%d], v%d, s[32:35], s3 offen sc1", RV + 4 * m, RV + 4 * m + 3, VG1)
    SLB = 50
    a("s_mul_i32 s%d, s%d, %d", SLB, SW, CV_W)
    VA, VB, VE, VS, VSG, VSR_, VPA, VL16 = 112, 116, 117, 118, 119, 120, 121, 122
    a("v_and_b32 v244, 15, v1"); a("v_lshrrev_b32 v245, 4, v1")
    a("v_and_b32 v246, 4, v244"); a("v_lshlrev_b32 v246, 1, v246"); a("v_lshrrev_b32 v247, 3, v244"); a("v_lshl_add_u32 v246, v247, 2, v246")
    a("v_and_b32 v247, 3, v244"); a("v_add3_u32 v246, v246, v247, 1")
    a("v_and_b32 v247, 1, v246"); a("v_mul_u32_u24 v247, 4160, v247"); a("v_and_b32 v246, 30, v246"); a("v_lshl_add_u32 v247, v246, 1, v247")
    a("v_lshl_add_u32 v247, v245, 4, v247"); a("s_add_u32 s3, s%d, %d", SLB, CV_C0); a("v_add_u32 v%d, s3, v247", VA)
    for j in range(1, 4): a("v_add_u32 v%d, %d, v%d", VA + j, 1024 * j, VA)
    a("v_lshlrev_b32 v247, 5, v244"); a("v_sub_u32 v247, 480, v247"); a("v_lshl_add_u32 v247, v245, 4, v247"); a("v_add_u32 v%d, s%d, v247", VB, SLB)
    a("v_and_b32 v246, 1, v245"); a("v_lshlrev_b32 v246, 4, v246"); a("v_lshrrev_b32 v247, 1, v245"); a("v_lshl_add_u32 v246, v247, 3, v246")
    a("v_lshl_add_u32 v246, v244, 5, v246"); a("v_sub_u32 v246, 504, v246"); a("v_add_u32 v%d, s%d, v246", VE, SLB)
    a("v_and_b32 v246, 1, v245"); a("v_lshl_add_u32 v246, v244, 1, v246"); a("v_lshl_add_u32 v246, v247, 5, v246")
    a("v_lshlrev_b32 v246, 2, v246"); a("v_add_u32 v246, s%d, v246", SW); a("v_and_b32 v247, 7, v244"); a("v_xor_b32 v246, v246, v247")
    a("v_lshlrev_b32 v246, 4, v246"); a("v_add_u32 v%d, %d, v246", VS, L_T1)
    a("v_bfe_u32 v246, v0, 3, 3"); a("v_xor_b32 v246, v246, v0"); a("v_lshlrev_b32 v246, 4, v246"); a("v_add_u32 v%d, %d, v246", VSR_, L_T1)
    a("v_lshrrev_b32 v246, 2, v0"); a("v_lshlrev_b32 v246, 14, v246"); a("v_and_b32 v247, 3, v0"); a("v_lshl_add_u32 v246, v247, 4, v246")
    a("s_lshl_b32 s3, s%d, 4", SD); a("v_add_u32 v%d, s3, v246", VSG)
    a("v_and_b32 v246, 31, v1"); a("v_mul_u32_u24 v%d, %d, v246", VPA, FAS)
    a("v_lshlrev_b32 v%d, 4, v1", VL16)
    ACC = 64; FA_ = [128, 160]; FB_ = [192, 4]
    for r in range(32): a("v_mov_b32 v%d, 0", ACC + r)
    a("s_waitcnt vmcnt(0)")
    a.st()
    a("s_barrier")
    nf = a.newlabel("nf")
    a("s_mul_i32 s51, s%d, %d", SX_, max(128, 32 * FAS)); a("s_add_u32 s51, s51, %d", FA)
    a("s_cmp_lg_u32 s%d, 0", SW); a("s_cbranch_scc1 %s", nf)
    a("s_mul_i32 s3, s%d, %d", SIDX, FAS); a("s_add_u32 s3, s3, s51")
    flag_store(a, VTAG, VZERO, "s3")
    a.put(nf)
    lead_poll(a, SW, 3, 244, lambda: poll(a, VPA, 246, TAG, "s51", n=32))
    a.st()
    a("s_lshl_b32 s52, s49, 12")
    for m in range(4):
        a("s_add_u32 m0, s%d, %d", SLB, CV_UR + 1024 * m)
        a("s_add_u32 s3, s52, %d", 1024 * m)
        a("buffer_load_dwordx4 v%d, s[32:35], s3 offen sc1 lds", VL16)
    hb("e0")
    lds_inc(a, 7, 244, 245)
    a("v_lshlrev_b32 v%d, 16, v%d", VD_, VD_)
    lds_wait(a, 6, 4, 244, 245)
    a("s_waitcnt vmcnt(0)")
    a.st()
    def cloads(rr, st):
        out = []
        def la(q):
            base = VA + (q >> 1); o = ((q & 1) * 8 + rr) * 16; d = FA_[st] + 4 * q
            out.append("ds_read2_b32 v[%d:%d], v%d offset0:%d offset1:%d" % (d, d + 1, base, o, o + 1))
            out.append("ds_read2_b32 v[%d:%d], v%d offset0:%d offset1:%d" % (d + 2, d + 3, base, o + 2, o + 3))
        def lb(t):
            d = FB_[st] + 4 * t
            out.append("ds_read_b128 v[%d:%d], v%d offset:%d" % (d, d + 3, VB, CV_UR + 64 * (56 - 8 * t + rr)))
        la(0)
        for t in range(8): lb(t)
        for q in range(1, 8): la(q)
        return out
    for l in cloads(0, 0): a(l)
    a("s_mov_b32 s53, 4")
    cvl = a.newlabel("cv")
    a.put(cvl)
    for st in range(2):
        nxt = cloads(st + 1, st ^ 1)
        if st == 1: nxt += ["v_add_u32 v%d, 128, v%d" % (r, r) for r in (VA, VA + 1, VA + 2, VA + 3, VB)] + ["s_sub_u32 s53, s53, 1", "s_cmp_lg_u32 s53, 0"]
        a("s_waitcnt lgkmcnt(0)")
        li = 0
        for q in range(8):
            ts = list(range(q, 8))
            if q & 1: ts.reverse()
            for t in ts:
                acc = ACC + 4 * t
                a("v_mfma_f32_16x16x32_bf16 %s, %s, %s, %s", v(acc, 4), v(FA_[st] + 4 * q, 4), v(FB_[st] + 4 * (t - q), 4), v(acc, 4))
                if li < len(nxt): a(nxt[li]); li += 1
        assert li == len(nxt)
    a("s_cbranch_scc1 %s", cvl)
    a("s_waitcnt lgkmcnt(0)")
    for t in range(8): a("ds_read_b64 v[%d:%d], v%d offset:%d", FA_[0] + 2 * t, FA_[0] + 2 * t + 1, VE, CV_UR + 512 * (7 - t))
    a.st()
    a("s_waitcnt lgkmcnt(0)")
    he("e"); hb("e1")
    U = FA_[0]; T = FA_[1]; PKo = FB_[0]
    for t in range(8):
        acc = ACC + 4 * t
        unpack(a, T + 3, T + 2, U + 2 * t); unpack(a, T + 1, T + 0, U + 2 * t + 1)
        for r in range(4): a("v_fmac_f32 v%d, v%d, v%d", acc + r, VD_, T + r)
        a("v_cvt_pk_bf16_f32 v%d, v%d, v%d", PKo + 2 * t, acc, acc + 1); a("v_cvt_pk_bf16_f32 v%d, v%d, v%d", PKo + 2 * t + 1, acc + 2, acc + 3)
    a("s_nop 1")
    for t in range(0, 8, 2):
        R = PKo + 2 * t
        a("v_permlane32_swap_b32 v%d, v%d", R, R + 2); a("v_permlane32_swap_b32 v%d, v%d", R + 1, R + 3)
        a("ds_write_b128 v%d, v[%d:%d] offset:%d", VS, R, R + 3, t * 32 * 64)
    lds_sync(a, 2, 244)
    for m in range(4): a("ds_read_b128 v[%d:%d], v%d offset:%d", 96 + 4 * m, 99 + 4 * m, VSR_, 4096 * m)
    for m in range(4):
        a("s_mov_b32 s3, %d", m * 64 * 16384)
        a("s_waitcnt lgkmcnt(%d)", 3 - m)
        a("buffer_store_dwordx4 v[%d:%d], v%d, s[40:43], s3 offen sc1", 96 + 4 * m, 99 + 4 * m, VSG)
    VHF, VKK, VQ, VM, VRW, VRR, VQ2, VQL, VLS = 2, 3, 4, 5, 8, 9, 13, 6, 7
    YA = 16
    RQ, RP, Q, PR, RY, S, RS, MU, H, YU = 24, 40, 64, 96, 136, 152, 160, 192, 200, 208
    HG = 160
    a.srd(20, P_WS, 12288, WS_MOD); x1srd(24); a.srd(28, P_WS, 4 * MB, WS_H2)
    a("v_bfe_u32 v%d, v0, 2, 1", VHF)
    a("v_lshrrev_b32 v11, 3, v0"); a("v_and_b32 v12, 3, v0"); a("v_lshl_add_u32 v%d, v11, 2, v12", VKK)
    a("s_lshl_b32 s3, s2, 14")
    a("v_lshlrev_b32 v11, 13, v%d", VHF); a("v_lshl_add_u32 v11, v%d, 4, v11", VKK); a("v_add_u32 v%d, s3, v11", VQ); a("v_add_u32 v%d, 4096, v%d", VQ2, VQ)
    a("v_lshlrev_b32 v%d, 4, v%d", VM, VKK)
    a("v_mul_u32_u24 v11, %d, v%d", 4 * QROW, VHF); a("v_add3_u32 v%d, v11, v%d, 0", VQL, VM); a("v_add_u32 v%d, %d, v%d", VQL, L_QT, VQL)
    a("v_lshlrev_b32 v11, 5, v%d", VHF); a("v_add_u32 v%d, %d, v11", VLS, L_L1S)
    a("v_bfe_u32 v11, v%d, 1, 3", VKK); a("v_lshlrev_b32 v11, 4, v11"); a("v_lshlrev_b32 v12, 7, v%d", VKK); a("v_lshl_add_u32 v12, v%d, 3, v12", VHF)
    for i in range(8):
        a("v_xor_b32 v%d, %d, v11", YA + i, 16 * i); a("v_add_u32 v%d, v12, v%d", YA + i, YA + i)
    a("v_lshrrev_b32 v11, 4, v1"); a("v_lshlrev_b32 v11, 2, v11"); a("v_lshl_add_u32 v11, v%d, 7, v11", VHF)
    a("s_lshl_b32 s3, s%d, 5", SW); a("s_add_u32 s3, s3, 16384"); a("v_add_u32 v%d, s3, v11", VRW)
    a("v_lshlrev_b32 v%d, 7, v%d", VRR, VHF)
    a("v_and_b32 v11, 11, v1"); a("v_cmp_eq_u32 s[52:53], 0, v11")
    a("v_lshlrev_b32 v10, 8, v1"); a("v_lshlrev_b32 v14, 2, v1"); a("v_mov_b32 v12, 1")
    a("v_mov_b32 v11, %d", L_CNT + 20); a("v_mov_b32 v15, 1")
    a("s_waitcnt vmcnt(0)")
    a.st()
    a("s_mov_b64 exec, 1")
    a("ds_add_rtn_u32 v15, v11, v15")
    a("s_waitcnt lgkmcnt(0)")
    a("v_readfirstlane_b32 s56, v15")
    nb = a.newlabel("nb"); na = a.newlabel("na")
    a("s_and_b32 s55, s2, 15"); a("s_lshl_b32 s3, s55, 7"); a("s_add_u32 s3, s3, %d", CN)
    a("s_cmp_lg_u32 s56, 3"); a("s_cbranch_scc1 %s", na)
    a("buffer_atomic_add v12, v%d, %s, s3 offen sc0 sc1", VZERO, srdr(R_SY))
    a.put(na)
    a("s_mov_b64 exec, -1")
    lds_wait(a, 1, 4, 11, 15)
    for j in range(4): a("ds_read_b128 v[%d:%d], v%d offset:%d", RQ + 4 * j, RQ + 4 * j + 3, VQL, QROW * j)
    for j in range(2): a("ds_read_b128 v[%d:%d], v%d offset:%d", MU + 4 * j, MU + 4 * j + 3, VLS, 16 * j)
    a("s_add_u32 s54, s%d, 15", TAG); a("s_lshl_b32 s3, s55, 2"); a("s_add_u32 s3, s3, %d", FB2)
    a("s_lshl_b32 s55, s%d, 8", SX_); a("s_add_u32 s55, s55, %d", FB2)
    a("s_waitcnt lgkmcnt(0)")
    for j in range(4):
        for d in range(4): unpack(a, Q + 8 * j + 2 * d, Q + 8 * j + 2 * d + 1, RQ + 4 * j + d)
    for j in range(4):
        for e in range(0, 8, 2):
            a("v_pk_fma_f32 %s, %s, %s, %s op_sel:[0,0,1] op_sel_hi:[1,0,1]", pk(HG + 8 * j + e), pk(Q + 8 * j + e), pk(MU + 2 * j), pk(MU + 2 * j))
    a("s_cmp_lg_u32 s56, 3"); a("s_cbranch_scc1 %s", nb)
    a("s_waitcnt vmcnt(0)")
    a("v_readfirstlane_b32 s19, v12")
    nl = a.newlabel("nl")
    a("s_mov_b64 exec, 0xff")
    a("s_cmp_lg_u32 s19, s54"); a("s_cbranch_scc1 %s", nl)
    a("buffer_store_dword v%d, v10, %s, s3 offen sc1", VTAG, srdr(R_SY))
    a.put(nl)
    poll(a, 14, 11, TAG, "s55", n=16)
    a("s_cmp_lg_u32 s2, 0"); a("s_cbranch_scc1 %s", nb)
    a("s_mov_b32 s3, %d", WT)
    flag_store(a, VTAG, VZERO, "s3")
    a.put(nb)
    a("s_barrier")
    a.st()
    he("e"); hb("e2")
    SA, CA, GA, SB, CBp = PR, PR + 8, PR + 16, PR + 24, PR + 32
    def unp_param(p):
        for d in range(4): unpack(a, PR + 8 * p + 2 * d, PR + 8 * p + 2 * d + 1, RP + 4 * p + d)
    ml = a.newlabel("ml"); mo = a.newlabel("mo")
    a("s_mov_b32 s11, 0")
    a.put(ml)
    for p in range(5):
        a("s_mov_b32 s3, %d", 2048 * p)
        a("buffer_load_dwordx4 v[%d:%d], v%d, s[20:23], s3 offen sc1", RP + 4 * p, RP + 4 * p + 3, VM)
    a("s_add_u32 s11, s11, 1")
    a("s_cmp_gt_u32 s11, %d", SPIN_MAX); a("s_cbranch_scc1 %s", mo)
    a("s_waitcnt vmcnt(0)")
    a("v_max3_u32 v11, v%d, v%d, v%d", RP, RP + 4, RP + 8); a("v_max3_u32 v11, v11, v%d, v%d", RP + 12, RP + 16)
    a("v_cmp_eq_u32 vcc, -1, v11"); a("s_nop 4"); a("s_cbranch_vccnz %s", ml)
    a.put(mo)
    unp_param(1); unp_param(0)
    for j in range(4):
        for e in range(0, 8, 2): a("v_pk_fma_f32 %s, %s, %s, %s", pk(HG + 8 * j + e), pk(HG + 8 * j + e), pk(CA + e), pk(SA + e))
    unp_param(2)
    for j in range(4):
        for e in range(0, 8, 2): a("v_pk_mul_f32 %s, %s, %s", pk(HG + 8 * j + e), pk(HG + 8 * j + e), pk(GA + e))
    a.st()
    a("s_barrier")
    a.st()
    for i in range(8): a("ds_read_b64 v[%d:%d], v%d", RY + 2 * i, RY + 2 * i + 1, YA + i)
    unp_param(4); unp_param(3)
    for i in range(8):
        a("s_waitcnt lgkmcnt(%d)", 7 - i)
        unpack(a, YU + i, YU + 8 + i, RY + 2 * i); unpack(a, YU + 16 + i, YU + 24 + i, RY + 2 * i + 1)
    for j in range(4):
        for e in range(0, 8, 2): a("v_pk_fma_f32 %s, %s, %s, %s", pk(H + e), pk(HG + 8 * j + e), pk(YU + 8 * j + e), pk(Q + 8 * j + e))
        for e in range(0, 8, 2): a("v_cvt_pk_bf16_f32 v%d, v%d, v%d", RQ + 4 * j + e // 2, H + e, H + e + 1)
        a("buffer_store_dwordx4 v[%d:%d], v%d, s[24:27], 0 offen offset:%d sc1", RQ + 4 * j, RQ + 4 * j + 3, VQ if j < 2 else VQ2, 2048 * (j & 1))
        for d in range(4): unpack(a, Q + 8 * j + 2 * d, Q + 8 * j + 2 * d + 1, RQ + 4 * j + d)
    for j in range(4):
        x = Q + 8 * j
        a("v_pk_add_f32 %s, %s, %s", pk(H), pk(x), pk(x + 2)); a("v_pk_mul_f32 %s, %s, %s", pk(H + 2), pk(x), pk(x))
        a("v_pk_add_f32 %s, %s, %s", pk(H + 4), pk(x + 4), pk(x + 6))
        for e in (2, 4, 6): a("v_pk_fma_f32 %s, %s, %s, %s", pk(H + 2), pk(x + e), pk(x + e), pk(H + 2))
        a("v_pk_add_f32 %s, %s, %s", pk(H), pk(H), pk(H + 4))
        a("v_add_f32 v%d, v%d, v%d", S + 4 + j, H + 2, H + 3); a("v_add_f32 v%d, v%d, v%d", S + j, H, H + 1)
    wave_reduce8(a, S, H)
    a("s_mov_b64 exec, s[52:53]")
    a("ds_write_b32 v%d, v%d", VRW, S); a("ds_write_b32 v%d, v%d offset:16", VRW, S + 4)
    a("s_mov_b64 exec, -1")
    a("s_waitcnt lgkmcnt(0)")
    a("s_barrier")
    a.st()
    for w in range(4):
        a("ds_read_b128 v[%d:%d], v%d offset:%d", RS + 8 * w, RS + 8 * w + 3, VRR, 16384 + 32 * w)
        a("ds_read_b128 v[%d:%d], v%d offset:%d", RS + 8 * w + 4, RS + 8 * w + 7, VRR, 16384 + 32 * w + 16)
    a("s_waitcnt lgkmcnt(0)")
    for (d, s) in ((0, 8), (16, 24), (0, 16)):
        for e in range(0, 8, 2): a("v_pk_add_f32 %s, %s, %s", pk(RS + d + e), pk(RS + d + e), pk(RS + s + e))
    a("s_mov_b32 s10, %s", fhex(1.0 / 1024))
    for j in range(4): a("v_mul_f32 v%d, s10, v%d", RS + j, RS + j)
    for j in range(4): a("v_mul_f32 v%d, v%d, v%d", RS + 8 + j, RS + j, RS + j)
    for j in range(4): a("v_fma_f32 v%d, v%d, s10, -v%d", RS + 4 + j, RS + 4 + j, RS + 8 + j)
    for j in range(4): a("v_max_f32 v%d, 0, v%d", RS + 4 + j, RS + 4 + j)
    for j in range(4): a("v_add_f32 v%d, %s, v%d", RS + 4 + j, fhex(EPS), RS + 4 + j)
    for j in range(4): a("v_rsq_f32 v%d, v%d", MU + 2 * j, RS + 4 + j)
    a("s_nop 0")
    for j in range(4): a("v_mul_f32_e64 v%d, -v%d, v%d", MU + 2 * j + 1, RS + j, MU + 2 * j)
    for j in range(4):
        for e in range(0, 8, 2):
            a("v_pk_fma_f32 %s, %s, %s, %s op_sel:[0,0,1] op_sel_hi:[1,0,1]", pk(H + e), pk(Q + 8 * j + e), pk(MU + 2 * j), pk(MU + 2 * j))
        for e in range(0, 8, 2): a("v_pk_fma_f32 %s, %s, %s, %s", pk(H + e), pk(H + e), pk(CBp + e), pk(SB + e))
        for e in range(0, 8, 2): a("v_cvt_pk_bf16_f32 v%d, v%d, v%d", RY + 4 * j + e // 2, H + e, H + e + 1)
        a("buffer_store_dwordx4 v[%d:%d], v%d, s[28:31], 0 offen offset:%d sc1", RY + 4 * j, RY + 4 * j + 3, VQ if j < 2 else VQ2, 2048 * (j & 1))
    a.st()
    a("s_waitcnt vmcnt(0)")
    a.st()
    a("s_barrier")
    nf = a.newlabel("nf")
    a("s_cmp_lg_u32 s%d, 0", SW); a("s_cbranch_scc1 %s", nf)
    a("s_lshr_b32 s3, s2, 4"); a("s_lshl_b32 s3, s3, 12"); a("s_and_b32 s19, s2, 15"); a("s_lshl_b32 s19, s19, 7"); a("s_add_u32 s3, s3, s19"); a("s_add_u32 s3, s3, %d", FC1)
    a("v_lshlrev_b32 v10, 11, v1")
    a("s_mov_b64 exec, 3")
    a("buffer_store_dword v%d, v10, %s, s3 offen sc1", VTAG, srdr(R_SY))
    a("s_mov_b64 exec, -1")
    a.put(nf)
    c_spare = a.label("cspare"); c_g3 = a.label("cg3")
    a("s_cmp_ge_u32 s%d, 28", SIDX); a("s_cbranch_scc1 %s", c_spare)

    he("e"); hb("l0")
    if DIAG[0]: a("v_mov_b32 v31, v250"); a.diag = (0, 31)
    R_Z2, R_P, R_BSP = 32, 40, 36
    a.srd(R_Z2, P_WS, 14 * 524288, WS_Z2); a.srd(R_P, P_WS, 16 * 458752, WS_P); a.srd(R_BSP, P_BSP, 4096)
    XA, YB, YG, VSW, VSF, KC, T, VZ, VP, VBS = 2, 4, 12, 14, 15, 16, 20, 28, 29, 30
    AC = 32; HO = 96; F = [160, 192]; ZK = 224; S = 240; BS = 240
    SWM, SWN = 48, 49
    a("s_and_b32 s%d, s%d, 1", SWM, SW); a("s_lshr_b32 s%d, s%d, 1", SWN, SW)
    c, h, g, r_, cq = 20, 21, 21, 22, 23
    a("v_and_b32 v%d, 15, v1", c); a("v_lshrrev_b32 v%d, 4, v1", h); a("v_bfe_u32 v%d, v1, 2, 2", r_); a("v_and_b32 v%d, 3, v1", cq)
    a("s_lshl_b32 s3, s%d, 7", SI); a("s_lshl_b32 s19, s%d, 6", SWM); a("s_add_u32 s3, s3, s19"); a("s_lshl_b32 s3, s3, 1")
    a("v_lshl_add_u32 v%d, v%d, 1, s3", VBS, c)
    a("v_lshrrev_b32 v24, 1, v%d", c); a("v_xor_b32 v24, v24, v%d", h); a("v_lshlrev_b32 v24, 4, v24")
    a("v_lshl_add_u32 v24, v%d, 7, v24", c); a("s_lshl_b32 s3, s%d, 13", SWM); a("v_add_u32 v%d, s3, v24", XA); a("v_xor_b32 v%d, 64, v%d", XA + 1, XA)
    a("v_lshl_add_u32 v24, v%d, 3, v%d", g, r_); a("v_lshlrev_b32 v24, 8, v24"); a("v_lshl_add_u32 v24, v%d, 3, v24", cq)
    a("v_and_b32 v25, 1, v%d", g); a("v_xor_b32 v25, s%d, v25", SWN); a("v_lshl_add_u32 v24, v25, 7, v24"); a("v_add_u32 v24, %d, v24", L_Y)
    for nt in range(4):
        a("v_xor_b32 v25, %d, v%d", nt, r_); a("v_lshl_add_u32 v%d, v25, 5, v24", YB + 2 * nt); a("v_add_u32 v%d, 1024, v%d", YB + 2 * nt + 1, YB + 2 * nt)
    a("v_and_b32 v24, 1, v%d", g); a("v_lshl_add_u32 v24, v24, 3, v%d", r_)
    a("v_lshrrev_b32 v25, 1, v%d", cq); a("v_lshl_add_u32 v24, v25, 2, v24"); a("v_lshl_add_u32 v24, v25, 5, v24")
    a("v_lshrrev_b32 v25, 1, v%d", g); a("v_lshl_add_u32 v24, v25, 4, v24"); a("v_lshlrev_b32 v24, 4, v24")
    a("v_and_b32 v25, 1, v%d", cq); a("v_lshl_add_u32 v24, v25, 3, v24")
    a("s_lshl_b32 s3, s%d, 12", SWN); a("s_add_u32 s3, s3, %d", L_Y); a("v_add_u32 v%d, s3, v24", YG); a("v_xor_b32 v%d, 64, v%d", YG + 1, YG)
    a("s_lshl_b32 s3, s%d, 10", SWN); a("s_lshl_b32 s19, s%d, 9", SWM); a("s_add_u32 s3, s3, s19"); a("s_add_u32 s3, s3, %d", L_ST)
    a("v_lshl_add_u32 v%d, v1, 3, s3", VSW)
    a("s_add_u32 s3, s19, %d", L_FIN); a("v_lshl_add_u32 v%d, v%d, 3, s3", VSF, c)
    a("v_lshrrev_b32 v24, 1, v%d", h); a("v_lshlrev_b32 v24, 2, v24"); a("v_xor_b32 v24, v24, v%d", c); a("v_lshl_add_u32 v24, v%d, 4, v24", h)
    a("s_lshl_b32 s3, s%d, 19", SJ); a("s_lshl_b32 s19, s%d, 15", SI); a("s_add_u32 s3, s3, s19")
    a("s_lshl_b32 s19, s%d, 14", SWM); a("s_add_u32 s3, s3, s19"); a("s_lshl_b32 s19, s%d, 12", SWN); a("s_add_u32 s3, s3, s19")
    a("v_lshl_add_u32 v%d, v24, 4, s3", VZ)
    a("s_mul_i32 s3, s%d, 458752", SI); a("s_lshl_b32 s19, s%d, 15", SJ); a("s_add_u32 s3, s3, s19")
    a("s_lshl_b32 s19, s%d, 14", SWN); a("s_add_u32 s3, s3, s19"); a("s_lshl_b32 s19, s%d, 12", SWM); a("s_add_u32 s3, s3, s19")
    a("v_lshl_add_u32 v%d, v1, 4, s3", VP)
    SC = 52
    a("s_mov_b32 s%d, %s", SC, fhex(GC1)); a("s_mov_b32 s%d, %s", SC + 1, fhex(GC1)); a("s_mov_b32 s54, 8192")
    a("v_mov_b32 v%d, %s", KC, fhex(GC0)); a("v_mov_b32 v%d, %s", KC + 1, fhex(GC0)); a("v_mov_b32 v%d, 1.0", KC + 2); a("v_mov_b32 v%d, 1.0", KC + 3)
    a("s_mov_b32 s50, 0"); a("s_mov_b32 s51, %d", (1 << 4) | (1 << 8) | (1 << 16))
    def frag_loads(slot, ks, fs):
        out = []
        def X(mt): out.append("ds_read_b128 %s, v%d offset:%d" % (v(F[fs] + 4 * mt, 4), XA + ks, slot * 16384 + mt * 2048))
        def Y(nt):
            for hh in range(2): out.append("ds_read_b64_tr_b16 %s, v%d offset:%d" % (v(F[fs] + 16 + 4 * nt + 2 * hh, 2), YB + 2 * nt + hh, slot * 16384 + ks * 8192))
        X(0); Y(0); X(1); X(2); X(3); Y(1); Y(2); Y(3)
        return out
    def phase(fs, first, nxt, waits):
        need = {("x", 0): 0, ("y", 0): 2, ("x", 1): 3, ("x", 2): 4, ("x", 3): 5, ("y", 1): 7, ("y", 2): 9, ("y", 3): 11}
        done = -1; li = 0; nds = 0
        for nt in range(4):
            for mt in (range(4) if nt % 2 == 0 else range(3, -1, -1)):
                if waits:
                    p = max(need[("x", mt)], need[("y", nt)])
                    if p > done:
                        a("s_waitcnt lgkmcnt(%d)", min(15, 11 - p + nds)); done = p
                d = AC + 4 * (mt * 4 + nt)
                a("v_mfma_f32_16x16x32_bf16 %s, %s, %s, %s", v(d, 4), v(F[fs] + 16 + 4 * nt, 4), v(F[fs] + 4 * mt, 4), "0" if first else v(d, 4))
                if li < len(nxt):
                    a(nxt[li]); nds += nxt[li].startswith("ds_"); li += 1
        assert li == len(nxt)
    def gelu():
        G = 2; NGp = 32 // G
        def tm(gi): return [ZK + 4 * (gi % 4) + 2 * n for n in range(G)]
        def pre(gi):
            t = tm(gi); x = [AC + 2 * (G * gi + n) for n in range(G)]
            return ([("v_pk_mul_f32 %s, %s, %s" % (pk(t[n]), pk(x[n]), pk(x[n]))) for n in range(G)] +
                    [("v_pk_fma_f32 %s, %s, s[%d:%d], %s" % (pk(t[n]), pk(t[n]), SC, SC + 1, pk(KC))) for n in range(G)] +
                    [("v_pk_mul_f32 %s, %s, %s" % (pk(t[n]), pk(t[n]), pk(x[n]))) for n in range(G)])
        def ex(gi): return ["v_exp_f32 v%d, v%d" % (r, r) for t in tm(gi) for r in (t, t + 1)]
        def ad(gi): return ["v_pk_add_f32 %s, %s, %s" % (pk(t), pk(t), pk(KC + 2)) for t in tm(gi)]
        def rc(gi): return ["v_rcp_f32 v%d, v%d" % (r, r) for t in tm(gi) for r in (t, t + 1)]
        def fin_(gi): return ["v_pk_mul_f32 %s, %s, %s" % (pk(HO + 2 * (G * gi + n)), pk(AC + 2 * (G * gi + n)), pk(tm(gi)[n])) for n in range(G)]
        for step in range(NGp + 3):
            tr = (ex(step - 1) if 0 <= step - 1 < NGp else []) + (rc(step - 2) if 0 <= step - 2 < NGp else [])
            al = (ad(step - 2) if 0 <= step - 2 < NGp else []) + (fin_(step - 3) if 0 <= step - 3 < NGp else []) + (pre(step) if step < NGp else [])
            out = []
            while tr or al:
                if al: out.append(al.pop(0))
                if tr: out.append(tr.pop(0))
            if not (0 <= step - 1 < NGp) and 0 <= step - 2 < NGp:
                out = ad(step - 2) + [o for o in out if o not in ad(step - 2)]
            for o in out: a(o)
            if step >= NGp: a("s_nop 0")
    def stats_z2():
        for mt in range(4):
            x = HO + 16 * mt
            a("v_pk_add_f32 %s, %s, %s", pk(T), pk(x), pk(x + 2)); a("v_pk_mul_f32 %s, %s, %s", pk(T + 2), pk(x), pk(x))
            a("v_pk_add_f32 %s, %s, %s", pk(T + 4), pk(x + 4), pk(x + 6)); a("v_pk_mul_f32 %s, %s, %s", pk(T + 6), pk(x + 2), pk(x + 2))
            for e in range(4, 16, 4):
                a("v_pk_fma_f32 %s, %s, %s, %s", pk(T + 2), pk(x + e), pk(x + e), pk(T + 2))
                a("v_pk_fma_f32 %s, %s, %s, %s", pk(T + 6), pk(x + e + 2), pk(x + e + 2), pk(T + 6))
            for e in range(8, 16, 4):
                a("v_pk_add_f32 %s, %s, %s", pk(T), pk(T), pk(x + e)); a("v_pk_add_f32 %s, %s, %s", pk(T + 4), pk(T + 4), pk(x + e + 2))
            a("v_pk_add_f32 %s, %s, %s", pk(T), pk(T), pk(T + 4)); a("v_pk_add_f32 %s, %s, %s", pk(T + 2), pk(T + 2), pk(T + 6))
            a("v_add_f32 v%d, v%d, v%d", S + mt, T, T + 1); a("v_add_f32 v%d, v%d, v%d", S + 4 + mt, T + 2, T + 3)
        a("s_nop 1")
        for base in (S, S + 4):
            a("v_permlane32_swap_b32 v%d, v%d", base, base + 2); a("v_permlane32_swap_b32 v%d, v%d", base + 1, base + 3)
        for base in (S, S + 4):
            a("v_add_f32 v%d, v%d, v%d", base, base, base + 2); a("v_add_f32 v%d, v%d, v%d", base + 1, base + 1, base + 3)
        a("s_nop 0")
        for base in (S, S + 4): a("v_permlane16_swap_b32 v%d, v%d", base, base + 1)
        a("v_add_f32 v%d, v%d, v%d", S, S, S + 1); a("v_add_f32 v%d, v%d, v%d", S + 1, S + 4, S + 5)
        a("ds_write_b64 v%d, %s", VSW, pk(S))
        a("s_waitcnt lgkmcnt(0)")
    def store_z(n):
        R = ZK + 4 * n; mp, nt = n // 4, n % 4
        a("v_permlane16_swap_b32 v%d, v%d", R, R + 2); a("v_permlane16_swap_b32 v%d, v%d", R + 1, R + 3)
        a("buffer_store_dwordx4 %s, v%d, %s, %s offen offset:%d sc1", v(R, 4), VZ, srdr(R_Z2), "s54" if mp else "0", 1024 * nt)
    def burst_norm():
        for mt in range(4): a("ds_read_b64 %s, v%d offset:%d", pk(T + 2 * mt), VSF, 128 * mt)
        a("s_waitcnt lgkmcnt(0)")
        n = 0
        for mp in range(2):
            for nt in range(4):
                R = ZK + 4 * n; n += 1
                for q in range(2):
                    mt = 2 * mp + q; x = HO + 4 * (mt * 4 + nt)
                    for e in (0, 2): a("v_pk_fma_f32 %s, %s, %s, %s op_sel:[0,0,1] op_sel_hi:[1,0,1]", pk(x + e), pk(x + e), pk(T + 2 * mt), pk(T + 2 * mt))
                for q in range(2):
                    mt = 2 * mp + q; x = HO + 4 * (mt * 4 + nt)
                    for e in (0, 2): a("v_cvt_pk_bf16_f32 v%d, v%d, v%d", R + 2 * q + e // 2, x + e, x + e + 1)
                if n > 1: store_z(n - 2)
        a("s_nop 1")
        store_z(7)
    def burst_p():
        a("s_waitcnt vmcnt(0) lgkmcnt(0)")
        for mt in range(4): a("v_lshlrev_b32 v%d, 16, v%d", T + 2 * mt, BS + mt)
        a("s_nop 3")
        for pr in range(2):
            for mt in range(4):
                R = F[0] + 4 * (pr * 4 + mt)
                os_ = [4 * (mt * 4 + 2 * pr + q) + e for q in range(2) for e in (0, 2)]
                for o in os_: a("v_pk_add_f32 %s, %s, %s op_sel_hi:[1,0]", pk(AC + o), pk(AC + o), pk(T + 2 * mt))
                for o in os_: a("v_pk_mul_f32 %s, %s, %s", pk(AC + o), pk(AC + o), pk(HO + o))
                for n, o in enumerate(os_): a("v_cvt_pk_bf16_f32 v%d, v%d, v%d", R + n, AC + o, AC + o + 1)
                a("buffer_store_dwordx4 %s, v%d, %s, %s offen offset:%d sc1", v(R, 4), VP, srdr(R_P), "s54" if pr else "0", 1024 * mt)
    l_first, l_top, l_mid, l_norm, l_normr, l_sw, l_swr, l_fin, l_z1 = [a.label(n) for n in ("kfirst", "ktop", "kmid", "knorm", "knormr", "ksw", "kswr", "kfin", "kz1")]
    assert ev["norm"] % 4 == 2 and ev["drain"] % 4 == 0
    a("s_waitcnt vmcnt(0)")
    a("s_barrier")
    a.st()
    for l in frag_loads(0, 0, 0): a(l)
    a.put(l_first)
    phase(0, True, frag_loads(0, 1, 1), True)
    a("s_branch %s", l_mid)
    a.put(l_top)
    for slot in range(4):
        extra = []
        if slot == 3: extra = ["s_cmp_eq_u32 s50, 7"]
        phase(0, False, frag_loads(slot, 1, 1) + extra, True)
        if slot == 0: a.put(l_mid)
        a("s_waitcnt vmcnt(0) lgkmcnt(0)" if slot == 0 else "s_waitcnt lgkmcnt(0)")
        a("s_barrier")
        if slot == 3:
            a("s_cbranch_scc1 %s", l_sw); a.put(l_swr)
        if slot in opt.get("stslots", (1, 3)): a.st()
        extra = []
        if slot == 2: extra = ["s_cmp_eq_u32 s50, %d" % (ev["norm"] // 4)]
        if slot == 3: extra = ["s_add_u32 s50, s50, 1", "s_bitcmp1_b32 s51, s50"]
        phase(1, False, frag_loads((slot + 1) & 3, 0, 0) + extra, False)
        if slot == 2:
            a("s_cbranch_scc1 %s", l_norm); a.put(l_normr)
    a("s_cbranch_scc0 %s", l_top)
    he("l"); hb("l1")
    a("s_cmp_eq_u32 s50, 16"); a("s_cbranch_scc1 %s", l_fin)
    a("s_cmp_lg_u32 s50, 8"); a("s_cbranch_scc1 %s", l_z1)
    for mt in range(4): a("buffer_load_ushort v%d, v%d, %s, 0 offen offset:%d", BS + mt, VBS, srdr(R_BSP), 32 * mt)
    a.put(l_z1)
    a("s_nop 3")
    gelu()
    a("s_cmp_eq_u32 s50, 8"); a("s_cbranch_scc1 %s", l_first)
    stats_z2()
    a("s_branch %s", l_first)
    a.put(l_sw)
    for nt in range(4):
        for hh in range(2): a("v_add_u32 v%d, %d, v%d", YB + 2 * nt + hh, 1024 * nt, YG + hh)
    a("s_branch %s", l_swr)
    a.put(l_norm)
    burst_norm()
    a("s_branch %s", l_normr)
    a.put(l_fin)
    burst_p()
    if DIAG[0]: a("v_mov_b32 v250, v31"); a.diag = (0, 250)
    a("s_waitcnt vmcnt(0)")
    a("s_barrier")
    a.st()
    he("l")
    a("s_branch %s", c_g3)

    def spare_stream():
        mode = opt.get("spare", 2)
        if mode == 0: return
        nw = {1: 8, 2: 2, 3: 4}[mode]
        sk = a.newlabel("ss")
        a.srd(20, P_WIN, 1024 * 7168); a.srd(24, P_WSP, 8 * MB); a.srd(28, P_WOUT, 1792 * 2048)
        a("s_cmp_ge_u32 s%d, %d", SW, nw); a("s_cbranch_scc1 %s", sk)
        a("s_sub_u32 s3, s%d, 28", SIDX); a("s_lshl_b32 s19, s%d, 2", SX_); a("s_add_u32 s3, s3, s19"); a("s_mul_i32 s3, s3, %d", nw); a("s_add_u32 s48, s3, s%d", SW)
        a("s_lshl_b32 s3, s48, 6"); a("v_add_u32 v2, s3, v1")
        step = 32 * nw * 64
        a("s_mov_b32 s49, 9363")
        def loop(n, body):
            lp = a.newlabel("sl")
            a("v_mov_b32 v3, v2"); a("s_mov_b32 s50, %d", -(-n // step))
            a.put(lp)
            body()
            a("v_add_u32 v3, %d, v3", step)
            if nw < 8: a("s_waitcnt vmcnt(0)")
            a("s_sub_u32 s50, s50, 1"); a("s_cmp_lg_u32 s50, 0"); a("s_cbranch_scc1 %s", lp)
        def b_in():
            a("v_lshrrev_b32 v4, 2, v3"); a("v_mul_u32_u24 v4, s49, v4"); a("v_lshrrev_b32 v4, 16, v4")
            a("v_mul_u32_u24 v5, 28, v4"); a("v_sub_u32 v5, v3, v5")
            a("v_mul_u32_u24 v4, 7168, v4"); a("v_lshl_add_u32 v5, v5, 7, v4")
            a("buffer_load_dword v10, v5, s[20:23], 0 offen")
        def b_sp():
            a("v_and_b32 v4, 2047, v3"); a("v_lshrrev_b32 v5, 11, v3"); a("v_lshlrev_b32 v4, 12, v4"); a("v_lshl_add_u32 v5, v5, 7, v4")
            a("buffer_load_dword v10, v5, s[24:27], 0 offen")
        def b_out():
            a("v_lshlrev_b32 v5, 7, v3")
            a("buffer_load_dword v10, v5, s[28:31], 0 offen")
        if not opt.get("t1pos"): loop(28672, b_in)
        if not opt.get("tspos"): loop(65536, b_sp)
        if not opt.get("topos"): loop(28672, b_out)
        a("s_waitcnt vmcnt(0)")
        a.put(sk)
    a.put(c_spare)
    spare_stream()

    a.put(c_g3)
    hb("l2")
    S3 = 4; NK = 28
    VO, VG, VSR, X1R, GBR = 120, 121, 122, 124, 132
    R_W, R_O, R_P3, R_X1, R_M = 20, 24, 28, 32, 36
    def g3_final_setup():
        a.srd(R_O, P_OUT, 4 * MB); x1srd(R_X1); a.srd(R_M, P_WS, 12288, WS_MOD)
        a("v_lshrrev_b32 v110, 3, v0"); a("v_and_b32 v111, 7, v0")
        a("s_lshl_b32 s3, s%d, 18", SI); a("s_lshl_b32 s19, s%d, 7", SJD); a("s_add_u32 s3, s3, s19")
        a("v_lshlrev_b32 v112, 4, v111"); a("v_lshl_add_u32 v113, v110, 11, v112"); a("v_add_u32 v%d, s3, v113", VO)
        a("s_add_u32 s19, s19, %d", 5 * 2048); a("v_add_u32 v%d, s19, v112", VG)
        a("v_and_b32 v112, 7, v110"); a("v_xor_b32 v112, v112, v111"); a("v_lshlrev_b32 v112, 4, v112"); a("v_lshl_add_u32 v%d, v110, 7, v112", VSR)
        a("s_mov_b32 s9, %d", 64 * 2048)
    def final_loads():
        a("buffer_load_dwordx4 %s, v%d, %s, 0 offen sc1", v(X1R, 4), VO, srdr(R_X1))
        a("buffer_load_dwordx4 %s, v%d, %s, s9 offen sc1", v(X1R + 4, 4), VO, srdr(R_X1))
        a("buffer_load_dwordx4 %s, v%d, %s, 0 offen sc1", v(GBR, 4), VG, srdr(R_M))
    g3_final_setup()
    XA3, YA3, VSW3 = 2, 4, 8
    ACC3 = 16; F3 = [48, 72]
    c, g, r_, cq = 10, 11, 12, 13
    a("v_and_b32 v%d, 15, v1", c); a("v_lshrrev_b32 v%d, 4, v1", g); a("v_bfe_u32 v%d, v1, 2, 2", r_); a("v_and_b32 v%d, 3, v1", cq)
    a("s_lshl_b32 s3, s%d, 11", SW); a("v_lshl_add_u32 v%d, v1, 4, s3", XA3)
    a("v_lshl_add_u32 v14, v%d, 2, v%d", g, r_); a("v_bfe_u32 v15, v14, 1, 2")
    a("v_lshlrev_b32 v14, 7, v14"); a("v_lshl_add_u32 v14, v%d, 3, v14", cq); a("v_add_u32 v14, %d, v14", L_Y3)
    for dt in range(4):
        a("v_xor_b32 v9, %d, v15", dt); a("v_lshl_add_u32 v%d, v9, 5, v14", YA3 + dt)
    a("v_lshrrev_b32 v14, 1, v%d", g); a("v_and_b32 v15, 7, v%d", c); a("v_xor_b32 v14, v14, v15"); a("v_lshlrev_b32 v14, 4, v14")
    a("v_and_b32 v15, 1, v%d", g); a("v_lshl_add_u32 v14, v15, 3, v14"); a("v_lshl_add_u32 v14, v%d, 7, v14", c)
    a("s_lshl_b32 s3, s%d, 12", SW); a("s_add_u32 s3, s3, 65536"); a("v_add_u32 v%d, s3, v14", VSW3)
    def frag3(slot, ks, fs):
        out = []
        def X(tt): out.append("ds_read_b128 %s, v%d offset:%d" % (v(F3[fs] + 4 * tt, 4), XA3, slot * 16384 + ks * 8192 + tt * 1024))
        def Y(dt):
            for hh in range(2):
                out.append("ds_read_b64_tr_b16 %s, v%d offset:%d" % (v(F3[fs] + 8 + 4 * dt + 2 * hh, 2), YA3 + dt, slot * 8192 + (32 * ks + 16 * hh) * 128))
        X(0); Y(0); X(1); Y(1); Y(2); Y(3)
        return out
    def phase3(fs, nxt, waits):
        need = {("x", 0): 0, ("y", 0): 2, ("x", 1): 3, ("y", 1): 5, ("y", 2): 7, ("y", 3): 9}
        done = -1; li = 0; n = 0
        for dt in range(4):
            for tt in ((0, 1) if dt % 2 == 0 else (1, 0)):
                if waits:
                    p = max(need[("x", tt)], need[("y", dt)])
                    if p > done:
                        a("s_waitcnt lgkmcnt(%d)", min(15, 9 - p + li)); done = p
                d = ACC3 + 4 * (tt * 4 + dt)
                a("v_mfma_f32_16x16x32_bf16 %s, %s, %s, %s", v(d, 4), v(F3[fs] + 8 + 4 * dt, 4), v(F3[fs] + 4 * tt, 4), v(d, 4))
                n += 1
                for _ in range(2 if n <= 2 else 1):
                    if li < len(nxt): a(nxt[li]); li += 1
        assert li == len(nxt)
    for r in range(32): a("v_mov_b32 v%d, 0", ACC3 + r)
    a("s_mov_b32 s50, 7")
    a("s_barrier")
    a.st()
    final_loads()
    for l in frag3(0, 0, 0): a(l)
    lab = a.newlabel("cl")
    a.put(lab)
    for slot in range(4):
        phase3(0, frag3(slot, 1, 1), True)
        a("s_waitcnt lgkmcnt(0)")
        a("s_barrier")
        if slot == 3: a.st()
        phase3(1, frag3((slot + 1) & 3, 0, 0), False)
    a("s_sub_u32 s50, s50, 1"); a("s_cmp_lg_u32 s50, 0"); a("s_cbranch_scc1 %s", lab)
    a("s_waitcnt lgkmcnt(0)")
    a("s_nop 7")
    for tt in range(2):
        for dt in range(4):
            d = ACC3 + 4 * (tt * 4 + dt); R = F3[0] + 2 * (tt * 4 + dt)
            a("v_cvt_pk_bf16_f32 v%d, v%d, v%d", R, d, d + 1); a("v_cvt_pk_bf16_f32 v%d, v%d, v%d", R + 1, d + 2, d + 3)
    for dt in range(4):
        if dt: a("v_xor_b32 v9, %d, v%d", 32 * dt, VSW3)
        for tt in range(2):
            a("ds_write_b64 v%d, %s offset:%d", 9 if dt else VSW3, pk(F3[0] + 2 * (tt * 4 + dt)), 2048 * tt)
    fin = a.label("fin")
    if HOP: a.hatch_end(a.label("hf_0"))
    a("s_branch %s", fin)

    a.put(prod)
    PV = 48
    a("s_sub_u32 s%d, s%d, 4", PV, SW)
    a.srd(20, P_SSMK, 4 * MB); a.srd(24, P_Q, 4 * MB); a.srd(28, P_C, 2048); a.srd(32, P_WMOD, 12 * MB)
    a.srd(36, P_WS, 16 * 24576, WS_MODP); a.srd(40, P_WS, 12288, WS_MOD)
    RKr, ZR, SH = 64, 88, 92
    a("s_mul_i32 s49, s%d, %d", PV, CV_W)
    a("s_lshl_b32 s50, s%d, 7", SX_); a("s_lshl_b32 s3, s%d, 2", SIDX); a("s_add_u32 s50, s50, s3"); a("s_add_u32 s50, s50, s%d", PV); a("s_lshl_b32 s50, s50, 12")
    a("v_lshlrev_b32 v3, 4, v1")
    a("v_add_u32 v6, s49, v3")
    for r in range(4): a("v_mov_b32 v%d, 0", ZR + r)
    a("s_mov_b32 exec_hi, 0")
    a("ds_write_b128 v6, v[%d:%d] offset:%d", ZR, ZR + 3, CV_UR + 4096)
    a("s_mov_b64 exec, 3")
    a("ds_write_b128 v6, v[%d:%d] offset:%d", ZR, ZR + 3, CV_C0)
    a("s_mov_b64 exec, 1")
    a("ds_write_b128 v6, v[%d:%d] offset:%d", ZR, ZR + 3, CV_C1)
    a("v_mov_b32 v7, %d", L_CNT)
    a("ds_write_b128 v7, v[%d:%d]", ZR, ZR + 3)
    a("ds_write_b128 v7, v[%d:%d] offset:16", ZR, ZR + 3)
    a("v_mov_b32 v7, %d", L_CD)
    a("ds_write_b32 v7, v%d", ZR)
    a("s_mov_b64 exec, -1")
    SG_R, SG_C = 51, 52
    a("s_lshr_b32 s%d, s%d, 1", SG_R, SIDX); a("s_lshl_b32 s%d, s%d, 1", SG_C, SX_); a("s_and_b32 s3, s%d, 1", SIDX); a("s_add_u32 s%d, s%d, s3", SG_C, SG_C)
    a("s_lshl_b32 s4, s%d, 6", SG_R); a("s_lshl_b32 s3, s%d, 4", PV); a("s_add_u32 s4, s4, s3")
    a("v_lshrrev_b32 v4, 4, v1"); a("v_lshlrev_b32 v4, 4, v4"); a("s_lshl_b32 s3, s%d, 7", SG_R); a("v_add_u32 v4, s3, v4")
    a("s_mul_i32 s5, s4, 12288"); a("s_mul_i32 s3, s%d, 768", SG_C); a("s_add_u32 s5, s5, s3")
    a("s_waitcnt lgkmcnt(0)")
    a("s_barrier")
    CR, SLT, SPK, AM, WMV, WMR, YF, GAC = 108, 116, 148, 156, 204, 210, 64, 112
    a("s_and_b32 s3, s2, 14"); a("s_cmp_eq_u32 s3, 14"); a("s_cselect_b32 s3, 0, -1")
    a("v_mov_b32 v60, s3"); a("s_lshl_b32 s3, s2, 10"); a("s_sub_u32 s3, s3, 1024"); a("v_lshl_add_u32 v61, v0, 2, s3")
    a("buffer_store_dword v60, v61, %s, 0 offen sc1", srdr(R_SY))
    a("v_mov_b32 v62, -1"); a("v_mov_b32 v63, -1")
    a("s_mul_i32 s3, s%d, 24576", SG_R); a("s_mul_i32 s19, s%d, 1536", SG_C); a("s_add_u32 s60, s3, s19")
    ns = a.newlabel("ns"); ns2 = a.newlabel("ns")
    a("s_cmp_eq_u32 s%d, 3", PV); a("s_cbranch_scc1 %s", ns)
    a("s_lshl_b32 s3, s%d, 9", PV); a("v_lshl_add_u32 v5, v1, 3, s3")
    a("buffer_store_dwordx2 v[62:63], v5, s[36:39], s60 offen sc1")
    a("s_branch %s", ns2)
    a.put(ns)
    a("s_mul_i32 s3, s%d, 1536", SX_); a("s_lshl_b32 s19, s%d, 6", SIDX); a("s_add_u32 s3, s3, s19")
    a("s_cmp_ge_u32 s%d, 24", SIDX); a("s_cselect_b32 s3, 0x10000, s3")
    a("v_lshlrev_b32 v5, 2, v1")
    a("s_mov_b64 exec, 0xffff")
    a("buffer_store_dword v62, v5, s[40:43], s3 offen sc1")
    a("s_mov_b64 exec, -1")
    a.put(ns2)
    for m in range(4):
        a("s_add_u32 s3, s50, %d", 1024 * m)
        a("buffer_load_dwordx4 v[%d:%d], v3, s[20:23], s3 offen %s", RKr + 6 * m, RKr + 6 * m + 3, NTS)
        a("buffer_load_dword v%d, v3, s[20:23], s3 offen offset:16 %s", RKr + 6 * m + 4, NTS)
    for ks in range(2): a("buffer_load_dwordx4 %s, v4, s[28:31], 0 offen offset:%d", v(CR + 4 * ks, 4), 64 * ks)
    a("s_waitcnt vmcnt(%d)", 12)
    get_tag()
    a("s_mov_b32 s3, 1366")
    for mm in range(3):
        a("v_add_u32 v60, %d, v1", 64 * mm); a("v_mul_u32_u24 v61, s3, v60"); a("v_lshrrev_b32 v61, 16, v61")
        a("v_mul_u32_u24 v62, 48, v61"); a("v_sub_u32 v60, v60, v62")
        a("v_lshlrev_b32 v62, 1, v61"); a("v_xor_b32 v60, v60, v62"); a("v_lshlrev_b32 v60, 4, v60")
        a("v_mul_u32_u24 v61, 12288, v61"); a("v_add_u32 v%d, v60, v61", WMV + mm)
        a("v_xor_b32 v60, 128, v60"); a("v_add_u32 v%d, v60, v61", WMV + 3 + mm)
    a("v_lshrrev_b32 v60, 4, v1"); a("v_bfe_u32 v61, v1, 2, 2"); a("v_lshl_add_u32 v62, v60, 3, v61"); a("v_mul_u32_u24 v62, 768, v62")
    a("v_and_b32 v63, 3, v1"); a("v_lshl_add_u32 v62, v63, 3, v62"); a("v_add_u32 v62, %d, v62", L_WM)
    a("v_and_b32 v60, 1, v60"); a("v_lshl_add_u32 v61, v60, 2, v61")
    a("s_mul_i32 s3, s%d, 6", PV)
    for nt in range(6):
        a("v_xor_b32 v60, s3, v61"); a("v_lshl_add_u32 v%d, v60, 5, v62", WMR + nt)
        if nt < 5: a("s_add_u32 s3, s3, 1")
    WPOS, QPOS, TPOS = opt.get("wmpos", "ur"), opt.get("qpos", "b0"), opt.get("tpos", "ur")
    vq = []
    def place(pos):
        if WPOS == pos: do_wm(); vq.extend(["w"] * 12)
        if QPOS == pos: do_q(); vq.extend(["q"] * 4)
        if TPOS == pos: do_t(P_WIN, 1024 * 7168, 7168, 3584, 28); vq.append("t")
        if opt.get("t1pos") == pos: do_t(P_WIN, 1024 * 7168, 7168, 0, 28); vq.append("t")
        if opt.get("tspos") == pos: do_t(P_WSP, 8 * MB, 8192, 0, 64); vq.append("t")
        if opt.get("topos") == pos: do_t(P_WOUT, 1792 * 2048, 3584, 0, 28); vq.append("t")
    def younger(kind): return len(vq) - 1 - max(n for n, k in enumerate(vq) if k == kind)
    def do_wm():
        a("s_mul_i32 s4, s%d, %d", PV, 16 * 768); a("s_add_u32 s4, s4, %d", L_WM)
        for m in range(12):
            a("s_add_u32 m0, s4, %d", 1024 * m)
            if m and m % 3 == 0: a("s_add_u32 s5, s5, %d", 4 * 12288)
            else: a("s_nop 0")
            a("buffer_load_dwordx4 v%d, s[32:35], s5 offen %s lds", WMV + 3 * (m // 6) + m % 3, NTW)
    def do_q():
        a("s_lshl_b32 s6, s2, 14"); a("s_lshl_b32 s3, s%d, 12", PV); a("s_add_u32 s6, s6, s3")
        a("s_mul_i32 s7, s%d, %d", PV, 2 * QROW); a("s_add_u32 s7, s7, %d", L_QT)
        for u in range(4):
            a("s_add_u32 m0, s7, %d", (u >> 1) * QROW + (u & 1) * 1024)
            a("s_add_u32 s3, s6, %d", 1024 * u)
            a("buffer_load_dwordx4 v3, s[24:27], s3 offen %s lds", NTQ)
    def do_t(ptr, nbytes, stride, off, lanes):
        a.srd(20, ptr, nbytes)
        a("s_lshl_b32 s3, s2, 2"); a("s_add_u32 s3, s3, s%d", PV); a("s_mul_i32 s3, s3, %d", stride); a("s_add_u32 s3, s3, %d", off)
        a("v_lshlrev_b32 v60, 7, v1")
        if lanes < 64: a("s_mov_b32 exec_lo, 0x%x", (1 << lanes) - 1); a("s_mov_b32 exec_hi, 0")
        a("buffer_load_dword v216, v60, s[20:23], s3 offen")
        a("s_mov_b64 exec, -1")
    place("b0")
    nb0 = len(vq)
    XZ, XG, YZp, YGp, VPUB, VLD, VPOLL, VFIN, VFP, VTG, VZR = 8, 12, 16, 20, 24, 25, 26, 27, 28, 29, 30
    VYD, XP, YP, VF16, VFD = 50, 52, 56, 58, 59
    SLX, SLY, SXo, SYo = 49, 50, 53, 54
    a("s_lshl_b32 s%d, s%d, 10", SLX, PV)
    a("s_lshl_b32 s%d, s%d, 12", SLY, PV); a("s_add_u32 s%d, s%d, %d", SLY, SLY, L_Y)
    a("v_lshrrev_b32 v60, 4, v1"); a("s_and_b32 s3, s%d, 1", PV); a("s_lshl_b32 s3, s3, 2"); a("v_add_u32 v60, s3, v60")
    a("v_and_b32 v61, 7, v1"); a("v_xor_b32 v60, v60, v61"); a("v_lshlrev_b32 v60, 4, v60")
    a("v_lshrrev_b32 v61, 3, v1"); a("s_lshl_b32 s3, s%d, 7", SI); a("s_lshl_b32 s19, s%d, 3", PV); a("s_add_u32 s3, s3, s19"); a("v_add_u32 v61, s3, v61")
    a("v_lshl_add_u32 v%d, v61, 11, v60", XZ); a("v_lshl_add_u32 v%d, v61, 12, v60", XG)
    for u in range(1, 4):
        a("v_add_u32 v%d, %d, v%d", XZ + u, u * 32 * 2048, XZ); a("v_add_u32 v%d, %d, v%d", XG + u, u * 32 * 4096, XG)
    a("v_lshrrev_b32 v60, 4, v1"); a("v_bfe_u32 v61, v1, 1, 3"); a("v_xor_b32 v61, v61, v60"); a("v_lshlrev_b32 v61, 5, v61")
    a("v_and_b32 v62, 1, v1"); a("v_lshl_add_u32 v61, v62, 4, v61")
    a("s_lshl_b32 s3, s%d, 4", PV); a("v_add_u32 v60, s3, v60"); a("v_mul_u32_u24 v60, 7168, v60")
    a("s_lshl_b32 s3, s%d, 8", SJ); a("v_add_u32 v60, s3, v60")
    for u in range(4):
        if u == 2: a("v_xor_b32 v61, 128, v61")
        if u: a("v_add_u32 v62, %d, v60", u * 4 * 7168)
        a("v_add_u32 v%d, v61, v%d", YZp + u, 62 if u else 60)
    a("s_lshl_b32 s3, s%d, 19", SJ); a("s_lshl_b32 s19, s%d, 12", PV); a("s_add_u32 s3, s3, s19")
    a("v_lshl_add_u32 v%d, v1, 4, s3", YGp)
    for u in range(1, 4): a("v_add_u32 v%d, %d, v%d", YGp + u, 1024 * u, YGp)
    a("s_lshl_b32 s3, s%d, 4", SI); a("s_add_u32 s3, s3, s%d", SJ); a("s_lshl_b32 s3, s3, 10"); a("v_lshl_add_u32 v%d, v1, 4, s3", VPUB)
    a("v_add_u32 v%d, %d, v3", VLD, L_ST)
    a("v_lshrrev_b32 v60, 4, v1"); a("v_and_b32 v61, 15, v1"); a("v_lshlrev_b32 v60, 10, v60"); a("v_lshl_add_u32 v60, v61, 4, v60")
    a("s_lshl_b32 s3, s%d, 14", SI); a("s_lshl_b32 s19, s%d, 8", PV); a("s_add_u32 s3, s3, s19"); a("v_add_u32 v%d, s3, v60", VPOLL)
    a("v_lshrrev_b32 v60, 5, v1"); a("v_lshl_add_u32 v60, v61, 1, v60"); a("s_add_u32 s3, s19, %d", L_FIN); a("v_lshl_add_u32 v%d, v60, 3, s3", VFIN)
    a("s_lshl_b32 s3, s%d, 7", SJ); a("s_add_u32 s3, s3, %d", FZ); a("v_lshl_add_u32 v%d, v61, 2, s3", VFP)
    a("s_lshl_b32 s19, s%d, 2", SI); a("s_add_u32 s55, s3, s19")
    a("s_lshl_b32 s3, s%d, 12", SI); a("s_lshl_b32 s19, s%d, 7", SJ); a("s_add_u32 s56, s3, s19"); a("s_add_u32 s56, s56, %d", FD1)
    a("s_and_b32 s19, s%d, 1", SX_); a("s_lshl_b32 s19, s19, 11"); a("s_add_u32 s8, s3, s19")
    a("v_lshlrev_b32 v%d, 7, v61", VF16)
    a("v_mov_b32 v%d, s%d", VTG, TAG); a("v_mov_b32 v%d, 0", VZR)
    for u in range(1, 4): a("s_mov_b32 s%d, %d", 56 + u, 4096 * u)
    a("v_lshrrev_b32 v60, 4, v1"); a("v_and_b32 v61, 7, v1"); a("v_xor_b32 v60, v60, v61"); a("v_and_b32 v61, 56, v1"); a("v_or_b32 v60, v60, v61")
    a("v_lshlrev_b32 v%d, 4, v60", VYD); a("v_xor_b32 v%d, 64, v%d", VYD + 1, VYD)
    a("s_mul_i32 s3, s%d, 458752", SI); a("s_lshl_b32 s19, s%d, 12", PV); a("s_add_u32 s3, s3, s19"); a("v_lshl_add_u32 v%d, v1, 4, s3", XP)
    for u in range(1, 4): a("v_add_u32 v%d, %d, v%d", XP + u, 1024 * u, XP)
    a("v_lshrrev_b32 v60, 4, v1"); a("v_lshlrev_b32 v60, 1, v60"); a("v_and_b32 v61, 7, v1"); a("v_xor_b32 v60, v60, v61"); a("v_lshlrev_b32 v60, 4, v60")
    a("v_lshrrev_b32 v61, 3, v1"); a("v_lshl_add_u32 v60, v61, 11, v60")
    a("s_lshl_b32 s3, s%d, 15", PV); a("s_lshl_b32 s19, s%d, 7", SJD); a("s_add_u32 s3, s3, s19"); a("v_add_u32 v%d, s3, v60", YP)
    a("v_add_u32 v%d, %d, v%d", YP + 1, 8 * 2048, YP)
    hop("e")
    a("s_barrier")
    place("b1")
    a("s_waitcnt vmcnt(%d)", 10 + len(vq))
    a("s_barrier")
    place("b2")
    hb("e3")
    for m in range(4):
        a("s_waitcnt vmcnt(%d)", 2 + 2 * (3 - m) + len(vq))
        r = RKr + 6 * m
        a("ds_write_b128 v6, v[%d:%d] offset:%d", r, r + 3, CV_C0 + 32 + 1024 * m)
        for j in range(4): a("v_alignbit_b32 v%d, v%d, v%d, 16", SH + 4 * m + j, r + j + 1, r + j)
        a("ds_write_b128 v6, v[%d:%d] offset:%d", SH + 4 * m, SH + 4 * m + 3, CV_C1 + 32 + 1024 * m)
        if m == 0:
            a("v_lshlrev_b32 v%d, 16, v%d", ZR + 3, r)
            a("s_mov_b64 exec, 1")
            a("ds_write_b128 v6, v[%d:%d] offset:%d", ZR, ZR + 3, CV_C1 + 16)
            a("s_mov_b64 exec, -1")
    a("s_waitcnt lgkmcnt(0)")
    lds_inc(a, 6, 62, 63)
    a("s_waitcnt vmcnt(%d)", len(vq))
    for d in range(8): unpack(a, SLT + 2 * d, SLT + 2 * d + 1, CR + d)
    a("s_mov_b32 s4, %s", fhex(-LOG2E))
    for e in range(16): a("v_mul_f32 v%d, s4, v%d", SLT + 16 + e, SLT + e)
    for e in range(16): a("v_exp_f32 v%d, v%d", SLT + 16 + e, SLT + 16 + e)
    for e in range(16): a("v_add_f32 v%d, 1.0, v%d", SLT + 16 + e, SLT + 16 + e)
    for e in range(16): a("v_rcp_f32 v%d, v%d", SLT + 16 + e, SLT + 16 + e)
    for e in range(16): a("v_mul_f32 v%d, v%d, v%d", SLT + e, SLT + e, SLT + 16 + e)
    for d in range(8): a("v_cvt_pk_bf16_f32 v%d, v%d, v%d", SPK + d, SLT + 2 * d, SLT + 2 * d + 1)
    a("v_and_b32 v60, 15, v1")
    for nt in range(6):
        a("v_cmp_eq_u32 vcc, %d, v60", 4 * (nt & 3) + (nt >> 2)); a("s_nop 1")
        for d in range(8): a("v_cndmask_b32 v%d, 0, v%d, vcc", AM + 8 * nt + d, SPK + d)
    lds_wait(a, 7, 4, 62, 63, 2)
    for pos in ("ur",): place(pos)
    a.st()
    a("s_waitcnt vmcnt(%d)", younger("w"))
    if opt.get("gprio", 1): a("s_setprio 3")
    lds_sync(a, 0, 62, 2)
    for nt in range(6):
        for ks in range(2):
            for hh in range(2): a("ds_read_b64_tr_b16 %s, v%d offset:%d", v(YF + 8 * nt + 4 * ks + 2 * hh, 2), WMR + nt, (32 * ks + 4 * hh) * 768)
    a("s_mul_i32 s3, s%d, 384", PV); a("s_add_u32 s3, s3, s60")
    a("v_lshlrev_b32 v60, 2, v1")
    for n in range(12):
        if n % 2 == 0: a("s_waitcnt lgkmcnt(%d)", min(15, 20 - 2 * n))
        a("v_mfma_f32_16x16x32_bf16 %s, %s, %s, %s", v(GAC, 4), v(AM + 4 * n, 4), v(YF + 4 * n, 4), v(GAC, 4) if n else "0")
    a("s_nop 7")
    a("buffer_store_dword v%d, v60, s[36:39], s3 offen sc1", GAC)
    a("s_mov_b32 exec_hi, 0")
    a("buffer_store_dword v%d, v60, s[36:39], s3 offen offset:256 sc1", GAC + 1)
    a("s_mov_b64 exec, -1")
    a.st()
    finz = a.label("finz"); pb5 = a.label("pb5")
    a("s_cmp_lg_u32 s%d, 3", PV); a("s_cbranch_scc1 %s", pb5)
    a("s_cmp_ge_u32 s%d, 24", SIDX); a("s_cbranch_scc1 %s", pb5)
    a("v_lshlrev_b32 v60, 2, v1")
    a("s_mul_i32 s4, s%d, 768", SX_); a("s_lshl_b32 s3, s%d, 5", SIDX); a("s_add_u32 s4, s4, s3")
    a("s_lshr_b32 s3, s4, 10"); a("s_cmp_eq_u32 s3, 1"); a("s_cselect_b32 s61, 1.0, 0"); a("s_cmp_eq_u32 s3, 4"); a("s_cselect_b32 s61, 1.0, s61")
    a("s_lshl_b32 s5, s4, 2"); a("s_lshl_b32 s4, s4, 1")
    a("v_lshlrev_b32 v63, 3, v1")
    a("s_mov_b64 exec, 0xffff")
    gl = a.newlabel("gl"); go = a.newlabel("go")
    a("s_mov_b32 s11, 0")
    a.put(gl)
    a("s_mov_b32 s6, s5")
    for p in range(16):
        a("buffer_load_dwordx2 %s, v63, s[36:39], s6 offen sc1", pk(64 + 2 * p))
        if p < 15: a("s_add_u32 s6, s6, 24576")
    a("s_add_u32 s11, s11, 1")
    a("s_cmp_gt_u32 s11, %d", SPIN_MAX); a("s_cbranch_scc1 %s", go)
    a("s_waitcnt vmcnt(0)")
    a("v_max3_u32 v61, v64, v66, v68")
    for p in range(3, 15, 2): a("v_max3_u32 v61, v61, v%d, v%d", 64 + 2 * p, 66 + 2 * p)
    a("v_max_u32 v61, v61, v94")
    a("v_cmp_eq_u32 vcc, -1, v61"); a("s_sleep 2"); a("s_cbranch_vccnz %s", gl)
    a.put(go)
    for w in (8, 4, 2, 1):
        for p in range(w): a("v_pk_add_f32 %s, %s, %s", pk(64 + 2 * p), pk(64 + 2 * p), pk(64 + 2 * (p + w)))
    a("v_cvt_pk_bf16_f32 v66, v64, v65"); unpack(a, 64, 65, 66)
    a("v_add_f32 v64, s61, v64"); a("v_add_f32 v65, s61, v65"); a("v_cvt_pk_bf16_f32 v64, v64, v65")
    a("buffer_store_dword v64, v60, s[40:43], s4 offen sc1")
    a("s_mov_b64 exec, -1")
    a.put(pb5)
    if opt.get("gprio", 1) == 1: a("s_setprio 0")
    a("s_waitcnt vmcnt(%d)", younger("q") + 2)
    a("v_add_u32 v7, s7, v3")
    for u in range(4): a("ds_read_b128 v[%d:%d], v7 offset:%d", 144 + 4 * u, 147 + 4 * u, (u >> 1) * QROW + (u & 1) * 1024)
    a("s_waitcnt lgkmcnt(0)")
    for rr in range(2):
        X = 160 + 16 * rr
        for d in range(8): unpack(a, X + 2 * d, X + 2 * d + 1, 144 + 8 * rr + d)
        a("v_pk_add_f32 v[192:193], %s, %s", pk(X), pk(X + 2)); a("v_pk_mul_f32 v[194:195], %s, %s", pk(X), pk(X))
        for e in range(2, 16, 2): a("v_pk_fma_f32 v[194:195], %s, %s, v[194:195]", pk(X + e), pk(X + e))
        for e in range(4, 16, 2): a("v_pk_add_f32 v[192:193], v[192:193], %s", pk(X + e))
        a("v_add_f32 v%d, v192, v193", 196 + rr); a("v_add_f32 v%d, v194, v195", 198 + rr)
    a("s_nop 1")
    a("v_permlane32_swap_b32 v196, v197"); a("v_permlane32_swap_b32 v198, v199")
    a("v_add_f32 v196, v196, v197"); a("v_add_f32 v198, v198, v199")
    a("v_mov_b32 v197, v196"); a("v_mov_b32 v199, v198")
    a("s_nop 1")
    a("v_permlane16_swap_b32 v197, v196"); a("v_permlane16_swap_b32 v199, v198")
    a("v_add_f32 v196, v196, v197"); a("v_add_f32 v198, v198, v199")
    for dpp in ("row_ror:8", "row_ror:4", "quad_perm:[1,0,3,2]", "quad_perm:[2,3,0,1]"):
        a("s_nop 0")
        a("v_add_f32_dpp v196, v196, v196 %s row_mask:0xf bank_mask:0xf", dpp); a("v_add_f32_dpp v198, v198, v198 %s row_mask:0xf bank_mask:0xf", dpp)
    rstd_calc(a, 196, 198, 197, 192, 1.0 / 1024)
    a("v_lshrrev_b32 v7, 5, v1"); a("v_lshlrev_b32 v7, 3, v7"); a("s_lshl_b32 s3, s%d, 4", PV); a("s_add_u32 s3, s3, %d", L_L1S); a("v_add_u32 v7, s3, v7")
    a("ds_write_b64 v7, v[192:193]")
    a("s_waitcnt lgkmcnt(0)")
    lds_inc(a, 1, 62, 63)
    a("s_setprio 0")
    place("ln")
    he("e")
    hop("l")
    hb("l3")
    R_X, R_Y, R_WSP, R_Z2p, R_YB = 20, 24, 28, 32, 36
    a.srd(R_X, P_WS, 4 * MB, WS_H2); a.srd(R_Y, P_WIN, 1024 * 7168); a.srd(R_WSP, P_WSP, 8 * MB); a.srd(R_Z2p, P_WS, 14 * 524288, WS_Z2)
    a.srd(R_YB, P_WS, 4 * MB, WS_YB)
    a("s_lshl_b32 s4, s%d, 12", PV); a("s_lshl_b32 s5, s2, 14"); a("s_add_u32 s5, s5, s4")
    SYS, SK = 6, 63
    a("s_mov_b32 s%d, 0", SXo); a("s_mov_b32 s%d, 3584", SYo); a("s_mov_b32 s%d, %d", SYS, 64 * 7168)
    a.st()
    a("s_barrier")
    for u in range(4):
        a("s_add_u32 m0, s4, %d", 1024 * u); a("s_add_u32 s3, s5, %d", 1024 * u)
        a("buffer_load_dwordx4 v%d, %s, s3 offen sc1 lds", VYD + (u & 1), srdr(R_YB))
    def issue(slot, which="xy"):
        for u in range(4):
            if "x" in which:
                a("s_add_u32 m0, s%d, %d", SLX, slot * 16384 + u * 4096); a("s_nop 0")
                a("buffer_load_dwordx4 v%d, %s, s%d offen sc1 lds", XZ + u, srdr(R_X), SXo)
            if "y" in which:
                a("s_add_u32 m0, s%d, %d", SLY, slot * 16384 + u * 1024); a("s_nop 0")
                a("buffer_load_dwordx4 v%d, %s, s%d offen sc1 lds", YZp + u, srdr(R_Y), SYo)
        if "x" in which: a("s_add_u32 s%d, s%d, 128", SXo, SXo)
        if "y" in which: a("s_add_u32 s%d, s%d, s%d", SYo, SYo, SYS)
    p_spare = a.label("pspare"); p_g3 = a.label("pg3"); ny = a.label("ny")
    a("v_mov_b32 v62, %d", L_CD)
    a("ds_write_b32 v62, v%d", VZR)
    a("s_waitcnt vmcnt(0) lgkmcnt(0)")
    a("s_barrier")
    a("s_barrier")
    a("s_barrier")
    a("s_cmp_ge_u32 s%d, 28", SIDX); a("s_cbranch_scc1 %s", p_spare)
    for s in range(2): issue(s, "y")
    a("s_add_u32 s4, s8, %d", FC1)
    lead_poll(a, PV, 4, 62, lambda: poll(a, VF16, 60, TAG, "s4", n=16))
    a.st()
    issue(0, "x"); issue(1, "x"); issue(2); issue(3)
    PS = 32
    def poll_loads():
        for u in range(4): a("buffer_load_dwordx4 %s, v%d, %s, %s offen sc1", v(PS + 4 * u, 4), VPOLL, srdr(R_SY), "s%d" % (56 + u) if u else "0")
    def poll_check(out):
        a("v_max3_u32 v60, v%d, v%d, v%d", PS + 1, PS + 3, PS + 5); a("v_max3_u32 v60, v60, v%d, v%d", PS + 7, PS + 9)
        a("v_max3_u32 v60, v60, v%d, v%d", PS + 11, PS + 13); a("v_max_u32 v60, v60, v%d", PS + 15)
        a("v_cmp_eq_u32 vcc, -1, v60"); a("s_nop 4")
        a("s_cbranch_vccz %s", out)
    def spin(loads, check):
        ok = a.newlabel("ok"); again = a.newlabel("sp")
        check(ok)
        a("s_mov_b32 s62, 0")
        a.put(again)
        loads()
        a("s_add_u32 s62, s62, 1")
        a("s_cmp_gt_u32 s62, %d", SPIN_MAX); a("s_cbranch_scc1 %s", ok)
        a("s_waitcnt vmcnt(0)")
        check(ok)
        a("s_branch %s", again)
        a.put(ok)
    def fpoll_load(): a("buffer_load_dword v48, v%d, %s, 0 offen sc1", VFP, srdr(R_SY))
    def fpoll_check(out):
        a("v_cmp_ne_u32 vcc, s%d, v48", TAG); a("s_nop 4"); a("s_cbranch_vccz %s", out)
    SLX3, SLY3, SX3, SY3 = 49, 50, 53, 54
    def issue3(slot, which="xy"):
        for u in range(4):
            if "x" in which:
                a("s_add_u32 m0, s%d, %d", SLX3, slot * 16384 + u * 1024); a("s_nop 0")
                a("buffer_load_dwordx4 v%d, %s, s%d offen sc1 lds", XP + u, srdr(R_P3), SX3)
            if u < 2 and "y" in which:
                a("s_add_u32 m0, s%d, %d", SLY3, slot * 8192 + u * 1024); a("s_nop 0")
                a("buffer_load_dwordx4 v%d, %s, s%d offen lds", YP + u, srdr(R_W), SY3)
        if "x" in which:
            a("s_add_u32 s%d, s%d, 16384", SX3, SX3); a("s_cmp_eq_u32 s%d, %d", SX3, 28 * 16384); a("s_cselect_b32 s%d, 0, s%d", SX3, SX3)
        if "y" in which:
            a("s_add_u32 s%d, s%d, %d", SY3, SY3, 64 * 2048); a("s_cmp_eq_u32 s%d, %d", SY3, 28 * 64 * 2048); a("s_cselect_b32 s%d, 0, s%d", SY3, SY3)
    def g3_pre():
        a.srd(R_W, P_WOUT, 1792 * 2048); a.srd(R_P3, P_WS, 16 * 458752, WS_P)
        a("s_lshl_b32 s%d, s%d, 12", SLX3, PV)
        a("s_lshl_b32 s%d, s%d, 11", SLY3, PV); a("s_add_u32 s%d, s%d, %d", SLY3, SLY3, L_Y3)
        a("s_add_u32 s3, s%d, s%d", SI, SJD); a("s_and_b32 s3, s3, %d", opt.get("rot3", 1) - 1); a("s_mul_i32 s3, s3, %d", 28 // opt.get("rot3", 1))
        a("s_lshl_b32 s%d, s3, 14", SX3); a("s_lshl_b32 s%d, s3, 17", SY3)
        for s in range(2): issue3(s, "y")
    def ev_pub():
        sk = a.newlabel("np")
        a("s_cmp_lg_u32 s%d, 0", PV); a("s_cbranch_scc1 %s", sk)
        a("ds_read_b128 v[32:35], v%d", VLD); a("ds_read_b128 v[36:39], v%d offset:1024", VLD)
        a("s_waitcnt lgkmcnt(0)")
        a("v_pk_add_f32 v[32:33], v[32:33], v[36:37]"); a("v_pk_add_f32 v[34:35], v[34:35], v[38:39]")
        a("buffer_store_dwordx4 v[32:35], v%d, %s, 0 offen sc1", VPUB, srdr(R_SY))
        a.put(sk)
    def ev_chk():
        a("s_waitcnt vmcnt(%d)", 8 * (ev["chk"] - ev["poll"]))
        spin(poll_loads, poll_check)
        for (d, s) in ((0, 4), (8, 12), (0, 8)):
            for e in (0, 2): a("v_pk_add_f32 %s, %s, %s", pk(PS + d + e), pk(PS + d + e), pk(PS + s + e))
        a("s_nop 1")
        a("v_permlane32_swap_b32 v%d, v%d", PS, PS + 2); a("v_permlane32_swap_b32 v%d, v%d", PS + 1, PS + 3)
        a("v_add_f32 v%d, v%d, v%d", PS, PS, PS + 2); a("v_add_f32 v%d, v%d, v%d", PS + 1, PS + 1, PS + 3)
        a("v_mov_b32 v%d, v%d", PS + 2, PS); a("v_mov_b32 v%d, v%d", PS + 3, PS + 1)
        a("s_nop 1")
        a("v_permlane16_swap_b32 v%d, v%d", PS + 2, PS); a("v_permlane16_swap_b32 v%d, v%d", PS + 3, PS + 1)
        a("v_add_f32 v%d, v%d, v%d", PS, PS, PS + 2); a("v_add_f32 v%d, v%d, v%d", PS + 1, PS + 1, PS + 3)
        rstd_calc(a, PS, PS + 1, PS + 2, PS + 2, 1.0 / 1792)
        a("ds_write_b64 v%d, %s", VFIN, pk(PS + 2))
        a("s_waitcnt lgkmcnt(0)")
    def ev_flag():
        sk = a.newlabel("nf")
        a("s_cmp_lg_u32 s%d, 0", PV); a("s_cbranch_scc1 %s", sk)
        flag_store(a, VTG, VZR, "s55")
        a.put(sk)
    def ev_z1():
        a("s_mov_b32 s%d, 0", SXo); a("s_mov_b32 s%d, 0", SYo)
    def ev_g():
        a("s_waitcnt vmcnt(%d)", 8 * (ev["fchk"] - ev["fpoll"]))
        spin(fpoll_load, fpoll_check)
        a("s_mov_b32 s%d, 0", SXo); a("s_mov_b32 s%d, 0", SYo); a("s_mov_b32 s%d, 16384", SYS)
        a.srd(R_X, P_WSP, 8 * MB); a.srd(R_Y, P_WS, 14 * 524288, WS_Z2)
        for u in range(4):
            a("v_mov_b32 v%d, v%d", XZ + u, XG + u); a("v_mov_b32 v%d, v%d", YZp + u, YGp + u)
    assert ev["fchk"] == 28
    events = {12: ev_z1, ev["pub"]: ev_pub, ev["poll"]: poll_loads, ev["chk"]: ev_chk, ev["drain"]: ev_flag, ev["fpoll"]: fpoll_load, 28: ev_g}
    a("s_mov_b32 s%d, 0", SK); a("s_mov_b32 s7, %d", sum(1 << k for k in events))
    a("s_waitcnt vmcnt(20)")
    a("s_barrier")
    ptop = a.label("ptop"); ptail = a.label("ptail")
    evl = [a.label("pe%d" % n) for n in range(4)]; evr = [a.label("pr%d" % n) for n in range(4)]
    a.put(ptop)
    for slot in range(4):
        a("s_lshr_b32 s3, s7, s%d", SK) if False else None
        a("s_bitcmp1_b32 s7, 0")
        a("s_waitcnt vmcnt(16)")
        a("s_barrier")
        a("s_cbranch_scc1 %s", evl[slot]); a.put(evr[slot])
        a("s_lshr_b32 s7, s7, 1"); a("s_add_u32 s%d, s%d, 1", SK, SK)
        issue(slot)
    a("s_cmp_lt_u32 s%d, 60", SK); a("s_cbranch_scc1 %s", ptop)
    a("s_branch %s", ptail)
    for slot in range(4):
        a.put(evl[slot])
        ks = sorted(k for k in events if k % 4 == slot)
        for n, k in enumerate(ks):
            nx = a.newlabel("en")
            if n + 1 < len(ks):
                a("s_cmp_lg_u32 s%d, %d", SK, k); a("s_cbranch_scc1 %s", nx)
            events[k]()
            a("s_branch %s", evr[slot])
            a.put(nx)
        if not ks: a("s_branch %s", evr[slot])
    a.put(ptail)
    a("s_waitcnt vmcnt(16)"); a("s_barrier")
    g3_pre()
    a("s_waitcnt vmcnt(12)"); a("s_barrier")
    a("s_waitcnt vmcnt(4)"); a("s_barrier")
    a("v_mov_b32 v62, %d", L_CD)
    a("ds_write_b32 v62, v%d", VZR)
    a("s_waitcnt lgkmcnt(0)"); a("s_barrier")
    a("s_barrier")
    sk = a.newlabel("nf")
    a("s_cmp_lg_u32 s%d, 0", PV); a("s_cbranch_scc1 %s", sk)
    a("v_lshlrev_b32 v62, 11, v1")
    a("s_mov_b64 exec, 3")
    a("buffer_store_dword v%d, v62, %s, s56 offen sc1", VTG, srdr(R_SY))
    a("s_mov_b64 exec, -1")
    a.put(sk)
    a("s_branch %s", p_g3)
    a.put(p_spare)
    spare_stream()
    a("s_sub_u32 s%d, s%d, 4", PV, SW)
    g3_pre()
    a.put(p_g3)
    g3_final_setup()
    a("s_add_u32 s4, s8, %d", FD1)
    lead_poll(a, PV, L_CD, 62, lambda: poll(a, VF16, 60, TAG, "s4", n=14))
    a.st()
    issue3(0, "x"); issue3(1, "x"); issue3(2); issue3(3)
    a("s_mov_b32 s63, 6")
    a("s_waitcnt vmcnt(16)")
    a("s_barrier")
    lab = a.newlabel("pl")
    a.put(lab)
    for slot in range(4):
        a("s_waitcnt vmcnt(12)"); a("s_barrier")
        issue3(slot)
    a("s_sub_u32 s63, s63, 1"); a("s_cmp_lg_u32 s63, 0"); a("s_cbranch_scc1 %s", lab)
    a("s_waitcnt vmcnt(12)"); a("s_barrier")
    final_loads()
    a("s_waitcnt vmcnt(9)"); a("s_barrier")
    a("s_waitcnt vmcnt(3)"); a("s_barrier")
    a("s_barrier")
    he("l")
    a.put(fin)
    hb("f")
    a("s_waitcnt vmcnt(0) lgkmcnt(0)")
    a("s_barrier")
    B = 48; U = 64; G = 96
    a("v_add_u32 v%d, 65536, v%d", VSR, VSR)
    for rr in range(2): a("ds_read_b128 %s, v%d offset:%d", v(B + 4 * rr, 4), VSR, 8192 * rr)
    for d in range(4): unpack(a, G + 2 * d, G + 2 * d + 1, GBR + d)
    for rr in range(2):
        for d in range(4): unpack(a, U + 16 * rr + 8 + 2 * d, U + 16 * rr + 8 + 2 * d + 1, X1R + 4 * rr + d)
    for rr in range(2):
        a("s_waitcnt lgkmcnt(%d)", 1 - rr)
        for d in range(4): unpack(a, U + 16 * rr + 2 * d, U + 16 * rr + 2 * d + 1, B + 4 * rr + d)
        for d in range(4):
            x = U + 16 * rr + 2 * d
            a("v_pk_fma_f32 %s, %s, %s, %s", pk(x), pk(x), pk(G + 2 * d), pk(x + 8))
        for d in range(4):
            x = U + 16 * rr + 2 * d
            a("v_cvt_pk_bf16_f32 v%d, v%d, v%d", B + 8 + 4 * rr + d, x, x + 1)
        a("buffer_store_dwordx4 %s, v%d, %s, %s offen %s", v(B + 8 + 4 * rr, 4), VO, srdr(R_O), "s9" if rr else "0", opt.get("outflag", ""))
    he("l")
    a.st_flush(16, 17)
    a.put(end)
    return a.text(), 256, LDS_TOTAL
```

```python
from asmlib import *
from gen_front import *
from gen_gemm import VmTrack, gelu_block, pk, GC0, GC1
P_Q, P_K, P_V, P_SK, P_SSMK, P_SSMD, P_BX, P_WIN, P_WSP, P_BSP, P_WOUT, P_C, P_WMOD, P_OUT, P_DBG, P_WS = [64 + 2 * n for n in range(16)]
SI, SJ, SJD, TAG, SX_, SIDX, SW = 12, 13, 14, 15, 16, 17, 18
R_SY = 44
SY0 = 256 * 1024
FA_OLD, FG, FC, FZ, FD, CB, WT = SY0, SY0 + 1024, SY0 + 2048, SY0 + 4096, SY0 + 6144, SY0 + 8192, SY0 + 12288
FB2, FX = SY0 + 16384, SY0 + 20480
CN, GOG, GOC, GOD = SY0 + 32768, SY0 + 49152, SY0 + 53248, SY0 + 57344
FAS = 128
L_T1 = 65536; L_WM = 81920; L_Y = 65536; L_ST = 131072; L_FIN = L_ST + 2048
L_QT = 135168; QROW = 2080; L_L1S = 151808; L_CNT = 151872
L_Y3 = 131072; L_CD = 98304
LDS_TOTAL = 163840
NZ, NG = 16, 32
NST = 2 * NZ + NG
EV = dict(pub=16, poll=19, chk=21, norm=22, drain=24, fpoll=26, fchk=28)
SPIN_MAX = 0x20000

FA = SY0 + 65536
FC1, FD1 = SY0 + 98304, SY0 + 163840
SY_END = SY0 + 229376
def srdr(r): return "s[%d:%d]" % (r, r + 3)

def poll(a, vaddr, vt, target, soff="0", n=16, sleep=0):
    lp = a.newlabel("pl"); ok = a.newlabel("pk")
    a("s_mov_b32 s11, 0")
    a("s_mov_b32 exec_lo, 0x%x", (1 << n) - 1); a("s_mov_b32 exec_hi, 0")
    a.put(lp)
    a("buffer_load_dword v%d, v%d, %s, %s offen sc1", vt, vaddr, srdr(R_SY), soff)
    a("s_add_u32 s11, s11, 1")
    a("s_cmp_gt_u32 s11, %d", SPIN_MAX); a("s_cbranch_scc1 %s", ok)
    a("s_waitcnt vmcnt(0)")
    a("v_cmp_ne_u32 vcc, s%d, v%d", target, vt)
    if sleep: a("s_sleep %d", sleep)
    else: a("s_nop 4")
    a("s_cbranch_vccnz %s", lp)
    a.put(ok)
    a("s_mov_b64 exec, -1")

def lead_poll(a, pv, cnt, t0, fn):
    oth = a.newlabel("ot"); done = a.newlabel("dn"); lp = a.newlabel("lw")
    a("v_mov_b32 v%d, %d", t0, L_CNT + 4 * cnt if cnt < 8 else cnt)
    a("s_cmp_lg_u32 s%d, 0", pv); a("s_cbranch_scc1 %s", oth)
    fn()
    a("v_mov_b32 v%d, 1", t0 + 1)
    a("ds_write_b32 v%d, v%d", t0, t0 + 1)
    a("s_branch %s", done)
    a.put(oth)
    a("s_mov_b32 s11, 0")
    a.put(lp)
    a("ds_read_b32 v%d, v%d", t0 + 1, t0)
    a("s_add_u32 s11, s11, 1")
    a("s_cmp_gt_u32 s11, %d", SPIN_MAX * 16); a("s_cbranch_scc1 %s", done)
    a("s_waitcnt lgkmcnt(0)")
    a("v_readfirstlane_b32 s10, v%d", t0 + 1)
    a("s_sleep 1")
    a("s_cmp_eq_u32 s10, 0"); a("s_cbranch_scc1 %s", lp)
    a.put(done)
    a("s_waitcnt vmcnt(0)")

def flag_store(a, vtag, vzero, soff):
    a("s_mov_b64 s[10:11], exec"); a("s_mov_b64 exec, 1")
    a("buffer_store_dword v%d, v%d, %s, %s offen sc1", vtag, vzero, srdr(R_SY), soff)
    a("s_mov_b64 exec, s[10:11]")

def arrive(a, scnt, n, sgo, nrep, vtag, vzero, vrep, t0):
    nl = a.newlabel("ar")
    a("s_mov_b64 exec, 1")
    a("v_mov_b32 v%d, 1", t0)
    a("buffer_atomic_add v%d, v%d, %s, s%d offen sc0 sc1", t0, vzero, srdr(R_SY), scnt)
    a("s_add_u32 s10, s%d, %d", TAG, n - 1)
    a("s_waitcnt vmcnt(0)")
    a("v_readfirstlane_b32 s11, v%d", t0)
    a("s_mov_b64 exec, %d", (1 << nrep) - 1)
    a("s_cmp_lg_u32 s11, s10"); a("s_cbranch_scc1 %s", nl)
    a("buffer_store_dword v%d, v%d, %s, s%d offen sc1", vtag, vrep, srdr(R_SY), sgo)
    a.put(nl)
    a("s_mov_b64 exec, -1")

def lds_inc(a, cnt, t0, t1):
    a("v_mov_b32 v%d, %d", t0, L_CNT + 4 * cnt); a("v_mov_b32 v%d, 1", t1)
    a("s_mov_b64 exec, 1")
    a("ds_add_u32 v%d, v%d", t0, t1)
    a("s_mov_b64 exec, -1")

def lds_wait(a, cnt, n, t0, t1, sleep=1):
    lp = a.newlabel("lw"); ok = a.newlabel("lo")
    a("v_mov_b32 v%d, %d", t0, L_CNT + 4 * cnt)
    a("s_mov_b32 s11, 0")
    a.put(lp)
    a("ds_read_b32 v%d, v%d", t1, t0)
    a("s_add_u32 s11, s11, 1")
    a("s_cmp_gt_u32 s11, %d", SPIN_MAX * 16); a("s_cbranch_scc1 %s", ok)
    a("s_waitcnt lgkmcnt(0)")
    a("v_readfirstlane_b32 s10, v%d", t1)
    a("s_nop 0")
    a("s_cmp_ge_u32 s10, %d", n); a("s_cbranch_scc1 %s", ok)
    a("s_sleep %d", sleep)
    a("s_branch %s", lp)
    a.put(ok)

def lds_sync(a, cnt, t0, sleep=1):
    lp = a.newlabel("ls"); ok = a.newlabel("lk")
    a("v_mov_b32 v%d, %d", t0, L_CNT + 4 * cnt); a("v_mov_b32 v%d, 1", t0 + 1)
    a("s_waitcnt lgkmcnt(0)")
    a("s_mov_b64 s[10:11], exec"); a("s_mov_b64 exec, 1")
    a("ds_add_u32 v%d, v%d", t0, t0 + 1)
    a("s_mov_b64 exec, s[10:11]")
    a("s_mov_b32 s11, 0")
    a.put(lp)
    a("ds_read_b32 v%d, v%d", t0 + 1, t0)
    a("s_add_u32 s11, s11, 1")
    a("s_cmp_gt_u32 s11, %d", SPIN_MAX * 8); a("s_cbranch_scc1 %s", ok)
    a("s_waitcnt lgkmcnt(0)")
    a("v_readfirstlane_b32 s10, v%d", t0 + 1)
    a("s_sleep %d", sleep)
    a("s_cmp_lt_u32 s10, 4"); a("s_cbranch_scc1 %s", lp)
    a.put(ok)

def rstd_calc(a, sm, sq, tmp, out, inv_n):
    a("s_mov_b32 s10, %s", fhex(inv_n))
    a("v_mul_f32 v%d, s10, v%d", sm, sm)
    a("v_mul_f32 v%d, v%d, v%d", tmp, sm, sm)
    a("v_fma_f32 v%d, v%d, s10, -v%d", sq, sq, tmp)
    a("v_max_f32 v%d, 0, v%d", sq, sq)
    a("v_add_f32 v%d, %s, v%d", sq, fhex(EPS), sq)
    a("v_rsq_f32 v%d, v%d", out, sq)
    a("s_nop 0")
    a("v_mul_f32_e64 v%d, -v%d, v%d", out + 1, sm, out)

def gen_mega(ev=EV, opt=None):
    opt = opt or {}
    a = Asm("m")
    NTK, NTS, NTQ, NTW = [("nt" if c in str(opt.get("nt", "ksqw")) else "") for c in "ksqw"]
    def x1srd(r):
        if ALIAS == 1: a.srd(r, P_OUT, 4 * MB)
        else: a.srd(r, P_WS, 4 * MB, WS_X1)
    end = a.label("end"); prod = a.label("prod")
    a("s_cmp_ge_u32 s2, 256"); a("s_cbranch_scc1 %s", end)
    a.st_init(0, 250)
    a("s_getpc_b64 s[96:97]")
    a.put(a.label("pc0"))
    HOP = opt.get("hop", 0); WREP = opt.get("wrep", 1)
    def hb(n):
        if HOP: a.hatch_begin(a.label("h%s" % n))
    def he(site):
        if HOP: a.hatch_end(a.label("hret" + site))
    def hop(site):
        if not HOP: return
        a("s_mov_b64 exec, 0")
        for n in range(3):
            a("s_cmp_eq_u32 s48, %d", n); a("s_cbranch_scc1 %s_0", a.label("h%s%d" % (site, n)))
        a("s_branch %s_0", a.label("h%s3" % site))
        a.put(a.label("hret" + site))
        a("s_mov_b64 exec, -1")
    if opt.get("codepf", 1):
        ncp = a.newlabel("ncp")
        a("s_lshr_b32 s3, s2, 3"); a("s_lshl_b32 s3, s3, 10"); a("v_lshl_add_u32 v4, v0, 7, s3")
        a("v_min_u32 v4, %s-%s-4, v4", end, a.label("pc0"))
        a("v_mov_b32 v5, s97"); a("v_add_co_u32 v4, vcc, s96, v4"); a("s_nop 1"); a("v_addc_co_u32 v5, vcc, 0, v5, vcc")
        a("v_cmp_gt_u32 vcc, 8, v0"); a("s_and_saveexec_b64 s[4:5], vcc"); a("s_cbranch_execz %s", ncp)
        a("global_load_dword v249, v[4:5], off")
        a.put(ncp)
        a("s_mov_b64 exec, -1")
    a("s_load_dwordx16 s[64:79], s[0:1], 0")
    a("s_load_dwordx16 s[80:95], s[0:1], 64")
    a("v_lshrrev_b32 v2, 6, v0")
    a("v_and_b32 v1, 63, v0")
    a("s_and_b32 s%d, s2, 7", SX_); a("s_lshr_b32 s%d, s2, 3", SIDX)
    a("v_readfirstlane_b32 s%d, v2", SW)
    a("s_lshr_b32 s%d, s%d, 1", SI, SX_); a("s_lshl_b32 s%d, s%d, 2", SI, SI); a("s_and_b32 s3, s%d, 3", SIDX); a("s_add_u32 s%d, s%d, s3", SI, SI)
    a("s_and_b32 s19, s%d, 1", SX_); a("s_lshr_b32 s3, s%d, 2", SIDX)
    a("s_mul_i32 s%d, s19, 7", SJ); a("s_add_u32 s%d, s%d, s3", SJ, SJ)
    if opt.get("jdx"): a("s_xor_b32 s3, s3, %d", opt["jdx"])
    a("s_lshl_b32 s%d, s19, 3", SJD); a("s_add_u32 s%d, s%d, s3", SJD, SJD)
    a("v_mov_b32 v3, %d", WT)
    a("s_waitcnt lgkmcnt(0)")
    a.srd(R_SY, P_WS, SY_END, WS_STATS)
    a("buffer_load_dword v2, v3, %s, 0 offen sc1", srdr(R_SY))
    def get_tag():
        a("v_readfirstlane_b32 s%d, v2", TAG)
        a("s_nop 0")
        a("s_mul_i32 s%d, s%d, 0x9E3779B1", TAG, TAG); a("s_add_u32 s%d, s%d, 0x7F4A7C15", TAG, TAG)
    a("s_cmp_ge_u32 s%d, 4", SW); a("s_cbranch_scc1 %s", prod)

    VCG, VRG = 3, 17
    VOFF, VSK = 4, 15
    RK, RV, RW, UK, UW, RES, TMP = 18, 40, 56, 128, 172, 188, 226
    VD_ = 240
    a.srd(20, P_K, 4 * MB); a.srd(24, P_V, 4 * MB); a.srd(28, P_SK, 8192); a.srd(32, P_WS, 4 * MB, WS_UR); a.srd(36, P_SSMD, 2048)
    a.srd(40, P_WS, 4 * MB, WS_YB)
    a("v_and_b32 v%d, 31, v0", VCG); a("v_lshrrev_b32 v%d, 5, v0", VRG)
    a("s_lshl_b32 s19, s%d, 17", SIDX); a("s_lshl_b32 s3, s%d, 8", SX_); a("s_add_u32 s19, s19, s3"); a("s_sub_u32 s19, s19, %d", 3 * 2048)
    a("v_lshlrev_b32 v%d, 14, v%d", VOFF, VRG); a("v_lshl_add_u32 v%d, v%d, 3, v%d", VOFF, VCG, VOFF); a("v_add_u32 v%d, s19, v%d", VOFF, VOFF)
    a("s_lshl_b32 s3, s%d, 10", SX_); a("v_lshl_add_u32 v%d, v%d, 5, s3", VSK, VCG)
    a("buffer_load_dwordx4 v[%d:%d], v%d, s[28:31], 0 offen", RW, RW + 3, VSK)
    a("buffer_load_dwordx4 v[%d:%d], v%d, s[28:31], 0 offen offset:16", RW + 4, RW + 7, VSK)
    for j in range(11):
        if j: a("v_add_u32 v%d, %d, v%d", VOFF + j, 2048 * j, VOFF)
        a("buffer_load_dwordx2 v[%d:%d], v%d, s[20:23], 0 offen %s", RK + 2 * j, RK + 2 * j + 1, VOFF + j, NTK)
    for j in range(8): a("buffer_load_dwordx2 v[%d:%d], v%d, s[24:27], 0 offen %s", RV + 2 * j, RV + 2 * j + 1, VOFF + 3 + j, NTK)
    SD = 48
    a("s_lshl_b32 s%d, s%d, 7", SD, SX_); a("s_lshl_b32 s3, s%d, 2", SIDX); a("s_add_u32 s%d, s%d, s3", SD, SD)
    a("s_add_u32 s49, s%d, s%d", SD, SW)
    a("s_lshl_b32 s3, s49, 1"); a("v_mov_b32 v%d, s3", TMP)
    a("buffer_load_ushort v%d, v%d, s[36:39], 0 offen", VD_, TMP)
    a("s_barrier")
    PK = 96
    VTAG, VZERO = 241, 242
    VW1, VR1, VG1 = TMP + 4, TMP + 6, TMP + 5
    a("v_sub_u32 v%d, 7, v%d", TMP + 4, VRG); a("v_and_b32 v%d, 7, v%d", TMP + 5, VCG); a("v_xor_b32 v%d, v%d, v%d", TMP + 4, TMP + 4, TMP + 5)
    a("v_lshlrev_b32 v%d, 4, v%d", TMP + 4, TMP + 4); a("v_lshl_add_u32 v%d, v%d, 9, v%d", TMP + 4, VCG, TMP + 4); a("v_add_u32 v%d, %d, v%d", VW1, L_T1, TMP + 4)
    a("v_lshrrev_b32 v%d, 3, v0", TMP + 7); a("v_and_b32 v%d, 7, v0", TMP + 5); a("v_lshrrev_b32 v%d, 2, v%d", TMP + 6, TMP + 7)
    a("v_xor_b32 v%d, v%d, v%d", TMP + 6, TMP + 6, TMP + 5); a("v_lshlrev_b32 v%d, 4, v%d", TMP + 6, TMP + 6)
    a("v_lshl_add_u32 v%d, v%d, 7, v%d", TMP + 6, TMP + 7, TMP + 6); a("v_add_u32 v%d, %d, v%d", VR1, L_T1, TMP + 6)
    a("s_lshl_b32 s3, s%d, 19", SX_); a("s_lshl_b32 s19, s%d, 7", SIDX); a("s_sub_u32 s3, s3, s19"); a("s_add_u32 s3, s3, %d", (2047 - 63) * 2)
    a("v_lshlrev_b32 v%d, 4, v%d", TMP + 5, TMP + 5); a("v_lshl_add_u32 v%d, v%d, 12, v%d", TMP + 5, TMP + 7, TMP + 5); a("v_add_u32 v%d, s3, v%d", VG1, TMP + 5)
    a("v_mov_b32 v%d, 0", VZERO)
    p1 = a.newlabel("p1"); p1e = a.newlabel("p1e")
    a("s_mov_b32 s53, %d", 0 if opt.get("dry1", 0) else 1)
    a.put(p1)
    a("s_cmp_eq_u32 s53, 0")
    def cwait(n, extra=None):
        sk = a.newlabel("w")
        a("s_cbranch_scc1 %s", sk)
        a("s_waitcnt vmcnt(%d)", n)
        if extra:
            extra(); a("s_cmp_eq_u32 s53, 0")
        a.put(sk)
    def tag_and_counter():
        get_tag()
        a("v_mov_b32 v%d, s%d", VTAG, TAG)
    cwait(20, tag_and_counter)
    for c in range(4):
        for t in range(4):
            dst = UW + (t * 2 + (c >> 1)) * 2 + (c & 1); src = RW + 2 * c + (t >> 1)
            if t & 1: a("v_and_b32 v%d, 0xffff0000, v%d", dst, src)
            else: a("v_lshlrev_b32 v%d, 16, v%d", dst, src)
    cwait(9, a.st if DIAG[0] else None)
    for j in range(11):
        for d in range(2): unpack(a, UK + 4 * j + 2 * d, UK + 4 * j + 2 * d + 1, RK + 2 * j + d)
    for j in range(8):
        for p in range(2):
            dst = RES + 4 * j + 2 * p
            a("v_pk_mul_f32 %s, %s, %s", pk(dst), pk(UK + 4 * j + 2 * p), pk(UW + (3 * 2 + p) * 2))
            for t in (2, 1, 0):
                a("v_pk_fma_f32 %s, %s, %s, %s", pk(dst), pk(UK + 4 * (j + 3 - t) + 2 * p), pk(UW + (t * 2 + p) * 2), pk(dst))
    cwait(1)
    for j in range(8):
        for p in range(2): unpack(a, UK + 4 * j + 2 * p, UK + 4 * j + 2 * p + 1, RV + 2 * j + p)
    for j in range(8):
        for p in range(2): a("v_pk_mul_f32 %s, %s, %s", pk(RES + 4 * j + 2 * p), pk(RES + 4 * j + 2 * p), pk(UK + 4 * j + 2 * p))
    for c in range(4):
        for m in range(4): a("v_cvt_pk_bf16_f32 v%d, v%d, v%d", PK + 4 * c + m, RES + 4 * (7 - 2 * m) + c, RES + 4 * (6 - 2 * m) + c)
    a("s_cbranch_scc0 %s", p1e)
    a("s_mov_b32 s53, 1")
    a("s_branch %s", p1)
    a.put(p1e)
    for c in range(4): a("ds_write_b128 v%d, v[%d:%d] offset:%d", VW1, PK + 4 * c, PK + 4 * c + 3, 128 * c)
    nc = a.newlabel("nc")
    a("s_cmp_ge_u32 s2, 17"); a("s_cbranch_scc1 %s", nc)
    a("s_cmp_lg_u32 s%d, 0", SW); a("s_cbranch_scc1 %s", nc)
    a("s_lshl_b32 s3, s2, 7"); a("s_add_u32 s3, s3, %d", CN)
    flag_store(a, VTAG, VZERO, "s3")
    a.put(nc)
    a("s_waitcnt lgkmcnt(0)")
    a.st()
    a("s_barrier")
    for m in range(4): a("ds_read_b128 v[%d:%d], v%d offset:%d", RV + 4 * m, RV + 4 * m + 3, VR1, 4096 * m)
    for m in range(4):
        a("s_mov_b32 s3, %d", m * 32 * 4096)
        a("s_waitcnt lgkmcnt(%d)", 3 - m)
        a("buffer_store_dwordx4 v[%d:%d], v%d, s[32:35], s3 offen sc1", RV + 4 * m, RV + 4 * m + 3, VG1)
    SLB = 50
    a("s_mul_i32 s%d, s%d, %d", SLB, SW, CV_W)
    VA, VB, VE, VS, VSG, VSR_, VPA, VL16 = 112, 116, 117, 118, 119, 120, 121, 122
    a("v_and_b32 v244, 15, v1"); a("v_lshrrev_b32 v245, 4, v1")
    a("v_and_b32 v246, 4, v244"); a("v_lshlrev_b32 v246, 1, v246"); a("v_lshrrev_b32 v247, 3, v244"); a("v_lshl_add_u32 v246, v247, 2, v246")
    a("v_and_b32 v247, 3, v244"); a("v_add3_u32 v246, v246, v247, 1")
    a("v_and_b32 v247, 1, v246"); a("v_mul_u32_u24 v247, 4160, v247"); a("v_and_b32 v246, 30, v246"); a("v_lshl_add_u32 v247, v246, 1, v247")
    a("v_lshl_add_u32 v247, v245, 4, v247"); a("s_add_u32 s3, s%d, %d", SLB, CV_C0); a("v_add_u32 v%d, s3, v247", VA)
    for j in range(1, 4): a("v_add_u32 v%d, %d, v%d", VA + j, 1024 * j, VA)
    a("v_lshlrev_b32 v247, 5, v244"); a("v_sub_u32 v247, 480, v247"); a("v_lshl_add_u32 v247, v245, 4, v247"); a("v_add_u32 v%d, s%d, v247", VB, SLB)
    a("v_and_b32 v246, 1, v245"); a("v_lshlrev_b32 v246, 4, v246"); a("v_lshrrev_b32 v247, 1, v245"); a("v_lshl_add_u32 v246, v247, 3, v246")
    a("v_lshl_add_u32 v246, v244, 5, v246"); a("v_sub_u32 v246, 504, v246"); a("v_add_u32 v%d, s%d, v246", VE, SLB)
    a("v_and_b32 v246, 1, v245"); a("v_lshl_add_u32 v246, v244, 1, v246"); a("v_lshl_add_u32 v246, v247, 5, v246")
    a("v_lshlrev_b32 v246, 2, v246"); a("v_add_u32 v246, s%d, v246", SW); a("v_and_b32 v247, 7, v244"); a("v_xor_b32 v246, v246, v247")
    a("v_lshlrev_b32 v246, 4, v246"); a("v_add_u32 v%d, %d, v246", VS, L_T1)
    a("v_bfe_u32 v246, v0, 3, 3"); a("v_xor_b32 v246, v246, v0"); a("v_lshlrev_b32 v246, 4, v246"); a("v_add_u32 v%d, %d, v246", VSR_, L_T1)
    a("v_lshrrev_b32 v246, 2, v0"); a("v_lshlrev_b32 v246, 14, v246"); a("v_and_b32 v247, 3, v0"); a("v_lshl_add_u32 v246, v247, 4, v246")
    a("s_lshl_b32 s3, s%d, 4", SD); a("v_add_u32 v%d, s3, v246", VSG)
    a("v_and_b32 v246, 31, v1"); a("v_mul_u32_u24 v%d, %d, v246", VPA, FAS)
    a("v_lshlrev_b32 v%d, 4, v1", VL16)
    ACC = 64; FA_ = [128, 160]; FB_ = [192, 4]
    for r in range(32): a("v_mov_b32 v%d, 0", ACC + r)
    a("s_waitcnt vmcnt(0)")
    a.st()
    a("s_barrier")
    nf = a.newlabel("nf")
    a("s_mul_i32 s51, s%d, %d", SX_, max(128, 32 * FAS)); a("s_add_u32 s51, s51, %d", FA)
    a("s_cmp_lg_u32 s%d, 0", SW); a("s_cbranch_scc1 %s", nf)
    a("s_mul_i32 s3, s%d, %d", SIDX, FAS); a("s_add_u32 s3, s3, s51")
    flag_store(a, VTAG, VZERO, "s3")
    a.put(nf)
    lead_poll(a, SW, 3, 244, lambda: poll(a, VPA, 246, TAG, "s51", n=32))
    a.st()
    a("s_lshl_b32 s52, s49, 12")
    for m in range(4):
        a("s_add_u32 m0, s%d, %d", SLB, CV_UR + 1024 * m)
        a("s_add_u32 s3, s52, %d", 1024 * m)
        a("buffer_load_dwordx4 v%d, s[32:35], s3 offen sc1 lds", VL16)
    hb("e0")
    lds_inc(a, 7, 244, 245)
    a("v_lshlrev_b32 v%d, 16, v%d", VD_, VD_)
    lds_wait(a, 6, 4, 244, 245)
    a("s_waitcnt vmcnt(0)")
    a.st()
    def cloads(rr, st):
        out = []
        def la(q):
            base = VA + (q >> 1); o = ((q & 1) * 8 + rr) * 16; d = FA_[st] + 4 * q
            out.append("ds_read2_b32 v[%d:%d], v%d offset0:%d offset1:%d" % (d, d + 1, base, o, o + 1))
            out.append("ds_read2_b32 v[%d:%d], v%d offset0:%d offset1:%d" % (d + 2, d + 3, base, o + 2, o + 3))
        def lb(t):
            d = FB_[st] + 4 * t
            out.append("ds_read_b128 v[%d:%d], v%d offset:%d" % (d, d + 3, VB, CV_UR + 64 * (56 - 8 * t + rr)))
        la(0)
        for t in range(8): lb(t)
        for q in range(1, 8): la(q)
        return out
    for l in cloads(0, 0): a(l)
    a("s_mov_b32 s53, 4")
    cvl = a.newlabel("cv")
    a.put(cvl)
    for st in range(2):
        nxt = cloads(st + 1, st ^ 1)
        if st == 1: nxt += ["v_add_u32 v%d, 128, v%d" % (r, r) for r in (VA, VA + 1, VA + 2, VA + 3, VB)] + ["s_sub_u32 s53, s53, 1", "s_cmp_lg_u32 s53, 0"]
        a("s_waitcnt lgkmcnt(0)")
        li = 0
        for q in range(8):
            ts = list(range(q, 8))
            if q & 1: ts.reverse()
            for t in ts:
                acc = ACC + 4 * t
                a("v_mfma_f32_16x16x32_bf16 %s, %s, %s, %s", v(acc, 4), v(FA_[st] + 4 * q, 4), v(FB_[st] + 4 * (t - q), 4), v(acc, 4))
                if li < len(nxt): a(nxt[li]); li += 1
        assert li == len(nxt)
    a("s_cbranch_scc1 %s", cvl)
    a("s_waitcnt lgkmcnt(0)")
    for t in range(8): a("ds_read_b64 v[%d:%d], v%d offset:%d", FA_[0] + 2 * t, FA_[0] + 2 * t + 1, VE, CV_UR + 512 * (7 - t))
    a.st()
    a("s_waitcnt lgkmcnt(0)")
    he("e"); hb("e1")
    U = FA_[0]; T = FA_[1]; PKo = FB_[0]
    for t in range(8):
        acc = ACC + 4 * t
        unpack(a, T + 3, T + 2, U + 2 * t); unpack(a, T + 1, T + 0, U + 2 * t + 1)
        for r in range(4): a("v_fmac_f32 v%d, v%d, v%d", acc + r, VD_, T + r)
        a("v_cvt_pk_bf16_f32 v%d, v%d, v%d", PKo + 2 * t, acc, acc + 1); a("v_cvt_pk_bf16_f32 v%d, v%d, v%d", PKo + 2 * t + 1, acc + 2, acc + 3)
    a("s_nop 1")
    for t in range(0, 8, 2):
        R = PKo + 2 * t
        a("v_permlane32_swap_b32 v%d, v%d", R, R + 2); a("v_permlane32_swap_b32 v%d, v%d", R + 1, R + 3)
        a("ds_write_b128 v%d, v[%d:%d] offset:%d", VS, R, R + 3, t * 32 * 64)
    lds_sync(a, 2, 244)
    for m in range(4): a("ds_read_b128 v[%d:%d], v%d offset:%d", 96 + 4 * m, 99 + 4 * m, VSR_, 4096 * m)
    for m in range(4):
        a("s_mov_b32 s3, %d", m * 64 * 16384)
        a("s_waitcnt lgkmcnt(%d)", 3 - m)
        a("buffer_store_dwordx4 v[%d:%d], v%d, s[40:43], s3 offen sc1", 96 + 4 * m, 99 + 4 * m, VSG)
    VHF, VKK, VQ, VM, VRW, VRR, VQ2, VQL, VLS = 2, 3, 4, 5, 8, 9, 13, 6, 7
    YA = 16
    RQ, RP, Q, PR, RY, S, RS, MU, H, YU = 24, 40, 64, 96, 136, 152, 160, 192, 200, 208
    HG = 160
    a.srd(20, P_WS, 12288, WS_MOD); x1srd(24); a.srd(28, P_WS, 4 * MB, WS_H2)
    a("v_bfe_u32 v%d, v0, 2, 1", VHF)
    a("v_lshrrev_b32 v11, 3, v0"); a("v_and_b32 v12, 3, v0"); a("v_lshl_add_u32 v%d, v11, 2, v12", VKK)
    a("s_lshl_b32 s3, s2, 14")
    a("v_lshlrev_b32 v11, 13, v%d", VHF); a("v_lshl_add_u32 v11, v%d, 4, v11", VKK); a("v_add_u32 v%d, s3, v11", VQ); a("v_add_u32 v%d, 4096, v%d", VQ2, VQ)
    VH = 243
    a("v_lshrrev_b32 v11, 3, v%d", VKK); a("v_lshlrev_b32 v11, 14, v11"); a("v_and_b32 v12, 7, v%d", VKK); a("v_lshl_add_u32 v11, v12, 4, v11")
    a("v_lshl_add_u32 v11, v%d, 9, v11", VHF)
    a("s_lshr_b32 s3, s2, 4"); a("s_lshl_b32 s3, s3, 18"); a("s_and_b32 s19, s2, 15"); a("s_lshl_b32 s19, s19, 10"); a("s_add_u32 s3, s3, s19"); a("v_add_u32 v%d, s3, v11", VH)
    a("v_lshlrev_b32 v%d, 4, v%d", VM, VKK)
    a("v_mul_u32_u24 v11, %d, v%d", 4 * QROW, VHF); a("v_add3_u32 v%d, v11, v%d, 0", VQL, VM); a("v_add_u32 v%d, %d, v%d", VQL, L_QT, VQL)
    a("v_lshlrev_b32 v11, 5, v%d", VHF); a("v_add_u32 v%d, %d, v11", VLS, L_L1S)
    a("v_bfe_u32 v11, v%d, 1, 3", VKK); a("v_lshlrev_b32 v11, 4, v11"); a("v_lshlrev_b32 v12, 7, v%d", VKK); a("v_lshl_add_u32 v12, v%d, 3, v12", VHF)
    for i in range(8):
        a("v_xor_b32 v%d, %d, v11", YA + i, 16 * i); a("v_add_u32 v%d, v12, v%d", YA + i, YA + i)
    a("v_lshrrev_b32 v11, 4, v1"); a("v_lshlrev_b32 v11, 2, v11"); a("v_lshl_add_u32 v11, v%d, 7, v11", VHF)
    a("s_lshl_b32 s3, s%d, 5", SW); a("s_add_u32 s3, s3, 16384"); a("v_add_u32 v%d, s3, v11", VRW)
    a("v_lshlrev_b32 v%d, 7, v%d", VRR, VHF)
    a("v_and_b32 v11, 11, v1"); a("v_cmp_eq_u32 s[52:53], 0, v11")
    a("v_lshlrev_b32 v10, 8, v1"); a("v_lshlrev_b32 v14, 2, v1"); a("v_mov_b32 v12, 1")
    a("v_mov_b32 v11, %d", L_CNT + 20); a("v_mov_b32 v15, 1")
    a("s_waitcnt vmcnt(0)")
    a.st()
    a("s_mov_b64 exec, 1")
    a("ds_add_rtn_u32 v15, v11, v15")
    a("s_waitcnt lgkmcnt(0)")
    a("v_readfirstlane_b32 s56, v15")
    nb = a.newlabel("nb"); na = a.newlabel("na")
    a("s_and_b32 s55, s2, 15"); a("s_lshl_b32 s3, s55, 7"); a("s_add_u32 s3, s3, %d", CN)
    a("s_cmp_lg_u32 s56, 3"); a("s_cbranch_scc1 %s", na)
    a("buffer_atomic_add v12, v%d, %s, s3 offen sc0 sc1", VZERO, srdr(R_SY))
    a.put(na)
    a("s_mov_b64 exec, -1")
    lds_wait(a, 1, 4, 11, 15)
    for j in range(4): a("ds_read_b128 v[%d:%d], v%d offset:%d", RQ + 4 * j, RQ + 4 * j + 3, VQL, QROW * j)
    for j in range(2): a("ds_read_b128 v[%d:%d], v%d offset:%d", MU + 4 * j, MU + 4 * j + 3, VLS, 16 * j)
    a("s_add_u32 s54, s%d, 15", TAG); a("s_lshl_b32 s3, s55, 2"); a("s_add_u32 s3, s3, %d", FB2)
    a("s_lshl_b32 s55, s%d, 8", SX_); a("s_add_u32 s55, s55, %d", FB2)
    a("s_waitcnt lgkmcnt(0)")
    for j in range(4):
        for d in range(4): unpack(a, Q + 8 * j + 2 * d, Q + 8 * j + 2 * d + 1, RQ + 4 * j + d)
    for j in range(4):
        for e in range(0, 8, 2):
            a("v_pk_fma_f32 %s, %s, %s, %s op_sel:[0,0,1] op_sel_hi:[1,0,1]", pk(HG + 8 * j + e), pk(Q + 8 * j + e), pk(MU + 2 * j), pk(MU + 2 * j))
    a("s_cmp_lg_u32 s56, 3"); a("s_cbranch_scc1 %s", nb)
    a("s_waitcnt vmcnt(0)")
    a("v_readfirstlane_b32 s19, v12")
    nl = a.newlabel("nl")
    a("s_mov_b64 exec, 0xff")
    a("s_cmp_lg_u32 s19, s54"); a("s_cbranch_scc1 %s", nl)
    a("buffer_store_dword v%d, v10, %s, s3 offen sc1", VTAG, srdr(R_SY))
    a.put(nl)
    poll(a, 14, 11, TAG, "s55", n=16)
    a("s_cmp_lg_u32 s2, 0"); a("s_cbranch_scc1 %s", nb)
    a("s_mov_b32 s3, %d", WT)
    flag_store(a, VTAG, VZERO, "s3")
    a.put(nb)
    a("s_barrier")
    a.st()
    he("e"); hb("e2")
    SA, CA, GA, SB, CBp = PR, PR + 8, PR + 16, PR + 24, PR + 32
    def unp_param(p):
        for d in range(4): unpack(a, PR + 8 * p + 2 * d, PR + 8 * p + 2 * d + 1, RP + 4 * p + d)
    ml = a.newlabel("ml"); mo = a.newlabel("mo")
    a("s_mov_b32 s11, 0")
    a.put(ml)
    for p in range(5):
        a("s_mov_b32 s3, %d", 2048 * p)
        a("buffer_load_dwordx4 v[%d:%d], v%d, s[20:23], s3 offen sc1", RP + 4 * p, RP + 4 * p + 3, VM)
    a("s_add_u32 s11, s11, 1")
    a("s_cmp_gt_u32 s11, %d", SPIN_MAX); a("s_cbranch_scc1 %s", mo)
    a("s_waitcnt vmcnt(0)")
    a("v_max3_u32 v11, v%d, v%d, v%d", RP, RP + 4, RP + 8); a("v_max3_u32 v11, v11, v%d, v%d", RP + 12, RP + 16)
    a("v_cmp_eq_u32 vcc, -1, v11"); a("s_nop 4"); a("s_cbranch_vccnz %s", ml)
    a.put(mo)
    unp_param(1); unp_param(0)
    for j in range(4):
        for e in range(0, 8, 2): a("v_pk_fma_f32 %s, %s, %s, %s", pk(HG + 8 * j + e), pk(HG + 8 * j + e), pk(CA + e), pk(SA + e))
    unp_param(2)
    for j in range(4):
        for e in range(0, 8, 2): a("v_pk_mul_f32 %s, %s, %s", pk(HG + 8 * j + e), pk(HG + 8 * j + e), pk(GA + e))
    a.st()
    a("s_barrier")
    a.st()
    for i in range(8): a("ds_read_b64 v[%d:%d], v%d", RY + 2 * i, RY + 2 * i + 1, YA + i)
    unp_param(4); unp_param(3)
    for i in range(8):
        a("s_waitcnt lgkmcnt(%d)", 7 - i)
        unpack(a, YU + i, YU + 8 + i, RY + 2 * i); unpack(a, YU + 16 + i, YU + 24 + i, RY + 2 * i + 1)
    for j in range(4):
        for e in range(0, 8, 2): a("v_pk_fma_f32 %s, %s, %s, %s", pk(H + e), pk(HG + 8 * j + e), pk(YU + 8 * j + e), pk(Q + 8 * j + e))
        for e in range(0, 8, 2): a("v_cvt_pk_bf16_f32 v%d, v%d, v%d", RQ + 4 * j + e // 2, H + e, H + e + 1)
        a("buffer_store_dwordx4 v[%d:%d], v%d, s[24:27], 0 offen offset:%d sc1", RQ + 4 * j, RQ + 4 * j + 3, VQ if j < 2 else VQ2, 2048 * (j & 1))
        for d in range(4): unpack(a, Q + 8 * j + 2 * d, Q + 8 * j + 2 * d + 1, RQ + 4 * j + d)
    for j in range(4):
        x = Q + 8 * j
        a("v_pk_add_f32 %s, %s, %s", pk(H), pk(x), pk(x + 2)); a("v_pk_mul_f32 %s, %s, %s", pk(H + 2), pk(x), pk(x))
        a("v_pk_add_f32 %s, %s, %s", pk(H + 4), pk(x + 4), pk(x + 6))
        for e in (2, 4, 6): a("v_pk_fma_f32 %s, %s, %s, %s", pk(H + 2), pk(x + e), pk(x + e), pk(H + 2))
        a("v_pk_add_f32 %s, %s, %s", pk(H), pk(H), pk(H + 4))
        a("v_add_f32 v%d, v%d, v%d", S + 4 + j, H + 2, H + 3); a("v_add_f32 v%d, v%d, v%d", S + j, H, H + 1)
    wave_reduce8(a, S, H)
    a("s_mov_b64 exec, s[52:53]")
    a("ds_write_b32 v%d, v%d", VRW, S); a("ds_write_b32 v%d, v%d offset:16", VRW, S + 4)
    a("s_mov_b64 exec, -1")
    a("s_waitcnt lgkmcnt(0)")
    a("s_barrier")
    a.st()
    for w in range(4):
        a("ds_read_b128 v[%d:%d], v%d offset:%d", RS + 8 * w, RS + 8 * w + 3, VRR, 16384 + 32 * w)
        a("ds_read_b128 v[%d:%d], v%d offset:%d", RS + 8 * w + 4, RS + 8 * w + 7, VRR, 16384 + 32 * w + 16)
    a("s_waitcnt lgkmcnt(0)")
    for (d, s) in ((0, 8), (16, 24), (0, 16)):
        for e in range(0, 8, 2): a("v_pk_add_f32 %s, %s, %s", pk(RS + d + e), pk(RS + d + e), pk(RS + s + e))
    a("s_mov_b32 s10, %s", fhex(1.0 / 1024))
    for j in range(4): a("v_mul_f32 v%d, s10, v%d", RS + j, RS + j)
    for j in range(4): a("v_mul_f32 v%d, v%d, v%d", RS + 8 + j, RS + j, RS + j)
    for j in range(4): a("v_fma_f32 v%d, v%d, s10, -v%d", RS + 4 + j, RS + 4 + j, RS + 8 + j)
    for j in range(4): a("v_max_f32 v%d, 0, v%d", RS + 4 + j, RS + 4 + j)
    for j in range(4): a("v_add_f32 v%d, %s, v%d", RS + 4 + j, fhex(EPS), RS + 4 + j)
    for j in range(4): a("v_rsq_f32 v%d, v%d", MU + 2 * j, RS + 4 + j)
    a("s_nop 0")
    for j in range(4): a("v_mul_f32_e64 v%d, -v%d, v%d", MU + 2 * j + 1, RS + j, MU + 2 * j)
    for j in range(4):
        for e in range(0, 8, 2):
            a("v_pk_fma_f32 %s, %s, %s, %s op_sel:[0,0,1] op_sel_hi:[1,0,1]", pk(H + e), pk(Q + 8 * j + e), pk(MU + 2 * j), pk(MU + 2 * j))
        for e in range(0, 8, 2): a("v_pk_fma_f32 %s, %s, %s, %s", pk(H + e), pk(H + e), pk(CBp + e), pk(SB + e))
        for e in range(0, 8, 2): a("v_cvt_pk_bf16_f32 v%d, v%d, v%d", RY + 4 * j + e // 2, H + e, H + e + 1)
        if H2LIN: a("buffer_store_dwordx4 v[%d:%d], v%d, s[28:31], 0 offen offset:%d sc1", RY + 4 * j, RY + 4 * j + 3, VH, 128 * j)
        else: a("buffer_store_dwordx4 v[%d:%d], v%d, s[28:31], 0 offen offset:%d sc1", RY + 4 * j, RY + 4 * j + 3, VQ if j < 2 else VQ2, 2048 * (j & 1))
    a.st()
    a("s_waitcnt vmcnt(0)")
    a.st()
    a("s_barrier")
    nf = a.newlabel("nf")
    a("s_cmp_lg_u32 s%d, 0", SW); a("s_cbranch_scc1 %s", nf)
    a("s_lshr_b32 s3, s2, 4"); a("s_lshl_b32 s3, s3, 12"); a("s_and_b32 s19, s2, 15"); a("s_lshl_b32 s19, s19, 7"); a("s_add_u32 s3, s3, s19"); a("s_add_u32 s3, s3, %d", FC1)
    a("v_lshlrev_b32 v10, 11, v1")
    a("s_mov_b64 exec, 3")
    a("buffer_store_dword v%d, v10, %s, s3 offen sc1", VTAG, srdr(R_SY))
    a("s_mov_b64 exec, -1")
    a.put(nf)
    c_spare = a.label("cspare"); c_g3 = a.label("cg3")
    a("s_cmp_ge_u32 s%d, 28", SIDX); a("s_cbranch_scc1 %s", c_spare)

    he("e"); hb("l0")
    if DIAG[0]: a("v_mov_b32 v31, v250"); a.diag = (0, 31)
    R_Z2, R_P, R_BSP = 32, 40, 36
    a.srd(R_Z2, P_WS, 14 * 524288, WS_Z2); a.srd(R_P, P_WS, 16 * 458752, WS_P); a.srd(R_BSP, P_BSP, 4096)
    XA, YB, YG, VSW, VSF, KC, T, VZ, VP, VBS = 2, 4, 12, 14, 15, 16, 20, 28, 29, 30
    AC = 32; HO = 96; F = [160, 192]; ZK = 224; S = 240; BS = 240
    SWM, SWN = 48, 49
    a("s_and_b32 s%d, s%d, 1", SWM, SW); a("s_lshr_b32 s%d, s%d, 1", SWN, SW)
    c, h, g, r_, cq = 20, 21, 21, 22, 23
    a("v_and_b32 v%d, 15, v1", c); a("v_lshrrev_b32 v%d, 4, v1", h); a("v_bfe_u32 v%d, v1, 2, 2", r_); a("v_and_b32 v%d, 3, v1", cq)
    a("s_lshl_b32 s3, s%d, 7", SI); a("s_lshl_b32 s19, s%d, 6", SWM); a("s_add_u32 s3, s3, s19"); a("s_lshl_b32 s3, s3, 1")
    a("v_lshl_add_u32 v%d, v%d, 1, s3", VBS, c)
    a("v_lshrrev_b32 v24, 1, v%d", c); a("v_xor_b32 v24, v24, v%d", h); a("v_lshlrev_b32 v24, 4, v24")
    a("v_lshl_add_u32 v24, v%d, 7, v24", c); a("s_lshl_b32 s3, s%d, 13", SWM); a("v_add_u32 v%d, s3, v24", XA); a("v_xor_b32 v%d, 64, v%d", XA + 1, XA)
    a("v_lshl_add_u32 v24, v%d, 3, v%d", g, r_); a("v_lshlrev_b32 v24, 8, v24"); a("v_lshl_add_u32 v24, v%d, 3, v24", cq)
    a("v_and_b32 v25, 1, v%d", g); a("v_xor_b32 v25, s%d, v25", SWN); a("v_lshl_add_u32 v24, v25, 7, v24"); a("v_add_u32 v24, %d, v24", L_Y)
    for nt in range(4):
        a("v_xor_b32 v25, %d, v%d", nt, r_); a("v_lshl_add_u32 v%d, v25, 5, v24", YB + 2 * nt); a("v_add_u32 v%d, 1024, v%d", YB + 2 * nt + 1, YB + 2 * nt)
    a("v_and_b32 v24, 1, v%d", g); a("v_lshl_add_u32 v24, v24, 3, v%d", r_)
    a("v_lshrrev_b32 v25, 1, v%d", cq); a("v_lshl_add_u32 v24, v25, 2, v24"); a("v_lshl_add_u32 v24, v25, 5, v24")
    a("v_lshrrev_b32 v25, 1, v%d", g); a("v_lshl_add_u32 v24, v25, 4, v24"); a("v_lshlrev_b32 v24, 4, v24")
    a("v_and_b32 v25, 1, v%d", cq); a("v_lshl_add_u32 v24, v25, 3, v24")
    a("s_lshl_b32 s3, s%d, 12", SWN); a("s_add_u32 s3, s3, %d", L_Y); a("v_add_u32 v%d, s3, v24", YG); a("v_xor_b32 v%d, 64, v%d", YG + 1, YG)
    a("s_lshl_b32 s3, s%d, 10", SWN); a("s_lshl_b32 s19, s%d, 9", SWM); a("s_add_u32 s3, s3, s19"); a("s_add_u32 s3, s3, %d", L_ST)
    a("v_lshl_add_u32 v%d, v1, 3, s3", VSW)
    a("s_add_u32 s3, s19, %d", L_FIN); a("v_lshl_add_u32 v%d, v%d, 3, s3", VSF, c)
    a("v_lshrrev_b32 v24, 1, v%d", h); a("v_lshlrev_b32 v24, 2, v24"); a("v_xor_b32 v24, v24, v%d", c); a("v_lshl_add_u32 v24, v%d, 4, v24", h)
    a("s_lshl_b32 s3, s%d, 19", SJ); a("s_lshl_b32 s19, s%d, 15", SI); a("s_add_u32 s3, s3, s19")
    a("s_lshl_b32 s19, s%d, 14", SWM); a("s_add_u32 s3, s3, s19"); a("s_lshl_b32 s19, s%d, 12", SWN); a("s_add_u32 s3, s3, s19")
    a("v_lshl_add_u32 v%d, v24, 4, s3", VZ)
    a("s_mul_i32 s3, s%d, 458752", SI); a("s_lshl_b32 s19, s%d, 15", SJ); a("s_add_u32 s3, s3, s19")
    a("s_lshl_b32 s19, s%d, 14", SWN); a("s_add_u32 s3, s3, s19"); a("s_lshl_b32 s19, s%d, 12", SWM); a("s_add_u32 s3, s3, s19")
    a("v_lshl_add_u32 v%d, v1, 4, s3", VP)
    SC = 52
    a("s_mov_b32 s%d, %s", SC, fhex(GC1)); a("s_mov_b32 s%d, %s", SC + 1, fhex(GC1)); a("s_mov_b32 s54, 8192")
    a("v_mov_b32 v%d, %s", KC, fhex(GC0)); a("v_mov_b32 v%d, %s", KC + 1, fhex(GC0)); a("v_mov_b32 v%d, 1.0", KC + 2); a("v_mov_b32 v%d, 1.0", KC + 3)
    a("s_mov_b32 s50, 0"); a("s_mov_b32 s51, %d", (1 << 4) | (1 << 8) | (1 << 16))
    def frag_loads(slot, ks, fs):
        out = []
        def X(mt): out.append("ds_read_b128 %s, v%d offset:%d" % (v(F[fs] + 4 * mt, 4), XA + ks, slot * 16384 + mt * 2048))
        def Y(nt):
            for hh in range(2): out.append("ds_read_b64_tr_b16 %s, v%d offset:%d" % (v(F[fs] + 16 + 4 * nt + 2 * hh, 2), YB + 2 * nt + hh, slot * 16384 + ks * 8192))
        X(0); Y(0); X(1); X(2); X(3); Y(1); Y(2); Y(3)
        return out
    def phase(fs, first, nxt, waits):
        need = {("x", 0): 0, ("y", 0): 2, ("x", 1): 3, ("x", 2): 4, ("x", 3): 5, ("y", 1): 7, ("y", 2): 9, ("y", 3): 11}
        done = -1; li = 0; nds = 0
        for nt in range(4):
            for mt in (range(4) if nt % 2 == 0 else range(3, -1, -1)):
                if waits:
                    p = max(need[("x", mt)], need[("y", nt)])
                    if p > done:
                        a("s_waitcnt lgkmcnt(%d)", min(15, 11 - p + nds)); done = p
                d = AC + 4 * (mt * 4 + nt)
                a("v_mfma_f32_16x16x32_bf16 %s, %s, %s, %s", v(d, 4), v(F[fs] + 16 + 4 * nt, 4), v(F[fs] + 4 * mt, 4), "0" if first else v(d, 4))
                if li < len(nxt):
                    a(nxt[li]); nds += nxt[li].startswith("ds_"); li += 1
        assert li == len(nxt)
    def gelu():
        G = 2; NGp = 32 // G
        def tm(gi): return [ZK + 4 * (gi % 4) + 2 * n for n in range(G)]
        def pre(gi):
            t = tm(gi); x = [AC + 2 * (G * gi + n) for n in range(G)]
            return ([("v_pk_mul_f32 %s, %s, %s" % (pk(t[n]), pk(x[n]), pk(x[n]))) for n in range(G)] +
                    [("v_pk_fma_f32 %s, %s, s[%d:%d], %s" % (pk(t[n]), pk(t[n]), SC, SC + 1, pk(KC))) for n in range(G)] +
                    [("v_pk_mul_f32 %s, %s, %s" % (pk(t[n]), pk(t[n]), pk(x[n]))) for n in range(G)])
        def ex(gi): return ["v_exp_f32 v%d, v%d" % (r, r) for t in tm(gi) for r in (t, t + 1)]
        def ad(gi): return ["v_pk_add_f32 %s, %s, %s" % (pk(t), pk(t), pk(KC + 2)) for t in tm(gi)]
        def rc(gi): return ["v_rcp_f32 v%d, v%d" % (r, r) for t in tm(gi) for r in (t, t + 1)]
        def fin_(gi): return ["v_pk_mul_f32 %s, %s, %s" % (pk(HO + 2 * (G * gi + n)), pk(AC + 2 * (G * gi + n)), pk(tm(gi)[n])) for n in range(G)]
        for step in range(NGp + 3):
            tr = (ex(step - 1) if 0 <= step - 1 < NGp else []) + (rc(step - 2) if 0 <= step - 2 < NGp else [])
            al = (ad(step - 2) if 0 <= step - 2 < NGp else []) + (fin_(step - 3) if 0 <= step - 3 < NGp else []) + (pre(step) if step < NGp else [])
            out = []
            while tr or al:
                if al: out.append(al.pop(0))
                if tr: out.append(tr.pop(0))
            if not (0 <= step - 1 < NGp) and 0 <= step - 2 < NGp:
                out = ad(step - 2) + [o for o in out if o not in ad(step - 2)]
            for o in out: a(o)
            if step >= NGp: a("s_nop 0")
    def stats_z2():
        for mt in range(4):
            x = HO + 16 * mt
            a("v_pk_add_f32 %s, %s, %s", pk(T), pk(x), pk(x + 2)); a("v_pk_mul_f32 %s, %s, %s", pk(T + 2), pk(x), pk(x))
            a("v_pk_add_f32 %s, %s, %s", pk(T + 4), pk(x + 4), pk(x + 6)); a("v_pk_mul_f32 %s, %s, %s", pk(T + 6), pk(x + 2), pk(x + 2))
            for e in range(4, 16, 4):
                a("v_pk_fma_f32 %s, %s, %s, %s", pk(T + 2), pk(x + e), pk(x + e), pk(T + 2))
                a("v_pk_fma_f32 %s, %s, %s, %s", pk(T + 6), pk(x + e + 2), pk(x + e + 2), pk(T + 6))
            for e in range(8, 16, 4):
                a("v_pk_add_f32 %s, %s, %s", pk(T), pk(T), pk(x + e)); a("v_pk_add_f32 %s, %s, %s", pk(T + 4), pk(T + 4), pk(x + e + 2))
            a("v_pk_add_f32 %s, %s, %s", pk(T), pk(T), pk(T + 4)); a("v_pk_add_f32 %s, %s, %s", pk(T + 2), pk(T + 2), pk(T + 6))
            a("v_add_f32 v%d, v%d, v%d", S + mt, T, T + 1); a("v_add_f32 v%d, v%d, v%d", S + 4 + mt, T + 2, T + 3)
        a("s_nop 1")
        for base in (S, S + 4):
            a("v_permlane32_swap_b32 v%d, v%d", base, base + 2); a("v_permlane32_swap_b32 v%d, v%d", base + 1, base + 3)
        for base in (S, S + 4):
            a("v_add_f32 v%d, v%d, v%d", base, base, base + 2); a("v_add_f32 v%d, v%d, v%d", base + 1, base + 1, base + 3)
        a("s_nop 0")
        for base in (S, S + 4): a("v_permlane16_swap_b32 v%d, v%d", base, base + 1)
        a("v_add_f32 v%d, v%d, v%d", S, S, S + 1); a("v_add_f32 v%d, v%d, v%d", S + 1, S + 4, S + 5)
        a("ds_write_b64 v%d, %s", VSW, pk(S))
        a("s_waitcnt lgkmcnt(0)")
    def store_z(n):
        R = ZK + 4 * n; mp, nt = n // 4, n % 4
        a("v_permlane16_swap_b32 v%d, v%d", R, R + 2); a("v_permlane16_swap_b32 v%d, v%d", R + 1, R + 3)
        a("buffer_store_dwordx4 %s, v%d, %s, %s offen offset:%d sc1", v(R, 4), VZ, srdr(R_Z2), "s54" if mp else "0", 1024 * nt)
    def burst_norm():
        for mt in range(4): a("ds_read_b64 %s, v%d offset:%d", pk(T + 2 * mt), VSF, 128 * mt)
        a("s_waitcnt lgkmcnt(0)")
        n = 0
        for mp in range(2):
            for nt in range(4):
                R = ZK + 4 * n; n += 1
                for q in range(2):
                    mt = 2 * mp + q; x = HO + 4 * (mt * 4 + nt)
                    for e in (0, 2): a("v_pk_fma_f32 %s, %s, %s, %s op_sel:[0,0,1] op_sel_hi:[1,0,1]", pk(x + e), pk(x + e), pk(T + 2 * mt), pk(T + 2 * mt))
                for q in range(2):
                    mt = 2 * mp + q; x = HO + 4 * (mt * 4 + nt)
                    for e in (0, 2): a("v_cvt_pk_bf16_f32 v%d, v%d, v%d", R + 2 * q + e // 2, x + e, x + e + 1)
                if n > 1: store_z(n - 2)
        a("s_nop 1")
        store_z(7)
    def burst_p():
        a("s_waitcnt vmcnt(0) lgkmcnt(0)")
        for mt in range(4): a("v_lshlrev_b32 v%d, 16, v%d", T + 2 * mt, BS + mt)
        a("s_nop 3")
        for pr in range(2):
            for mt in range(4):
                R = F[0] + 4 * (pr * 4 + mt)
                os_ = [4 * (mt * 4 + 2 * pr + q) + e for q in range(2) for e in (0, 2)]
                for o in os_: a("v_pk_add_f32 %s, %s, %s op_sel_hi:[1,0]", pk(AC + o), pk(AC + o), pk(T + 2 * mt))
                for o in os_: a("v_pk_mul_f32 %s, %s, %s", pk(AC + o), pk(AC + o), pk(HO + o))
                for n, o in enumerate(os_): a("v_cvt_pk_bf16_f32 v%d, v%d, v%d", R + n, AC + o, AC + o + 1)
                a("buffer_store_dwordx4 %s, v%d, %s, %s offen offset:%d sc1", v(R, 4), VP, srdr(R_P), "s54" if pr else "0", 1024 * mt)
    l_first, l_top, l_mid, l_norm, l_normr, l_sw, l_swr, l_fin, l_z1 = [a.label(n) for n in ("kfirst", "ktop", "kmid", "knorm", "knormr", "ksw", "kswr", "kfin", "kz1")]
    assert ev["norm"] % 4 == 2 and ev["drain"] % 4 == 0
    a("s_waitcnt vmcnt(0)")
    a("s_barrier")
    a.st()
    for l in frag_loads(0, 0, 0): a(l)
    a.put(l_first)
    phase(0, True, frag_loads(0, 1, 1), True)
    a("s_branch %s", l_mid)
    a.put(l_top)
    for slot in range(4):
        extra = []
        if slot == 3: extra = ["s_cmp_eq_u32 s50, 7"]
        phase(0, False, frag_loads(slot, 1, 1) + extra, True)
        if slot == 0: a.put(l_mid)
        a("s_waitcnt vmcnt(0) lgkmcnt(0)" if slot == 0 else "s_waitcnt lgkmcnt(0)")
        a("s_barrier")
        if slot == 3:
            a("s_cbranch_scc1 %s", l_sw); a.put(l_swr)
        if slot in opt.get("stslots", (1, 3)): a.st()
        extra = []
        if slot == 2: extra = ["s_cmp_eq_u32 s50, %d" % (ev["norm"] // 4)]
        if slot == 3: extra = ["s_add_u32 s50, s50, 1", "s_bitcmp1_b32 s51, s50"]
        phase(1, False, frag_loads((slot + 1) & 3, 0, 0) + extra, False)
        if slot == 2:
            a("s_cbranch_scc1 %s", l_norm); a.put(l_normr)
    a("s_cbranch_scc0 %s", l_top)
    he("l"); hb("l1")
    a("s_cmp_eq_u32 s50, 16"); a("s_cbranch_scc1 %s", l_fin)
    a("s_cmp_lg_u32 s50, 8"); a("s_cbranch_scc1 %s", l_z1)
    for mt in range(4): a("buffer_load_ushort v%d, v%d, %s, 0 offen offset:%d", BS + mt, VBS, srdr(R_BSP), 32 * mt)
    a.put(l_z1)
    a("s_nop 3")
    gelu()
    a("s_cmp_eq_u32 s50, 8"); a("s_cbranch_scc1 %s", l_first)
    stats_z2()
    a("s_branch %s", l_first)
    a.put(l_sw)
    for nt in range(4):
        for hh in range(2): a("v_add_u32 v%d, %d, v%d", YB + 2 * nt + hh, 1024 * nt, YG + hh)
    a("s_branch %s", l_swr)
    a.put(l_norm)
    burst_norm()
    a("s_branch %s", l_normr)
    a.put(l_fin)
    burst_p()
    if DIAG[0]: a("v_mov_b32 v250, v31"); a.diag = (0, 250)
    a("s_waitcnt vmcnt(0)")
    a("s_barrier")
    a.st()
    he("l")
    a("s_branch %s", c_g3)

    def spare_stream():
        mode = opt.get("spare", 2)
        if mode == 0: return
        nw = {1: 8, 2: 2, 3: 4}[mode]
        sk = a.newlabel("ss")
        a.srd(20, P_WIN, 1024 * 7168); a.srd(24, P_WSP, 8 * MB); a.srd(28, P_WOUT, 1792 * 2048)
        a("s_cmp_ge_u32 s%d, %d", SW, nw); a("s_cbranch_scc1 %s", sk)
        a("s_sub_u32 s3, s%d, 28", SIDX); a("s_lshl_b32 s19, s%d, 2", SX_); a("s_add_u32 s3, s3, s19"); a("s_mul_i32 s3, s3, %d", nw); a("s_add_u32 s48, s3, s%d", SW)
        a("s_lshl_b32 s3, s48, 6"); a("v_add_u32 v2, s3, v1")
        step = 32 * nw * 64
        a("s_mov_b32 s49, 9363")
        def loop(n, body):
            lp = a.newlabel("sl")
            a("v_mov_b32 v3, v2"); a("s_mov_b32 s50, %d", -(-n // step))
            a.put(lp)
            body()
            a("v_add_u32 v3, %d, v3", step)
            if nw < 8: a("s_waitcnt vmcnt(0)")
            a("s_sub_u32 s50, s50, 1"); a("s_cmp_lg_u32 s50, 0"); a("s_cbranch_scc1 %s", lp)
        def b_in():
            a("v_lshrrev_b32 v4, 2, v3"); a("v_mul_u32_u24 v4, s49, v4"); a("v_lshrrev_b32 v4, 16, v4")
            a("v_mul_u32_u24 v5, 28, v4"); a("v_sub_u32 v5, v3, v5")
            a("v_mul_u32_u24 v4, 7168, v4"); a("v_lshl_add_u32 v5, v5, 7, v4")
            a("buffer_load_dword v10, v5, s[20:23], 0 offen")
        def b_sp():
            a("v_and_b32 v4, 2047, v3"); a("v_lshrrev_b32 v5, 11, v3"); a("v_lshlrev_b32 v4, 12, v4"); a("v_lshl_add_u32 v5, v5, 7, v4")
            a("buffer_load_dword v10, v5, s[24:27], 0 offen")
        def b_out():
            a("v_lshlrev_b32 v5, 7, v3")
            a("buffer_load_dword v10, v5, s[28:31], 0 offen")
        if not opt.get("t1pos"): loop(28672, b_in)
        if not opt.get("tspos"): loop(65536, b_sp)
        if not opt.get("topos") and not WREP: loop(28672, b_out)
        a("s_waitcnt vmcnt(0)")
        a.put(sk)
        if WREP:
            a.srd(24, P_WS, 1792 * 2048, WS_WO)
            a("s_sub_u32 s3, s%d, 28", SIDX); a("s_lshl_b32 s19, s%d, 2", SX_); a("s_add_u32 s3, s3, s19"); a("s_lshl_b32 s3, s3, 3"); a("s_add_u32 s3, s3, s%d", SW)
            a("s_mul_i32 s49, s3, %d", 14 * 1024); a("s_mul_i32 s50, s3, %d", 7 * 128)
            a("v_lshlrev_b32 v2, 4, v1")
            a("v_lshrrev_b32 v3, 3, v1"); a("s_mov_b32 s3, 229376"); a("v_mul_lo_u32 v3, v3, s3"); a("v_and_b32 v4, 7, v1"); a("v_lshl_add_u32 v3, v4, 4, v3")
            a("v_add_u32 v4, %d, v3", 8 * 229376)
            for n in range(14):
                a("buffer_load_dwordx4 %s, v2, s[28:31], s49 offen nt", v(64 + 4 * n, 4))
                a("s_add_u32 s49, s49, 1024")
            for n in range(14):
                a("s_waitcnt vmcnt(13)")
                a("buffer_store_dwordx4 %s, v%d, s[24:27], s50 offen offset:%d sc1", v(64 + 4 * n, 4), 3 + (n & 1), 128 * (n >> 1))
            a("s_waitcnt vmcnt(0)")
            a("s_barrier")
    a.put(c_spare)
    spare_stream()

    a.put(c_g3)
    hb("l2")
    S3 = 4; NK = 28
    VO, VG, VSR, X1R, GBR = 120, 121, 122, 124, 132
    R_W, R_O, R_P3, R_X1, R_M = 20, 24, 28, 32, 36
    def g3_final_setup():
        a.srd(R_O, P_OUT, 4 * MB); x1srd(R_X1); a.srd(R_M, P_WS, 12288, WS_MOD)
        a("v_lshrrev_b32 v110, 3, v0"); a("v_and_b32 v111, 7, v0")
        a("s_lshl_b32 s3, s%d, 18", SI); a("s_lshl_b32 s19, s%d, 7", SJD); a("s_add_u32 s3, s3, s19")
        a("v_lshlrev_b32 v112, 4, v111"); a("v_lshl_add_u32 v113, v110, 11, v112"); a("v_add_u32 v%d, s3, v113", VO)
        a("s_add_u32 s19, s19, %d", 5 * 2048); a("v_add_u32 v%d, s19, v112", VG)
        a("v_and_b32 v112, 7, v110"); a("v_xor_b32 v112, v112, v111"); a("v_lshlrev_b32 v112, 4, v112"); a("v_lshl_add_u32 v%d, v110, 7, v112", VSR)
        a("s_mov_b32 s9, %d", 64 * 2048)
    def final_loads():
        a("buffer_load_dwordx4 %s, v%d, %s, 0 offen sc1", v(X1R, 4), VO, srdr(R_X1))
        a("buffer_load_dwordx4 %s, v%d, %s, s9 offen sc1", v(X1R + 4, 4), VO, srdr(R_X1))
        a("buffer_load_dwordx4 %s, v%d, %s, 0 offen sc1", v(GBR, 4), VG, srdr(R_M))
    g3_final_setup()
    XA3, YA3, VSW3 = 2, 4, 8
    ACC3 = 16; F3 = [48, 72]
    c, g, r_, cq = 10, 11, 12, 13
    a("v_and_b32 v%d, 15, v1", c); a("v_lshrrev_b32 v%d, 4, v1", g); a("v_bfe_u32 v%d, v1, 2, 2", r_); a("v_and_b32 v%d, 3, v1", cq)
    a("s_lshl_b32 s3, s%d, 11", SW); a("v_lshl_add_u32 v%d, v1, 4, s3", XA3)
    a("v_lshl_add_u32 v14, v%d, 2, v%d", g, r_); a("v_bfe_u32 v15, v14, 1, 2")
    a("v_lshlrev_b32 v14, 7, v14"); a("v_lshl_add_u32 v14, v%d, 3, v14", cq); a("v_add_u32 v14, %d, v14", L_Y3)
    for dt in range(4):
        a("v_xor_b32 v9, %d, v15", dt); a("v_lshl_add_u32 v%d, v9, 5, v14", YA3 + dt)
    a("v_lshrrev_b32 v14, 1, v%d", g); a("v_and_b32 v15, 7, v%d", c); a("v_xor_b32 v14, v14, v15"); a("v_lshlrev_b32 v14, 4, v14")
    a("v_and_b32 v15, 1, v%d", g); a("v_lshl_add_u32 v14, v15, 3, v14"); a("v_lshl_add_u32 v14, v%d, 7, v14", c)
    a("s_lshl_b32 s3, s%d, 12", SW); a("s_add_u32 s3, s3, 65536"); a("v_add_u32 v%d, s3, v14", VSW3)
    def frag3(slot, ks, fs):
        out = []
        def X(tt): out.append("ds_read_b128 %s, v%d offset:%d" % (v(F3[fs] + 4 * tt, 4), XA3, slot * 16384 + ks * 8192 + tt * 1024))
        def Y(dt):
            for hh in range(2):
                out.append("ds_read_b64_tr_b16 %s, v%d offset:%d" % (v(F3[fs] + 8 + 4 * dt + 2 * hh, 2), YA3 + dt, slot * 8192 + (32 * ks + 16 * hh) * 128))
        X(0); Y(0); X(1); Y(1); Y(2); Y(3)
        return out
    def phase3(fs, nxt, waits):
        need = {("x", 0): 0, ("y", 0): 2, ("x", 1): 3, ("y", 1): 5, ("y", 2): 7, ("y", 3): 9}
        done = -1; li = 0; n = 0
        for dt in range(4):
            for tt in ((0, 1) if dt % 2 == 0 else (1, 0)):
                if waits:
                    p = max(need[("x", tt)], need[("y", dt)])
                    if p > done:
                        a("s_waitcnt lgkmcnt(%d)", min(15, 9 - p + li)); done = p
                d = ACC3 + 4 * (tt * 4 + dt)
                a("v_mfma_f32_16x16x32_bf16 %s, %s, %s, %s", v(d, 4), v(F3[fs] + 8 + 4 * dt, 4), v(F3[fs] + 4 * tt, 4), v(d, 4))
                n += 1
                for _ in range(2 if n <= 2 else 1):
                    if li < len(nxt): a(nxt[li]); li += 1
        assert li == len(nxt)
    for r in range(32): a("v_mov_b32 v%d, 0", ACC3 + r)
    a("s_mov_b32 s50, 7")
    a("s_barrier")
    a.st()
    final_loads()
    for l in frag3(0, 0, 0): a(l)
    lab = a.newlabel("cl")
    a.put(lab)
    for slot in range(4):
        phase3(0, frag3(slot, 1, 1), True)
        a("s_waitcnt lgkmcnt(0)")
        a("s_barrier")
        if slot == 3: a.st()
        phase3(1, frag3((slot + 1) & 3, 0, 0), False)
    a("s_sub_u32 s50, s50, 1"); a("s_cmp_lg_u32 s50, 0"); a("s_cbranch_scc1 %s", lab)
    a("s_waitcnt lgkmcnt(0)")
    a("s_nop 7")
    for tt in range(2):
        for dt in range(4):
            d = ACC3 + 4 * (tt * 4 + dt); R = F3[0] + 2 * (tt * 4 + dt)
            a("v_cvt_pk_bf16_f32 v%d, v%d, v%d", R, d, d + 1); a("v_cvt_pk_bf16_f32 v%d, v%d, v%d", R + 1, d + 2, d + 3)
    for dt in range(4):
        if dt: a("v_xor_b32 v9, %d, v%d", 32 * dt, VSW3)
        for tt in range(2):
            a("ds_write_b64 v%d, %s offset:%d", 9 if dt else VSW3, pk(F3[0] + 2 * (tt * 4 + dt)), 2048 * tt)
    fin = a.label("fin")
    if HOP: a.hatch_end(a.label("hf_0"))
    a("s_branch %s", fin)

    a.put(prod)
    PV = 48
    a("s_sub_u32 s%d, s%d, 4", PV, SW)
    a.srd(20, P_SSMK, 4 * MB); a.srd(24, P_Q, 4 * MB); a.srd(28, P_C, 2048); a.srd(32, P_WMOD, 12 * MB)
    a.srd(36, P_WS, 16 * 24576, WS_MODP); a.srd(40, P_WS, 12288, WS_MOD)
    RKr, ZR, SH = 64, 88, 92
    a("s_mul_i32 s49, s%d, %d", PV, CV_W)
    a("s_lshl_b32 s50, s%d, 7", SX_); a("s_lshl_b32 s3, s%d, 2", SIDX); a("s_add_u32 s50, s50, s3"); a("s_add_u32 s50, s50, s%d", PV); a("s_lshl_b32 s50, s50, 12")
    a("v_lshlrev_b32 v3, 4, v1")
    a("v_add_u32 v6, s49, v3")
    for r in range(4): a("v_mov_b32 v%d, 0", ZR + r)
    a("s_mov_b32 exec_hi, 0")
    a("ds_write_b128 v6, v[%d:%d] offset:%d", ZR, ZR + 3, CV_UR + 4096)
    a("s_mov_b64 exec, 3")
    a("ds_write_b128 v6, v[%d:%d] offset:%d", ZR, ZR + 3, CV_C0)
    a("s_mov_b64 exec, 1")
    a("ds_write_b128 v6, v[%d:%d] offset:%d", ZR, ZR + 3, CV_C1)
    a("v_mov_b32 v7, %d", L_CNT)
    a("ds_write_b128 v7, v[%d:%d]", ZR, ZR + 3)
    a("ds_write_b128 v7, v[%d:%d] offset:16", ZR, ZR + 3)
    a("v_mov_b32 v7, %d", L_CD)
    a("ds_write_b32 v7, v%d", ZR)
    a("s_mov_b64 exec, -1")
    SG_R, SG_C = 51, 52
    a("s_lshr_b32 s%d, s%d, 1", SG_R, SIDX); a("s_lshl_b32 s%d, s%d, 1", SG_C, SX_); a("s_and_b32 s3, s%d, 1", SIDX); a("s_add_u32 s%d, s%d, s3", SG_C, SG_C)
    a("s_lshl_b32 s4, s%d, 6", SG_R); a("s_lshl_b32 s3, s%d, 4", PV); a("s_add_u32 s4, s4, s3")
    a("v_lshrrev_b32 v4, 4, v1"); a("v_lshlrev_b32 v4, 4, v4"); a("s_lshl_b32 s3, s%d, 7", SG_R); a("v_add_u32 v4, s3, v4")
    a("s_mul_i32 s5, s4, 12288"); a("s_mul_i32 s3, s%d, 768", SG_C); a("s_add_u32 s5, s5, s3")
    a("s_waitcnt lgkmcnt(0)")
    a("s_barrier")
    CR, SLT, SPK, AM, WMV, WMR, YF, GAC = 108, 116, 148, 156, 204, 210, 64, 112
    a("s_and_b32 s3, s2, 14"); a("s_cmp_eq_u32 s3, 14"); a("s_cselect_b32 s3, 0, -1")
    a("v_mov_b32 v60, s3"); a("s_lshl_b32 s3, s2, 10"); a("s_sub_u32 s3, s3, 1024"); a("v_lshl_add_u32 v61, v0, 2, s3")
    a("buffer_store_dword v60, v61, %s, 0 offen sc1", srdr(R_SY))
    a("v_mov_b32 v62, -1"); a("v_mov_b32 v63, -1")
    a("s_mul_i32 s3, s%d, 24576", SG_R); a("s_mul_i32 s19, s%d, 1536", SG_C); a("s_add_u32 s60, s3, s19")
    ns = a.newlabel("ns"); ns2 = a.newlabel("ns")
    a("s_cmp_eq_u32 s%d, 3", PV); a("s_cbranch_scc1 %s", ns)
    a("s_lshl_b32 s3, s%d, 9", PV); a("v_lshl_add_u32 v5, v1, 3, s3")
    a("buffer_store_dwordx2 v[62:63], v5, s[36:39], s60 offen sc1")
    a("s_branch %s", ns2)
    a.put(ns)
    a("s_mul_i32 s3, s%d, 1536", SX_); a("s_lshl_b32 s19, s%d, 6", SIDX); a("s_add_u32 s3, s3, s19")
    a("s_cmp_ge_u32 s%d, 24", SIDX); a("s_cselect_b32 s3, 0x10000, s3")
    a("v_lshlrev_b32 v5, 2, v1")
    a("s_mov_b64 exec, 0xffff")
    a("buffer_store_dword v62, v5, s[40:43], s3 offen sc1")
    a("s_mov_b64 exec, -1")
    a.put(ns2)
    for m in range(4):
        a("s_add_u32 s3, s50, %d", 1024 * m)
        a("buffer_load_dwordx4 v[%d:%d], v3, s[20:23], s3 offen %s", RKr + 6 * m, RKr + 6 * m + 3, NTS)
        a("buffer_load_dword v%d, v3, s[20:23], s3 offen offset:16 %s", RKr + 6 * m + 4, NTS)
    for ks in range(2): a("buffer_load_dwordx4 %s, v4, s[28:31], 0 offen offset:%d", v(CR + 4 * ks, 4), 64 * ks)
    a("s_waitcnt vmcnt(%d)", 12)
    get_tag()
    a("s_mov_b32 s3, 1366")
    for mm in range(3):
        a("v_add_u32 v60, %d, v1", 64 * mm); a("v_mul_u32_u24 v61, s3, v60"); a("v_lshrrev_b32 v61, 16, v61")
        a("v_mul_u32_u24 v62, 48, v61"); a("v_sub_u32 v60, v60, v62")
        a("v_lshlrev_b32 v62, 1, v61"); a("v_xor_b32 v60, v60, v62"); a("v_lshlrev_b32 v60, 4, v60")
        a("v_mul_u32_u24 v61, 12288, v61"); a("v_add_u32 v%d, v60, v61", WMV + mm)
        a("v_xor_b32 v60, 128, v60"); a("v_add_u32 v%d, v60, v61", WMV + 3 + mm)
    a("v_lshrrev_b32 v60, 4, v1"); a("v_bfe_u32 v61, v1, 2, 2"); a("v_lshl_add_u32 v62, v60, 3, v61"); a("v_mul_u32_u24 v62, 768, v62")
    a("v_and_b32 v63, 3, v1"); a("v_lshl_add_u32 v62, v63, 3, v62"); a("v_add_u32 v62, %d, v62", L_WM)
    a("v_and_b32 v60, 1, v60"); a("v_lshl_add_u32 v61, v60, 2, v61")
    a("s_mul_i32 s3, s%d, 6", PV)
    for nt in range(6):
        a("v_xor_b32 v60, s3, v61"); a("v_lshl_add_u32 v%d, v60, 5, v62", WMR + nt)
        if nt < 5: a("s_add_u32 s3, s3, 1")
    WPOS, QPOS, TPOS = opt.get("wmpos", "ur"), opt.get("qpos", "b0"), opt.get("tpos", "ur")
    vq = []
    def place(pos):
        if WPOS == pos: do_wm(); vq.extend(["w"] * 12)
        if QPOS == pos: do_q(); vq.extend(["q"] * 4)
        if TPOS == pos: do_t(P_WIN, 1024 * 7168, 7168, 3584, 28); vq.append("t")
        if opt.get("t1pos") == pos: do_t(P_WIN, 1024 * 7168, 7168, 0, 28); vq.append("t")
        if opt.get("tspos") == pos: do_t(P_WSP, 8 * MB, 8192, 0, 64); vq.append("t")
        if opt.get("topos") == pos: do_t(P_WOUT, 1792 * 2048, 3584, 0, 28); vq.append("t")
    def younger(kind): return len(vq) - 1 - max(n for n, k in enumerate(vq) if k == kind)
    def do_wm():
        a("s_mul_i32 s4, s%d, %d", PV, 16 * 768); a("s_add_u32 s4, s4, %d", L_WM)
        for m in range(12):
            a("s_add_u32 m0, s4, %d", 1024 * m)
            if m and m % 3 == 0: a("s_add_u32 s5, s5, %d", 4 * 12288)
            else: a("s_nop 0")
            a("buffer_load_dwordx4 v%d, s[32:35], s5 offen %s lds", WMV + 3 * (m // 6) + m % 3, NTW)
    def do_q():
        a("s_lshl_b32 s6, s2, 14"); a("s_lshl_b32 s3, s%d, 12", PV); a("s_add_u32 s6, s6, s3")
        a("s_mul_i32 s7, s%d, %d", PV, 2 * QROW); a("s_add_u32 s7, s7, %d", L_QT)
        for u in range(4):
            a("s_add_u32 m0, s7, %d", (u >> 1) * QROW + (u & 1) * 1024)
            a("s_add_u32 s3, s6, %d", 1024 * u)
            a("buffer_load_dwordx4 v3, s[24:27], s3 offen %s lds", NTQ)
    def do_t(ptr, nbytes, stride, off, lanes):
        a.srd(20, ptr, nbytes)
        a("s_lshl_b32 s3, s2, 2"); a("s_add_u32 s3, s3, s%d", PV); a("s_mul_i32 s3, s3, %d", stride); a("s_add_u32 s3, s3, %d", off)
        a("v_lshlrev_b32 v60, 7, v1")
        if lanes < 64: a("s_mov_b32 exec_lo, 0x%x", (1 << lanes) - 1); a("s_mov_b32 exec_hi, 0")
        a("buffer_load_dword v216, v60, s[20:23], s3 offen")
        a("s_mov_b64 exec, -1")
    place("b0")
    nb0 = len(vq)
    XZ, XG, YZp, YGp, VPUB, VLD, VPOLL, VFIN, VFP, VTG, VZR = 8, 12, 16, 20, 24, 25, 26, 27, 28, 29, 30
    VYD, XP, YP, VF16, VFD = 50, 52, 56, 58, 59
    SLX, SLY, SXo, SYo = 49, 50, 53, 54
    a("s_lshl_b32 s%d, s%d, 10", SLX, PV)
    a("s_lshl_b32 s%d, s%d, 12", SLY, PV); a("s_add_u32 s%d, s%d, %d", SLY, SLY, L_Y)
    a("v_lshrrev_b32 v60, 4, v1"); a("s_and_b32 s3, s%d, 1", PV); a("s_lshl_b32 s3, s3, 2"); a("v_add_u32 v60, s3, v60")
    a("v_and_b32 v61, 7, v1"); a("v_xor_b32 v60, v60, v61"); a("v_lshlrev_b32 v60, 4, v60")
    a("v_lshrrev_b32 v61, 3, v1"); a("s_lshl_b32 s3, s%d, 7", SI); a("s_lshl_b32 s19, s%d, 3", PV); a("s_add_u32 s3, s3, s19"); a("v_add_u32 v61, s3, v61")
    a("v_lshl_add_u32 v%d, v61, 11, v60", XZ); a("v_lshl_add_u32 v%d, v61, 12, v60", XG)
    if H2LIN:
        a("v_and_b32 v62, 127, v61"); a("v_lshl_add_u32 v62, v62, 7, v60"); a("s_lshl_b32 s3, s%d, 18", SI); a("v_add_u32 v%d, s3, v62", XZ)
    for u in range(1, 4):
        a("v_add_u32 v%d, %d, v%d", XZ + u, u * 32 * (128 if H2LIN else 2048), XZ); a("v_add_u32 v%d, %d, v%d", XG + u, u * 32 * 4096, XG)
    a("v_lshrrev_b32 v60, 4, v1"); a("v_bfe_u32 v61, v1, 1, 3"); a("v_xor_b32 v61, v61, v60"); a("v_lshlrev_b32 v61, 5, v61")
    a("v_and_b32 v62, 1, v1"); a("v_lshl_add_u32 v61, v62, 4, v61")
    a("s_lshl_b32 s3, s%d, 4", PV); a("v_add_u32 v60, s3, v60"); a("v_mul_u32_u24 v60, 7168, v60")
    a("s_lshl_b32 s3, s%d, 8", SJ); a("v_add_u32 v60, s3, v60")
    for u in range(4):
        if u == 2: a("v_xor_b32 v61, 128, v61")
        if u: a("v_add_u32 v62, %d, v60", u * 4 * 7168)
        a("v_add_u32 v%d, v61, v%d", YZp + u, 62 if u else 60)
    a("s_lshl_b32 s3, s%d, 19", SJ); a("s_lshl_b32 s19, s%d, 12", PV); a("s_add_u32 s3, s3, s19")
    a("v_lshl_add_u32 v%d, v1, 4, s3", YGp)
    for u in range(1, 4): a("v_add_u32 v%d, %d, v%d", YGp + u, 1024 * u, YGp)
    a("s_lshl_b32 s3, s%d, 4", SI); a("s_add_u32 s3, s3, s%d", SJ); a("s_lshl_b32 s3, s3, 10"); a("v_lshl_add_u32 v%d, v1, 4, s3", VPUB)
    a("v_add_u32 v%d, %d, v3", VLD, L_ST)
    a("v_lshrrev_b32 v60, 4, v1"); a("v_and_b32 v61, 15, v1"); a("v_lshlrev_b32 v60, 10, v60"); a("v_lshl_add_u32 v60, v61, 4, v60")
    a("s_lshl_b32 s3, s%d, 14", SI); a("s_lshl_b32 s19, s%d, 8", PV); a("s_add_u32 s3, s3, s19"); a("v_add_u32 v%d, s3, v60", VPOLL)
    a("v_lshrrev_b32 v60, 5, v1"); a("v_lshl_add_u32 v60, v61, 1, v60"); a("s_add_u32 s3, s19, %d", L_FIN); a("v_lshl_add_u32 v%d, v60, 3, s3", VFIN)
    a("s_lshl_b32 s3, s%d, 7", SJ); a("s_add_u32 s3, s3, %d", FZ); a("v_lshl_add_u32 v%d, v61, 2, s3", VFP)
    a("s_lshl_b32 s19, s%d, 2", SI); a("s_add_u32 s55, s3, s19")
    a("s_lshl_b32 s3, s%d, 12", SI); a("s_lshl_b32 s19, s%d, 7", SJ); a("s_add_u32 s56, s3, s19"); a("s_add_u32 s56, s56, %d", FD1)
    a("s_and_b32 s19, s%d, 1", SX_); a("s_lshl_b32 s19, s19, 11"); a("s_add_u32 s8, s3, s19")
    a("v_lshlrev_b32 v%d, 7, v61", VF16)
    a("v_mov_b32 v%d, s%d", VTG, TAG); a("v_mov_b32 v%d, 0", VZR)
    for u in range(1, 4): a("s_mov_b32 s%d, %d", 56 + u, 4096 * u)
    a("v_lshrrev_b32 v60, 4, v1"); a("v_and_b32 v61, 7, v1"); a("v_xor_b32 v60, v60, v61"); a("v_and_b32 v61, 56, v1"); a("v_or_b32 v60, v60, v61")
    a("v_lshlrev_b32 v%d, 4, v60", VYD); a("v_xor_b32 v%d, 64, v%d", VYD + 1, VYD)
    a("s_mul_i32 s3, s%d, 458752", SI); a("s_lshl_b32 s19, s%d, 12", PV); a("s_add_u32 s3, s3, s19"); a("v_lshl_add_u32 v%d, v1, 4, s3", XP)
    for u in range(1, 4): a("v_add_u32 v%d, %d, v%d", XP + u, 1024 * u, XP)
    a("v_lshrrev_b32 v60, 4, v1"); a("v_lshlrev_b32 v60, 1, v60"); a("v_and_b32 v61, 7, v1"); a("v_xor_b32 v60, v60, v61"); a("v_lshlrev_b32 v60, 4, v60")
    a("v_lshrrev_b32 v61, 3, v1"); a("v_lshl_add_u32 v60, v61, 11, v60")
    if WREP:
        a("v_and_b32 v60, 0x70, v60"); a("v_lshl_add_u32 v60, v61, 7, v60")
        a("s_lshl_b32 s3, s%d, 11", PV); a("s_mul_i32 s19, s%d, 229376", SJD); a("s_add_u32 s3, s3, s19"); a("v_add_u32 v%d, s3, v60", YP)
        a("v_add_u32 v%d, 1024, v%d", YP + 1, YP)
    else:
        a("s_lshl_b32 s3, s%d, 15", PV); a("s_lshl_b32 s19, s%d, 7", SJD); a("s_add_u32 s3, s3, s19"); a("v_add_u32 v%d, s3, v60", YP)
        a("v_add_u32 v%d, %d, v%d", YP + 1, 8 * 2048, YP)
    hop("e")
    a("s_barrier")
    place("b1")
    a("s_waitcnt vmcnt(%d)", 10 + len(vq))
    a("s_barrier")
    place("b2")
    hb("e3")
    for m in range(4):
        a("s_waitcnt vmcnt(%d)", 2 + 2 * (3 - m) + len(vq))
        r = RKr + 6 * m
        a("ds_write_b128 v6, v[%d:%d] offset:%d", r, r + 3, CV_C0 + 32 + 1024 * m)
        for j in range(4): a("v_alignbit_b32 v%d, v%d, v%d, 16", SH + 4 * m + j, r + j + 1, r + j)
        a("ds_write_b128 v6, v[%d:%d] offset:%d", SH + 4 * m, SH + 4 * m + 3, CV_C1 + 32 + 1024 * m)
        if m == 0:
            a("v_lshlrev_b32 v%d, 16, v%d", ZR + 3, r)
            a("s_mov_b64 exec, 1")
            a("ds_write_b128 v6, v[%d:%d] offset:%d", ZR, ZR + 3, CV_C1 + 16)
            a("s_mov_b64 exec, -1")
    a("s_waitcnt lgkmcnt(0)")
    lds_inc(a, 6, 62, 63)
    a("s_waitcnt vmcnt(%d)", len(vq))
    for d in range(8): unpack(a, SLT + 2 * d, SLT + 2 * d + 1, CR + d)
    a("s_mov_b32 s4, %s", fhex(-LOG2E))
    for e in range(16): a("v_mul_f32 v%d, s4, v%d", SLT + 16 + e, SLT + e)
    for e in range(16): a("v_exp_f32 v%d, v%d", SLT + 16 + e, SLT + 16 + e)
    for e in range(16): a("v_add_f32 v%d, 1.0, v%d", SLT + 16 + e, SLT + 16 + e)
    for e in range(16): a("v_rcp_f32 v%d, v%d", SLT + 16 + e, SLT + 16 + e)
    for e in range(16): a("v_mul_f32 v%d, v%d, v%d", SLT + e, SLT + e, SLT + 16 + e)
    for d in range(8): a("v_cvt_pk_bf16_f32 v%d, v%d, v%d", SPK + d, SLT + 2 * d, SLT + 2 * d + 1)
    a("v_and_b32 v60, 15, v1")
    for nt in range(6):
        a("v_cmp_eq_u32 vcc, %d, v60", 4 * (nt & 3) + (nt >> 2)); a("s_nop 1")
        for d in range(8): a("v_cndmask_b32 v%d, 0, v%d, vcc", AM + 8 * nt + d, SPK + d)
    lds_wait(a, 7, 4, 62, 63, 2)
    for pos in ("ur",): place(pos)
    a.st()
    a("s_waitcnt vmcnt(%d)", younger("w"))
    if opt.get("gprio", 1): a("s_setprio 3")
    lds_sync(a, 0, 62, 2)
    for nt in range(6):
        for ks in range(2):
            for hh in range(2): a("ds_read_b64_tr_b16 %s, v%d offset:%d", v(YF + 8 * nt + 4 * ks + 2 * hh, 2), WMR + nt, (32 * ks + 4 * hh) * 768)
    a("s_mul_i32 s3, s%d, 384", PV); a("s_add_u32 s3, s3, s60")
    a("v_lshlrev_b32 v60, 2, v1")
    for n in range(12):
        if n % 2 == 0: a("s_waitcnt lgkmcnt(%d)", min(15, 20 - 2 * n))
        a("v_mfma_f32_16x16x32_bf16 %s, %s, %s, %s", v(GAC, 4), v(AM + 4 * n, 4), v(YF + 4 * n, 4), v(GAC, 4) if n else "0")
    a("s_nop 7")
    a("buffer_store_dword v%d, v60, s[36:39], s3 offen sc1", GAC)
    a("s_mov_b32 exec_hi, 0")
    a("buffer_store_dword v%d, v60, s[36:39], s3 offen offset:256 sc1", GAC + 1)
    a("s_mov_b64 exec, -1")
    a.st()
    finz = a.label("finz"); pb5 = a.label("pb5")
    a("s_cmp_lg_u32 s%d, 3", PV); a("s_cbranch_scc1 %s", pb5)
    a("s_cmp_ge_u32 s%d, 24", SIDX); a("s_cbranch_scc1 %s", pb5)
    a("v_lshlrev_b32 v60, 2, v1")
    a("s_mul_i32 s4, s%d, 768", SX_); a("s_lshl_b32 s3, s%d, 5", SIDX); a("s_add_u32 s4, s4, s3")
    a("s_lshr_b32 s3, s4, 10"); a("s_cmp_eq_u32 s3, 1"); a("s_cselect_b32 s61, 1.0, 0"); a("s_cmp_eq_u32 s3, 4"); a("s_cselect_b32 s61, 1.0, s61")
    a("s_lshl_b32 s5, s4, 2"); a("s_lshl_b32 s4, s4, 1")
    a("v_lshlrev_b32 v63, 3, v1")
    a("s_mov_b64 exec, 0xffff")
    gl = a.newlabel("gl"); go = a.newlabel("go")
    a("s_mov_b32 s11, 0")
    a.put(gl)
    a("s_mov_b32 s6, s5")
    for p in range(16):
        a("buffer_load_dwordx2 %s, v63, s[36:39], s6 offen sc1", pk(64 + 2 * p))
        if p < 15: a("s_add_u32 s6, s6, 24576")
    a("s_add_u32 s11, s11, 1")
    a("s_cmp_gt_u32 s11, %d", SPIN_MAX); a("s_cbranch_scc1 %s", go)
    a("s_waitcnt vmcnt(0)")
    a("v_max3_u32 v61, v64, v66, v68")
    for p in range(3, 15, 2): a("v_max3_u32 v61, v61, v%d, v%d", 64 + 2 * p, 66 + 2 * p)
    a("v_max_u32 v61, v61, v94")
    a("v_cmp_eq_u32 vcc, -1, v61"); a("s_sleep 2"); a("s_cbranch_vccnz %s", gl)
    a.put(go)
    for w in (8, 4, 2, 1):
        for p in range(w): a("v_pk_add_f32 %s, %s, %s", pk(64 + 2 * p), pk(64 + 2 * p), pk(64 + 2 * (p + w)))
    a("v_cvt_pk_bf16_f32 v66, v64, v65"); unpack(a, 64, 65, 66)
    a("v_add_f32 v64, s61, v64"); a("v_add_f32 v65, s61, v65"); a("v_cvt_pk_bf16_f32 v64, v64, v65")
    a("buffer_store_dword v64, v60, s[40:43], s4 offen sc1")
    a("s_mov_b64 exec, -1")
    a.put(pb5)
    if opt.get("gprio", 1) == 1: a("s_setprio 0")
    a("s_waitcnt vmcnt(%d)", younger("q") + 2)
    a("v_add_u32 v7, s7, v3")
    for u in range(4): a("ds_read_b128 v[%d:%d], v7 offset:%d", 144 + 4 * u, 147 + 4 * u, (u >> 1) * QROW + (u & 1) * 1024)
    a("s_waitcnt lgkmcnt(0)")
    for rr in range(2):
        X = 160 + 16 * rr
        for d in range(8): unpack(a, X + 2 * d, X + 2 * d + 1, 144 + 8 * rr + d)
        a("v_pk_add_f32 v[192:193], %s, %s", pk(X), pk(X + 2)); a("v_pk_mul_f32 v[194:195], %s, %s", pk(X), pk(X))
        for e in range(2, 16, 2): a("v_pk_fma_f32 v[194:195], %s, %s, v[194:195]", pk(X + e), pk(X + e))
        for e in range(4, 16, 2): a("v_pk_add_f32 v[192:193], v[192:193], %s", pk(X + e))
        a("v_add_f32 v%d, v192, v193", 196 + rr); a("v_add_f32 v%d, v194, v195", 198 + rr)
    a("s_nop 1")
    a("v_permlane32_swap_b32 v196, v197"); a("v_permlane32_swap_b32 v198, v199")
    a("v_add_f32 v196, v196, v197"); a("v_add_f32 v198, v198, v199")
    a("v_mov_b32 v197, v196"); a("v_mov_b32 v199, v198")
    a("s_nop 1")
    a("v_permlane16_swap_b32 v197, v196"); a("v_permlane16_swap_b32 v199, v198")
    a("v_add_f32 v196, v196, v197"); a("v_add_f32 v198, v198, v199")
    for dpp in ("row_ror:8", "row_ror:4", "quad_perm:[1,0,3,2]", "quad_perm:[2,3,0,1]"):
        a("s_nop 0")
        a("v_add_f32_dpp v196, v196, v196 %s row_mask:0xf bank_mask:0xf", dpp); a("v_add_f32_dpp v198, v198, v198 %s row_mask:0xf bank_mask:0xf", dpp)
    rstd_calc(a, 196, 198, 197, 192, 1.0 / 1024)
    a("v_lshrrev_b32 v7, 5, v1"); a("v_lshlrev_b32 v7, 3, v7"); a("s_lshl_b32 s3, s%d, 4", PV); a("s_add_u32 s3, s3, %d", L_L1S); a("v_add_u32 v7, s3, v7")
    a("ds_write_b64 v7, v[192:193]")
    a("s_waitcnt lgkmcnt(0)")
    lds_inc(a, 1, 62, 63)
    a("s_setprio 0")
    place("ln")
    he("e")
    hop("l")
    hb("l3")
    R_X, R_Y, R_WSP, R_Z2p, R_YB = 20, 24, 28, 32, 36
    a.srd(R_X, P_WS, 4 * MB, WS_H2); a.srd(R_Y, P_WIN, 1024 * 7168); a.srd(R_WSP, P_WSP, 8 * MB); a.srd(R_Z2p, P_WS, 14 * 524288, WS_Z2)
    a.srd(R_YB, P_WS, 4 * MB, WS_YB)
    a("s_lshl_b32 s4, s%d, 12", PV); a("s_lshl_b32 s5, s2, 14"); a("s_add_u32 s5, s5, s4")
    SYS, SK = 6, 63
    a("s_mov_b32 s%d, 0", SXo); a("s_mov_b32 s%d, 3584", SYo); a("s_mov_b32 s%d, %d", SYS, 64 * 7168); a("s_mov_b32 s9, %d", 16384 if H2LIN else 128)
    a.st()
    a("s_barrier")
    for u in range(4):
        a("s_add_u32 m0, s4, %d", 1024 * u); a("s_add_u32 s3, s5, %d", 1024 * u)
        a("buffer_load_dwordx4 v%d, %s, s3 offen sc1 lds", VYD + (u & 1), srdr(R_YB))
    def issue(slot, which="xy"):
        for u in range(4):
            if "x" in which:
                a("s_add_u32 m0, s%d, %d", SLX, slot * 16384 + u * 4096); a("s_nop 0")
                a("buffer_load_dwordx4 v%d, %s, s%d offen sc1 lds", XZ + u, srdr(R_X), SXo)
            if "y" in which:
                a("s_add_u32 m0, s%d, %d", SLY, slot * 16384 + u * 1024); a("s_nop 0")
                a("buffer_load_dwordx4 v%d, %s, s%d offen sc1 lds", YZp + u, srdr(R_Y), SYo)
        if "x" in which: a("s_add_u32 s%d, s%d, s9", SXo, SXo)
        if "y" in which: a("s_add_u32 s%d, s%d, s%d", SYo, SYo, SYS)
    p_spare = a.label("pspare"); p_g3 = a.label("pg3"); ny = a.label("ny")
    a("v_mov_b32 v62, %d", L_CD)
    a("ds_write_b32 v62, v%d", VZR)
    a("s_waitcnt vmcnt(0) lgkmcnt(0)")
    a("s_barrier")
    a("s_barrier")
    a("s_barrier")
    a("s_cmp_ge_u32 s%d, 28", SIDX); a("s_cbranch_scc1 %s", p_spare)
    for s in range(2): issue(s, "y")
    a("s_add_u32 s4, s8, %d", FC1)
    lead_poll(a, PV, 4, 62, lambda: poll(a, VF16, 60, TAG, "s4", n=16))
    a.st()
    issue(0, "x"); issue(1, "x"); issue(2); issue(3)
    PS = 32
    def poll_loads():
        for u in range(4): a("buffer_load_dwordx4 %s, v%d, %s, %s offen sc1", v(PS + 4 * u, 4), VPOLL, srdr(R_SY), "s%d" % (56 + u) if u else "0")
    def poll_check(out):
        a("v_max3_u32 v60, v%d, v%d, v%d", PS + 1, PS + 3, PS + 5); a("v_max3_u32 v60, v60, v%d, v%d", PS + 7, PS + 9)
        a("v_max3_u32 v60, v60, v%d, v%d", PS + 11, PS + 13); a("v_max_u32 v60, v60, v%d", PS + 15)
        a("v_cmp_eq_u32 vcc, -1, v60"); a("s_nop 4")
        a("s_cbranch_vccz %s", out)
    def spin(loads, check):
        ok = a.newlabel("ok"); again = a.newlabel("sp")
        check(ok)
        a("s_mov_b32 s62, 0")
        a.put(again)
        loads()
        a("s_add_u32 s62, s62, 1")
        a("s_cmp_gt_u32 s62, %d", SPIN_MAX); a("s_cbranch_scc1 %s", ok)
        a("s_waitcnt vmcnt(0)")
        check(ok)
        a("s_branch %s", again)
        a.put(ok)
    def fpoll_load(): a("buffer_load_dword v48, v%d, %s, 0 offen sc1", VFP, srdr(R_SY))
    def fpoll_check(out):
        a("v_cmp_ne_u32 vcc, s%d, v48", TAG); a("s_nop 4"); a("s_cbranch_vccz %s", out)
    SLX3, SLY3, SX3, SY3 = 49, 50, 53, 54
    def issue3(slot, which="xy"):
        for u in range(4):
            if "x" in which:
                a("s_add_u32 m0, s%d, %d", SLX3, slot * 16384 + u * 1024); a("s_nop 0")
                a("buffer_load_dwordx4 v%d, %s, s%d offen sc1 lds", XP + u, srdr(R_P3), SX3)
            if u < 2 and "y" in which:
                a("s_add_u32 m0, s%d, %d", SLY3, slot * 8192 + u * 1024); a("s_nop 0")
                a("buffer_load_dwordx4 v%d, %s, s%d offen sc1 lds", YP + u, srdr(R_W), SY3)
        if "x" in which:
            a("s_add_u32 s%d, s%d, 16384", SX3, SX3); a("s_cmp_eq_u32 s%d, %d", SX3, 28 * 16384); a("s_cselect_b32 s%d, 0, s%d", SX3, SX3)
        if "y" in which:
            ys = 8192 if WREP else 64 * 2048
            a("s_add_u32 s%d, s%d, %d", SY3, SY3, ys); a("s_cmp_eq_u32 s%d, %d", SY3, 28 * ys); a("s_cselect_b32 s%d, 0, s%d", SY3, SY3)
    def g3_pre():
        if WREP:
            a("s_lshl_b32 s4, s%d, 7", SX_); a("s_add_u32 s4, s4, %d", GOG)
            poll(a, VZR, 60, TAG, "s4", n=1, sleep=4)
            a.srd(R_W, P_WS, 1792 * 2048, WS_WO)
        else: a.srd(R_W, P_WOUT, 1792 * 2048)
        a.srd(R_P3, P_WS, 16 * 458752, WS_P)
        a("s_lshl_b32 s%d, s%d, 12", SLX3, PV)
        a("s_lshl_b32 s%d, s%d, 11", SLY3, PV); a("s_add_u32 s%d, s%d, %d", SLY3, SLY3, L_Y3)
        a("s_add_u32 s3, s%d, s%d", SI, SJD); a("s_and_b32 s3, s3, %d", opt.get("rot3", 1) - 1); a("s_mul_i32 s3, s3, %d", 28 // opt.get("rot3", 1))
        a("s_lshl_b32 s%d, s3, 14", SX3); a("s_lshl_b32 s%d, s3, %d", SY3, 13 if WREP else 17)
        for s in range(2): issue3(s, "y")
    def ev_pub():
        sk = a.newlabel("np")
        a("s_cmp_lg_u32 s%d, 0", PV); a("s_cbranch_scc1 %s", sk)
        a("ds_read_b128 v[32:35], v%d", VLD); a("ds_read_b128 v[36:39], v%d offset:1024", VLD)
        a("s_waitcnt lgkmcnt(0)")
        a("v_pk_add_f32 v[32:33], v[32:33], v[36:37]"); a("v_pk_add_f32 v[34:35], v[34:35], v[38:39]")
        a("buffer_store_dwordx4 v[32:35], v%d, %s, 0 offen sc1", VPUB, srdr(R_SY))
        a.put(sk)
    def ev_chk():
        a("s_waitcnt vmcnt(%d)", 8 * (ev["chk"] - ev["poll"]))
        spin(poll_loads, poll_check)
        for (d, s) in ((0, 4), (8, 12), (0, 8)):
            for e in (0, 2): a("v_pk_add_f32 %s, %s, %s", pk(PS + d + e), pk(PS + d + e), pk(PS + s + e))
        a("s_nop 1")
        a("v_permlane32_swap_b32 v%d, v%d", PS, PS + 2); a("v_permlane32_swap_b32 v%d, v%d", PS + 1, PS + 3)
        a("v_add_f32 v%d, v%d, v%d", PS, PS, PS + 2); a("v_add_f32 v%d, v%d, v%d", PS + 1, PS + 1, PS + 3)
        a("v_mov_b32 v%d, v%d", PS + 2, PS); a("v_mov_b32 v%d, v%d", PS + 3, PS + 1)
        a("s_nop 1")
        a("v_permlane16_swap_b32 v%d, v%d", PS + 2, PS); a("v_permlane16_swap_b32 v%d, v%d", PS + 3, PS + 1)
        a("v_add_f32 v%d, v%d, v%d", PS, PS, PS + 2); a("v_add_f32 v%d, v%d, v%d", PS + 1, PS + 1, PS + 3)
        rstd_calc(a, PS, PS + 1, PS + 2, PS + 2, 1.0 / 1792)
        a("ds_write_b64 v%d, %s", VFIN, pk(PS + 2))
        a("s_waitcnt lgkmcnt(0)")
    def ev_flag():
        sk = a.newlabel("nf")
        a("s_cmp_lg_u32 s%d, 0", PV); a("s_cbranch_scc1 %s", sk)
        flag_store(a, VTG, VZR, "s55")
        a.put(sk)
    def ev_z1():
        a("s_mov_b32 s%d, 0", SXo); a("s_mov_b32 s%d, 0", SYo)
    def ev_g():
        a("s_waitcnt vmcnt(%d)", 8 * (ev["fchk"] - ev["fpoll"]))
        spin(fpoll_load, fpoll_check)
        a("s_mov_b32 s%d, 0", SXo); a("s_mov_b32 s%d, 0", SYo); a("s_mov_b32 s%d, 16384", SYS); a("s_mov_b32 s9, 128")
        a.srd(R_X, P_WSP, 8 * MB); a.srd(R_Y, P_WS, 14 * 524288, WS_Z2)
        for u in range(4):
            a("v_mov_b32 v%d, v%d", XZ + u, XG + u); a("v_mov_b32 v%d, v%d", YZp + u, YGp + u)
    assert ev["fchk"] == 28
    events = {12: ev_z1, ev["pub"]: ev_pub, ev["poll"]: poll_loads, ev["chk"]: ev_chk, ev["drain"]: ev_flag, ev["fpoll"]: fpoll_load, 28: ev_g}
    a("s_mov_b32 s%d, 0", SK); a("s_mov_b32 s7, %d", sum(1 << k for k in events))
    a("s_waitcnt vmcnt(20)")
    a("s_barrier")
    ptop = a.label("ptop"); ptail = a.label("ptail")
    evl = [a.label("pe%d" % n) for n in range(4)]; evr = [a.label("pr%d" % n) for n in range(4)]
    a.put(ptop)
    for slot in range(4):
        a("s_lshr_b32 s3, s7, s%d", SK) if False else None
        a("s_bitcmp1_b32 s7, 0")
        a("s_waitcnt vmcnt(16)")
        a("s_barrier")
        a("s_cbranch_scc1 %s", evl[slot]); a.put(evr[slot])
        a("s_lshr_b32 s7, s7, 1"); a("s_add_u32 s%d, s%d, 1", SK, SK)
        issue(slot)
    a("s_cmp_lt_u32 s%d, 60", SK); a("s_cbranch_scc1 %s", ptop)
    a("s_branch %s", ptail)
    for slot in range(4):
        a.put(evl[slot])
        ks = sorted(k for k in events if k % 4 == slot)
        for n, k in enumerate(ks):
            nx = a.newlabel("en")
            if n + 1 < len(ks):
                a("s_cmp_lg_u32 s%d, %d", SK, k); a("s_cbranch_scc1 %s", nx)
            events[k]()
            a("s_branch %s", evr[slot])
            a.put(nx)
        if not ks: a("s_branch %s", evr[slot])
    a.put(ptail)
    a("s_waitcnt vmcnt(16)"); a("s_barrier")
    a("s_waitcnt vmcnt(8)"); a("s_barrier")
    a("s_waitcnt vmcnt(0)"); a("s_barrier")
    a("v_mov_b32 v62, %d", L_CD)
    a("ds_write_b32 v62, v%d", VZR)
    a("s_waitcnt lgkmcnt(0)"); a("s_barrier")
    g3_pre()
    a("s_barrier")
    sk = a.newlabel("nf")
    a("s_cmp_lg_u32 s%d, 0", PV); a("s_cbranch_scc1 %s", sk)
    a("v_lshlrev_b32 v62, 11, v1")
    a("s_mov_b64 exec, 3")
    a("buffer_store_dword v%d, v62, %s, s56 offen sc1", VTG, srdr(R_SY))
    a("s_mov_b64 exec, -1")
    a.put(sk)
    a("s_branch %s", p_g3)
    a.put(p_spare)
    spare_stream()
    a("s_sub_u32 s%d, s%d, 4", PV, SW)
    if WREP:
        nw_ = a.newlabel("nw")
        a("s_cmp_lg_u32 s%d, 0", PV); a("s_cbranch_scc1 %s", nw_)
        a("s_mov_b32 s4, %d", CN + 16 * 128); a("s_mov_b32 s5, %d", GOG); a("v_lshlrev_b32 v62, 7, v1")
        arrive(a, 4, 32, 5, 8, VTG, VZR, 62, 63)
        a.put(nw_)
    g3_pre()
    a.put(p_g3)
    g3_final_setup()
    a("s_add_u32 s4, s8, %d", FD1)
    lead_poll(a, PV, L_CD, 62, lambda: poll(a, VF16, 60, TAG, "s4", n=14))
    a.st()
    issue3(0, "x"); issue3(1, "x"); issue3(2); issue3(3)
    a("s_mov_b32 s63, 6")
    a("s_waitcnt vmcnt(16)")
    a("s_barrier")
    lab = a.newlabel("pl")
    a.put(lab)
    for slot in range(4):
        a("s_waitcnt vmcnt(12)"); a("s_barrier")
        issue3(slot)
    a("s_sub_u32 s63, s63, 1"); a("s_cmp_lg_u32 s63, 0"); a("s_cbranch_scc1 %s", lab)
    a("s_waitcnt vmcnt(12)"); a("s_barrier")
    final_loads()
    a("s_waitcnt vmcnt(9)"); a("s_barrier")
    a("s_waitcnt vmcnt(3)"); a("s_barrier")
    a("s_barrier")
    he("l")
    a.put(fin)
    hb("f")
    a("s_waitcnt vmcnt(0) lgkmcnt(0)")
    a("s_barrier")
    B = 48; U = 64; G = 96
    a("v_add_u32 v%d, 65536, v%d", VSR, VSR)
    for rr in range(2): a("ds_read_b128 %s, v%d offset:%d", v(B + 4 * rr, 4), VSR, 8192 * rr)
    for d in range(4): unpack(a, G + 2 * d, G + 2 * d + 1, GBR + d)
    for rr in range(2):
        for d in range(4): unpack(a, U + 16 * rr + 8 + 2 * d, U + 16 * rr + 8 + 2 * d + 1, X1R + 4 * rr + d)
    for rr in range(2):
        a("s_waitcnt lgkmcnt(%d)", 1 - rr)
        for d in range(4): unpack(a, U + 16 * rr + 2 * d, U + 16 * rr + 2 * d + 1, B + 4 * rr + d)
        for d in range(4):
            x = U + 16 * rr + 2 * d
            a("v_pk_fma_f32 %s, %s, %s, %s", pk(x), pk(x), pk(G + 2 * d), pk(x + 8))
        for d in range(4):
            x = U + 16 * rr + 2 * d
            a("v_cvt_pk_bf16_f32 v%d, v%d, v%d", B + 8 + 4 * rr + d, x, x + 1)
        a("buffer_store_dwordx4 %s, v%d, %s, %s offen %s", v(B + 8 + 4 * rr, 4), VO, srdr(R_O), "s9" if rr else "0", opt.get("outflag", ""))
    he("l")
    a.st_flush(16, 17)
    a.put(end)
    return a.text(), 256, LDS_TOTAL
```

```python
import sys
from asmlib import *
import gen_front, gen_gemm
import importlib, os
gen_mega = importlib.import_module(os.environ.get('GM', 'gen_mega6'))
from gen_front import *
NAME = "adaLN_cond__ssm_conv_h3__mixer_gmlp__prompt"
def gen_empty():
    return "", 8, 0
def gen_pref(items, name):
    a = Asm(name)
    end = a.label("end")
    a("s_cmp_ge_u32 s2, 256"); a("s_cbranch_scc1 %s", end)
    a("s_lshl_b32 s3, s2, 12")
    a("v_lshl_add_u32 v1, v0, 4, s3")
    for n, (off, nb) in enumerate(items):
        a("s_load_dwordx2 s[4:5], s[0:1], %d", off)
        a("s_waitcnt lgkmcnt(0)")
        a.srd(8, 4, nb)
        for m in range((nb + (1 << 20) - 1) >> 20):
            a("s_mov_b32 s3, %d", m << 20)
            a("buffer_load_dwordx4 v[4:7], v1, s[8:11], s3 offen")
    a("s_waitcnt vmcnt(0)")
    a.put(end)
    return a.text(), 8, 0
NOTES = """
One persistent launch, one workgroup per CU. Waves 0-3 compute, waves 4-7 move data (LDS-DMA) and run side jobs.
  1  kv = shift_conv(k) * v, written per channel with time reversed          | silu(c) @ w_mod on the matrix pipe, LN1 statistics
  2  long causal convolution as Toeplitz MFMA blocks, four channels per workgroup (ssm_D enters as a diagonal block)
  3  x1 = q + ga * h * y and h2 = LN(x1) * (1 + cb) + sb, eight rows per workgroup
  4  224 workgroups, 128 x 128 tiles: z2 = gelu(h2 w_in), z1 likewise, then w_sp @ LN(z2); the row statistics of z2 and the
     normalised z2 are exchanged while the z1 product runs. The other 32 workgroups bring the weights on chip ahead of use.
  5  out = x1 + gb * ((z1 * g) @ w_out), 128 x 64 tiles on all workgroups
Hand-offs between workgroups: write-through stores, drained, then a flag word holding a tag that is new in every launch
(derived from one workspace word); small records are recognised by a not-yet-written marker set earlier in the same launch.
Every wait for another workgroup is bounded. Generated by a script.
"""
WS_DIAG = 6 * MB
OPT = {}
def stamp(n, pre):
    a = Asm("%s_st%d" % (pre, n))
    sk = a.label("sk")
    a("s_cmp_lg_u32 s2, 0"); a("s_cbranch_scc1 %s", sk)
    a("s_memrealtime s[90:91]")
    a("s_load_dwordx2 s[92:93], s[0:1], %d", A_WS)
    a("s_waitcnt lgkmcnt(0)")
    a.srd(84, 92, 4096, WS_DIAG)
    a("v_mov_b32 v2, s90"); a("v_mov_b32 v3, %d", 4 * n)
    a("buffer_store_dword v2, v3, s[84:87], 0 offen")
    a("s_waitcnt vmcnt(0)")
    a.put(sk)
    return a.text() + "\n"
def gen_spin(n):
    a = Asm("kz")
    end = a.label("end"); lp = a.label("lp")
    a("s_cmp_lg_u32 s2, 0"); a("s_cbranch_scc1 %s", end)
    a("s_load_dwordx2 s[92:93], s[0:1], %d", A_WS)
    a("s_waitcnt lgkmcnt(0)")
    a.srd(84, 92, 4096, WS_DIAG)
    a("v_mov_b32 v3, %d", 4 * n)
    a("buffer_load_dword v2, v3, s[84:87], 0 offen")
    a("s_waitcnt vmcnt(0)")
    a("v_readfirstlane_b32 s10, v2")
    a("s_mov_b32 s11, 0")
    a.put(lp)
    a("s_memrealtime s[90:91]")
    a("s_add_u32 s11, s11, 1")
    a("s_waitcnt lgkmcnt(0)")
    a("s_sub_u32 s12, s90, s10")
    a("s_cmp_gt_u32 s11, 200000"); a("s_cbranch_scc1 %s", end)
    a("s_cmp_lt_u32 s12, 20000"); a("s_cbranch_scc1 %s", lp)
    a.put(end)
    return a.text(), 8, 0
def diagm(n, wg=0, wave=0):
    DIAG[0] = True
    ks = kernels()
    body, vg, lds = gen_spin(n)
    body = body.replace("s_add_u32 s84, s92, %d" % WS_DIAG, "s_add_u32 s84, s92, %d" % ((64 << 20) + (wg * 8 + wave) * 256))
    body = body.replace("s_cmp_lt_u32 s12, 20000", "s_cmp_lt_u32 s12, %d" % (100 * OPT.get("t0", 200)))
    ks["kz"] = ((body, vg, lds), 64)
    return build(["mega", "kz"], ks)
def diag(order, n):
    ks = kernels()
    for i, k in enumerate(order):
        (body, vg, lds), blk = ks[k]
        ks[k] = ((stamp(i, k) + body, vg, lds), blk)
    ks["kz"] = (gen_spin(n), 64)
    if n == len(order):
        (body, vg, lds), blk = ks["kz"]
        ks["kz"] = ((stamp(n, "kz") + body, vg, lds), blk)
    return build(list(order) + ["kz"], ks)
def kernels():
    return {"k1": (gen_front.gen_k1(), 256), "k2": (gen_front.gen_k2(), 320), "k3": (gen_front.gen_k3(), 256),
            "kg": (gen_gemm.gen_kg(), 512), "k6": (gen_gemm.gen_k6(), 512),
            "ke": (gen_empty(), 256), "mega": (gen_mega.gen_mega(opt=OPT), 512),
            "pa": (gen_pref([(A_K, 4 * MB), (A_V, 4 * MB), (A_WMOD, 12 * MB), (A_SSMK, 4 * MB), (A_Q, 4 * MB), (A_WIN, 7 * MB), (A_WSP, 8 * MB), (A_WOUT, 1792 * 2048)], "pa"), 256),
            "pw": (gen_pref([(A_WIN, 7 * MB), (A_WSP, 8 * MB), (A_WOUT, 1792 * 2048)], "pw"), 256),
            }
def build(order=("k1", "k2", "k3", "kg", "k6"), ks=None):
    ks = ks or kernels()
    hdr = open("cdna_kernels/%s.s.ref" % NAME).read().split("\n")
    head = [l for l in hdr if l.startswith(";") and "@launch" not in l]
    head = head[:head.index([l for l in head if "d_ws" in l][0]) + 1]
    out = list(head)
    if list(order) == ["mega"] and not OPT.get("aslist"):
        (body, vg, lds), blk = ks["mega"]
        out.append("; @launch grid=(256,1,1) block=(%d,1,1) lds=%d" % (blk, lds))
        out += ["; " + l if l else ";" for l in NOTES.strip("\n").split("\n")]
        out.append('.amdgcn_target "amdgcn-amd-amdhsa--gfx950"')
        out.append(kernel_text(NAME + "_kernel", body, vg))
        return "\n".join(out) + "\n"
    for n in order:
        (body, vg, lds), blk = ks[n]
        out.append("; @launch kernel=%s_kernel grid=(256,1,1) block=(%d,1,1) lds=%d" % (n, blk, lds))
    out.append('.amdgcn_target "amdgcn-amd-amdhsa--gfx950"')
    for n in dict.fromkeys(order):
        (body, vg, lds), blk = ks[n]
        out.append(kernel_text(n + "_kernel", body, vg))
    return "\n".join(out) + "\n"
if __name__ == "__main__":
    for x in [x for x in sys.argv if "=" in x]:
        k_, v_ = x.split("="); OPT[k_] = int(v_) if v_.lstrip("-").isdigit() else v_; sys.argv.remove(x)
    if "--diag" in sys.argv:
        DIAG[0] = True; sys.argv.remove("--diag")
    path = sys.argv[1] if len(sys.argv) > 1 else "cdna_kernels/%s.s" % NAME
    order = sys.argv[2].split(",") if len(sys.argv) > 2 else ("k1", "k2", "k3", "kg", "k6")
    if "pt" in OPT: open(path, "w").write(diagm(OPT["pt"], OPT.get("wg", 0), OPT.get("wave", 0)))
    elif len(sys.argv) > 3: open(path, "w").write(diag(order, int(sys.argv[3])))
    else: open(path, "w").write(build(order))
    print("wrote", path)
```
